```python
import torch

def _softmax(x, axis=-1):
    return torch.softmax(x, dim=axis)
def _gelu(x):
    return torch.nn.functional.gelu(x, approximate="tanh")
def _silu(x):
    return torch.nn.functional.silu(x)
def _sigmoid(x):
    return torch.sigmoid(x)
def _layernorm(x, axis=-1, eps=1e-5):
    m = x.mean(dim=axis, keepdim=True)
    v = x.var(dim=axis, keepdim=True, unbiased=False)
    return (x - m) / torch.sqrt(v + eps)
def _scatter_add(tgt, idx, src, axis=0):
    return tgt.clone().index_add_(axis, idx, src)
def _segment_sum(src, seg, n):
    out = torch.zeros((n,) + src.shape[1:], dtype=src.dtype)
    return out.index_add_(0, seg, src)
def _pad(x, pw):
    flat = tuple(v for pair in reversed(pw) for v in pair)
    return torch.nn.functional.pad(x, flat)

kernel_name = 'standalone__channel_attn_cbam__vision'

def setup_inputs():

    _w = (lambda a: (lambda t: t.to(torch.bfloat16) if t.is_floating_point() else t)(torch.as_tensor(a)))
    H = W = 512
    C = 192
    r = max(C // 4, 1)
    return {
        "x": _w((lambda *s: torch.randn(*s, dtype=torch.bfloat16) * 0.2)(1, H, W, C) + (lambda *s: torch.randn(*s, dtype=torch.bfloat16) * 0.2)(1, 1, 1, C) * 2.0),
        "w1": _w((lambda *s: torch.randn(*s, dtype=torch.bfloat16) * 0.2)(C, r)),
        "w2": _w((lambda *s: torch.randn(*s, dtype=torch.bfloat16) * 0.2)(r, C)),
    }

def reference(x, w1, w2):
    B, H, W, C = x.shape
    xf = x.reshape(B, H * W, C)
    gap = torch.mean(xf, 1)
    gmp = torch.amax(xf, 1)
    h_a = gap @ w1
    h_a = h_a * (lambda x, dt: x.to(dt))(h_a > 0, h_a.dtype)
    h_m = gmp @ w1
    h_m = h_m * (lambda x, dt: x.to(dt))(h_m > 0, h_m.dtype)
    scale = _sigmoid(h_a @ w2 + h_m @ w2)
    return x * scale[:, None, None, :]
```

```python
import sys, json

HEADER = """; CBAM channel attention, x kept in registers across a grid-wide reduction (single pass over HBM)
"""

def gen(pat="contig", ld="nt", st="", nrep=8, repstride=4096, stamps=0, sleepA=0, sleepF=0, pat_st=None):
    NW = 12
    NL = 32
    VD = 40
    XB = 100663296
    L_W1, L_W2 = 0, 18432
    L_RED = 36864
    L_G = L_RED + 6144
    L_H = L_G + 768
    L_SC = L_H + 1536
    L_SP = L_SC + 768
    L_END = L_SP + 3 * 6144
    W_A = 0
    W_F = 96 * 4096
    W_ST = 1 << 20
    SPIN = 1 << 20
    step = NW * 1024
    L = []
    A = L.append
    def stamp(i):
        if stamps:
            A(f"s_memrealtime s[{60+2*i}:{61+2*i}]")
    A(HEADER.rstrip())
    A(f"; @launch grid=(256,1,1) block=({NW*64},1,1) lds={L_END}")
    A('.amdgcn_target "amdgcn-amd-amdhsa--gfx950"')
    A(".text")
    A(".globl standalone__channel_attn_cbam__vision_kernel")
    A(".p2align 8")
    A(".type standalone__channel_attn_cbam__vision_kernel,@function")
    A("standalone__channel_attn_cbam__vision_kernel:")
    stamp(0)
    A("s_load_dwordx4 s[4:7], s[0:1], 0")
    A("s_load_dwordx4 s[24:27], s[0:1], 16")
    A("s_load_dwordx4 s[28:31], s[0:1], 32")
    A("s_cmp_ge_u32 s2, 256")
    A("s_cbranch_scc1 L_end")
    A("v_lshrrev_b32 v2, 6, v0")
    A("v_and_b32 v3, 63, v0")
    A("v_readfirstlane_b32 s36, v2")
    A("v_lshrrev_b32 v4, 3, v3")
    A("v_mul_u32_u24 v4, 384, v4")
    A("v_and_b32 v5, 7, v3")
    A("v_lshl_add_u32 v1, v5, 4, v4")
    A("s_mul_i32 s37, s36, 43691")
    A("s_lshr_b32 s37, s37, 17")
    A("s_mul_i32 s38, s37, 3")
    A("s_sub_u32 s38, s36, s38")
    A("s_mul_i32 s39, s37, 3072")
    A("s_lshl_b32 s40, s38, 7")
    A("s_add_u32 s39, s39, s40")
    def base_stride(p):
        if p == "contig":
            return 393216, step
        if p == "inter":
            return step, 256 * step
        raise ValueError
    b, s = base_stride(pat)
    A(f"s_mul_i32 s41, s2, {b}")
    A("s_add_u32 s41, s41, s39")
    A("s_mov_b32 s3, s41")
    A("s_mov_b32 s10, %d" % XB); A("s_mov_b32 s11, 0x20000")
    A("s_mov_b32 s14, %d" % XB); A("s_mov_b32 s15, 0x20000")
    A("s_mov_b32 s18, 256"); A("s_mov_b32 s19, 0x20000")
    A("s_mov_b32 s22, 402653184"); A("s_mov_b32 s23, 0x20000")
    A("s_mov_b32 s34, 18432"); A("s_mov_b32 s35, 0x20000")
    A("s_waitcnt lgkmcnt(0)")
    A("s_mov_b32 s8, s4"); A("s_mov_b32 s9, s5")
    A("s_mov_b32 s12, s26"); A("s_mov_b32 s13, s27")
    A("s_mov_b32 s16, s28"); A("s_mov_b32 s17, s29")
    A("s_mov_b32 s20, s30"); A("s_mov_b32 s21, s31")
    A("s_cmp_lg_u32 s36, 7")
    A("s_cbranch_scc1 L_noclear")
    A("v_mov_b32 v4, -1"); A("v_mov_b32 v5, -1"); A("v_mov_b32 v6, -1"); A("v_mov_b32 v7, -1")
    A("v_lshlrev_b32 v8, 12, v3")
    A("s_lshl_b32 s42, s2, 4")
    A(f"buffer_store_dwordx4 v[4:7], v8, s[20:23], s42 offen sc1")
    A("s_add_u32 s42, s42, %d" % (64 * 4096))
    A("s_mov_b32 exec_hi, 0")
    A(f"buffer_store_dwordx4 v[4:7], v8, s[20:23], s42 offen sc1")
    A("s_cmp_ge_u32 s2, 96")
    A("s_cbranch_scc1 L_noclearF")
    A(f"s_mov_b32 exec_lo, {(1 << nrep) - 1}")
    A(f"v_mul_u32_u24 v8, {repstride}, v3")
    A("s_lshl_b32 s42, s2, 3")
    A(f"s_add_u32 s42, s42, {W_F}")
    A(f"buffer_store_dwordx2 v[4:5], v8, s[20:23], s42 offen sc1")
    A("L_noclearF:")
    A("s_mov_b64 exec, 1")
    A("v_mov_b32 v9, 0")
    A("v_mov_b32 v10, 1")
    A("s_waitcnt vmcnt(0)")
    A("buffer_atomic_add v10, v9, s[16:19], 0 offen sc1")
    A("s_mov_b64 exec, -1")
    A("L_noclear:")
    ops = []
    for j in range(NL):
        r = VD + 4 * j
        A(f"buffer_load_dwordx4 v[{r}:{r+3}], v1, s[8:11], s3 offen {ld}".rstrip())
        ops.append(("d", j))
        if j != NL - 1:
            A(f"s_add_u32 s3, s3, {s}")
        if j == 3:
            A("s_cmp_ge_u32 s36, 6")
            A("s_cselect_b32 s32, s24, s6")
            A("s_cselect_b32 s33, s25, s7")
            A("s_cselect_b32 s42, 18432, 0")
            A("s_mul_i32 s43, s36, 3072")
            A("s_sub_u32 s42, s43, s42")
            A("s_mov_b32 m0, s43")
            A("v_lshlrev_b32 v2, 4, v3")
            for k in range(3):
                A(f"buffer_load_dwordx4 v2, s[32:35], s42 offen offset:{k*1024} lds")
                ops.append(("w", k))
    A("v_mov_b32 v34, 0")
    A("s_and_b32 s42, s36, 14")
    A("s_cmp_lg_u32 s42, 2")
    A("s_cbranch_scc1 L_nocnt")
    A("buffer_load_dword v34, v34, s[16:19], 0 offen sc1")
    A("L_nocnt:")
    stamp(1)
    S, M, T = 2, 10, 18
    for i in range(8):
        A(f"v_mov_b32 v{S+i}, 0")
        A(f"v_mov_b32 v{M+i}, 0xff800000")
    A("s_mov_b32 s44, 0xffff0000")
    def after(j):
        idx = ops.index(("d", j))
        return len(ops) - 1 - idx
    groups = [(j, j + 1) for j in range(0, NL - 2, 2)] + [(NL - 2,), (NL - 1,)]
    for g in groups:
        A(f"s_waitcnt vmcnt({after(g[-1])})")
        for gi, j in enumerate(g):
            for i in range(4):
                d = VD + 4 * j + i
                t = T + 8 * gi + 2 * i
                A(f"v_lshlrev_b32 v{t}, 16, v{d}")
                A(f"v_and_b32 v{t+1}, s44, v{d}")
        for gi, j in enumerate(g):
            for i in range(4):
                t = T + 8 * gi + 2 * i
                A(f"v_pk_add_f32 v[{S+2*i}:{S+2*i+1}], v[{S+2*i}:{S+2*i+1}], v[{t}:{t+1}]")
        for i in range(8):
            if len(g) == 2:
                A(f"v_max3_f32 v{M+i}, v{M+i}, v{T+i}, v{T+8+i}")
            else:
                A(f"v_max_f32 v{M+i}, v{M+i}, v{T+i}")
    stamp(2)
    A("v_and_b32 v35, 63, v0")
    A("s_nop 0")
    for i in range(4):
        A(f"v_permlane32_swap_b32 v{S+i}, v{S+i+4}")
    for i in range(4):
        A(f"v_permlane32_swap_b32 v{M+i}, v{M+i+4}")
    for i in range(4):
        A(f"v_add_f32 v{S+i}, v{S+i}, v{S+i+4}")
    for i in range(4):
        A(f"v_max_f32 v{M+i}, v{M+i}, v{M+i+4}")
    A("v_and_b32 v36, 7, v35")
    A("v_lshrrev_b32 v37, 3, v35")
    for i in range(2):
        A(f"v_permlane16_swap_b32 v{S+i}, v{S+i+2}")
    for i in range(2):
        A(f"v_permlane16_swap_b32 v{M+i}, v{M+i+2}")
    for i in range(2):
        A(f"v_add_f32 v{S+i}, v{S+i}, v{S+i+2}")
    for i in range(2):
        A(f"v_max_f32 v{M+i}, v{M+i}, v{M+i+2}")
    A("v_lshl_add_u32 v36, v36, 3, v37")
    A("s_mul_i32 s42, s37, 768")
    A("s_lshl_b32 s43, s38, 8")
    A("s_add_u32 s42, s42, s43")
    A(f"s_add_u32 s42, s42, {L_RED}")
    A(f"v_add_f32_dpp v{T}, v{S}, v{S} row_ror:8 row_mask:0xf bank_mask:0x3")
    A(f"v_max_f32_dpp v{T+1}, v{M}, v{M} row_ror:8 row_mask:0xf bank_mask:0x3")
    A("v_lshl_add_u32 v36, v36, 2, s42")
    A(f"v_add_f32_dpp v{T}, v{S+1}, v{S+1} row_ror:8 row_mask:0xf bank_mask:0xc")
    A(f"v_max_f32_dpp v{T+1}, v{M+1}, v{M+1} row_ror:8 row_mask:0xf bank_mask:0xc")
    A(f"ds_write2st64_b32 v36, v{T}, v{T+1} offset0:0 offset1:12")
    A("s_waitcnt lgkmcnt(0)")
    A("s_barrier")
    stamp(3)
    A("s_cmp_ge_u32 s36, 2")
    A("s_cbranch_scc1 L_role2")
    A("s_mul_i32 s42, s36, 3072")
    A(f"s_add_u32 s42, s42, {L_RED}")
    A("s_mov_b32 exec_hi, 0xffff")
    A("v_lshl_add_u32 v36, v35, 4, s42")
    for q in range(4):
        A(f"ds_read_b128 v[{T+4*q}:{T+4*q+3}], v36 offset:{q*768}")
    A("s_mul_i32 s42, s36, %d" % (48 * 4096))
    A("s_lshl_b32 s43, s2, 4")
    A("s_add_u32 s42, s42, s43")
    A("v_lshlrev_b32 v37, 12, v35")
    A("s_cmp_eq_u32 s36, 1")
    A("s_cbranch_scc1 L_pubmax")
    A("s_waitcnt lgkmcnt(2)")
    A(f"v_pk_add_f32 v[{T}:{T+1}], v[{T}:{T+1}], v[{T+4}:{T+5}]")
    A(f"v_pk_add_f32 v[{T+2}:{T+3}], v[{T+2}:{T+3}], v[{T+6}:{T+7}]")
    A("s_waitcnt lgkmcnt(0)")
    A(f"v_pk_add_f32 v[{T+8}:{T+9}], v[{T+8}:{T+9}], v[{T+12}:{T+13}]")
    A(f"v_pk_add_f32 v[{T+10}:{T+11}], v[{T+10}:{T+11}], v[{T+14}:{T+15}]")
    A(f"v_pk_add_f32 v[{T}:{T+1}], v[{T}:{T+1}], v[{T+8}:{T+9}]")
    A(f"v_pk_add_f32 v[{T+2}:{T+3}], v[{T+2}:{T+3}], v[{T+10}:{T+11}]")
    A("s_branch L_pub")
    A("L_pubmax:")
    A("s_waitcnt lgkmcnt(0)")
    for i in range(4):
        A(f"v_max3_f32 v{T+i}, v{T+i}, v{T+4+i}, v{T+8+i}")
    for i in range(4):
        A(f"v_max_f32 v{T+i}, v{T+i}, v{T+12+i}")
    A("L_pub:")
    A(f"buffer_store_dwordx4 v[{T}:{T+3}], v37, s[20:23], s42 offen sc1")
    A("s_mov_b64 exec, -1")
    A("s_branch L_common")
    A("L_role2:")
    A("s_cmp_ge_u32 s36, 4")
    A("s_cbranch_scc1 L_role4")
    A("s_mov_b32 s45, 0")
    A("L_cnt:")
    A("v_readfirstlane_b32 s42, v34")
    A("s_cmp_ge_u32 s42, 256")
    A("s_cbranch_scc1 L_cntok")
    A("v_mov_b32 v34, 0")
    A("buffer_load_dword v34, v34, s[16:19], 0 offen sc1")
    A("s_add_u32 s45, s45, 1")
    A("s_waitcnt vmcnt(0)")
    A(f"s_cmp_lt_u32 s45, {SPIN}")
    A("s_cbranch_scc1 L_cnt")
    A("L_cntok:")
    A("s_cmp_eq_u32 s36, 3")
    A("s_cbranch_scc1 L_pollF")
    A("s_cmp_ge_u32 s2, 96")
    A("s_cbranch_scc1 L_common")
    A("s_lshl_b32 s42, s2, 12")
    A("v_lshlrev_b32 v36, 4, v35")
    A("L_pollA:")
    for k in range(4):
        A(f"buffer_load_dwordx4 v[{T+4*k}:{T+4*k+3}], v36, s[20:23], s42 offen offset:{k*1024} sc1")
    A("s_add_u32 s45, s45, 1")
    A("s_waitcnt vmcnt(3)")
    A(f"v_max3_u32 v2, v{T}, v{T+1}, v{T+2}")
    A("s_waitcnt vmcnt(2)")
    A(f"v_max3_u32 v2, v2, v{T+3}, v{T+4}")
    A(f"v_max3_u32 v2, v2, v{T+5}, v{T+6}")
    A("s_waitcnt vmcnt(1)")
    A(f"v_max3_u32 v2, v2, v{T+7}, v{T+8}")
    A(f"v_max3_u32 v2, v2, v{T+9}, v{T+10}")
    A("s_waitcnt vmcnt(0)")
    A(f"v_max3_u32 v3, v{T+11}, v{T+12}, v{T+13}")
    A(f"v_max3_u32 v2, v2, v{T+14}, v{T+15}")
    A("v_max_u32 v2, v2, v3")
    A("v_cmp_eq_u32 vcc, -1, v2")
    A("s_cbranch_vccz L_gotA")
    if sleepA:
        A(f"s_sleep {sleepA}")
    A(f"s_cmp_lt_u32 s45, {SPIN}")
    A("s_cbranch_scc1 L_pollA")
    A("L_gotA:")
    A("s_cmp_ge_u32 s2, 48")
    A("s_cbranch_scc1 L_redmax")
    def xreduce(op):
        A("s_nop 1")
        A(f"v_permlane32_swap_b32 v{T}, v{T+2}")
        A(f"v_permlane32_swap_b32 v{T+1}, v{T+3}")
        A(f"v_{op}_f32 v2, v{T}, v{T+2}")
        A(f"v_{op}_f32 v3, v{T+1}, v{T+3}")
        A(f"v_{op}_f32 v4, v{T}, v{T+2}")
        A(f"v_{op}_f32 v5, v{T+1}, v{T+3}")
        A("s_nop 0")
        A("v_permlane16_swap_b32 v2, v4")
        A("v_permlane16_swap_b32 v3, v5")
        A(f"v_{op}_f32 v2, v2, v4")
        A(f"v_{op}_f32 v3, v3, v5")
        for r in (8, 4, 2, 1):
            A("s_nop 0")
            A(f"v_{op}_f32_dpp v2, v2, v2 row_ror:{r} row_mask:0xf bank_mask:0xf")
            A(f"v_{op}_f32_dpp v3, v3, v3 row_ror:{r} row_mask:0xf bank_mask:0xf")
    A(f"v_pk_add_f32 v[{T}:{T+1}], v[{T}:{T+1}], v[{T+4}:{T+5}]")
    A(f"v_pk_add_f32 v[{T+2}:{T+3}], v[{T+2}:{T+3}], v[{T+6}:{T+7}]")
    A(f"v_pk_add_f32 v[{T+8}:{T+9}], v[{T+8}:{T+9}], v[{T+12}:{T+13}]")
    A(f"v_pk_add_f32 v[{T+10}:{T+11}], v[{T+10}:{T+11}], v[{T+14}:{T+15}]")
    A(f"v_pk_add_f32 v[{T}:{T+1}], v[{T}:{T+1}], v[{T+8}:{T+9}]")
    A(f"v_pk_add_f32 v[{T+2}:{T+3}], v[{T+2}:{T+3}], v[{T+10}:{T+11}]")
    xreduce("add")
    A("v_mul_f32 v2, 0x36800000, v2")
    A("v_mul_f32 v3, 0x36800000, v3")
    A("s_branch L_pubF")
    A("L_redmax:")
    for i in range(4):
        A(f"v_max3_f32 v{T+i}, v{T+i}, v{T+4+i}, v{T+8+i}")
    for i in range(4):
        A(f"v_max_f32 v{T+i}, v{T+i}, v{T+12+i}")
    xreduce("max")
    A("L_pubF:")
    A("v_and_b32 v4, 31, v35")
    A(f"v_mul_u32_u24 v4, {repstride}, v4")
    A("v_lshrrev_b32 v5, 5, v35")
    A("v_cvt_pk_bf16_f32 v2, v2, v3")
    A("v_lshl_add_u32 v4, v5, 2, v4")
    A("v_min_u32 v2, -2, v2")
    A("s_lshl_b32 s42, s2, 3")
    A(f"s_add_u32 s42, s42, {W_F}")
    m = (1 << nrep) - 1
    A(f"s_mov_b32 exec_lo, {m}")
    A(f"s_mov_b32 exec_hi, {m}")
    A("buffer_store_dword v2, v4, s[20:23], s42 offen sc1")
    A("s_mov_b64 exec, -1")
    A("s_branch L_common")
    A("L_pollF:")
    A(f"s_and_b32 s42, s2, {nrep-1}")
    A(f"s_mul_i32 s42, s42, {repstride}")
    A(f"s_add_u32 s42, s42, {W_F}")
    A("v_lshlrev_b32 v36, 4, v35")
    A("s_mov_b32 exec_hi, 0xffff")
    A("L_pollF2:")
    A(f"buffer_load_dwordx4 v[{T}:{T+3}], v36, s[20:23], s42 offen sc1")
    A("s_add_u32 s45, s45, 1")
    A("s_waitcnt vmcnt(0)")
    A(f"v_max3_u32 v2, v{T}, v{T+1}, v{T+2}")
    A(f"v_max_u32 v2, v2, v{T+3}")
    A("v_cmp_eq_u32 vcc, -1, v2")
    A("s_cbranch_vccz L_gotF")
    if sleepF:
        A(f"s_sleep {sleepF}")
    A(f"s_cmp_lt_u32 s45, {SPIN}")
    A("s_cbranch_scc1 L_pollF2")
    A("L_gotF:")
    A(f"ds_write_b128 v36, v[{T}:{T+3}] offset:{L_G}")
    A("s_mov_b64 exec, -1")
    A("s_branch L_common")
    A("L_role4:")
    A("s_cmp_ge_u32 s36, 7")
    A("s_cbranch_scc1 L_common")
    A("s_sub_u32 s46, s36, 4")
    A("s_mul_i32 s42, s46, 6144")
    A(f"s_add_u32 s42, s42, {L_SP}")
    A("v_lshl_add_u32 v38, v35, 4, s42")
    VS = VD + 4 * (NL - 6)
    for k in range(6):
        A(f"ds_write_b128 v38, v[{VS+4*k}:{VS+4*k+3}] offset:{k*1024}")
    A("v_lshrrev_b32 v2, 4, v35")
    A("v_lshlrev_b32 v2, 3, v2")
    A("v_bfe_u32 v3, v35, 2, 2")
    A("v_add_u32 v2, v2, v3")
    A("v_mul_u32_u24 v2, 96, v2")
    A("v_and_b32 v3, 3, v35")
    A("v_lshl_add_u32 v2, v3, 3, v2")
    A("s_lshl_b32 s42, s46, 5")
    A("v_add_u32 v2, s42, v2")
    A("s_waitcnt lgkmcnt(0)")
    for k in range(6):
        A(f"ds_read_b64_tr_b16 v[{VS+4*k}:{VS+4*k+1}], v2 offset:{L_W1 + k*3072}")
        A(f"ds_read_b64_tr_b16 v[{VS+4*k+2}:{VS+4*k+3}], v2 offset:{L_W1 + k*3072 + 384}")
    A("v_and_b32 v2, 1, v35")
    A("v_mul_u32_u24 v2, 384, v2")
    A("v_lshrrev_b32 v3, 4, v35")
    A("v_lshl_add_u32 v39, v3, 4, v2")
    A("L_common:")
    A("v_lshrrev_b32 v2, 2, v35")
    A("v_mul_u32_u24 v2, 384, v2")
    A("v_and_b32 v3, 3, v35")
    A("v_lshl_add_u32 v2, v3, 3, v2")
    A("s_lshl_b32 s42, s36, 5")
    A("v_add_u32 v2, s42, v2")
    W2F = 28
    for k in range(3):
        A(f"ds_read_b64_tr_b16 v[{W2F+2*k}:{W2F+2*k+1}], v2 offset:{L_W2 + k*6144}")
    A("v_lshlrev_b32 v37, 3, v35")
    A("s_waitcnt lgkmcnt(0)")
    A("s_barrier")
    stamp(4)
    A("s_sub_u32 s42, s36, 4")
    A("s_cmp_ge_u32 s42, 3")
    A("s_cbranch_scc1 L_l2")
    BF = 4
    for k in range(6):
        A(f"ds_read_b128 v[{BF+4*k}:{BF+4*k+3}], v39 offset:{L_G + k*64}")
    A("s_lshl_b32 s42, s42, 9")
    A("v_add_u32 v36, s42, v37")
    for k in range(6):
        A(f"s_waitcnt lgkmcnt({5-k})")
        c = "0" if k == 0 else f"v[{BF}:{BF+3}]"
        if k == 0:
            A(f"v_mfma_f32_16x16x32_bf16 v[0:3], v[{VS}:{VS+3}], v[{BF}:{BF+3}], 0")
        else:
            A(f"v_mfma_f32_16x16x32_bf16 v[0:3], v[{VS+4*k}:{VS+4*k+3}], v[{BF+4*k}:{BF+4*k+3}], v[0:3]")
    A("s_nop 7")
    A("v_cvt_pk_bf16_f32 v4, v0, v1")
    A("v_cvt_pk_bf16_f32 v5, v2, v3")
    A("v_lshlrev_b32 v0, 16, v4"); A("v_and_b32 v1, s44, v4")
    A("v_lshlrev_b32 v2, 16, v5"); A("v_and_b32 v3, s44, v5")
    for i in range(4):
        A(f"v_cmp_lt_f32 s[{48+2*i}:{49+2*i}], 0, v{i}")
    for i in range(4):
        A(f"v_cndmask_b32 v{6+i}, 0, 1.0, s[{48+2*i}:{49+2*i}]")
    A("v_pk_mul_f32 v[0:1], v[0:1], v[6:7]")
    A("v_pk_mul_f32 v[2:3], v[2:3], v[8:9]")
    A("v_cvt_pk_bf16_f32 v4, v0, v1")
    A("v_cvt_pk_bf16_f32 v5, v2, v3")
    A(f"ds_write_b64 v36, v[4:5] offset:{L_H}")
    A("v_lshrrev_b32 v6, 3, v35")
    A("v_mul_u32_u24 v6, 384, v6")
    A("v_and_b32 v7, 7, v35")
    A("v_lshl_add_u32 v1, v7, 4, v6")
    A("s_waitcnt lgkmcnt(0)")
    A("L_l2:")
    A("s_barrier")
    for k in range(3):
        A(f"ds_read_b64 v[{4+2*k}:{5+2*k}], v37 offset:{L_H + k*512}")
    A("v_bfe_u32 v2, v35, 1, 2")
    A("v_cmp_eq_u32 s[48:49], 1, v2")
    A("v_cmp_eq_u32 s[50:51], 2, v2")
    A("v_cmp_eq_u32 s[52:53], 3, v2")
    A("v_lshrrev_b32 v3, 4, v35")
    A("v_lshl_add_u32 v2, v3, 2, v2")
    A("s_lshl_b32 s42, s36, 6")
    A("v_lshl_add_u32 v36, v2, 2, s42")
    for k in range(3):
        A(f"s_waitcnt lgkmcnt({2-k})")
        c = "0" if k == 0 else "v[12:15]"
        A(f"v_mfma_f32_16x16x16_bf16 v[12:15], v[{W2F+2*k}:{W2F+2*k+1}], v[{4+2*k}:{5+2*k}], {c}")
    A("v_and_b32 v2, 7, v35")
    A("s_lshl_b32 s42, s38, 8")
    A("v_lshl_add_u32 v39, v2, 5, s42")
    A("s_mov_b32 s43, 0xbfb8aa3b")
    A("s_nop 4")
    A("v_cndmask_b32 v12, v12, v13, s[48:49]")
    A("v_cndmask_b32 v12, v12, v14, s[50:51]")
    A("v_cndmask_b32 v12, v12, v15, s[52:53]")
    A("v_cvt_pk_bf16_f32 v12, v12, v12")
    A("v_and_b32 v12, s44, v12")
    A("s_nop 1")
    A("v_add_f32_dpp v12, v12, v12 quad_perm:[1,0,3,2] row_mask:0xf bank_mask:0xf")
    A("v_cvt_pk_bf16_f32 v12, v12, v12")
    A("v_and_b32 v12, s44, v12")
    A("v_mul_f32 v12, s43, v12")
    A("v_exp_f32 v12, v12")
    A("s_nop 0")
    A("v_add_f32 v12, 1.0, v12")
    A("v_rcp_f32 v12, v12")
    A("s_nop 0")
    A("v_cvt_pk_bf16_f32 v12, v12, v12")
    A("v_and_b32 v12, s44, v12")
    A(f"ds_write_b32 v36, v12 offset:{L_SC}")
    A("s_waitcnt lgkmcnt(0)")
    A("s_barrier")
    SCR = 2
    A(f"ds_read_b128 v[{SCR}:{SCR+3}], v39 offset:{L_SC}")
    A(f"ds_read_b128 v[{SCR+4}:{SCR+7}], v39 offset:{L_SC+16}")
    stamp(5)
    A("s_mov_b32 s3, s41")
    T2 = 10
    first = True
    for j in range(NL):
        tb = T2 + 8 * (j % 3)
        for i in range(4):
            d = VD + 4 * j + i
            A(f"v_lshlrev_b32 v{tb+2*i}, 16, v{d}")
            A(f"v_and_b32 v{tb+2*i+1}, s44, v{d}")
        if first:
            A("s_waitcnt lgkmcnt(0)")
            first = False
        for i in range(4):
            A(f"v_pk_mul_f32 v[{tb+2*i}:{tb+2*i+1}], v[{tb+2*i}:{tb+2*i+1}], v[{SCR+2*i}:{SCR+2*i+1}]")
        for i in range(4):
            d = VD + 4 * j + i
            A(f"v_cvt_pk_bf16_f32 v{d}, v{tb+2*i}, v{tb+2*i+1}")
        r = VD + 4 * j
        A(f"buffer_store_dwordx4 v[{r}:{r+3}], v1, s[12:15], s3 offen {st}".rstrip())
        if j != NL - 1:
            A(f"s_add_u32 s3, s3, {s}")
        if j == 0:
            A("s_sub_u32 s42, s36, 4")
            A("s_cmp_ge_u32 s42, 3")
            A("s_cbranch_scc1 L_noreload")
            for k in range(6):
                A(f"ds_read_b128 v[{VS+4*k}:{VS+4*k+3}], v38 offset:{k*1024}")
            A("L_noreload:")
        if j == NL - 7:
            A("s_waitcnt lgkmcnt(0)")
    if stamps:
        stamp(6)
        A("s_waitcnt vmcnt(0)")
        stamp(7)
        A("s_waitcnt lgkmcnt(0)")
        A("s_mov_b64 exec, 1")
        A("s_mul_i32 s3, s2, 12")
        A("s_add_u32 s3, s3, s36")
        A("s_lshl_b32 s3, s3, 5")
        A(f"s_add_u32 s3, s3, {W_ST}")
        A("v_mov_b32 v1, 0")
        for i in range(8):
            A(f"v_mov_b32 v{4+i}, s{60+2*i}")
        A("buffer_store_dwordx4 v[4:7], v1, s[20:23], s3 offen")
        A("buffer_store_dwordx4 v[8:11], v1, s[20:23], s3 offen offset:16")
    A("L_end:")
    A("s_endpgm")
    A('.section .rodata,"a"')
    A(".p2align 6")
    A(".amdhsa_kernel standalone__channel_attn_cbam__vision_kernel")
    A("  .amdhsa_next_free_vgpr 168")
    A("  .amdhsa_next_free_sgpr 96")
    A("  .amdhsa_accum_offset 168")
    A("  .amdhsa_group_segment_fixed_size 0")
    A("  .amdhsa_kernarg_size 48")
    A("  .amdhsa_user_sgpr_count 2")
    A("  .amdhsa_user_sgpr_kernarg_segment_ptr 1")
    A("  .amdhsa_system_sgpr_workgroup_id_x 1")
    A("  .amdhsa_float_denorm_mode_32 3")
    A(".end_amdhsa_kernel")
    out = []
    for line in L:
        if line.startswith(("s_", "v_", "ds_", "buffer_")):
            out.append("    " + line)
        else:
            out.append(line)
    return "\n".join(out) + "\n"

if __name__ == "__main__":
    cfg = json.loads(sys.argv[1]) if len(sys.argv) > 1 else {}
    sys.stdout.write(gen(**cfg))
```

```python
import sys, json

HEADER = """; CBAM channel attention, x kept in registers across a grid-wide reduction (single pass over HBM)
"""

def gen(pat="contig", ld="nt", st="", nrep=8, repstride=4096, stamps=0, sleepA=0, sleepF=0, pat_st=None, diag=None):
    if diag: stamps = 1
    NW = 12
    NL = 32
    VD = 40
    XB = 100663296
    L_W1, L_W2 = 0, 18432
    L_RED = 36864
    L_G = L_RED + 6144
    L_H = L_G + 768
    L_SC = L_H + 1536
    L_SP = L_SC + 768
    L_END = L_SP + 3 * 6144
    W_A = 0
    W_F = 96 * 4096
    W_ST = 1 << 20
    SPIN = 1 << 20
    step = NW * 1024
    L = []
    A = L.append
    def stamp(i):
        if stamps:
            A(f"s_memrealtime s[{60+2*i}:{61+2*i}]")
    A(HEADER.rstrip())
    A(f"; @launch grid=(256,1,1) block=({NW*64},1,1) lds={L_END}")
    A('.amdgcn_target "amdgcn-amd-amdhsa--gfx950"')
    A(".text")
    A(".globl standalone__channel_attn_cbam__vision_kernel")
    A(".p2align 8")
    A(".type standalone__channel_attn_cbam__vision_kernel,@function")
    A("standalone__channel_attn_cbam__vision_kernel:")
    stamp(0)
    A("s_load_dwordx4 s[4:7], s[0:1], 0")
    A("s_load_dwordx4 s[24:27], s[0:1], 16")
    A("s_load_dwordx4 s[28:31], s[0:1], 32")
    A("s_cmp_ge_u32 s2, 256")
    A("s_cbranch_scc1 L_end")
    A("v_lshrrev_b32 v2, 6, v0")
    A("v_and_b32 v3, 63, v0")
    A("v_readfirstlane_b32 s36, v2")
    A("v_lshrrev_b32 v4, 3, v3")
    A("v_mul_u32_u24 v4, 384, v4")
    A("v_and_b32 v5, 7, v3")
    A("v_lshl_add_u32 v1, v5, 4, v4")
    A("s_mul_i32 s37, s36, 43691")
    A("s_lshr_b32 s37, s37, 17")
    A("s_mul_i32 s38, s37, 3")
    A("s_sub_u32 s38, s36, s38")
    A("s_mul_i32 s39, s37, 3072")
    A("s_lshl_b32 s40, s38, 7")
    A("s_add_u32 s39, s39, s40")
    def base_stride(p):
        if p == "contig":
            return 393216, step
        if p == "inter":
            return step, 256 * step
        raise ValueError
    b, s = base_stride(pat)
    A(f"s_mul_i32 s41, s2, {b}")
    A("s_add_u32 s41, s41, s39")
    A("s_mov_b32 s3, s41")
    A("s_mov_b32 s10, %d" % XB); A("s_mov_b32 s11, 0x20000")
    A("s_mov_b32 s14, %d" % XB); A("s_mov_b32 s15, 0x20000")
    A("s_mov_b32 s18, 256"); A("s_mov_b32 s19, 0x20000")
    A("s_mov_b32 s22, 402653184"); A("s_mov_b32 s23, 0x20000")
    A("s_mov_b32 s34, 18432"); A("s_mov_b32 s35, 0x20000")
    A("s_waitcnt lgkmcnt(0)")
    A("s_mov_b32 s8, s4"); A("s_mov_b32 s9, s5")
    A("s_mov_b32 s12, s26"); A("s_mov_b32 s13, s27")
    A("s_mov_b32 s16, s28"); A("s_mov_b32 s17, s29")
    A("s_mov_b32 s20, s30"); A("s_mov_b32 s21, s31")
    A("s_cmp_lg_u32 s36, 7")
    A("s_cbranch_scc1 L_noclear")
    A("v_mov_b32 v4, -1"); A("v_mov_b32 v5, -1"); A("v_mov_b32 v6, -1"); A("v_mov_b32 v7, -1")
    A("v_lshlrev_b32 v8, 12, v3")
    A("s_lshl_b32 s42, s2, 4")
    A(f"buffer_store_dwordx4 v[4:7], v8, s[20:23], s42 offen sc1")
    A("s_add_u32 s42, s42, %d" % (64 * 4096))
    A("s_mov_b32 exec_hi, 0")
    A(f"buffer_store_dwordx4 v[4:7], v8, s[20:23], s42 offen sc1")
    A("s_cmp_ge_u32 s2, 96")
    A("s_cbranch_scc1 L_noclearF")
    A(f"s_mov_b32 exec_lo, {(1 << nrep) - 1}")
    A(f"v_mul_u32_u24 v8, {repstride}, v3")
    A("s_lshl_b32 s42, s2, 3")
    A(f"s_add_u32 s42, s42, {W_F}")
    A(f"buffer_store_dwordx2 v[4:5], v8, s[20:23], s42 offen sc1")
    A("L_noclearF:")
    A("s_mov_b64 exec, 1")
    A("v_mov_b32 v9, 0")
    A("v_mov_b32 v10, 1")
    A("s_waitcnt vmcnt(0)")
    A("buffer_atomic_add v10, v9, s[16:19], 0 offen sc1")
    A("s_mov_b64 exec, -1")
    A("L_noclear:")
    ops = []
    for j in range(NL):
        r = VD + 4 * j
        A(f"buffer_load_dwordx4 v[{r}:{r+3}], v1, s[8:11], s3 offen {ld}".rstrip())
        ops.append(("d", j))
        if j != NL - 1:
            A(f"s_add_u32 s3, s3, {s}")
        if j == 3:
            A("s_cmp_ge_u32 s36, 6")
            A("s_cselect_b32 s32, s24, s6")
            A("s_cselect_b32 s33, s25, s7")
            A("s_cselect_b32 s42, 18432, 0")
            A("s_mul_i32 s43, s36, 3072")
            A("s_sub_u32 s42, s43, s42")
            A("s_mov_b32 m0, s43")
            A("v_lshlrev_b32 v2, 4, v3")
            for k in range(3):
                A(f"buffer_load_dwordx4 v2, s[32:35], s42 offen offset:{k*1024} lds")
                ops.append(("w", k))
    A("v_mov_b32 v34, 0")
    A("s_and_b32 s42, s36, 14")
    A("s_cmp_lg_u32 s42, 2")
    A("s_cbranch_scc1 L_nocnt")
    A("buffer_load_dword v34, v34, s[16:19], 0 offen sc1")
    A("L_nocnt:")
    stamp(1)
    S, M, T = 2, 10, 18
    for i in range(8):
        A(f"v_mov_b32 v{S+i}, 0")
        A(f"v_mov_b32 v{M+i}, 0xff800000")
    A("s_mov_b32 s44, 0xffff0000")
    def after(j):
        idx = ops.index(("d", j))
        return len(ops) - 1 - idx
    groups = [(j, j + 1) for j in range(0, NL - 2, 2)] + [(NL - 2,), (NL - 1,)]
    for g in groups:
        A(f"s_waitcnt vmcnt({after(g[-1])})")
        for gi, j in enumerate(g):
            for i in range(4):
                d = VD + 4 * j + i
                t = T + 8 * gi + 2 * i
                A(f"v_lshlrev_b32 v{t}, 16, v{d}")
                A(f"v_and_b32 v{t+1}, s44, v{d}")
        for gi, j in enumerate(g):
            for i in range(4):
                t = T + 8 * gi + 2 * i
                A(f"v_pk_add_f32 v[{S+2*i}:{S+2*i+1}], v[{S+2*i}:{S+2*i+1}], v[{t}:{t+1}]")
        for i in range(8):
            if len(g) == 2:
                A(f"v_max3_f32 v{M+i}, v{M+i}, v{T+i}, v{T+8+i}")
            else:
                A(f"v_max_f32 v{M+i}, v{M+i}, v{T+i}")
    stamp(2)
    A("v_and_b32 v35, 63, v0")
    A("s_nop 0")
    for i in range(4):
        A(f"v_permlane32_swap_b32 v{S+i}, v{S+i+4}")
    for i in range(4):
        A(f"v_permlane32_swap_b32 v{M+i}, v{M+i+4}")
    for i in range(4):
        A(f"v_add_f32 v{S+i}, v{S+i}, v{S+i+4}")
    for i in range(4):
        A(f"v_max_f32 v{M+i}, v{M+i}, v{M+i+4}")
    A("v_and_b32 v36, 7, v35")
    A("v_lshrrev_b32 v37, 3, v35")
    for i in range(2):
        A(f"v_permlane16_swap_b32 v{S+i}, v{S+i+2}")
    for i in range(2):
        A(f"v_permlane16_swap_b32 v{M+i}, v{M+i+2}")
    for i in range(2):
        A(f"v_add_f32 v{S+i}, v{S+i}, v{S+i+2}")
    for i in range(2):
        A(f"v_max_f32 v{M+i}, v{M+i}, v{M+i+2}")
    A("v_lshl_add_u32 v36, v36, 3, v37")
    A("s_mul_i32 s42, s37, 768")
    A("s_lshl_b32 s43, s38, 8")
    A("s_add_u32 s42, s42, s43")
    A(f"s_add_u32 s42, s42, {L_RED}")
    A(f"v_add_f32_dpp v{T}, v{S}, v{S} row_ror:8 row_mask:0xf bank_mask:0x3")
    A(f"v_max_f32_dpp v{T+1}, v{M}, v{M} row_ror:8 row_mask:0xf bank_mask:0x3")
    A("v_lshl_add_u32 v36, v36, 2, s42")
    A(f"v_add_f32_dpp v{T}, v{S+1}, v{S+1} row_ror:8 row_mask:0xf bank_mask:0xc")
    A(f"v_max_f32_dpp v{T+1}, v{M+1}, v{M+1} row_ror:8 row_mask:0xf bank_mask:0xc")
    A(f"ds_write2st64_b32 v36, v{T}, v{T+1} offset0:0 offset1:12")
    A("s_waitcnt lgkmcnt(0)")
    A("s_barrier")
    stamp(3)
    A("s_cmp_ge_u32 s36, 2")
    A("s_cbranch_scc1 L_role2")
    A("s_mul_i32 s42, s36, 3072")
    A(f"s_add_u32 s42, s42, {L_RED}")
    A("s_mov_b32 exec_hi, 0xffff")
    A("v_lshl_add_u32 v36, v35, 4, s42")
    for q in range(4):
        A(f"ds_read_b128 v[{T+4*q}:{T+4*q+3}], v36 offset:{q*768}")
    A("s_mul_i32 s42, s36, %d" % (48 * 4096))
    A("s_lshl_b32 s43, s2, 4")
    A("s_add_u32 s42, s42, s43")
    A("v_lshlrev_b32 v37, 12, v35")
    A("s_cmp_eq_u32 s36, 1")
    A("s_cbranch_scc1 L_pubmax")
    A("s_waitcnt lgkmcnt(2)")
    A(f"v_pk_add_f32 v[{T}:{T+1}], v[{T}:{T+1}], v[{T+4}:{T+5}]")
    A(f"v_pk_add_f32 v[{T+2}:{T+3}], v[{T+2}:{T+3}], v[{T+6}:{T+7}]")
    A("s_waitcnt lgkmcnt(0)")
    A(f"v_pk_add_f32 v[{T+8}:{T+9}], v[{T+8}:{T+9}], v[{T+12}:{T+13}]")
    A(f"v_pk_add_f32 v[{T+10}:{T+11}], v[{T+10}:{T+11}], v[{T+14}:{T+15}]")
    A(f"v_pk_add_f32 v[{T}:{T+1}], v[{T}:{T+1}], v[{T+8}:{T+9}]")
    A(f"v_pk_add_f32 v[{T+2}:{T+3}], v[{T+2}:{T+3}], v[{T+10}:{T+11}]")
    A("s_branch L_pub")
    A("L_pubmax:")
    A("s_waitcnt lgkmcnt(0)")
    for i in range(4):
        A(f"v_max3_f32 v{T+i}, v{T+i}, v{T+4+i}, v{T+8+i}")
    for i in range(4):
        A(f"v_max_f32 v{T+i}, v{T+i}, v{T+12+i}")
    A("L_pub:")
    A(f"buffer_store_dwordx4 v[{T}:{T+3}], v37, s[20:23], s42 offen sc1")
    A("s_mov_b64 exec, -1")
    A("s_branch L_common")
    A("L_role2:")
    A("s_cmp_ge_u32 s36, 4")
    A("s_cbranch_scc1 L_role4")
    A("s_mov_b32 s45, 0")
    A("L_cnt:")
    A("v_readfirstlane_b32 s42, v34")
    A("s_cmp_ge_u32 s42, 256")
    A("s_cbranch_scc1 L_cntok")
    A("v_mov_b32 v34, 0")
    A("buffer_load_dword v34, v34, s[16:19], 0 offen sc1")
    A("s_add_u32 s45, s45, 1")
    A("s_waitcnt vmcnt(0)")
    A(f"s_cmp_lt_u32 s45, {SPIN}")
    A("s_cbranch_scc1 L_cnt")
    A("L_cntok:")
    A("s_cmp_eq_u32 s36, 3")
    A("s_cbranch_scc1 L_pollF")
    A("s_cmp_ge_u32 s2, 96")
    A("s_cbranch_scc1 L_common")
    A("s_lshl_b32 s42, s2, 12")
    A("v_lshlrev_b32 v36, 4, v35")
    A("L_pollA:")
    for k in range(4):
        A(f"buffer_load_dwordx4 v[{T+4*k}:{T+4*k+3}], v36, s[20:23], s42 offen offset:{k*1024} sc1")
    A("s_add_u32 s45, s45, 1")
    A("s_waitcnt vmcnt(3)")
    A(f"v_max3_u32 v2, v{T}, v{T+1}, v{T+2}")
    A("s_waitcnt vmcnt(2)")
    A(f"v_max3_u32 v2, v2, v{T+3}, v{T+4}")
    A(f"v_max3_u32 v2, v2, v{T+5}, v{T+6}")
    A("s_waitcnt vmcnt(1)")
    A(f"v_max3_u32 v2, v2, v{T+7}, v{T+8}")
    A(f"v_max3_u32 v2, v2, v{T+9}, v{T+10}")
    A("s_waitcnt vmcnt(0)")
    A(f"v_max3_u32 v3, v{T+11}, v{T+12}, v{T+13}")
    A(f"v_max3_u32 v2, v2, v{T+14}, v{T+15}")
    A("v_max_u32 v2, v2, v3")
    A("v_cmp_eq_u32 vcc, -1, v2")
    A("s_cbranch_vccz L_gotA")
    if sleepA:
        A(f"s_sleep {sleepA}")
    A(f"s_cmp_lt_u32 s45, {SPIN}")
    A("s_cbranch_scc1 L_pollA")
    A("L_gotA:")
    A("s_cmp_ge_u32 s2, 48")
    A("s_cbranch_scc1 L_redmax")
    def xreduce(op):
        A("s_nop 1")
        A(f"v_permlane32_swap_b32 v{T}, v{T+2}")
        A(f"v_permlane32_swap_b32 v{T+1}, v{T+3}")
        A(f"v_{op}_f32 v2, v{T}, v{T+2}")
        A(f"v_{op}_f32 v3, v{T+1}, v{T+3}")
        A(f"v_{op}_f32 v4, v{T}, v{T+2}")
        A(f"v_{op}_f32 v5, v{T+1}, v{T+3}")
        A("s_nop 0")
        A("v_permlane16_swap_b32 v2, v4")
        A("v_permlane16_swap_b32 v3, v5")
        A(f"v_{op}_f32 v2, v2, v4")
        A(f"v_{op}_f32 v3, v3, v5")
        for r in (8, 4, 2, 1):
            A("s_nop 0")
            A(f"v_{op}_f32_dpp v2, v2, v2 row_ror:{r} row_mask:0xf bank_mask:0xf")
            A(f"v_{op}_f32_dpp v3, v3, v3 row_ror:{r} row_mask:0xf bank_mask:0xf")
    A(f"v_pk_add_f32 v[{T}:{T+1}], v[{T}:{T+1}], v[{T+4}:{T+5}]")
    A(f"v_pk_add_f32 v[{T+2}:{T+3}], v[{T+2}:{T+3}], v[{T+6}:{T+7}]")
    A(f"v_pk_add_f32 v[{T+8}:{T+9}], v[{T+8}:{T+9}], v[{T+12}:{T+13}]")
    A(f"v_pk_add_f32 v[{T+10}:{T+11}], v[{T+10}:{T+11}], v[{T+14}:{T+15}]")
    A(f"v_pk_add_f32 v[{T}:{T+1}], v[{T}:{T+1}], v[{T+8}:{T+9}]")
    A(f"v_pk_add_f32 v[{T+2}:{T+3}], v[{T+2}:{T+3}], v[{T+10}:{T+11}]")
    xreduce("add")
    A("v_mul_f32 v2, 0x36800000, v2")
    A("v_mul_f32 v3, 0x36800000, v3")
    A("s_branch L_pubF")
    A("L_redmax:")
    for i in range(4):
        A(f"v_max3_f32 v{T+i}, v{T+i}, v{T+4+i}, v{T+8+i}")
    for i in range(4):
        A(f"v_max_f32 v{T+i}, v{T+i}, v{T+12+i}")
    xreduce("max")
    A("L_pubF:")
    A("v_and_b32 v4, 31, v35")
    A(f"v_mul_u32_u24 v4, {repstride}, v4")
    A("v_lshrrev_b32 v5, 5, v35")
    A("v_cvt_pk_bf16_f32 v2, v2, v3")
    A("v_lshl_add_u32 v4, v5, 2, v4")
    A("v_min_u32 v2, -2, v2")
    A("s_lshl_b32 s42, s2, 3")
    A(f"s_add_u32 s42, s42, {W_F}")
    m = (1 << nrep) - 1
    A(f"s_mov_b32 exec_lo, {m}")
    A(f"s_mov_b32 exec_hi, {m}")
    A("buffer_store_dword v2, v4, s[20:23], s42 offen sc1")
    A("s_mov_b64 exec, -1")
    A("s_branch L_common")
    A("L_pollF:")
    A(f"s_and_b32 s42, s2, {nrep-1}")
    A(f"s_mul_i32 s42, s42, {repstride}")
    A(f"s_add_u32 s42, s42, {W_F}")
    A("v_lshlrev_b32 v36, 4, v35")
    A("s_mov_b32 exec_hi, 0xffff")
    A("L_pollF2:")
    A(f"buffer_load_dwordx4 v[{T}:{T+3}], v36, s[20:23], s42 offen sc1")
    A("s_add_u32 s45, s45, 1")
    A("s_waitcnt vmcnt(0)")
    A(f"v_max3_u32 v2, v{T}, v{T+1}, v{T+2}")
    A(f"v_max_u32 v2, v2, v{T+3}")
    A("v_cmp_eq_u32 vcc, -1, v2")
    A("s_cbranch_vccz L_gotF")
    if sleepF:
        A(f"s_sleep {sleepF}")
    A(f"s_cmp_lt_u32 s45, {SPIN}")
    A("s_cbranch_scc1 L_pollF2")
    A("L_gotF:")
    A(f"ds_write_b128 v36, v[{T}:{T+3}] offset:{L_G}")
    A("s_mov_b64 exec, -1")
    A("s_branch L_common")
    A("L_role4:")
    A("s_cmp_ge_u32 s36, 7")
    A("s_cbranch_scc1 L_common")
    A("s_sub_u32 s46, s36, 4")
    A("s_mul_i32 s42, s46, 6144")
    A(f"s_add_u32 s42, s42, {L_SP}")
    A("v_lshl_add_u32 v38, v35, 4, s42")
    VS = VD + 4 * (NL - 6)
    for k in range(6):
        A(f"ds_write_b128 v38, v[{VS+4*k}:{VS+4*k+3}] offset:{k*1024}")
    A("v_lshrrev_b32 v2, 4, v35")
    A("v_lshlrev_b32 v2, 3, v2")
    A("v_bfe_u32 v3, v35, 2, 2")
    A("v_add_u32 v2, v2, v3")
    A("v_mul_u32_u24 v2, 96, v2")
    A("v_and_b32 v3, 3, v35")
    A("v_lshl_add_u32 v2, v3, 3, v2")
    A("s_lshl_b32 s42, s46, 5")
    A("v_add_u32 v2, s42, v2")
    A("s_waitcnt lgkmcnt(0)")
    for k in range(6):
        A(f"ds_read_b64_tr_b16 v[{VS+4*k}:{VS+4*k+1}], v2 offset:{L_W1 + k*3072}")
        A(f"ds_read_b64_tr_b16 v[{VS+4*k+2}:{VS+4*k+3}], v2 offset:{L_W1 + k*3072 + 384}")
    A("v_and_b32 v2, 1, v35")
    A("v_mul_u32_u24 v2, 384, v2")
    A("v_lshrrev_b32 v3, 4, v35")
    A("v_lshl_add_u32 v39, v3, 4, v2")
    A("L_common:")
    A("v_lshrrev_b32 v2, 2, v35")
    A("v_mul_u32_u24 v2, 384, v2")
    A("v_and_b32 v3, 3, v35")
    A("v_lshl_add_u32 v2, v3, 3, v2")
    A("s_lshl_b32 s42, s36, 5")
    A("v_add_u32 v2, s42, v2")
    W2F = 28
    for k in range(3):
        A(f"ds_read_b64_tr_b16 v[{W2F+2*k}:{W2F+2*k+1}], v2 offset:{L_W2 + k*6144}")
    A("v_lshlrev_b32 v37, 3, v35")
    A("s_waitcnt lgkmcnt(0)")
    A("s_barrier")
    stamp(4)
    A("s_sub_u32 s42, s36, 4")
    A("s_cmp_ge_u32 s42, 3")
    A("s_cbranch_scc1 L_l2")
    BF = 4
    for k in range(6):
        A(f"ds_read_b128 v[{BF+4*k}:{BF+4*k+3}], v39 offset:{L_G + k*64}")
    A("s_lshl_b32 s42, s42, 9")
    A("v_add_u32 v36, s42, v37")
    for k in range(6):
        A(f"s_waitcnt lgkmcnt({5-k})")
        c = "0" if k == 0 else f"v[{BF}:{BF+3}]"
        if k == 0:
            A(f"v_mfma_f32_16x16x32_bf16 v[0:3], v[{VS}:{VS+3}], v[{BF}:{BF+3}], 0")
        else:
            A(f"v_mfma_f32_16x16x32_bf16 v[0:3], v[{VS+4*k}:{VS+4*k+3}], v[{BF+4*k}:{BF+4*k+3}], v[0:3]")
    A("s_nop 7")
    A("v_cvt_pk_bf16_f32 v4, v0, v1")
    A("v_cvt_pk_bf16_f32 v5, v2, v3")
    A("v_lshlrev_b32 v0, 16, v4"); A("v_and_b32 v1, s44, v4")
    A("v_lshlrev_b32 v2, 16, v5"); A("v_and_b32 v3, s44, v5")
    for i in range(4):
        A(f"v_cmp_lt_f32 s[{48+2*i}:{49+2*i}], 0, v{i}")
    for i in range(4):
        A(f"v_cndmask_b32 v{6+i}, 0, 1.0, s[{48+2*i}:{49+2*i}]")
    A("v_pk_mul_f32 v[0:1], v[0:1], v[6:7]")
    A("v_pk_mul_f32 v[2:3], v[2:3], v[8:9]")
    A("v_cvt_pk_bf16_f32 v4, v0, v1")
    A("v_cvt_pk_bf16_f32 v5, v2, v3")
    A(f"ds_write_b64 v36, v[4:5] offset:{L_H}")
    A("v_lshrrev_b32 v6, 3, v35")
    A("v_mul_u32_u24 v6, 384, v6")
    A("v_and_b32 v7, 7, v35")
    A("v_lshl_add_u32 v1, v7, 4, v6")
    A("s_waitcnt lgkmcnt(0)")
    A("L_l2:")
    A("s_barrier")
    for k in range(3):
        A(f"ds_read_b64 v[{4+2*k}:{5+2*k}], v37 offset:{L_H + k*512}")
    A("v_bfe_u32 v2, v35, 1, 2")
    A("v_cmp_eq_u32 s[48:49], 1, v2")
    A("v_cmp_eq_u32 s[50:51], 2, v2")
    A("v_cmp_eq_u32 s[52:53], 3, v2")
    A("v_lshrrev_b32 v3, 4, v35")
    A("v_lshl_add_u32 v2, v3, 2, v2")
    A("s_lshl_b32 s42, s36, 6")
    A("v_lshl_add_u32 v36, v2, 2, s42")
    for k in range(3):
        A(f"s_waitcnt lgkmcnt({2-k})")
        c = "0" if k == 0 else "v[12:15]"
        A(f"v_mfma_f32_16x16x16_bf16 v[12:15], v[{W2F+2*k}:{W2F+2*k+1}], v[{4+2*k}:{5+2*k}], {c}")
    A("v_and_b32 v2, 7, v35")
    A("s_lshl_b32 s42, s38, 8")
    A("v_lshl_add_u32 v39, v2, 5, s42")
    A("s_mov_b32 s43, 0xbfb8aa3b")
    A("s_nop 4")
    A("v_cndmask_b32 v12, v12, v13, s[48:49]")
    A("v_cndmask_b32 v12, v12, v14, s[50:51]")
    A("v_cndmask_b32 v12, v12, v15, s[52:53]")
    A("v_cvt_pk_bf16_f32 v12, v12, v12")
    A("v_and_b32 v12, s44, v12")
    A("s_nop 1")
    A("v_add_f32_dpp v12, v12, v12 quad_perm:[1,0,3,2] row_mask:0xf bank_mask:0xf")
    A("v_cvt_pk_bf16_f32 v12, v12, v12")
    A("v_and_b32 v12, s44, v12")
    A("v_mul_f32 v12, s43, v12")
    A("v_exp_f32 v12, v12")
    A("s_nop 0")
    A("v_add_f32 v12, 1.0, v12")
    A("v_rcp_f32 v12, v12")
    A("s_nop 0")
    A("v_cvt_pk_bf16_f32 v12, v12, v12")
    A("v_and_b32 v12, s44, v12")
    A(f"ds_write_b32 v36, v12 offset:{L_SC}")
    A("s_waitcnt lgkmcnt(0)")
    A("s_barrier")
    SCR = 2
    A(f"ds_read_b128 v[{SCR}:{SCR+3}], v39 offset:{L_SC}")
    A(f"ds_read_b128 v[{SCR+4}:{SCR+7}], v39 offset:{L_SC+16}")
    stamp(5)
    A("s_mov_b32 s3, s41")
    T2 = 10
    first = True
    for j in range(NL):
        tb = T2 + 8 * (j % 3)
        for i in range(4):
            d = VD + 4 * j + i
            A(f"v_lshlrev_b32 v{tb+2*i}, 16, v{d}")
            A(f"v_and_b32 v{tb+2*i+1}, s44, v{d}")
        if first:
            A("s_waitcnt lgkmcnt(0)")
            first = False
        for i in range(4):
            A(f"v_pk_mul_f32 v[{tb+2*i}:{tb+2*i+1}], v[{tb+2*i}:{tb+2*i+1}], v[{SCR+2*i}:{SCR+2*i+1}]")
        for i in range(4):
            d = VD + 4 * j + i
            A(f"v_cvt_pk_bf16_f32 v{d}, v{tb+2*i}, v{tb+2*i+1}")
        r = VD + 4 * j
        A(f"buffer_store_dwordx4 v[{r}:{r+3}], v1, s[12:15], s3 offen {st}".rstrip())
        if j != NL - 1:
            A(f"s_add_u32 s3, s3, {s}")
        if j == 0:
            A("s_sub_u32 s42, s36, 4")
            A("s_cmp_ge_u32 s42, 3")
            A("s_cbranch_scc1 L_noreload")
            for k in range(6):
                A(f"ds_read_b128 v[{VS+4*k}:{VS+4*k+3}], v38 offset:{k*1024}")
            A("L_noreload:")
        if j == NL - 7:
            A("s_waitcnt lgkmcnt(0)")
    if stamps:
        stamp(6)
        A("s_waitcnt vmcnt(0)")
        stamp(7)
        A("s_waitcnt lgkmcnt(0)")
        A("s_mov_b64 exec, 1")
        if diag:
            idx, mul, base = diag[:3]
            dwg = diag[3] if len(diag) > 3 else 0
            A("s_barrier")
            A("s_cmp_lg_u32 s36, 0")
            A("s_cbranch_scc1 L_end")
            A("v_mov_b32 v9, 4")
            A("v_mov_b32 v10, 1")
            A("buffer_atomic_add v10, v9, s[16:19], 0 offen sc1")
            A(f"s_cmp_lg_u32 s2, {dwg}")
            A("s_cbranch_scc1 L_end")
            A("s_mov_b32 s45, 0")
            A("L_dg1:")
            A("buffer_load_dword v10, v9, s[16:19], 0 offen sc1")
            A("s_add_u32 s45, s45, 1")
            A("s_waitcnt vmcnt(0)")
            A("v_readfirstlane_b32 s42, v10")
            A(f"s_cmp_ge_u32 s45, {SPIN}")
            A("s_cbranch_scc1 L_dg2")
            A("s_cmp_lt_u32 s42, 256")
            A("s_cbranch_scc1 L_dg1")
            A("L_dg2:")
            A("s_memrealtime s[76:77]")
            A("s_waitcnt lgkmcnt(0)")
            A(f"s_sub_u32 s42, s{60+2*idx}, s60")
            A(f"s_mul_i32 s42, s42, {mul}")
            A(f"s_add_u32 s42, s42, {base}")
            A("s_min_u32 s42, s42, 200000")
            A("L_dg3:")
            A("s_memrealtime s[78:79]")
            A("s_waitcnt lgkmcnt(0)")
            A("s_sub_u32 s43, s78, s60")
            A("s_cmp_lt_u32 s43, s42")
            A("s_cbranch_scc1 L_dg3")
            A("s_branch L_end")
        A("s_mul_i32 s3, s2, 12")
        A("s_add_u32 s3, s3, s36")
        A("s_lshl_b32 s3, s3, 5")
        A(f"s_add_u32 s3, s3, {W_ST}")
        A("v_mov_b32 v1, 0")
        for i in range(8):
            A(f"v_mov_b32 v{4+i}, s{60+2*i}")
        A("buffer_store_dwordx4 v[4:7], v1, s[20:23], s3 offen")
        A("buffer_store_dwordx4 v[8:11], v1, s[20:23], s3 offen offset:16")
    A("L_end:")
    A("s_endpgm")
    A('.section .rodata,"a"')
    A(".p2align 6")
    A(".amdhsa_kernel standalone__channel_attn_cbam__vision_kernel")
    A("  .amdhsa_next_free_vgpr 168")
    A("  .amdhsa_next_free_sgpr 96")
    A("  .amdhsa_accum_offset 168")
    A("  .amdhsa_group_segment_fixed_size 0")
    A("  .amdhsa_kernarg_size 48")
    A("  .amdhsa_user_sgpr_count 2")
    A("  .amdhsa_user_sgpr_kernarg_segment_ptr 1")
    A("  .amdhsa_system_sgpr_workgroup_id_x 1")
    A("  .amdhsa_float_denorm_mode_32 3")
    A(".end_amdhsa_kernel")
    out = []
    for line in L:
        if line.startswith(("s_", "v_", "ds_", "buffer_")):
            out.append("    " + line)
        else:
            out.append(line)
    return "\n".join(out) + "\n"

if __name__ == "__main__":
    cfg = json.loads(sys.argv[1]) if len(sys.argv) > 1 else {}
    sys.stdout.write(gen(**cfg))
```

```python
import sys, json

HEADER = """; CBAM channel attention, x kept in registers across a grid-wide reduction (single pass over HBM)
"""

def gen(pat="contig", ld="nt", st="", nrep=8, repstride=4096, stamps=0, sleepA=0, sleepF=0, pat_st=None, diag=None, probe=None):
    if diag: stamps = 1
    NW = 12
    NL = 32
    VD = 40
    XB = 100663296
    L_W1, L_W2 = 0, 18432
    L_RED = 36864
    L_G = L_RED + 6144
    L_H = L_G + 768
    L_SC = L_H + 1536
    L_SP = L_SC + 768
    L_END = L_SP + 3 * 6144
    W_A = 0
    W_F = 96 * 4096
    W_ST = 1 << 20
    SPIN = 1 << 20
    step = NW * 1024
    L = []
    A = L.append
    def stamp(i):
        if stamps:
            A(f"s_memrealtime s[{60+2*i}:{61+2*i}]")
    A(HEADER.rstrip())
    A(f"; @launch grid=(256,1,1) block=({NW*64},1,1) lds={L_END}")
    A('.amdgcn_target "amdgcn-amd-amdhsa--gfx950"')
    A(".text")
    A(".globl standalone__channel_attn_cbam__vision_kernel")
    A(".p2align 8")
    A(".type standalone__channel_attn_cbam__vision_kernel,@function")
    A("standalone__channel_attn_cbam__vision_kernel:")
    stamp(0)
    A("s_load_dwordx4 s[4:7], s[0:1], 0")
    A("s_load_dwordx4 s[24:27], s[0:1], 16")
    A("s_load_dwordx4 s[28:31], s[0:1], 32")
    A("s_cmp_ge_u32 s2, 256")
    A("s_cbranch_scc1 L_end")
    A("v_lshrrev_b32 v2, 6, v0")
    A("v_and_b32 v3, 63, v0")
    A("v_readfirstlane_b32 s36, v2")
    A("v_lshrrev_b32 v4, 3, v3")
    A("v_mul_u32_u24 v4, 384, v4")
    A("v_and_b32 v5, 7, v3")
    A("v_lshl_add_u32 v1, v5, 4, v4")
    A("s_mul_i32 s37, s36, 43691")
    A("s_lshr_b32 s37, s37, 17")
    A("s_mul_i32 s38, s37, 3")
    A("s_sub_u32 s38, s36, s38")
    A("s_mul_i32 s39, s37, 3072")
    A("s_lshl_b32 s40, s38, 7")
    A("s_add_u32 s39, s39, s40")
    def base_stride(p):
        if p == "contig":
            return 393216, step
        if p == "inter":
            return step, 256 * step
        raise ValueError
    b, s = base_stride(pat)
    A(f"s_mul_i32 s41, s2, {b}")
    A("s_add_u32 s41, s41, s39")
    A("s_mov_b32 s3, s41")
    A("s_mov_b32 s10, %d" % XB); A("s_mov_b32 s11, 0x20000")
    A("s_mov_b32 s14, %d" % XB); A("s_mov_b32 s15, 0x20000")
    A("s_mov_b32 s18, 256"); A("s_mov_b32 s19, 0x20000")
    A("s_mov_b32 s22, 402653184"); A("s_mov_b32 s23, 0x20000")
    A("s_mov_b32 s34, 18432"); A("s_mov_b32 s35, 0x20000")
    A("s_waitcnt lgkmcnt(0)")
    A("s_mov_b32 s8, s4"); A("s_mov_b32 s9, s5")
    A("s_mov_b32 s12, s26"); A("s_mov_b32 s13, s27")
    A("s_mov_b32 s16, s28"); A("s_mov_b32 s17, s29")
    A("s_mov_b32 s20, s30"); A("s_mov_b32 s21, s31")
    A("s_cmp_lg_u32 s36, 7")
    A("s_cbranch_scc1 L_noclear")
    A("v_mov_b32 v4, -1"); A("v_mov_b32 v5, -1"); A("v_mov_b32 v6, -1"); A("v_mov_b32 v7, -1")
    A("v_lshlrev_b32 v8, 12, v3")
    A("s_lshl_b32 s42, s2, 4")
    A(f"buffer_store_dwordx4 v[4:7], v8, s[20:23], s42 offen sc1")
    A("s_add_u32 s42, s42, %d" % (64 * 4096))
    A("s_mov_b32 exec_hi, 0")
    A(f"buffer_store_dwordx4 v[4:7], v8, s[20:23], s42 offen sc1")
    A("s_cmp_ge_u32 s2, 96")
    A("s_cbranch_scc1 L_noclearF")
    A(f"s_mov_b32 exec_lo, {(1 << nrep) - 1}")
    A(f"v_mul_u32_u24 v8, {repstride}, v3")
    A("s_lshl_b32 s42, s2, 3")
    A(f"s_add_u32 s42, s42, {W_F}")
    A(f"buffer_store_dwordx2 v[4:5], v8, s[20:23], s42 offen sc1")
    A("L_noclearF:")
    A("s_mov_b64 exec, 1")
    A("v_mov_b32 v9, 0")
    A("v_mov_b32 v10, 1")
    A("s_waitcnt vmcnt(0)")
    A("buffer_atomic_add v10, v9, s[16:19], 0 offen sc1")
    A("s_mov_b64 exec, -1")
    A("L_noclear:")
    ops = []
    for j in range(NL):
        r = VD + 4 * j
        A(f"buffer_load_dwordx4 v[{r}:{r+3}], v1, s[8:11], s3 offen {ld}".rstrip())
        ops.append(("d", j))
        if j != NL - 1:
            A(f"s_add_u32 s3, s3, {s}")
        if probe is not None and j == probe:
            A("s_waitcnt vmcnt(0)")
            stamp(1)
        if j == 3:
            A("s_cmp_ge_u32 s36, 6")
            A("s_cselect_b32 s32, s24, s6")
            A("s_cselect_b32 s33, s25, s7")
            A("s_cselect_b32 s42, 18432, 0")
            A("s_mul_i32 s43, s36, 3072")
            A("s_sub_u32 s42, s43, s42")
            A("s_mov_b32 m0, s43")
            A("v_lshlrev_b32 v2, 4, v3")
            for k in range(3):
                A(f"buffer_load_dwordx4 v2, s[32:35], s42 offen offset:{k*1024} lds")
                ops.append(("w", k))
    A("v_mov_b32 v34, 0")
    A("s_and_b32 s42, s36, 14")
    A("s_cmp_lg_u32 s42, 2")
    A("s_cbranch_scc1 L_nocnt")
    A("buffer_load_dword v34, v34, s[16:19], 0 offen sc1")
    A("L_nocnt:")
    if probe is None: stamp(1)
    S, M, T = 2, 10, 18
    for i in range(8):
        A(f"v_mov_b32 v{S+i}, 0")
        A(f"v_mov_b32 v{M+i}, 0xff800000")
    A("s_mov_b32 s44, 0xffff0000")
    def after(j):
        idx = ops.index(("d", j))
        return len(ops) - 1 - idx
    groups = [(j, j + 1) for j in range(0, NL - 2, 2)] + [(NL - 2,), (NL - 1,)]
    for g in groups:
        A(f"s_waitcnt vmcnt({after(g[-1])})")
        for gi, j in enumerate(g):
            for i in range(4):
                d = VD + 4 * j + i
                t = T + 8 * gi + 2 * i
                A(f"v_lshlrev_b32 v{t}, 16, v{d}")
                A(f"v_and_b32 v{t+1}, s44, v{d}")
        for gi, j in enumerate(g):
            for i in range(4):
                t = T + 8 * gi + 2 * i
                A(f"v_pk_add_f32 v[{S+2*i}:{S+2*i+1}], v[{S+2*i}:{S+2*i+1}], v[{t}:{t+1}]")
        for i in range(8):
            if len(g) == 2:
                A(f"v_max3_f32 v{M+i}, v{M+i}, v{T+i}, v{T+8+i}")
            else:
                A(f"v_max_f32 v{M+i}, v{M+i}, v{T+i}")
    stamp(2)
    A("v_and_b32 v35, 63, v0")
    A("s_nop 0")
    for i in range(4):
        A(f"v_permlane32_swap_b32 v{S+i}, v{S+i+4}")
    for i in range(4):
        A(f"v_permlane32_swap_b32 v{M+i}, v{M+i+4}")
    for i in range(4):
        A(f"v_add_f32 v{S+i}, v{S+i}, v{S+i+4}")
    for i in range(4):
        A(f"v_max_f32 v{M+i}, v{M+i}, v{M+i+4}")
    A("v_and_b32 v36, 7, v35")
    A("v_lshrrev_b32 v37, 3, v35")
    for i in range(2):
        A(f"v_permlane16_swap_b32 v{S+i}, v{S+i+2}")
    for i in range(2):
        A(f"v_permlane16_swap_b32 v{M+i}, v{M+i+2}")
    for i in range(2):
        A(f"v_add_f32 v{S+i}, v{S+i}, v{S+i+2}")
    for i in range(2):
        A(f"v_max_f32 v{M+i}, v{M+i}, v{M+i+2}")
    A("v_lshl_add_u32 v36, v36, 3, v37")
    A("s_mul_i32 s42, s37, 768")
    A("s_lshl_b32 s43, s38, 8")
    A("s_add_u32 s42, s42, s43")
    A(f"s_add_u32 s42, s42, {L_RED}")
    A(f"v_add_f32_dpp v{T}, v{S}, v{S} row_ror:8 row_mask:0xf bank_mask:0x3")
    A(f"v_max_f32_dpp v{T+1}, v{M}, v{M} row_ror:8 row_mask:0xf bank_mask:0x3")
    A("v_lshl_add_u32 v36, v36, 2, s42")
    A(f"v_add_f32_dpp v{T}, v{S+1}, v{S+1} row_ror:8 row_mask:0xf bank_mask:0xc")
    A(f"v_max_f32_dpp v{T+1}, v{M+1}, v{M+1} row_ror:8 row_mask:0xf bank_mask:0xc")
    A(f"ds_write2st64_b32 v36, v{T}, v{T+1} offset0:0 offset1:12")
    A("s_waitcnt lgkmcnt(0)")
    A("s_barrier")
    stamp(3)
    A("s_cmp_ge_u32 s36, 2")
    A("s_cbranch_scc1 L_role2")
    A("s_mul_i32 s42, s36, 3072")
    A(f"s_add_u32 s42, s42, {L_RED}")
    A("s_mov_b32 exec_hi, 0xffff")
    A("v_lshl_add_u32 v36, v35, 4, s42")
    for q in range(4):
        A(f"ds_read_b128 v[{T+4*q}:{T+4*q+3}], v36 offset:{q*768}")
    A("s_mul_i32 s42, s36, %d" % (48 * 4096))
    A("s_lshl_b32 s43, s2, 4")
    A("s_add_u32 s42, s42, s43")
    A("v_lshlrev_b32 v37, 12, v35")
    A("s_cmp_eq_u32 s36, 1")
    A("s_cbranch_scc1 L_pubmax")
    A("s_waitcnt lgkmcnt(2)")
    A(f"v_pk_add_f32 v[{T}:{T+1}], v[{T}:{T+1}], v[{T+4}:{T+5}]")
    A(f"v_pk_add_f32 v[{T+2}:{T+3}], v[{T+2}:{T+3}], v[{T+6}:{T+7}]")
    A("s_waitcnt lgkmcnt(0)")
    A(f"v_pk_add_f32 v[{T+8}:{T+9}], v[{T+8}:{T+9}], v[{T+12}:{T+13}]")
    A(f"v_pk_add_f32 v[{T+10}:{T+11}], v[{T+10}:{T+11}], v[{T+14}:{T+15}]")
    A(f"v_pk_add_f32 v[{T}:{T+1}], v[{T}:{T+1}], v[{T+8}:{T+9}]")
    A(f"v_pk_add_f32 v[{T+2}:{T+3}], v[{T+2}:{T+3}], v[{T+10}:{T+11}]")
    A("s_branch L_pub")
    A("L_pubmax:")
    A("s_waitcnt lgkmcnt(0)")
    for i in range(4):
        A(f"v_max3_f32 v{T+i}, v{T+i}, v{T+4+i}, v{T+8+i}")
    for i in range(4):
        A(f"v_max_f32 v{T+i}, v{T+i}, v{T+12+i}")
    A("L_pub:")
    A(f"buffer_store_dwordx4 v[{T}:{T+3}], v37, s[20:23], s42 offen sc1")
    A("s_mov_b64 exec, -1")
    A("s_branch L_common")
    A("L_role2:")
    A("s_cmp_ge_u32 s36, 4")
    A("s_cbranch_scc1 L_role4")
    A("s_mov_b32 s45, 0")
    A("L_cnt:")
    A("v_readfirstlane_b32 s42, v34")
    A("s_cmp_ge_u32 s42, 256")
    A("s_cbranch_scc1 L_cntok")
    A("v_mov_b32 v34, 0")
    A("buffer_load_dword v34, v34, s[16:19], 0 offen sc1")
    A("s_add_u32 s45, s45, 1")
    A("s_waitcnt vmcnt(0)")
    A(f"s_cmp_lt_u32 s45, {SPIN}")
    A("s_cbranch_scc1 L_cnt")
    A("L_cntok:")
    A("s_cmp_eq_u32 s36, 3")
    A("s_cbranch_scc1 L_pollF")
    A("s_cmp_ge_u32 s2, 96")
    A("s_cbranch_scc1 L_common")
    A("s_lshl_b32 s42, s2, 12")
    A("v_lshlrev_b32 v36, 4, v35")
    A("L_pollA:")
    for k in range(4):
        A(f"buffer_load_dwordx4 v[{T+4*k}:{T+4*k+3}], v36, s[20:23], s42 offen offset:{k*1024} sc1")
    A("s_add_u32 s45, s45, 1")
    A("s_waitcnt vmcnt(3)")
    A(f"v_max3_u32 v2, v{T}, v{T+1}, v{T+2}")
    A("s_waitcnt vmcnt(2)")
    A(f"v_max3_u32 v2, v2, v{T+3}, v{T+4}")
    A(f"v_max3_u32 v2, v2, v{T+5}, v{T+6}")
    A("s_waitcnt vmcnt(1)")
    A(f"v_max3_u32 v2, v2, v{T+7}, v{T+8}")
    A(f"v_max3_u32 v2, v2, v{T+9}, v{T+10}")
    A("s_waitcnt vmcnt(0)")
    A(f"v_max3_u32 v3, v{T+11}, v{T+12}, v{T+13}")
    A(f"v_max3_u32 v2, v2, v{T+14}, v{T+15}")
    A("v_max_u32 v2, v2, v3")
    A("v_cmp_eq_u32 vcc, -1, v2")
    A("s_cbranch_vccz L_gotA")
    if sleepA:
        A(f"s_sleep {sleepA}")
    A(f"s_cmp_lt_u32 s45, {SPIN}")
    A("s_cbranch_scc1 L_pollA")
    A("L_gotA:")
    A("s_cmp_ge_u32 s2, 48")
    A("s_cbranch_scc1 L_redmax")
    def xreduce(op):
        A("s_nop 1")
        A(f"v_permlane32_swap_b32 v{T}, v{T+2}")
        A(f"v_permlane32_swap_b32 v{T+1}, v{T+3}")
        A(f"v_{op}_f32 v2, v{T}, v{T+2}")
        A(f"v_{op}_f32 v3, v{T+1}, v{T+3}")
        A(f"v_{op}_f32 v4, v{T}, v{T+2}")
        A(f"v_{op}_f32 v5, v{T+1}, v{T+3}")
        A("s_nop 0")
        A("v_permlane16_swap_b32 v2, v4")
        A("v_permlane16_swap_b32 v3, v5")
        A(f"v_{op}_f32 v2, v2, v4")
        A(f"v_{op}_f32 v3, v3, v5")
        for r in (8, 4, 2, 1):
            A("s_nop 0")
            A(f"v_{op}_f32_dpp v2, v2, v2 row_ror:{r} row_mask:0xf bank_mask:0xf")
            A(f"v_{op}_f32_dpp v3, v3, v3 row_ror:{r} row_mask:0xf bank_mask:0xf")
    A(f"v_pk_add_f32 v[{T}:{T+1}], v[{T}:{T+1}], v[{T+4}:{T+5}]")
    A(f"v_pk_add_f32 v[{T+2}:{T+3}], v[{T+2}:{T+3}], v[{T+6}:{T+7}]")
    A(f"v_pk_add_f32 v[{T+8}:{T+9}], v[{T+8}:{T+9}], v[{T+12}:{T+13}]")
    A(f"v_pk_add_f32 v[{T+10}:{T+11}], v[{T+10}:{T+11}], v[{T+14}:{T+15}]")
    A(f"v_pk_add_f32 v[{T}:{T+1}], v[{T}:{T+1}], v[{T+8}:{T+9}]")
    A(f"v_pk_add_f32 v[{T+2}:{T+3}], v[{T+2}:{T+3}], v[{T+10}:{T+11}]")
    xreduce("add")
    A("v_mul_f32 v2, 0x36800000, v2")
    A("v_mul_f32 v3, 0x36800000, v3")
    A("s_branch L_pubF")
    A("L_redmax:")
    for i in range(4):
        A(f"v_max3_f32 v{T+i}, v{T+i}, v{T+4+i}, v{T+8+i}")
    for i in range(4):
        A(f"v_max_f32 v{T+i}, v{T+i}, v{T+12+i}")
    xreduce("max")
    A("L_pubF:")
    A("v_and_b32 v4, 31, v35")
    A(f"v_mul_u32_u24 v4, {repstride}, v4")
    A("v_lshrrev_b32 v5, 5, v35")
    A("v_cvt_pk_bf16_f32 v2, v2, v3")
    A("v_lshl_add_u32 v4, v5, 2, v4")
    A("v_min_u32 v2, -2, v2")
    A("s_lshl_b32 s42, s2, 3")
    A(f"s_add_u32 s42, s42, {W_F}")
    m = (1 << nrep) - 1
    A(f"s_mov_b32 exec_lo, {m}")
    A(f"s_mov_b32 exec_hi, {m}")
    A("buffer_store_dword v2, v4, s[20:23], s42 offen sc1")
    A("s_mov_b64 exec, -1")
    A("s_branch L_common")
    A("L_pollF:")
    A(f"s_and_b32 s42, s2, {nrep-1}")
    A(f"s_mul_i32 s42, s42, {repstride}")
    A(f"s_add_u32 s42, s42, {W_F}")
    A("v_lshlrev_b32 v36, 4, v35")
    A("s_mov_b32 exec_hi, 0xffff")
    A("L_pollF2:")
    A(f"buffer_load_dwordx4 v[{T}:{T+3}], v36, s[20:23], s42 offen sc1")
    A("s_add_u32 s45, s45, 1")
    A("s_waitcnt vmcnt(0)")
    A(f"v_max3_u32 v2, v{T}, v{T+1}, v{T+2}")
    A(f"v_max_u32 v2, v2, v{T+3}")
    A("v_cmp_eq_u32 vcc, -1, v2")
    A("s_cbranch_vccz L_gotF")
    if sleepF:
        A(f"s_sleep {sleepF}")
    A(f"s_cmp_lt_u32 s45, {SPIN}")
    A("s_cbranch_scc1 L_pollF2")
    A("L_gotF:")
    A(f"ds_write_b128 v36, v[{T}:{T+3}] offset:{L_G}")
    A("s_mov_b64 exec, -1")
    A("s_branch L_common")
    A("L_role4:")
    A("s_cmp_ge_u32 s36, 7")
    A("s_cbranch_scc1 L_common")
    A("s_sub_u32 s46, s36, 4")
    A("s_mul_i32 s42, s46, 6144")
    A(f"s_add_u32 s42, s42, {L_SP}")
    A("v_lshl_add_u32 v38, v35, 4, s42")
    VS = VD + 4 * (NL - 6)
    for k in range(6):
        A(f"ds_write_b128 v38, v[{VS+4*k}:{VS+4*k+3}] offset:{k*1024}")
    A("v_lshrrev_b32 v2, 4, v35")
    A("v_lshlrev_b32 v2, 3, v2")
    A("v_bfe_u32 v3, v35, 2, 2")
    A("v_add_u32 v2, v2, v3")
    A("v_mul_u32_u24 v2, 96, v2")
    A("v_and_b32 v3, 3, v35")
    A("v_lshl_add_u32 v2, v3, 3, v2")
    A("s_lshl_b32 s42, s46, 5")
    A("v_add_u32 v2, s42, v2")
    A("s_waitcnt lgkmcnt(0)")
    for k in range(6):
        A(f"ds_read_b64_tr_b16 v[{VS+4*k}:{VS+4*k+1}], v2 offset:{L_W1 + k*3072}")
        A(f"ds_read_b64_tr_b16 v[{VS+4*k+2}:{VS+4*k+3}], v2 offset:{L_W1 + k*3072 + 384}")
    A("v_and_b32 v2, 1, v35")
    A("v_mul_u32_u24 v2, 384, v2")
    A("v_lshrrev_b32 v3, 4, v35")
    A("v_lshl_add_u32 v39, v3, 4, v2")
    A("L_common:")
    A("v_lshrrev_b32 v2, 2, v35")
    A("v_mul_u32_u24 v2, 384, v2")
    A("v_and_b32 v3, 3, v35")
    A("v_lshl_add_u32 v2, v3, 3, v2")
    A("s_lshl_b32 s42, s36, 5")
    A("v_add_u32 v2, s42, v2")
    W2F = 28
    for k in range(3):
        A(f"ds_read_b64_tr_b16 v[{W2F+2*k}:{W2F+2*k+1}], v2 offset:{L_W2 + k*6144}")
    A("v_lshlrev_b32 v37, 3, v35")
    A("s_waitcnt lgkmcnt(0)")
    A("s_barrier")
    stamp(4)
    A("s_sub_u32 s42, s36, 4")
    A("s_cmp_ge_u32 s42, 3")
    A("s_cbranch_scc1 L_l2")
    BF = 4
    for k in range(6):
        A(f"ds_read_b128 v[{BF+4*k}:{BF+4*k+3}], v39 offset:{L_G + k*64}")
    A("s_lshl_b32 s42, s42, 9")
    A("v_add_u32 v36, s42, v37")
    for k in range(6):
        A(f"s_waitcnt lgkmcnt({5-k})")
        c = "0" if k == 0 else f"v[{BF}:{BF+3}]"
        if k == 0:
            A(f"v_mfma_f32_16x16x32_bf16 v[0:3], v[{VS}:{VS+3}], v[{BF}:{BF+3}], 0")
        else:
            A(f"v_mfma_f32_16x16x32_bf16 v[0:3], v[{VS+4*k}:{VS+4*k+3}], v[{BF+4*k}:{BF+4*k+3}], v[0:3]")
    A("s_nop 7")
    A("v_cvt_pk_bf16_f32 v4, v0, v1")
    A("v_cvt_pk_bf16_f32 v5, v2, v3")
    A("v_lshlrev_b32 v0, 16, v4"); A("v_and_b32 v1, s44, v4")
    A("v_lshlrev_b32 v2, 16, v5"); A("v_and_b32 v3, s44, v5")
    for i in range(4):
        A(f"v_cmp_lt_f32 s[{48+2*i}:{49+2*i}], 0, v{i}")
    for i in range(4):
        A(f"v_cndmask_b32 v{6+i}, 0, 1.0, s[{48+2*i}:{49+2*i}]")
    A("v_pk_mul_f32 v[0:1], v[0:1], v[6:7]")
    A("v_pk_mul_f32 v[2:3], v[2:3], v[8:9]")
    A("v_cvt_pk_bf16_f32 v4, v0, v1")
    A("v_cvt_pk_bf16_f32 v5, v2, v3")
    A(f"ds_write_b64 v36, v[4:5] offset:{L_H}")
    A("v_lshrrev_b32 v6, 3, v35")
    A("v_mul_u32_u24 v6, 384, v6")
    A("v_and_b32 v7, 7, v35")
    A("v_lshl_add_u32 v1, v7, 4, v6")
    A("s_waitcnt lgkmcnt(0)")
    A("L_l2:")
    A("s_barrier")
    for k in range(3):
        A(f"ds_read_b64 v[{4+2*k}:{5+2*k}], v37 offset:{L_H + k*512}")
    A("v_bfe_u32 v2, v35, 1, 2")
    A("v_cmp_eq_u32 s[48:49], 1, v2")
    A("v_cmp_eq_u32 s[50:51], 2, v2")
    A("v_cmp_eq_u32 s[52:53], 3, v2")
    A("v_lshrrev_b32 v3, 4, v35")
    A("v_lshl_add_u32 v2, v3, 2, v2")
    A("s_lshl_b32 s42, s36, 6")
    A("v_lshl_add_u32 v36, v2, 2, s42")
    for k in range(3):
        A(f"s_waitcnt lgkmcnt({2-k})")
        c = "0" if k == 0 else "v[12:15]"
        A(f"v_mfma_f32_16x16x16_bf16 v[12:15], v[{W2F+2*k}:{W2F+2*k+1}], v[{4+2*k}:{5+2*k}], {c}")
    A("v_and_b32 v2, 7, v35")
    A("s_lshl_b32 s42, s38, 8")
    A("v_lshl_add_u32 v39, v2, 5, s42")
    A("s_mov_b32 s43, 0xbfb8aa3b")
    A("s_nop 4")
    A("v_cndmask_b32 v12, v12, v13, s[48:49]")
    A("v_cndmask_b32 v12, v12, v14, s[50:51]")
    A("v_cndmask_b32 v12, v12, v15, s[52:53]")
    A("v_cvt_pk_bf16_f32 v12, v12, v12")
    A("v_and_b32 v12, s44, v12")
    A("s_nop 1")
    A("v_add_f32_dpp v12, v12, v12 quad_perm:[1,0,3,2] row_mask:0xf bank_mask:0xf")
    A("v_cvt_pk_bf16_f32 v12, v12, v12")
    A("v_and_b32 v12, s44, v12")
    A("v_mul_f32 v12, s43, v12")
    A("v_exp_f32 v12, v12")
    A("s_nop 0")
    A("v_add_f32 v12, 1.0, v12")
    A("v_rcp_f32 v12, v12")
    A("s_nop 0")
    A("v_cvt_pk_bf16_f32 v12, v12, v12")
    A("v_and_b32 v12, s44, v12")
    A(f"ds_write_b32 v36, v12 offset:{L_SC}")
    A("s_waitcnt lgkmcnt(0)")
    A("s_barrier")
    SCR = 2
    A(f"ds_read_b128 v[{SCR}:{SCR+3}], v39 offset:{L_SC}")
    A(f"ds_read_b128 v[{SCR+4}:{SCR+7}], v39 offset:{L_SC+16}")
    stamp(5)
    A("s_mov_b32 s3, s41")
    T2 = 10
    first = True
    for j in range(NL):
        tb = T2 + 8 * (j % 3)
        for i in range(4):
            d = VD + 4 * j + i
            A(f"v_lshlrev_b32 v{tb+2*i}, 16, v{d}")
            A(f"v_and_b32 v{tb+2*i+1}, s44, v{d}")
        if first:
            A("s_waitcnt lgkmcnt(0)")
            first = False
        for i in range(4):
            A(f"v_pk_mul_f32 v[{tb+2*i}:{tb+2*i+1}], v[{tb+2*i}:{tb+2*i+1}], v[{SCR+2*i}:{SCR+2*i+1}]")
        for i in range(4):
            d = VD + 4 * j + i
            A(f"v_cvt_pk_bf16_f32 v{d}, v{tb+2*i}, v{tb+2*i+1}")
        r = VD + 4 * j
        A(f"buffer_store_dwordx4 v[{r}:{r+3}], v1, s[12:15], s3 offen {st}".rstrip())
        if j != NL - 1:
            A(f"s_add_u32 s3, s3, {s}")
        if j == 0:
            A("s_sub_u32 s42, s36, 4")
            A("s_cmp_ge_u32 s42, 3")
            A("s_cbranch_scc1 L_noreload")
            for k in range(6):
                A(f"ds_read_b128 v[{VS+4*k}:{VS+4*k+3}], v38 offset:{k*1024}")
            A("L_noreload:")
        if j == NL - 7:
            A("s_waitcnt lgkmcnt(0)")
    if stamps:
        stamp(6)
        A("s_waitcnt vmcnt(0)")
        stamp(7)
        A("s_waitcnt lgkmcnt(0)")
        A("s_mov_b64 exec, 1")
        if diag:
            idx, mul, base = diag[:3]
            dwg = diag[3] if len(diag) > 3 else 0
            A("s_barrier")
            A("s_cmp_lg_u32 s36, 0")
            A("s_cbranch_scc1 L_end")
            A("v_mov_b32 v9, 4")
            A("v_mov_b32 v10, 1")
            A("buffer_atomic_add v10, v9, s[16:19], 0 offen sc1")
            A(f"s_cmp_lg_u32 s2, {dwg}")
            A("s_cbranch_scc1 L_end")
            A("s_mov_b32 s45, 0")
            A("L_dg1:")
            A("buffer_load_dword v10, v9, s[16:19], 0 offen sc1")
            A("s_add_u32 s45, s45, 1")
            A("s_waitcnt vmcnt(0)")
            A("v_readfirstlane_b32 s42, v10")
            A(f"s_cmp_ge_u32 s45, {SPIN}")
            A("s_cbranch_scc1 L_dg2")
            A("s_cmp_lt_u32 s42, 256")
            A("s_cbranch_scc1 L_dg1")
            A("L_dg2:")
            A("s_memrealtime s[76:77]")
            A("s_waitcnt lgkmcnt(0)")
            A(f"s_sub_u32 s42, s{60+2*idx}, s60")
            A(f"s_mul_i32 s42, s42, {mul}")
            A(f"s_add_u32 s42, s42, {base}")
            A("s_min_u32 s42, s42, 200000")
            A("L_dg3:")
            A("s_memrealtime s[78:79]")
            A("s_waitcnt lgkmcnt(0)")
            A("s_sub_u32 s43, s78, s60")
            A("s_cmp_lt_u32 s43, s42")
            A("s_cbranch_scc1 L_dg3")
            A("s_branch L_end")
        A("s_mul_i32 s3, s2, 12")
        A("s_add_u32 s3, s3, s36")
        A("s_lshl_b32 s3, s3, 5")
        A(f"s_add_u32 s3, s3, {W_ST}")
        A("v_mov_b32 v1, 0")
        for i in range(8):
            A(f"v_mov_b32 v{4+i}, s{60+2*i}")
        A("buffer_store_dwordx4 v[4:7], v1, s[20:23], s3 offen")
        A("buffer_store_dwordx4 v[8:11], v1, s[20:23], s3 offen offset:16")
    A("L_end:")
    A("s_endpgm")
    A('.section .rodata,"a"')
    A(".p2align 6")
    A(".amdhsa_kernel standalone__channel_attn_cbam__vision_kernel")
    A("  .amdhsa_next_free_vgpr 168")
    A("  .amdhsa_next_free_sgpr 96")
    A("  .amdhsa_accum_offset 168")
    A("  .amdhsa_group_segment_fixed_size 0")
    A("  .amdhsa_kernarg_size 48")
    A("  .amdhsa_user_sgpr_count 2")
    A("  .amdhsa_user_sgpr_kernarg_segment_ptr 1")
    A("  .amdhsa_system_sgpr_workgroup_id_x 1")
    A("  .amdhsa_float_denorm_mode_32 3")
    A(".end_amdhsa_kernel")
    out = []
    for line in L:
        if line.startswith(("s_", "v_", "ds_", "buffer_")):
            out.append("    " + line)
        else:
            out.append(line)
    return "\n".join(out) + "\n"

if __name__ == "__main__":
    cfg = json.loads(sys.argv[1]) if len(sys.argv) > 1 else {}
    sys.stdout.write(gen(**cfg))
```

```python
import sys, json

HEADER = """; CBAM channel attention, x kept in registers across a grid-wide reduction (single pass over HBM)
"""

def gen(pat="contig", ld="nt", st="", nrep=8, repstride=4096, stamps=0, sleepA=0, sleepF=0, pat_st=None, diag=None, probe=None, mprobe=None):
    if diag: stamps = 1
    NW = 12
    NL = 32
    VD = 40
    XB = 100663296
    L_W1, L_W2 = 0, 18432
    L_RED = 36864
    L_G = L_RED + 6144
    L_H = L_G + 768
    L_SC = L_H + 1536
    L_SP = L_SC + 768
    L_END = L_SP + 3 * 6144
    W_A = 0
    W_F = 96 * 4096
    W_ST = 1 << 20
    SPIN = 1 << 20
    step = NW * 1024
    L = []
    A = L.append
    def stamp(i):
        if stamps:
            A(f"s_memrealtime s[{60+2*i}:{61+2*i}]")
    A(HEADER.rstrip())
    A(f"; @launch grid=(256,1,1) block=({NW*64},1,1) lds={L_END}")
    A('.amdgcn_target "amdgcn-amd-amdhsa--gfx950"')
    A(".text")
    A(".globl standalone__channel_attn_cbam__vision_kernel")
    A(".p2align 8")
    A(".type standalone__channel_attn_cbam__vision_kernel,@function")
    A("standalone__channel_attn_cbam__vision_kernel:")
    stamp(0)
    A("s_load_dwordx4 s[4:7], s[0:1], 0")
    A("s_load_dwordx4 s[24:27], s[0:1], 16")
    A("s_load_dwordx4 s[28:31], s[0:1], 32")
    A("s_cmp_ge_u32 s2, 256")
    A("s_cbranch_scc1 L_end")
    A("v_lshrrev_b32 v2, 6, v0")
    A("v_and_b32 v3, 63, v0")
    A("v_readfirstlane_b32 s36, v2")
    A("v_lshrrev_b32 v4, 3, v3")
    A("v_mul_u32_u24 v4, 384, v4")
    A("v_and_b32 v5, 7, v3")
    A("v_lshl_add_u32 v1, v5, 4, v4")
    A("s_mul_i32 s37, s36, 43691")
    A("s_lshr_b32 s37, s37, 17")
    A("s_mul_i32 s38, s37, 3")
    A("s_sub_u32 s38, s36, s38")
    A("s_mul_i32 s39, s37, 3072")
    A("s_lshl_b32 s40, s38, 7")
    A("s_add_u32 s39, s39, s40")
    def base_stride(p):
        if p == "contig":
            return 393216, step
        if p == "inter":
            return step, 256 * step
        raise ValueError
    b, s = base_stride(pat)
    A(f"s_mul_i32 s41, s2, {b}")
    A("s_add_u32 s41, s41, s39")
    A("s_mov_b32 s3, s41")
    A("s_mov_b32 s10, %d" % XB); A("s_mov_b32 s11, 0x20000")
    A("s_mov_b32 s14, %d" % XB); A("s_mov_b32 s15, 0x20000")
    A("s_mov_b32 s18, 256"); A("s_mov_b32 s19, 0x20000")
    A("s_mov_b32 s22, 402653184"); A("s_mov_b32 s23, 0x20000")
    A("s_mov_b32 s34, 18432"); A("s_mov_b32 s35, 0x20000")
    A("s_waitcnt lgkmcnt(0)")
    A("s_mov_b32 s8, s4"); A("s_mov_b32 s9, s5")
    A("s_mov_b32 s12, s26"); A("s_mov_b32 s13, s27")
    A("s_mov_b32 s16, s28"); A("s_mov_b32 s17, s29")
    A("s_mov_b32 s20, s30"); A("s_mov_b32 s21, s31")
    if mprobe:
        buf, start, stride, n, thr, warm, pol = mprobe
        srd = {"x": "s[8:11]", "out": "s[12:15]", "ws": "s[20:23]"}[buf]
        A("s_mov_b32 s80, 0")
        A("s_cmp_lg_u32 s36, 0")
        A("s_cbranch_scc1 L_mp_bar")
        A("s_mov_b64 exec, 1")
        A("v_mov_b32 v9, 8")
        A("s_cmp_lg_u32 s2, 0")
        A("s_cbranch_scc1 L_mp_wait")
        A(f"s_mov_b32 s81, {start}")
        A("s_mov_b32 s82, 0")
        A("v_mov_b32 v11, 0")
        A("s_sleep 127")
        A("L_mp_loop:")
        A(f"buffer_load_dword v10, v11, {srd}, s81 offen offset:{warm} {pol}")
        A("s_waitcnt vmcnt(0)")
        A("s_memtime s[84:85]")
        A("s_waitcnt lgkmcnt(0)")
        A(f"buffer_load_dword v10, v11, {srd}, s81 offen {pol}")
        A("s_waitcnt vmcnt(0)")
        A("s_memtime s[86:87]")
        A("s_waitcnt lgkmcnt(0)")
        A("s_sub_u32 s83, s86, s84")
        if thr > 0:
            A(f"s_cmp_lt_u32 s83, {thr}")
            A("s_cselect_b32 s83, 1, 0")
        A("s_add_u32 s80, s80, s83")
        if not diag:
            A("v_mov_b32 v12, s83")
            A("s_lshl_b32 s88, s82, 2")
            A(f"s_add_u32 s88, s88, {2 << 20}")
            A("buffer_store_dword v12, v11, s[20:23], s88 offen")
        A(f"s_add_u32 s81, s81, {stride}")
        A("s_add_u32 s82, s82, 1")
        A(f"s_cmp_lt_u32 s82, {n}")
        A("s_cbranch_scc1 L_mp_loop")
        A("v_mov_b32 v10, 1")
        A("buffer_store_dword v10, v9, s[16:19], 0 offen sc1")
        A("s_branch L_mp_done")
        A("L_mp_wait:")
        A("s_mov_b32 s82, 0")
        A("L_mp_w2:")
        A("s_sleep 127"); A("s_sleep 127"); A("s_sleep 127")
        A("buffer_load_dword v10, v9, s[16:19], 0 offen sc1")
        A("s_add_u32 s82, s82, 1")
        A("s_waitcnt vmcnt(0)")
        A("v_readfirstlane_b32 s83, v10")
        A("s_cmp_ge_u32 s82, 20000")
        A("s_cbranch_scc1 L_mp_done")
        A("s_cmp_eq_u32 s83, 0")
        A("s_cbranch_scc1 L_mp_w2")
        A("L_mp_done:")
        A("s_mov_b64 exec, -1")
        A("L_mp_bar:")
        A("s_barrier")
    A("s_cmp_lg_u32 s36, 7")
    A("s_cbranch_scc1 L_noclear")
    A("v_mov_b32 v4, -1"); A("v_mov_b32 v5, -1"); A("v_mov_b32 v6, -1"); A("v_mov_b32 v7, -1")
    A("v_lshlrev_b32 v8, 12, v3")
    A("s_lshl_b32 s42, s2, 4")
    A(f"buffer_store_dwordx4 v[4:7], v8, s[20:23], s42 offen sc1")
    A("s_add_u32 s42, s42, %d" % (64 * 4096))
    A("s_mov_b32 exec_hi, 0")
    A(f"buffer_store_dwordx4 v[4:7], v8, s[20:23], s42 offen sc1")
    A("s_cmp_ge_u32 s2, 96")
    A("s_cbranch_scc1 L_noclearF")
    A(f"s_mov_b32 exec_lo, {(1 << nrep) - 1}")
    A(f"v_mul_u32_u24 v8, {repstride}, v3")
    A("s_lshl_b32 s42, s2, 3")
    A(f"s_add_u32 s42, s42, {W_F}")
    A(f"buffer_store_dwordx2 v[4:5], v8, s[20:23], s42 offen sc1")
    A("L_noclearF:")
    A("s_mov_b64 exec, 1")
    A("v_mov_b32 v9, 0")
    A("v_mov_b32 v10, 1")
    A("s_waitcnt vmcnt(0)")
    A("buffer_atomic_add v10, v9, s[16:19], 0 offen sc1")
    A("s_mov_b64 exec, -1")
    A("L_noclear:")
    ops = []
    for j in range(NL):
        r = VD + 4 * j
        A(f"buffer_load_dwordx4 v[{r}:{r+3}], v1, s[8:11], s3 offen {ld}".rstrip())
        ops.append(("d", j))
        if j != NL - 1:
            A(f"s_add_u32 s3, s3, {s}")
        if probe is not None and j == probe:
            A("s_waitcnt vmcnt(0)")
            stamp(1)
        if j == 3:
            A("s_cmp_ge_u32 s36, 6")
            A("s_cselect_b32 s32, s24, s6")
            A("s_cselect_b32 s33, s25, s7")
            A("s_cselect_b32 s42, 18432, 0")
            A("s_mul_i32 s43, s36, 3072")
            A("s_sub_u32 s42, s43, s42")
            A("s_mov_b32 m0, s43")
            A("v_lshlrev_b32 v2, 4, v3")
            for k in range(3):
                A(f"buffer_load_dwordx4 v2, s[32:35], s42 offen offset:{k*1024} lds")
                ops.append(("w", k))
    A("v_mov_b32 v34, 0")
    A("s_and_b32 s42, s36, 14")
    A("s_cmp_lg_u32 s42, 2")
    A("s_cbranch_scc1 L_nocnt")
    A("buffer_load_dword v34, v34, s[16:19], 0 offen sc1")
    A("L_nocnt:")
    if probe is None: stamp(1)
    S, M, T = 2, 10, 18
    for i in range(8):
        A(f"v_mov_b32 v{S+i}, 0")
        A(f"v_mov_b32 v{M+i}, 0xff800000")
    A("s_mov_b32 s44, 0xffff0000")
    def after(j):
        idx = ops.index(("d", j))
        return len(ops) - 1 - idx
    groups = [(j, j + 1) for j in range(0, NL - 2, 2)] + [(NL - 2,), (NL - 1,)]
    for g in groups:
        A(f"s_waitcnt vmcnt({after(g[-1])})")
        for gi, j in enumerate(g):
            for i in range(4):
                d = VD + 4 * j + i
                t = T + 8 * gi + 2 * i
                A(f"v_lshlrev_b32 v{t}, 16, v{d}")
                A(f"v_and_b32 v{t+1}, s44, v{d}")
        for gi, j in enumerate(g):
            for i in range(4):
                t = T + 8 * gi + 2 * i
                A(f"v_pk_add_f32 v[{S+2*i}:{S+2*i+1}], v[{S+2*i}:{S+2*i+1}], v[{t}:{t+1}]")
        for i in range(8):
            if len(g) == 2:
                A(f"v_max3_f32 v{M+i}, v{M+i}, v{T+i}, v{T+8+i}")
            else:
                A(f"v_max_f32 v{M+i}, v{M+i}, v{T+i}")
    stamp(2)
    A("v_and_b32 v35, 63, v0")
    A("s_nop 0")
    for i in range(4):
        A(f"v_permlane32_swap_b32 v{S+i}, v{S+i+4}")
    for i in range(4):
        A(f"v_permlane32_swap_b32 v{M+i}, v{M+i+4}")
    for i in range(4):
        A(f"v_add_f32 v{S+i}, v{S+i}, v{S+i+4}")
    for i in range(4):
        A(f"v_max_f32 v{M+i}, v{M+i}, v{M+i+4}")
    A("v_and_b32 v36, 7, v35")
    A("v_lshrrev_b32 v37, 3, v35")
    for i in range(2):
        A(f"v_permlane16_swap_b32 v{S+i}, v{S+i+2}")
    for i in range(2):
        A(f"v_permlane16_swap_b32 v{M+i}, v{M+i+2}")
    for i in range(2):
        A(f"v_add_f32 v{S+i}, v{S+i}, v{S+i+2}")
    for i in range(2):
        A(f"v_max_f32 v{M+i}, v{M+i}, v{M+i+2}")
    A("v_lshl_add_u32 v36, v36, 3, v37")
    A("s_mul_i32 s42, s37, 768")
    A("s_lshl_b32 s43, s38, 8")
    A("s_add_u32 s42, s42, s43")
    A(f"s_add_u32 s42, s42, {L_RED}")
    A(f"v_add_f32_dpp v{T}, v{S}, v{S} row_ror:8 row_mask:0xf bank_mask:0x3")
    A(f"v_max_f32_dpp v{T+1}, v{M}, v{M} row_ror:8 row_mask:0xf bank_mask:0x3")
    A("v_lshl_add_u32 v36, v36, 2, s42")
    A(f"v_add_f32_dpp v{T}, v{S+1}, v{S+1} row_ror:8 row_mask:0xf bank_mask:0xc")
    A(f"v_max_f32_dpp v{T+1}, v{M+1}, v{M+1} row_ror:8 row_mask:0xf bank_mask:0xc")
    A(f"ds_write2st64_b32 v36, v{T}, v{T+1} offset0:0 offset1:12")
    A("s_waitcnt lgkmcnt(0)")
    A("s_barrier")
    stamp(3)
    A("s_cmp_ge_u32 s36, 2")
    A("s_cbranch_scc1 L_role2")
    A("s_mul_i32 s42, s36, 3072")
    A(f"s_add_u32 s42, s42, {L_RED}")
    A("s_mov_b32 exec_hi, 0xffff")
    A("v_lshl_add_u32 v36, v35, 4, s42")
    for q in range(4):
        A(f"ds_read_b128 v[{T+4*q}:{T+4*q+3}], v36 offset:{q*768}")
    A("s_mul_i32 s42, s36, %d" % (48 * 4096))
    A("s_lshl_b32 s43, s2, 4")
    A("s_add_u32 s42, s42, s43")
    A("v_lshlrev_b32 v37, 12, v35")
    A("s_cmp_eq_u32 s36, 1")
    A("s_cbranch_scc1 L_pubmax")
    A("s_waitcnt lgkmcnt(2)")
    A(f"v_pk_add_f32 v[{T}:{T+1}], v[{T}:{T+1}], v[{T+4}:{T+5}]")
    A(f"v_pk_add_f32 v[{T+2}:{T+3}], v[{T+2}:{T+3}], v[{T+6}:{T+7}]")
    A("s_waitcnt lgkmcnt(0)")
    A(f"v_pk_add_f32 v[{T+8}:{T+9}], v[{T+8}:{T+9}], v[{T+12}:{T+13}]")
    A(f"v_pk_add_f32 v[{T+10}:{T+11}], v[{T+10}:{T+11}], v[{T+14}:{T+15}]")
    A(f"v_pk_add_f32 v[{T}:{T+1}], v[{T}:{T+1}], v[{T+8}:{T+9}]")
    A(f"v_pk_add_f32 v[{T+2}:{T+3}], v[{T+2}:{T+3}], v[{T+10}:{T+11}]")
    A("s_branch L_pub")
    A("L_pubmax:")
    A("s_waitcnt lgkmcnt(0)")
    for i in range(4):
        A(f"v_max3_f32 v{T+i}, v{T+i}, v{T+4+i}, v{T+8+i}")
    for i in range(4):
        A(f"v_max_f32 v{T+i}, v{T+i}, v{T+12+i}")
    A("L_pub:")
    A(f"buffer_store_dwordx4 v[{T}:{T+3}], v37, s[20:23], s42 offen sc1")
    A("s_mov_b64 exec, -1")
    A("s_branch L_common")
    A("L_role2:")
    A("s_cmp_ge_u32 s36, 4")
    A("s_cbranch_scc1 L_role4")
    A("s_mov_b32 s45, 0")
    A("L_cnt:")
    A("v_readfirstlane_b32 s42, v34")
    A("s_cmp_ge_u32 s42, 256")
    A("s_cbranch_scc1 L_cntok")
    A("v_mov_b32 v34, 0")
    A("buffer_load_dword v34, v34, s[16:19], 0 offen sc1")
    A("s_add_u32 s45, s45, 1")
    A("s_waitcnt vmcnt(0)")
    A(f"s_cmp_lt_u32 s45, {SPIN}")
    A("s_cbranch_scc1 L_cnt")
    A("L_cntok:")
    A("s_cmp_eq_u32 s36, 3")
    A("s_cbranch_scc1 L_pollF")
    A("s_cmp_ge_u32 s2, 96")
    A("s_cbranch_scc1 L_common")
    A("s_lshl_b32 s42, s2, 12")
    A("v_lshlrev_b32 v36, 4, v35")
    A("L_pollA:")
    for k in range(4):
        A(f"buffer_load_dwordx4 v[{T+4*k}:{T+4*k+3}], v36, s[20:23], s42 offen offset:{k*1024} sc1")
    A("s_add_u32 s45, s45, 1")
    A("s_waitcnt vmcnt(3)")
    A(f"v_max3_u32 v2, v{T}, v{T+1}, v{T+2}")
    A("s_waitcnt vmcnt(2)")
    A(f"v_max3_u32 v2, v2, v{T+3}, v{T+4}")
    A(f"v_max3_u32 v2, v2, v{T+5}, v{T+6}")
    A("s_waitcnt vmcnt(1)")
    A(f"v_max3_u32 v2, v2, v{T+7}, v{T+8}")
    A(f"v_max3_u32 v2, v2, v{T+9}, v{T+10}")
    A("s_waitcnt vmcnt(0)")
    A(f"v_max3_u32 v3, v{T+11}, v{T+12}, v{T+13}")
    A(f"v_max3_u32 v2, v2, v{T+14}, v{T+15}")
    A("v_max_u32 v2, v2, v3")
    A("v_cmp_eq_u32 vcc, -1, v2")
    A("s_cbranch_vccz L_gotA")
    if sleepA:
        A(f"s_sleep {sleepA}")
    A(f"s_cmp_lt_u32 s45, {SPIN}")
    A("s_cbranch_scc1 L_pollA")
    A("L_gotA:")
    A("s_cmp_ge_u32 s2, 48")
    A("s_cbranch_scc1 L_redmax")
    def xreduce(op):
        A("s_nop 1")
        A(f"v_permlane32_swap_b32 v{T}, v{T+2}")
        A(f"v_permlane32_swap_b32 v{T+1}, v{T+3}")
        A(f"v_{op}_f32 v2, v{T}, v{T+2}")
        A(f"v_{op}_f32 v3, v{T+1}, v{T+3}")
        A(f"v_{op}_f32 v4, v{T}, v{T+2}")
        A(f"v_{op}_f32 v5, v{T+1}, v{T+3}")
        A("s_nop 0")
        A("v_permlane16_swap_b32 v2, v4")
        A("v_permlane16_swap_b32 v3, v5")
        A(f"v_{op}_f32 v2, v2, v4")
        A(f"v_{op}_f32 v3, v3, v5")
        for r in (8, 4, 2, 1):
            A("s_nop 0")
            A(f"v_{op}_f32_dpp v2, v2, v2 row_ror:{r} row_mask:0xf bank_mask:0xf")
            A(f"v_{op}_f32_dpp v3, v3, v3 row_ror:{r} row_mask:0xf bank_mask:0xf")
    A(f"v_pk_add_f32 v[{T}:{T+1}], v[{T}:{T+1}], v[{T+4}:{T+5}]")
    A(f"v_pk_add_f32 v[{T+2}:{T+3}], v[{T+2}:{T+3}], v[{T+6}:{T+7}]")
    A(f"v_pk_add_f32 v[{T+8}:{T+9}], v[{T+8}:{T+9}], v[{T+12}:{T+13}]")
    A(f"v_pk_add_f32 v[{T+10}:{T+11}], v[{T+10}:{T+11}], v[{T+14}:{T+15}]")
    A(f"v_pk_add_f32 v[{T}:{T+1}], v[{T}:{T+1}], v[{T+8}:{T+9}]")
    A(f"v_pk_add_f32 v[{T+2}:{T+3}], v[{T+2}:{T+3}], v[{T+10}:{T+11}]")
    xreduce("add")
    A("v_mul_f32 v2, 0x36800000, v2")
    A("v_mul_f32 v3, 0x36800000, v3")
    A("s_branch L_pubF")
    A("L_redmax:")
    for i in range(4):
        A(f"v_max3_f32 v{T+i}, v{T+i}, v{T+4+i}, v{T+8+i}")
    for i in range(4):
        A(f"v_max_f32 v{T+i}, v{T+i}, v{T+12+i}")
    xreduce("max")
    A("L_pubF:")
    A("v_and_b32 v4, 31, v35")
    A(f"v_mul_u32_u24 v4, {repstride}, v4")
    A("v_lshrrev_b32 v5, 5, v35")
    A("v_cvt_pk_bf16_f32 v2, v2, v3")
    A("v_lshl_add_u32 v4, v5, 2, v4")
    A("v_min_u32 v2, -2, v2")
    A("s_lshl_b32 s42, s2, 3")
    A(f"s_add_u32 s42, s42, {W_F}")
    m = (1 << nrep) - 1
    A(f"s_mov_b32 exec_lo, {m}")
    A(f"s_mov_b32 exec_hi, {m}")
    A("buffer_store_dword v2, v4, s[20:23], s42 offen sc1")
    A("s_mov_b64 exec, -1")
    A("s_branch L_common")
    A("L_pollF:")
    A(f"s_and_b32 s42, s2, {nrep-1}")
    A(f"s_mul_i32 s42, s42, {repstride}")
    A(f"s_add_u32 s42, s42, {W_F}")
    A("v_lshlrev_b32 v36, 4, v35")
    A("s_mov_b32 exec_hi, 0xffff")
    A("L_pollF2:")
    A(f"buffer_load_dwordx4 v[{T}:{T+3}], v36, s[20:23], s42 offen sc1")
    A("s_add_u32 s45, s45, 1")
    A("s_waitcnt vmcnt(0)")
    A(f"v_max3_u32 v2, v{T}, v{T+1}, v{T+2}")
    A(f"v_max_u32 v2, v2, v{T+3}")
    A("v_cmp_eq_u32 vcc, -1, v2")
    A("s_cbranch_vccz L_gotF")
    if sleepF:
        A(f"s_sleep {sleepF}")
    A(f"s_cmp_lt_u32 s45, {SPIN}")
    A("s_cbranch_scc1 L_pollF2")
    A("L_gotF:")
    A(f"ds_write_b128 v36, v[{T}:{T+3}] offset:{L_G}")
    A("s_mov_b64 exec, -1")
    A("s_branch L_common")
    A("L_role4:")
    A("s_cmp_ge_u32 s36, 7")
    A("s_cbranch_scc1 L_common")
    A("s_sub_u32 s46, s36, 4")
    A("s_mul_i32 s42, s46, 6144")
    A(f"s_add_u32 s42, s42, {L_SP}")
    A("v_lshl_add_u32 v38, v35, 4, s42")
    VS = VD + 4 * (NL - 6)
    for k in range(6):
        A(f"ds_write_b128 v38, v[{VS+4*k}:{VS+4*k+3}] offset:{k*1024}")
    A("v_lshrrev_b32 v2, 4, v35")
    A("v_lshlrev_b32 v2, 3, v2")
    A("v_bfe_u32 v3, v35, 2, 2")
    A("v_add_u32 v2, v2, v3")
    A("v_mul_u32_u24 v2, 96, v2")
    A("v_and_b32 v3, 3, v35")
    A("v_lshl_add_u32 v2, v3, 3, v2")
    A("s_lshl_b32 s42, s46, 5")
    A("v_add_u32 v2, s42, v2")
    A("s_waitcnt lgkmcnt(0)")
    for k in range(6):
        A(f"ds_read_b64_tr_b16 v[{VS+4*k}:{VS+4*k+1}], v2 offset:{L_W1 + k*3072}")
        A(f"ds_read_b64_tr_b16 v[{VS+4*k+2}:{VS+4*k+3}], v2 offset:{L_W1 + k*3072 + 384}")
    A("v_and_b32 v2, 1, v35")
    A("v_mul_u32_u24 v2, 384, v2")
    A("v_lshrrev_b32 v3, 4, v35")
    A("v_lshl_add_u32 v39, v3, 4, v2")
    A("L_common:")
    A("v_lshrrev_b32 v2, 2, v35")
    A("v_mul_u32_u24 v2, 384, v2")
    A("v_and_b32 v3, 3, v35")
    A("v_lshl_add_u32 v2, v3, 3, v2")
    A("s_lshl_b32 s42, s36, 5")
    A("v_add_u32 v2, s42, v2")
    W2F = 28
    for k in range(3):
        A(f"ds_read_b64_tr_b16 v[{W2F+2*k}:{W2F+2*k+1}], v2 offset:{L_W2 + k*6144}")
    A("v_lshlrev_b32 v37, 3, v35")
    A("s_waitcnt lgkmcnt(0)")
    A("s_barrier")
    stamp(4)
    A("s_sub_u32 s42, s36, 4")
    A("s_cmp_ge_u32 s42, 3")
    A("s_cbranch_scc1 L_l2")
    BF = 4
    for k in range(6):
        A(f"ds_read_b128 v[{BF+4*k}:{BF+4*k+3}], v39 offset:{L_G + k*64}")
    A("s_lshl_b32 s42, s42, 9")
    A("v_add_u32 v36, s42, v37")
    for k in range(6):
        A(f"s_waitcnt lgkmcnt({5-k})")
        c = "0" if k == 0 else f"v[{BF}:{BF+3}]"
        if k == 0:
            A(f"v_mfma_f32_16x16x32_bf16 v[0:3], v[{VS}:{VS+3}], v[{BF}:{BF+3}], 0")
        else:
            A(f"v_mfma_f32_16x16x32_bf16 v[0:3], v[{VS+4*k}:{VS+4*k+3}], v[{BF+4*k}:{BF+4*k+3}], v[0:3]")
    A("s_nop 7")
    A("v_cvt_pk_bf16_f32 v4, v0, v1")
    A("v_cvt_pk_bf16_f32 v5, v2, v3")
    A("v_lshlrev_b32 v0, 16, v4"); A("v_and_b32 v1, s44, v4")
    A("v_lshlrev_b32 v2, 16, v5"); A("v_and_b32 v3, s44, v5")
    for i in range(4):
        A(f"v_cmp_lt_f32 s[{48+2*i}:{49+2*i}], 0, v{i}")
    for i in range(4):
        A(f"v_cndmask_b32 v{6+i}, 0, 1.0, s[{48+2*i}:{49+2*i}]")
    A("v_pk_mul_f32 v[0:1], v[0:1], v[6:7]")
    A("v_pk_mul_f32 v[2:3], v[2:3], v[8:9]")
    A("v_cvt_pk_bf16_f32 v4, v0, v1")
    A("v_cvt_pk_bf16_f32 v5, v2, v3")
    A(f"ds_write_b64 v36, v[4:5] offset:{L_H}")
    A("v_lshrrev_b32 v6, 3, v35")
    A("v_mul_u32_u24 v6, 384, v6")
    A("v_and_b32 v7, 7, v35")
    A("v_lshl_add_u32 v1, v7, 4, v6")
    A("s_waitcnt lgkmcnt(0)")
    A("L_l2:")
    A("s_barrier")
    for k in range(3):
        A(f"ds_read_b64 v[{4+2*k}:{5+2*k}], v37 offset:{L_H + k*512}")
    A("v_bfe_u32 v2, v35, 1, 2")
    A("v_cmp_eq_u32 s[48:49], 1, v2")
    A("v_cmp_eq_u32 s[50:51], 2, v2")
    A("v_cmp_eq_u32 s[52:53], 3, v2")
    A("v_lshrrev_b32 v3, 4, v35")
    A("v_lshl_add_u32 v2, v3, 2, v2")
    A("s_lshl_b32 s42, s36, 6")
    A("v_lshl_add_u32 v36, v2, 2, s42")
    for k in range(3):
        A(f"s_waitcnt lgkmcnt({2-k})")
        c = "0" if k == 0 else "v[12:15]"
        A(f"v_mfma_f32_16x16x16_bf16 v[12:15], v[{W2F+2*k}:{W2F+2*k+1}], v[{4+2*k}:{5+2*k}], {c}")
    A("v_and_b32 v2, 7, v35")
    A("s_lshl_b32 s42, s38, 8")
    A("v_lshl_add_u32 v39, v2, 5, s42")
    A("s_mov_b32 s43, 0xbfb8aa3b")
    A("s_nop 4")
    A("v_cndmask_b32 v12, v12, v13, s[48:49]")
    A("v_cndmask_b32 v12, v12, v14, s[50:51]")
    A("v_cndmask_b32 v12, v12, v15, s[52:53]")
    A("v_cvt_pk_bf16_f32 v12, v12, v12")
    A("v_and_b32 v12, s44, v12")
    A("s_nop 1")
    A("v_add_f32_dpp v12, v12, v12 quad_perm:[1,0,3,2] row_mask:0xf bank_mask:0xf")
    A("v_cvt_pk_bf16_f32 v12, v12, v12")
    A("v_and_b32 v12, s44, v12")
    A("v_mul_f32 v12, s43, v12")
    A("v_exp_f32 v12, v12")
    A("s_nop 0")
    A("v_add_f32 v12, 1.0, v12")
    A("v_rcp_f32 v12, v12")
    A("s_nop 0")
    A("v_cvt_pk_bf16_f32 v12, v12, v12")
    A("v_and_b32 v12, s44, v12")
    A(f"ds_write_b32 v36, v12 offset:{L_SC}")
    A("s_waitcnt lgkmcnt(0)")
    A("s_barrier")
    SCR = 2
    A(f"ds_read_b128 v[{SCR}:{SCR+3}], v39 offset:{L_SC}")
    A(f"ds_read_b128 v[{SCR+4}:{SCR+7}], v39 offset:{L_SC+16}")
    stamp(5)
    A("s_mov_b32 s3, s41")
    T2 = 10
    first = True
    for j in range(NL):
        tb = T2 + 8 * (j % 3)
        for i in range(4):
            d = VD + 4 * j + i
            A(f"v_lshlrev_b32 v{tb+2*i}, 16, v{d}")
            A(f"v_and_b32 v{tb+2*i+1}, s44, v{d}")
        if first:
            A("s_waitcnt lgkmcnt(0)")
            first = False
        for i in range(4):
            A(f"v_pk_mul_f32 v[{tb+2*i}:{tb+2*i+1}], v[{tb+2*i}:{tb+2*i+1}], v[{SCR+2*i}:{SCR+2*i+1}]")
        for i in range(4):
            d = VD + 4 * j + i
            A(f"v_cvt_pk_bf16_f32 v{d}, v{tb+2*i}, v{tb+2*i+1}")
        r = VD + 4 * j
        A(f"buffer_store_dwordx4 v[{r}:{r+3}], v1, s[12:15], s3 offen {st}".rstrip())
        if j != NL - 1:
            A(f"s_add_u32 s3, s3, {s}")
        if j == 0:
            A("s_sub_u32 s42, s36, 4")
            A("s_cmp_ge_u32 s42, 3")
            A("s_cbranch_scc1 L_noreload")
            for k in range(6):
                A(f"ds_read_b128 v[{VS+4*k}:{VS+4*k+3}], v38 offset:{k*1024}")
            A("L_noreload:")
        if j == NL - 7:
            A("s_waitcnt lgkmcnt(0)")
    if stamps:
        stamp(6)
        A("s_waitcnt vmcnt(0)")
        stamp(7)
        A("s_waitcnt lgkmcnt(0)")
        A("s_mov_b64 exec, 1")
        if diag:
            idx, mul, base = diag[:3]
            dwg = diag[3] if len(diag) > 3 else 0
            A("s_barrier")
            A("s_cmp_lg_u32 s36, 0")
            A("s_cbranch_scc1 L_end")
            A("v_mov_b32 v9, 4")
            A("v_mov_b32 v10, 1")
            A("buffer_atomic_add v10, v9, s[16:19], 0 offen sc1")
            A(f"s_cmp_lg_u32 s2, {dwg}")
            A("s_cbranch_scc1 L_end")
            A("s_mov_b32 s45, 0")
            A("L_dg1:")
            A("buffer_load_dword v10, v9, s[16:19], 0 offen sc1")
            A("s_add_u32 s45, s45, 1")
            A("s_waitcnt vmcnt(0)")
            A("v_readfirstlane_b32 s42, v10")
            A(f"s_cmp_ge_u32 s45, {SPIN}")
            A("s_cbranch_scc1 L_dg2")
            A("s_cmp_lt_u32 s42, 256")
            A("s_cbranch_scc1 L_dg1")
            A("L_dg2:")
            A("s_memrealtime s[76:77]")
            A("s_waitcnt lgkmcnt(0)")
            if idx >= 0:
                A(f"s_sub_u32 s42, s{60+2*idx}, s60")
            else:
                A("s_mov_b32 s42, s80")
            A(f"s_mul_i32 s42, s42, {mul}")
            A(f"s_add_u32 s42, s42, {base}")
            A("s_min_u32 s42, s42, 200000")
            A("L_dg3:")
            A("s_memrealtime s[78:79]")
            A("s_waitcnt lgkmcnt(0)")
            A("s_sub_u32 s43, s78, s60")
            A("s_cmp_lt_u32 s43, s42")
            A("s_cbranch_scc1 L_dg3")
            A("s_branch L_end")
        A("s_mul_i32 s3, s2, 12")
        A("s_add_u32 s3, s3, s36")
        A("s_lshl_b32 s3, s3, 5")
        A(f"s_add_u32 s3, s3, {W_ST}")
        A("v_mov_b32 v1, 0")
        for i in range(8):
            A(f"v_mov_b32 v{4+i}, s{60+2*i}")
        A("buffer_store_dwordx4 v[4:7], v1, s[20:23], s3 offen")
        A("buffer_store_dwordx4 v[8:11], v1, s[20:23], s3 offen offset:16")
    A("L_end:")
    A("s_endpgm")
    A('.section .rodata,"a"')
    A(".p2align 6")
    A(".amdhsa_kernel standalone__channel_attn_cbam__vision_kernel")
    A("  .amdhsa_next_free_vgpr 168")
    A("  .amdhsa_next_free_sgpr 96")
    A("  .amdhsa_accum_offset 168")
    A("  .amdhsa_group_segment_fixed_size 0")
    A("  .amdhsa_kernarg_size 48")
    A("  .amdhsa_user_sgpr_count 2")
    A("  .amdhsa_user_sgpr_kernarg_segment_ptr 1")
    A("  .amdhsa_system_sgpr_workgroup_id_x 1")
    A("  .amdhsa_float_denorm_mode_32 3")
    A(".end_amdhsa_kernel")
    out = []
    for line in L:
        if line.startswith(("s_", "v_", "ds_", "buffer_")):
            out.append("    " + line)
        else:
            out.append(line)
    return "\n".join(out) + "\n"

if __name__ == "__main__":
    cfg = json.loads(sys.argv[1]) if len(sys.argv) > 1 else {}
    sys.stdout.write(gen(**cfg))
```

```python
import sys, json

HEADER = """; CBAM channel attention, x kept in registers across a grid-wide reduction (single pass over HBM)
"""

def gen(pat="contig", ld="nt", st="", nrep=8, repstride=4096, stamps=0, sleepA=0, sleepF=0, pat_st=None, diag=None, probe=None, mprobe=None, want=None):
    if diag: stamps = 1
    NW = 12
    NL = 32
    VD = 40
    XB = 100663296
    L_W1, L_W2 = 0, 18432
    L_RED = 36864
    L_G = L_RED + 6144
    L_H = L_G + 768
    L_SC = L_H + 1536
    L_SP = L_SC + 768
    L_END = L_SP + 3 * 6144
    W_A = 0
    W_F = 96 * 4096
    W_ST = 1 << 20
    SPIN = 1 << 20
    step = NW * 1024
    L = []
    A = L.append
    def stamp(i):
        if stamps:
            A(f"s_memrealtime s[{60+2*i}:{61+2*i}]")
    A(HEADER.rstrip())
    A(f"; @launch grid=(256,1,1) block=({NW*64},1,1) lds={L_END}")
    A('.amdgcn_target "amdgcn-amd-amdhsa--gfx950"')
    A(".text")
    A(".globl standalone__channel_attn_cbam__vision_kernel")
    A(".p2align 8")
    A(".type standalone__channel_attn_cbam__vision_kernel,@function")
    A("standalone__channel_attn_cbam__vision_kernel:")
    stamp(0)
    A("s_load_dwordx4 s[4:7], s[0:1], 0")
    A("s_load_dwordx4 s[24:27], s[0:1], 16")
    A("s_load_dwordx4 s[28:31], s[0:1], 32")
    A("s_cmp_ge_u32 s2, 256")
    A("s_cbranch_scc1 L_end")
    A("v_lshrrev_b32 v2, 6, v0")
    A("v_and_b32 v3, 63, v0")
    A("v_readfirstlane_b32 s36, v2")
    A("v_lshrrev_b32 v4, 3, v3")
    A("v_mul_u32_u24 v4, 384, v4")
    A("v_and_b32 v5, 7, v3")
    A("v_lshl_add_u32 v1, v5, 4, v4")
    A("s_mul_i32 s37, s36, 43691")
    A("s_lshr_b32 s37, s37, 17")
    A("s_mul_i32 s38, s37, 3")
    A("s_sub_u32 s38, s36, s38")
    A("s_mul_i32 s39, s37, 3072")
    A("s_lshl_b32 s40, s38, 7")
    A("s_add_u32 s39, s39, s40")
    def base_stride(p):
        if p == "contig":
            return 393216, step
        if p == "inter":
            return step, 256 * step
        raise ValueError
    b, s = base_stride(pat)
    A(f"s_mul_i32 s41, s2, {b}")
    A("s_add_u32 s41, s41, s39")
    A("s_mov_b32 s3, s41")
    A("s_mov_b32 s10, %d" % XB); A("s_mov_b32 s11, 0x20000")
    A("s_mov_b32 s14, %d" % XB); A("s_mov_b32 s15, 0x20000")
    A("s_mov_b32 s18, 256"); A("s_mov_b32 s19, 0x20000")
    A("s_mov_b32 s22, 402653184"); A("s_mov_b32 s23, 0x20000")
    A("s_mov_b32 s34, 18432"); A("s_mov_b32 s35, 0x20000")
    A("s_waitcnt lgkmcnt(0)")
    A("s_mov_b32 s8, s4"); A("s_mov_b32 s9, s5")
    A("s_mov_b32 s12, s26"); A("s_mov_b32 s13, s27")
    A("s_mov_b32 s16, s28"); A("s_mov_b32 s17, s29")
    A("s_mov_b32 s20, s30"); A("s_mov_b32 s21, s31")
    if mprobe:
        buf, start, stride, n, thr, warm, pol = mprobe
        srd = {"x": "s[8:11]", "out": "s[12:15]", "ws": "s[20:23]"}[buf]
        A("s_mov_b32 s80, 0")
        A("s_cmp_lg_u32 s36, 0")
        A("s_cbranch_scc1 L_mp_bar")
        A("s_mov_b64 exec, 1")
        A("v_mov_b32 v9, 8")
        A("s_cmp_lg_u32 s2, 0")
        A("s_cbranch_scc1 L_mp_wait")
        A("v_mov_b32 v11, 0")
        A("s_sleep 127")
        if want is not None:
            A("s_mov_b32 s81, 8192")
            A("s_mov_b32 s82, 0")
            A("s_mov_b32 s89, 0")
            A("L_sp_loop:")
            A(f"buffer_load_dword v10, v11, s[8:11], s81 offen offset:1024")
            A("s_waitcnt vmcnt(0)")
            A("s_memtime s[84:85]")
            A("s_waitcnt lgkmcnt(0)")
            A(f"buffer_load_dword v10, v11, s[8:11], s81 offen")
            A("s_waitcnt vmcnt(0)")
            A("s_memtime s[86:87]")
            A("s_waitcnt lgkmcnt(0)")
            A("s_sub_u32 s83, s86, s84")
            A(f"s_cmp_lt_u32 s83, 560")
            A("s_cselect_b32 s83, 1, 0")
            A("s_add_u32 s89, s89, s83")
            A(f"s_add_u32 s81, s81, {6160384+4096+128}")
            A("s_add_u32 s82, s82, 1")
            A(f"s_cmp_lt_u32 s82, 16")
            A("s_cbranch_scc1 L_sp_loop")
        A(f"s_mov_b32 s81, {start}")
        A("s_mov_b32 s82, 0")
        A("L_mp_loop:")
        A(f"buffer_load_dword v10, v11, {srd}, s81 offen offset:{warm} {pol}")
        A("s_waitcnt vmcnt(0)")
        A("s_memtime s[84:85]")
        A("s_waitcnt lgkmcnt(0)")
        A(f"buffer_load_dword v10, v11, {srd}, s81 offen {pol}")
        A("s_waitcnt vmcnt(0)")
        A("s_memtime s[86:87]")
        A("s_waitcnt lgkmcnt(0)")
        A("s_sub_u32 s83, s86, s84")
        if thr > 0:
            A(f"s_cmp_lt_u32 s83, {thr}")
            A("s_cselect_b32 s83, 1, 0")
        A("s_add_u32 s80, s80, s83")
        if not diag:
            A("v_mov_b32 v12, s83")
            A("s_lshl_b32 s88, s82, 2")
            A(f"s_add_u32 s88, s88, {2 << 20}")
            A("buffer_store_dword v12, v11, s[20:23], s88 offen")
        A(f"s_add_u32 s81, s81, {stride}")
        A("s_add_u32 s82, s82, 1")
        A(f"s_cmp_lt_u32 s82, {n}")
        A("s_cbranch_scc1 L_mp_loop")
        A("v_mov_b32 v10, 1")
        A("buffer_store_dword v10, v9, s[16:19], 0 offen sc1")
        A("s_branch L_mp_done")
        A("L_mp_wait:")
        A("s_mov_b32 s82, 0")
        A("L_mp_w2:")
        A("s_sleep 32")
        A("buffer_load_dword v10, v9, s[16:19], 0 offen sc1")
        A("s_add_u32 s82, s82, 1")
        A("s_waitcnt vmcnt(0)")
        A("v_readfirstlane_b32 s83, v10")
        A("s_cmp_ge_u32 s82, 200000")
        A("s_cbranch_scc1 L_mp_done")
        A("s_cmp_eq_u32 s83, 0")
        A("s_cbranch_scc1 L_mp_w2")
        A("L_mp_done:")
        A("s_mov_b64 exec, -1")
        A("L_mp_bar:")
        A("s_barrier")
        A("s_mov_b32 s90, s60")
        stamp(0)
        A("s_waitcnt lgkmcnt(0)")
    A("s_cmp_lg_u32 s36, 7")
    A("s_cbranch_scc1 L_noclear")
    A("v_mov_b32 v4, -1"); A("v_mov_b32 v5, -1"); A("v_mov_b32 v6, -1"); A("v_mov_b32 v7, -1")
    A("v_lshlrev_b32 v8, 12, v3")
    A("s_lshl_b32 s42, s2, 4")
    A(f"buffer_store_dwordx4 v[4:7], v8, s[20:23], s42 offen sc1")
    A("s_add_u32 s42, s42, %d" % (64 * 4096))
    A("s_mov_b32 exec_hi, 0")
    A(f"buffer_store_dwordx4 v[4:7], v8, s[20:23], s42 offen sc1")
    A("s_cmp_ge_u32 s2, 96")
    A("s_cbranch_scc1 L_noclearF")
    A(f"s_mov_b32 exec_lo, {(1 << nrep) - 1}")
    A(f"v_mul_u32_u24 v8, {repstride}, v3")
    A("s_lshl_b32 s42, s2, 3")
    A(f"s_add_u32 s42, s42, {W_F}")
    A(f"buffer_store_dwordx2 v[4:5], v8, s[20:23], s42 offen sc1")
    A("L_noclearF:")
    A("s_mov_b64 exec, 1")
    A("v_mov_b32 v9, 0")
    A("v_mov_b32 v10, 1")
    A("s_waitcnt vmcnt(0)")
    A("buffer_atomic_add v10, v9, s[16:19], 0 offen sc1")
    A("s_mov_b64 exec, -1")
    A("L_noclear:")
    ops = []
    for j in range(NL):
        r = VD + 4 * j
        A(f"buffer_load_dwordx4 v[{r}:{r+3}], v1, s[8:11], s3 offen {ld}".rstrip())
        ops.append(("d", j))
        if j != NL - 1:
            A(f"s_add_u32 s3, s3, {s}")
        if probe is not None and j == probe:
            A("s_waitcnt vmcnt(0)")
            stamp(1)
        if j == 3:
            A("s_cmp_ge_u32 s36, 6")
            A("s_cselect_b32 s32, s24, s6")
            A("s_cselect_b32 s33, s25, s7")
            A("s_cselect_b32 s42, 18432, 0")
            A("s_mul_i32 s43, s36, 3072")
            A("s_sub_u32 s42, s43, s42")
            A("s_mov_b32 m0, s43")
            A("v_lshlrev_b32 v2, 4, v3")
            for k in range(3):
                A(f"buffer_load_dwordx4 v2, s[32:35], s42 offen offset:{k*1024} lds")
                ops.append(("w", k))
    A("v_mov_b32 v34, 0")
    A("s_and_b32 s42, s36, 14")
    A("s_cmp_lg_u32 s42, 2")
    A("s_cbranch_scc1 L_nocnt")
    A("buffer_load_dword v34, v34, s[16:19], 0 offen sc1")
    A("L_nocnt:")
    if probe is None: stamp(1)
    S, M, T = 2, 10, 18
    for i in range(8):
        A(f"v_mov_b32 v{S+i}, 0")
        A(f"v_mov_b32 v{M+i}, 0xff800000")
    A("s_mov_b32 s44, 0xffff0000")
    def after(j):
        idx = ops.index(("d", j))
        return len(ops) - 1 - idx
    groups = [(j, j + 1) for j in range(0, NL - 2, 2)] + [(NL - 2,), (NL - 1,)]
    for g in groups:
        A(f"s_waitcnt vmcnt({after(g[-1])})")
        for gi, j in enumerate(g):
            for i in range(4):
                d = VD + 4 * j + i
                t = T + 8 * gi + 2 * i
                A(f"v_lshlrev_b32 v{t}, 16, v{d}")
                A(f"v_and_b32 v{t+1}, s44, v{d}")
        for gi, j in enumerate(g):
            for i in range(4):
                t = T + 8 * gi + 2 * i
                A(f"v_pk_add_f32 v[{S+2*i}:{S+2*i+1}], v[{S+2*i}:{S+2*i+1}], v[{t}:{t+1}]")
        for i in range(8):
            if len(g) == 2:
                A(f"v_max3_f32 v{M+i}, v{M+i}, v{T+i}, v{T+8+i}")
            else:
                A(f"v_max_f32 v{M+i}, v{M+i}, v{T+i}")
    stamp(2)
    A("v_and_b32 v35, 63, v0")
    A("s_nop 0")
    for i in range(4):
        A(f"v_permlane32_swap_b32 v{S+i}, v{S+i+4}")
    for i in range(4):
        A(f"v_permlane32_swap_b32 v{M+i}, v{M+i+4}")
    for i in range(4):
        A(f"v_add_f32 v{S+i}, v{S+i}, v{S+i+4}")
    for i in range(4):
        A(f"v_max_f32 v{M+i}, v{M+i}, v{M+i+4}")
    A("v_and_b32 v36, 7, v35")
    A("v_lshrrev_b32 v37, 3, v35")
    for i in range(2):
        A(f"v_permlane16_swap_b32 v{S+i}, v{S+i+2}")
    for i in range(2):
        A(f"v_permlane16_swap_b32 v{M+i}, v{M+i+2}")
    for i in range(2):
        A(f"v_add_f32 v{S+i}, v{S+i}, v{S+i+2}")
    for i in range(2):
        A(f"v_max_f32 v{M+i}, v{M+i}, v{M+i+2}")
    A("v_lshl_add_u32 v36, v36, 3, v37")
    A("s_mul_i32 s42, s37, 768")
    A("s_lshl_b32 s43, s38, 8")
    A("s_add_u32 s42, s42, s43")
    A(f"s_add_u32 s42, s42, {L_RED}")
    A(f"v_add_f32_dpp v{T}, v{S}, v{S} row_ror:8 row_mask:0xf bank_mask:0x3")
    A(f"v_max_f32_dpp v{T+1}, v{M}, v{M} row_ror:8 row_mask:0xf bank_mask:0x3")
    A("v_lshl_add_u32 v36, v36, 2, s42")
    A(f"v_add_f32_dpp v{T}, v{S+1}, v{S+1} row_ror:8 row_mask:0xf bank_mask:0xc")
    A(f"v_max_f32_dpp v{T+1}, v{M+1}, v{M+1} row_ror:8 row_mask:0xf bank_mask:0xc")
    A(f"ds_write2st64_b32 v36, v{T}, v{T+1} offset0:0 offset1:12")
    A("s_waitcnt lgkmcnt(0)")
    A("s_barrier")
    stamp(3)
    A("s_cmp_ge_u32 s36, 2")
    A("s_cbranch_scc1 L_role2")
    A("s_mul_i32 s42, s36, 3072")
    A(f"s_add_u32 s42, s42, {L_RED}")
    A("s_mov_b32 exec_hi, 0xffff")
    A("v_lshl_add_u32 v36, v35, 4, s42")
    for q in range(4):
        A(f"ds_read_b128 v[{T+4*q}:{T+4*q+3}], v36 offset:{q*768}")
    A("s_mul_i32 s42, s36, %d" % (48 * 4096))
    A("s_lshl_b32 s43, s2, 4")
    A("s_add_u32 s42, s42, s43")
    A("v_lshlrev_b32 v37, 12, v35")
    A("s_cmp_eq_u32 s36, 1")
    A("s_cbranch_scc1 L_pubmax")
    A("s_waitcnt lgkmcnt(2)")
    A(f"v_pk_add_f32 v[{T}:{T+1}], v[{T}:{T+1}], v[{T+4}:{T+5}]")
    A(f"v_pk_add_f32 v[{T+2}:{T+3}], v[{T+2}:{T+3}], v[{T+6}:{T+7}]")
    A("s_waitcnt lgkmcnt(0)")
    A(f"v_pk_add_f32 v[{T+8}:{T+9}], v[{T+8}:{T+9}], v[{T+12}:{T+13}]")
    A(f"v_pk_add_f32 v[{T+10}:{T+11}], v[{T+10}:{T+11}], v[{T+14}:{T+15}]")
    A(f"v_pk_add_f32 v[{T}:{T+1}], v[{T}:{T+1}], v[{T+8}:{T+9}]")
    A(f"v_pk_add_f32 v[{T+2}:{T+3}], v[{T+2}:{T+3}], v[{T+10}:{T+11}]")
    A("s_branch L_pub")
    A("L_pubmax:")
    A("s_waitcnt lgkmcnt(0)")
    for i in range(4):
        A(f"v_max3_f32 v{T+i}, v{T+i}, v{T+4+i}, v{T+8+i}")
    for i in range(4):
        A(f"v_max_f32 v{T+i}, v{T+i}, v{T+12+i}")
    A("L_pub:")
    A(f"buffer_store_dwordx4 v[{T}:{T+3}], v37, s[20:23], s42 offen sc1")
    A("s_mov_b64 exec, -1")
    A("s_branch L_common")
    A("L_role2:")
    A("s_cmp_ge_u32 s36, 4")
    A("s_cbranch_scc1 L_role4")
    A("s_mov_b32 s45, 0")
    A("L_cnt:")
    A("v_readfirstlane_b32 s42, v34")
    A("s_cmp_ge_u32 s42, 256")
    A("s_cbranch_scc1 L_cntok")
    A("v_mov_b32 v34, 0")
    A("buffer_load_dword v34, v34, s[16:19], 0 offen sc1")
    A("s_add_u32 s45, s45, 1")
    A("s_waitcnt vmcnt(0)")
    A(f"s_cmp_lt_u32 s45, {SPIN}")
    A("s_cbranch_scc1 L_cnt")
    A("L_cntok:")
    A("s_cmp_eq_u32 s36, 3")
    A("s_cbranch_scc1 L_pollF")
    A("s_cmp_ge_u32 s2, 96")
    A("s_cbranch_scc1 L_common")
    A("s_lshl_b32 s42, s2, 12")
    A("v_lshlrev_b32 v36, 4, v35")
    A("L_pollA:")
    for k in range(4):
        A(f"buffer_load_dwordx4 v[{T+4*k}:{T+4*k+3}], v36, s[20:23], s42 offen offset:{k*1024} sc1")
    A("s_add_u32 s45, s45, 1")
    A("s_waitcnt vmcnt(3)")
    A(f"v_max3_u32 v2, v{T}, v{T+1}, v{T+2}")
    A("s_waitcnt vmcnt(2)")
    A(f"v_max3_u32 v2, v2, v{T+3}, v{T+4}")
    A(f"v_max3_u32 v2, v2, v{T+5}, v{T+6}")
    A("s_waitcnt vmcnt(1)")
    A(f"v_max3_u32 v2, v2, v{T+7}, v{T+8}")
    A(f"v_max3_u32 v2, v2, v{T+9}, v{T+10}")
    A("s_waitcnt vmcnt(0)")
    A(f"v_max3_u32 v3, v{T+11}, v{T+12}, v{T+13}")
    A(f"v_max3_u32 v2, v2, v{T+14}, v{T+15}")
    A("v_max_u32 v2, v2, v3")
    A("v_cmp_eq_u32 vcc, -1, v2")
    A("s_cbranch_vccz L_gotA")
    if sleepA:
        A(f"s_sleep {sleepA}")
    A(f"s_cmp_lt_u32 s45, {SPIN}")
    A("s_cbranch_scc1 L_pollA")
    A("L_gotA:")
    A("s_cmp_ge_u32 s2, 48")
    A("s_cbranch_scc1 L_redmax")
    def xreduce(op):
        A("s_nop 1")
        A(f"v_permlane32_swap_b32 v{T}, v{T+2}")
        A(f"v_permlane32_swap_b32 v{T+1}, v{T+3}")
        A(f"v_{op}_f32 v2, v{T}, v{T+2}")
        A(f"v_{op}_f32 v3, v{T+1}, v{T+3}")
        A(f"v_{op}_f32 v4, v{T}, v{T+2}")
        A(f"v_{op}_f32 v5, v{T+1}, v{T+3}")
        A("s_nop 0")
        A("v_permlane16_swap_b32 v2, v4")
        A("v_permlane16_swap_b32 v3, v5")
        A(f"v_{op}_f32 v2, v2, v4")
        A(f"v_{op}_f32 v3, v3, v5")
        for r in (8, 4, 2, 1):
            A("s_nop 0")
            A(f"v_{op}_f32_dpp v2, v2, v2 row_ror:{r} row_mask:0xf bank_mask:0xf")
            A(f"v_{op}_f32_dpp v3, v3, v3 row_ror:{r} row_mask:0xf bank_mask:0xf")
    A(f"v_pk_add_f32 v[{T}:{T+1}], v[{T}:{T+1}], v[{T+4}:{T+5}]")
    A(f"v_pk_add_f32 v[{T+2}:{T+3}], v[{T+2}:{T+3}], v[{T+6}:{T+7}]")
    A(f"v_pk_add_f32 v[{T+8}:{T+9}], v[{T+8}:{T+9}], v[{T+12}:{T+13}]")
    A(f"v_pk_add_f32 v[{T+10}:{T+11}], v[{T+10}:{T+11}], v[{T+14}:{T+15}]")
    A(f"v_pk_add_f32 v[{T}:{T+1}], v[{T}:{T+1}], v[{T+8}:{T+9}]")
    A(f"v_pk_add_f32 v[{T+2}:{T+3}], v[{T+2}:{T+3}], v[{T+10}:{T+11}]")
    xreduce("add")
    A("v_mul_f32 v2, 0x36800000, v2")
    A("v_mul_f32 v3, 0x36800000, v3")
    A("s_branch L_pubF")
    A("L_redmax:")
    for i in range(4):
        A(f"v_max3_f32 v{T+i}, v{T+i}, v{T+4+i}, v{T+8+i}")
    for i in range(4):
        A(f"v_max_f32 v{T+i}, v{T+i}, v{T+12+i}")
    xreduce("max")
    A("L_pubF:")
    A("v_and_b32 v4, 31, v35")
    A(f"v_mul_u32_u24 v4, {repstride}, v4")
    A("v_lshrrev_b32 v5, 5, v35")
    A("v_cvt_pk_bf16_f32 v2, v2, v3")
    A("v_lshl_add_u32 v4, v5, 2, v4")
    A("v_min_u32 v2, -2, v2")
    A("s_lshl_b32 s42, s2, 3")
    A(f"s_add_u32 s42, s42, {W_F}")
    m = (1 << nrep) - 1
    A(f"s_mov_b32 exec_lo, {m}")
    A(f"s_mov_b32 exec_hi, {m}")
    A("buffer_store_dword v2, v4, s[20:23], s42 offen sc1")
    A("s_mov_b64 exec, -1")
    A("s_branch L_common")
    A("L_pollF:")
    A(f"s_and_b32 s42, s2, {nrep-1}")
    A(f"s_mul_i32 s42, s42, {repstride}")
    A(f"s_add_u32 s42, s42, {W_F}")
    A("v_lshlrev_b32 v36, 4, v35")
    A("s_mov_b32 exec_hi, 0xffff")
    A("L_pollF2:")
    A(f"buffer_load_dwordx4 v[{T}:{T+3}], v36, s[20:23], s42 offen sc1")
    A("s_add_u32 s45, s45, 1")
    A("s_waitcnt vmcnt(0)")
    A(f"v_max3_u32 v2, v{T}, v{T+1}, v{T+2}")
    A(f"v_max_u32 v2, v2, v{T+3}")
    A("v_cmp_eq_u32 vcc, -1, v2")
    A("s_cbranch_vccz L_gotF")
    if sleepF:
        A(f"s_sleep {sleepF}")
    A(f"s_cmp_lt_u32 s45, {SPIN}")
    A("s_cbranch_scc1 L_pollF2")
    A("L_gotF:")
    A(f"ds_write_b128 v36, v[{T}:{T+3}] offset:{L_G}")
    A("s_mov_b64 exec, -1")
    A("s_branch L_common")
    A("L_role4:")
    A("s_cmp_ge_u32 s36, 7")
    A("s_cbranch_scc1 L_common")
    A("s_sub_u32 s46, s36, 4")
    A("s_mul_i32 s42, s46, 6144")
    A(f"s_add_u32 s42, s42, {L_SP}")
    A("v_lshl_add_u32 v38, v35, 4, s42")
    VS = VD + 4 * (NL - 6)
    for k in range(6):
        A(f"ds_write_b128 v38, v[{VS+4*k}:{VS+4*k+3}] offset:{k*1024}")
    A("v_lshrrev_b32 v2, 4, v35")
    A("v_lshlrev_b32 v2, 3, v2")
    A("v_bfe_u32 v3, v35, 2, 2")
    A("v_add_u32 v2, v2, v3")
    A("v_mul_u32_u24 v2, 96, v2")
    A("v_and_b32 v3, 3, v35")
    A("v_lshl_add_u32 v2, v3, 3, v2")
    A("s_lshl_b32 s42, s46, 5")
    A("v_add_u32 v2, s42, v2")
    A("s_waitcnt lgkmcnt(0)")
    for k in range(6):
        A(f"ds_read_b64_tr_b16 v[{VS+4*k}:{VS+4*k+1}], v2 offset:{L_W1 + k*3072}")
        A(f"ds_read_b64_tr_b16 v[{VS+4*k+2}:{VS+4*k+3}], v2 offset:{L_W1 + k*3072 + 384}")
    A("v_and_b32 v2, 1, v35")
    A("v_mul_u32_u24 v2, 384, v2")
    A("v_lshrrev_b32 v3, 4, v35")
    A("v_lshl_add_u32 v39, v3, 4, v2")
    A("L_common:")
    A("v_lshrrev_b32 v2, 2, v35")
    A("v_mul_u32_u24 v2, 384, v2")
    A("v_and_b32 v3, 3, v35")
    A("v_lshl_add_u32 v2, v3, 3, v2")
    A("s_lshl_b32 s42, s36, 5")
    A("v_add_u32 v2, s42, v2")
    W2F = 28
    for k in range(3):
        A(f"ds_read_b64_tr_b16 v[{W2F+2*k}:{W2F+2*k+1}], v2 offset:{L_W2 + k*6144}")
    A("v_lshlrev_b32 v37, 3, v35")
    A("s_waitcnt lgkmcnt(0)")
    A("s_barrier")
    stamp(4)
    A("s_sub_u32 s42, s36, 4")
    A("s_cmp_ge_u32 s42, 3")
    A("s_cbranch_scc1 L_l2")
    BF = 4
    for k in range(6):
        A(f"ds_read_b128 v[{BF+4*k}:{BF+4*k+3}], v39 offset:{L_G + k*64}")
    A("s_lshl_b32 s42, s42, 9")
    A("v_add_u32 v36, s42, v37")
    for k in range(6):
        A(f"s_waitcnt lgkmcnt({5-k})")
        c = "0" if k == 0 else f"v[{BF}:{BF+3}]"
        if k == 0:
            A(f"v_mfma_f32_16x16x32_bf16 v[0:3], v[{VS}:{VS+3}], v[{BF}:{BF+3}], 0")
        else:
            A(f"v_mfma_f32_16x16x32_bf16 v[0:3], v[{VS+4*k}:{VS+4*k+3}], v[{BF+4*k}:{BF+4*k+3}], v[0:3]")
    A("s_nop 7")
    A("v_cvt_pk_bf16_f32 v4, v0, v1")
    A("v_cvt_pk_bf16_f32 v5, v2, v3")
    A("v_lshlrev_b32 v0, 16, v4"); A("v_and_b32 v1, s44, v4")
    A("v_lshlrev_b32 v2, 16, v5"); A("v_and_b32 v3, s44, v5")
    for i in range(4):
        A(f"v_cmp_lt_f32 s[{48+2*i}:{49+2*i}], 0, v{i}")
    for i in range(4):
        A(f"v_cndmask_b32 v{6+i}, 0, 1.0, s[{48+2*i}:{49+2*i}]")
    A("v_pk_mul_f32 v[0:1], v[0:1], v[6:7]")
    A("v_pk_mul_f32 v[2:3], v[2:3], v[8:9]")
    A("v_cvt_pk_bf16_f32 v4, v0, v1")
    A("v_cvt_pk_bf16_f32 v5, v2, v3")
    A(f"ds_write_b64 v36, v[4:5] offset:{L_H}")
    A("v_lshrrev_b32 v6, 3, v35")
    A("v_mul_u32_u24 v6, 384, v6")
    A("v_and_b32 v7, 7, v35")
    A("v_lshl_add_u32 v1, v7, 4, v6")
    A("s_waitcnt lgkmcnt(0)")
    A("L_l2:")
    A("s_barrier")
    for k in range(3):
        A(f"ds_read_b64 v[{4+2*k}:{5+2*k}], v37 offset:{L_H + k*512}")
    A("v_bfe_u32 v2, v35, 1, 2")
    A("v_cmp_eq_u32 s[48:49], 1, v2")
    A("v_cmp_eq_u32 s[50:51], 2, v2")
    A("v_cmp_eq_u32 s[52:53], 3, v2")
    A("v_lshrrev_b32 v3, 4, v35")
    A("v_lshl_add_u32 v2, v3, 2, v2")
    A("s_lshl_b32 s42, s36, 6")
    A("v_lshl_add_u32 v36, v2, 2, s42")
    for k in range(3):
        A(f"s_waitcnt lgkmcnt({2-k})")
        c = "0" if k == 0 else "v[12:15]"
        A(f"v_mfma_f32_16x16x16_bf16 v[12:15], v[{W2F+2*k}:{W2F+2*k+1}], v[{4+2*k}:{5+2*k}], {c}")
    A("v_and_b32 v2, 7, v35")
    A("s_lshl_b32 s42, s38, 8")
    A("v_lshl_add_u32 v39, v2, 5, s42")
    A("s_mov_b32 s43, 0xbfb8aa3b")
    A("s_nop 4")
    A("v_cndmask_b32 v12, v12, v13, s[48:49]")
    A("v_cndmask_b32 v12, v12, v14, s[50:51]")
    A("v_cndmask_b32 v12, v12, v15, s[52:53]")
    A("v_cvt_pk_bf16_f32 v12, v12, v12")
    A("v_and_b32 v12, s44, v12")
    A("s_nop 1")
    A("v_add_f32_dpp v12, v12, v12 quad_perm:[1,0,3,2] row_mask:0xf bank_mask:0xf")
    A("v_cvt_pk_bf16_f32 v12, v12, v12")
    A("v_and_b32 v12, s44, v12")
    A("v_mul_f32 v12, s43, v12")
    A("v_exp_f32 v12, v12")
    A("s_nop 0")
    A("v_add_f32 v12, 1.0, v12")
    A("v_rcp_f32 v12, v12")
    A("s_nop 0")
    A("v_cvt_pk_bf16_f32 v12, v12, v12")
    A("v_and_b32 v12, s44, v12")
    A(f"ds_write_b32 v36, v12 offset:{L_SC}")
    A("s_waitcnt lgkmcnt(0)")
    A("s_barrier")
    SCR = 2
    A(f"ds_read_b128 v[{SCR}:{SCR+3}], v39 offset:{L_SC}")
    A(f"ds_read_b128 v[{SCR+4}:{SCR+7}], v39 offset:{L_SC+16}")
    stamp(5)
    A("s_mov_b32 s3, s41")
    T2 = 10
    first = True
    for j in range(NL):
        tb = T2 + 8 * (j % 3)
        for i in range(4):
            d = VD + 4 * j + i
            A(f"v_lshlrev_b32 v{tb+2*i}, 16, v{d}")
            A(f"v_and_b32 v{tb+2*i+1}, s44, v{d}")
        if first:
            A("s_waitcnt lgkmcnt(0)")
            first = False
        for i in range(4):
            A(f"v_pk_mul_f32 v[{tb+2*i}:{tb+2*i+1}], v[{tb+2*i}:{tb+2*i+1}], v[{SCR+2*i}:{SCR+2*i+1}]")
        for i in range(4):
            d = VD + 4 * j + i
            A(f"v_cvt_pk_bf16_f32 v{d}, v{tb+2*i}, v{tb+2*i+1}")
        r = VD + 4 * j
        A(f"buffer_store_dwordx4 v[{r}:{r+3}], v1, s[12:15], s3 offen {st}".rstrip())
        if j != NL - 1:
            A(f"s_add_u32 s3, s3, {s}")
        if j == 0:
            A("s_sub_u32 s42, s36, 4")
            A("s_cmp_ge_u32 s42, 3")
            A("s_cbranch_scc1 L_noreload")
            for k in range(6):
                A(f"ds_read_b128 v[{VS+4*k}:{VS+4*k+3}], v38 offset:{k*1024}")
            A("L_noreload:")
        if j == NL - 7:
            A("s_waitcnt lgkmcnt(0)")
    if stamps:
        stamp(6)
        A("s_waitcnt vmcnt(0)")
        stamp(7)
        A("s_waitcnt lgkmcnt(0)")
        A("s_mov_b64 exec, 1")
        if diag:
            idx, mul, base = diag[:3]
            dwg = diag[3] if len(diag) > 3 else 0
            A("s_barrier")
            A("s_cmp_lg_u32 s36, 0")
            A("s_cbranch_scc1 L_end")
            A("v_mov_b32 v9, 4")
            A("v_mov_b32 v10, 1")
            A("buffer_atomic_add v10, v9, s[16:19], 0 offen sc1")
            A(f"s_cmp_lg_u32 s2, {dwg}")
            A("s_cbranch_scc1 L_end")
            A("s_mov_b32 s45, 0")
            A("L_dg1:")
            A("buffer_load_dword v10, v9, s[16:19], 0 offen sc1")
            A("s_add_u32 s45, s45, 1")
            A("s_waitcnt vmcnt(0)")
            A("v_readfirstlane_b32 s42, v10")
            A(f"s_cmp_ge_u32 s45, {SPIN}")
            A("s_cbranch_scc1 L_dg2")
            A("s_cmp_lt_u32 s42, 256")
            A("s_cbranch_scc1 L_dg1")
            A("L_dg2:")
            A("s_memrealtime s[76:77]")
            A("s_waitcnt lgkmcnt(0)")
            if idx >= 0:
                A(f"s_sub_u32 s42, s{60+2*idx}, s60")
            else:
                A("s_mov_b32 s42, s80")
            A(f"s_mul_i32 s42, s42, {mul}")
            A(f"s_add_u32 s42, s42, {base}")
            A("s_min_u32 s42, s42, 200000")
            if want is not None:
                A("s_cmp_ge_u32 s89, 2")
                A("s_cselect_b32 s42, s42, 0" if want else "s_cselect_b32 s42, 0, s42")
            A("L_dg3:")
            A("s_memrealtime s[78:79]")
            A("s_waitcnt lgkmcnt(0)")
            A("s_sub_u32 s43, s78, %s" % ("s90" if mprobe else "s60"))
            A("s_cmp_lt_u32 s43, s42")
            A("s_cbranch_scc1 L_dg3")
            A("s_branch L_end")
        A("s_mul_i32 s3, s2, 12")
        A("s_add_u32 s3, s3, s36")
        A("s_lshl_b32 s3, s3, 5")
        A(f"s_add_u32 s3, s3, {W_ST}")
        A("v_mov_b32 v1, 0")
        for i in range(8):
            A(f"v_mov_b32 v{4+i}, s{60+2*i}")
        A("buffer_store_dwordx4 v[4:7], v1, s[20:23], s3 offen")
        A("buffer_store_dwordx4 v[8:11], v1, s[20:23], s3 offen offset:16")
    A("L_end:")
    A("s_endpgm")
    A('.section .rodata,"a"')
    A(".p2align 6")
    A(".amdhsa_kernel standalone__channel_attn_cbam__vision_kernel")
    A("  .amdhsa_next_free_vgpr 168")
    A("  .amdhsa_next_free_sgpr 96")
    A("  .amdhsa_accum_offset 168")
    A("  .amdhsa_group_segment_fixed_size 0")
    A("  .amdhsa_kernarg_size 48")
    A("  .amdhsa_user_sgpr_count 2")
    A("  .amdhsa_user_sgpr_kernarg_segment_ptr 1")
    A("  .amdhsa_system_sgpr_workgroup_id_x 1")
    A("  .amdhsa_float_denorm_mode_32 3")
    A(".end_amdhsa_kernel")
    out = []
    for line in L:
        if line.startswith(("s_", "v_", "ds_", "buffer_")):
            out.append("    " + line)
        else:
            out.append(line)
    return "\n".join(out) + "\n"

if __name__ == "__main__":
    cfg = json.loads(sys.argv[1]) if len(sys.argv) > 1 else {}
    sys.stdout.write(gen(**cfg))
```

```python
import sys, json

HEADER = """; CBAM channel attention, x kept in registers across a grid-wide reduction (single pass over HBM)
"""

def gen(pat="contig", ld="nt", st="", nrep=8, repstride=4096, stamps=0, sleepA=0, sleepF=0, pat_st=None, diag=None, probe=None, mprobe=None, want=None, predelay=None):
    if diag: stamps = 1
    NW = 12
    NL = 32
    VD = 40
    XB = 100663296
    L_W1, L_W2 = 0, 18432
    L_RED = 36864
    L_G = L_RED + 6144
    L_H = L_G + 768
    L_SC = L_H + 1536
    L_SP = L_SC + 768
    L_END = L_SP + 3 * 6144
    W_A = 0
    W_F = 96 * 4096
    W_ST = 1 << 20
    SPIN = 1 << 20
    step = NW * 1024
    L = []
    A = L.append
    def stamp(i):
        if stamps:
            A(f"s_memrealtime s[{60+2*i}:{61+2*i}]")
    A(HEADER.rstrip())
    A(f"; @launch grid=(256,1,1) block=({NW*64},1,1) lds={L_END}")
    A('.amdgcn_target "amdgcn-amd-amdhsa--gfx950"')
    A(".text")
    A(".globl standalone__channel_attn_cbam__vision_kernel")
    A(".p2align 8")
    A(".type standalone__channel_attn_cbam__vision_kernel,@function")
    A("standalone__channel_attn_cbam__vision_kernel:")
    stamp(0)
    A("s_load_dwordx4 s[4:7], s[0:1], 0")
    A("s_load_dwordx4 s[24:27], s[0:1], 16")
    A("s_load_dwordx4 s[28:31], s[0:1], 32")
    A("s_cmp_ge_u32 s2, 256")
    A("s_cbranch_scc1 L_end")
    A("v_lshrrev_b32 v2, 6, v0")
    A("v_and_b32 v3, 63, v0")
    A("v_readfirstlane_b32 s36, v2")
    A("v_lshrrev_b32 v4, 3, v3")
    A("v_mul_u32_u24 v4, 384, v4")
    A("v_and_b32 v5, 7, v3")
    A("v_lshl_add_u32 v1, v5, 4, v4")
    A("s_mul_i32 s37, s36, 43691")
    A("s_lshr_b32 s37, s37, 17")
    A("s_mul_i32 s38, s37, 3")
    A("s_sub_u32 s38, s36, s38")
    A("s_mul_i32 s39, s37, 3072")
    A("s_lshl_b32 s40, s38, 7")
    A("s_add_u32 s39, s39, s40")
    def base_stride(p):
        if p == "contig":
            return 393216, step
        if p == "inter":
            return step, 256 * step
        raise ValueError
    b, s = base_stride(pat)
    A(f"s_mul_i32 s41, s2, {b}")
    A("s_add_u32 s41, s41, s39")
    A("s_mov_b32 s3, s41")
    A("s_mov_b32 s10, %d" % XB); A("s_mov_b32 s11, 0x20000")
    A("s_mov_b32 s14, %d" % XB); A("s_mov_b32 s15, 0x20000")
    A("s_mov_b32 s18, 256"); A("s_mov_b32 s19, 0x20000")
    A("s_mov_b32 s22, 402653184"); A("s_mov_b32 s23, 0x20000")
    A("s_mov_b32 s34, 18432"); A("s_mov_b32 s35, 0x20000")
    A("s_waitcnt lgkmcnt(0)")
    A("s_mov_b32 s8, s4"); A("s_mov_b32 s9, s5")
    A("s_mov_b32 s12, s26"); A("s_mov_b32 s13, s27")
    A("s_mov_b32 s16, s28"); A("s_mov_b32 s17, s29")
    A("s_mov_b32 s20, s30"); A("s_mov_b32 s21, s31")
    if mprobe:
        buf, start, stride, n, thr, warm, pol = mprobe
        srd = {"x": "s[8:11]", "out": "s[12:15]", "ws": "s[20:23]"}[buf]
        A("s_mov_b32 s80, 0")
        A("s_cmp_lg_u32 s36, 0")
        A("s_cbranch_scc1 L_mp_bar")
        A("s_mov_b64 exec, 1")
        A("v_mov_b32 v9, 8")
        A("s_cmp_lg_u32 s2, 0")
        A("s_cbranch_scc1 L_mp_wait")
        A("v_mov_b32 v11, 0")
        A("s_sleep 127")
        if want is not None:
            A("s_mov_b32 s81, 8192")
            A("s_mov_b32 s82, 0")
            A("s_mov_b32 s89, 0")
            A("L_sp_loop:")
            A(f"buffer_load_dword v10, v11, s[8:11], s81 offen offset:1024")
            A("s_waitcnt vmcnt(0)")
            A("s_memtime s[84:85]")
            A("s_waitcnt lgkmcnt(0)")
            A(f"buffer_load_dword v10, v11, s[8:11], s81 offen")
            A("s_waitcnt vmcnt(0)")
            A("s_memtime s[86:87]")
            A("s_waitcnt lgkmcnt(0)")
            A("s_sub_u32 s83, s86, s84")
            A(f"s_cmp_lt_u32 s83, 560")
            A("s_cselect_b32 s83, 1, 0")
            A("s_add_u32 s89, s89, s83")
            A(f"s_add_u32 s81, s81, {6160384+4096+128}")
            A("s_add_u32 s82, s82, 1")
            A(f"s_cmp_lt_u32 s82, 16")
            A("s_cbranch_scc1 L_sp_loop")
        A(f"s_mov_b32 s81, {start}")
        A("s_mov_b32 s82, 0")
        A("L_mp_loop:")
        A(f"buffer_load_dword v10, v11, {srd}, s81 offen offset:{warm} {pol}")
        A("s_waitcnt vmcnt(0)")
        A("s_memtime s[84:85]")
        A("s_waitcnt lgkmcnt(0)")
        A(f"buffer_load_dword v10, v11, {srd}, s81 offen {pol}")
        A("s_waitcnt vmcnt(0)")
        A("s_memtime s[86:87]")
        A("s_waitcnt lgkmcnt(0)")
        A("s_sub_u32 s83, s86, s84")
        if thr > 0:
            A(f"s_cmp_lt_u32 s83, {thr}")
            A("s_cselect_b32 s83, 1, 0")
        A("s_add_u32 s80, s80, s83")
        if not diag:
            A("v_mov_b32 v12, s83")
            A("s_lshl_b32 s88, s82, 2")
            A(f"s_add_u32 s88, s88, {2 << 20}")
            A("buffer_store_dword v12, v11, s[20:23], s88 offen")
        A(f"s_add_u32 s81, s81, {stride}")
        A("s_add_u32 s82, s82, 1")
        A(f"s_cmp_lt_u32 s82, {n}")
        A("s_cbranch_scc1 L_mp_loop")
        A("v_mov_b32 v10, 1")
        A("buffer_store_dword v10, v9, s[16:19], 0 offen sc1")
        A("s_branch L_mp_done")
        A("L_mp_wait:")
        A("s_mov_b32 s82, 0")
        A("L_mp_w2:")
        A("s_sleep 32")
        A("buffer_load_dword v10, v9, s[16:19], 0 offen sc1")
        A("s_add_u32 s82, s82, 1")
        A("s_waitcnt vmcnt(0)")
        A("v_readfirstlane_b32 s83, v10")
        A("s_cmp_ge_u32 s82, 200000")
        A("s_cbranch_scc1 L_mp_done")
        A("s_cmp_eq_u32 s83, 0")
        A("s_cbranch_scc1 L_mp_w2")
        A("L_mp_done:")
        A("s_mov_b64 exec, -1")
        A("L_mp_bar:")
        A("s_barrier")
        A("s_mov_b32 s90, s60")
        stamp(0)
        A("s_waitcnt lgkmcnt(0)")
    if predelay is not None:
        A("s_mov_b32 s90, s60")
        A("L_pd:")
        A("s_sleep 1")
        A("s_memrealtime s[60:61]")
        A("s_waitcnt lgkmcnt(0)")
        A("s_sub_u32 s43, s60, s90")
        A(f"s_cmp_lt_u32 s43, {predelay}")
        A("s_cbranch_scc1 L_pd")
    A("s_cmp_lg_u32 s36, 7")
    A("s_cbranch_scc1 L_noclear")
    A("v_mov_b32 v4, -1"); A("v_mov_b32 v5, -1"); A("v_mov_b32 v6, -1"); A("v_mov_b32 v7, -1")
    A("v_lshlrev_b32 v8, 12, v3")
    A("s_lshl_b32 s42, s2, 4")
    A(f"buffer_store_dwordx4 v[4:7], v8, s[20:23], s42 offen sc1")
    A("s_add_u32 s42, s42, %d" % (64 * 4096))
    A("s_mov_b32 exec_hi, 0")
    A(f"buffer_store_dwordx4 v[4:7], v8, s[20:23], s42 offen sc1")
    A("s_cmp_ge_u32 s2, 96")
    A("s_cbranch_scc1 L_noclearF")
    A(f"s_mov_b32 exec_lo, {(1 << nrep) - 1}")
    A(f"v_mul_u32_u24 v8, {repstride}, v3")
    A("s_lshl_b32 s42, s2, 3")
    A(f"s_add_u32 s42, s42, {W_F}")
    A(f"buffer_store_dwordx2 v[4:5], v8, s[20:23], s42 offen sc1")
    A("L_noclearF:")
    A("s_mov_b64 exec, 1")
    A("v_mov_b32 v9, 0")
    A("v_mov_b32 v10, 1")
    A("s_waitcnt vmcnt(0)")
    A("buffer_atomic_add v10, v9, s[16:19], 0 offen sc1")
    A("s_mov_b64 exec, -1")
    A("L_noclear:")
    ops = []
    for j in range(NL):
        r = VD + 4 * j
        A(f"buffer_load_dwordx4 v[{r}:{r+3}], v1, s[8:11], s3 offen {ld}".rstrip())
        ops.append(("d", j))
        if j != NL - 1:
            A(f"s_add_u32 s3, s3, {s}")
        if probe is not None and j == probe:
            A("s_waitcnt vmcnt(0)")
            stamp(1)
        if j == 3:
            A("s_cmp_ge_u32 s36, 6")
            A("s_cselect_b32 s32, s24, s6")
            A("s_cselect_b32 s33, s25, s7")
            A("s_cselect_b32 s42, 18432, 0")
            A("s_mul_i32 s43, s36, 3072")
            A("s_sub_u32 s42, s43, s42")
            A("s_mov_b32 m0, s43")
            A("v_lshlrev_b32 v2, 4, v3")
            for k in range(3):
                A(f"buffer_load_dwordx4 v2, s[32:35], s42 offen offset:{k*1024} lds")
                ops.append(("w", k))
    A("v_mov_b32 v34, 0")
    A("s_and_b32 s42, s36, 14")
    A("s_cmp_lg_u32 s42, 2")
    A("s_cbranch_scc1 L_nocnt")
    A("buffer_load_dword v34, v34, s[16:19], 0 offen sc1")
    A("L_nocnt:")
    if probe is None: stamp(1)
    S, M, T = 2, 10, 18
    for i in range(8):
        A(f"v_mov_b32 v{S+i}, 0")
        A(f"v_mov_b32 v{M+i}, 0xff800000")
    A("s_mov_b32 s44, 0xffff0000")
    def after(j):
        idx = ops.index(("d", j))
        return len(ops) - 1 - idx
    groups = [(j, j + 1) for j in range(0, NL - 2, 2)] + [(NL - 2,), (NL - 1,)]
    for g in groups:
        A(f"s_waitcnt vmcnt({after(g[-1])})")
        for gi, j in enumerate(g):
            for i in range(4):
                d = VD + 4 * j + i
                t = T + 8 * gi + 2 * i
                A(f"v_lshlrev_b32 v{t}, 16, v{d}")
                A(f"v_and_b32 v{t+1}, s44, v{d}")
        for gi, j in enumerate(g):
            for i in range(4):
                t = T + 8 * gi + 2 * i
                A(f"v_pk_add_f32 v[{S+2*i}:{S+2*i+1}], v[{S+2*i}:{S+2*i+1}], v[{t}:{t+1}]")
        for i in range(8):
            if len(g) == 2:
                A(f"v_max3_f32 v{M+i}, v{M+i}, v{T+i}, v{T+8+i}")
            else:
                A(f"v_max_f32 v{M+i}, v{M+i}, v{T+i}")
    stamp(2)
    A("v_and_b32 v35, 63, v0")
    A("s_nop 0")
    for i in range(4):
        A(f"v_permlane32_swap_b32 v{S+i}, v{S+i+4}")
    for i in range(4):
        A(f"v_permlane32_swap_b32 v{M+i}, v{M+i+4}")
    for i in range(4):
        A(f"v_add_f32 v{S+i}, v{S+i}, v{S+i+4}")
    for i in range(4):
        A(f"v_max_f32 v{M+i}, v{M+i}, v{M+i+4}")
    A("v_and_b32 v36, 7, v35")
    A("v_lshrrev_b32 v37, 3, v35")
    for i in range(2):
        A(f"v_permlane16_swap_b32 v{S+i}, v{S+i+2}")
    for i in range(2):
        A(f"v_permlane16_swap_b32 v{M+i}, v{M+i+2}")
    for i in range(2):
        A(f"v_add_f32 v{S+i}, v{S+i}, v{S+i+2}")
    for i in range(2):
        A(f"v_max_f32 v{M+i}, v{M+i}, v{M+i+2}")
    A("v_lshl_add_u32 v36, v36, 3, v37")
    A("s_mul_i32 s42, s37, 768")
    A("s_lshl_b32 s43, s38, 8")
    A("s_add_u32 s42, s42, s43")
    A(f"s_add_u32 s42, s42, {L_RED}")
    A(f"v_add_f32_dpp v{T}, v{S}, v{S} row_ror:8 row_mask:0xf bank_mask:0x3")
    A(f"v_max_f32_dpp v{T+1}, v{M}, v{M} row_ror:8 row_mask:0xf bank_mask:0x3")
    A("v_lshl_add_u32 v36, v36, 2, s42")
    A(f"v_add_f32_dpp v{T}, v{S+1}, v{S+1} row_ror:8 row_mask:0xf bank_mask:0xc")
    A(f"v_max_f32_dpp v{T+1}, v{M+1}, v{M+1} row_ror:8 row_mask:0xf bank_mask:0xc")
    A(f"ds_write2st64_b32 v36, v{T}, v{T+1} offset0:0 offset1:12")
    A("s_waitcnt lgkmcnt(0)")
    A("s_barrier")
    stamp(3)
    A("s_cmp_ge_u32 s36, 2")
    A("s_cbranch_scc1 L_role2")
    A("s_mul_i32 s42, s36, 3072")
    A(f"s_add_u32 s42, s42, {L_RED}")
    A("s_mov_b32 exec_hi, 0xffff")
    A("v_lshl_add_u32 v36, v35, 4, s42")
    for q in range(4):
        A(f"ds_read_b128 v[{T+4*q}:{T+4*q+3}], v36 offset:{q*768}")
    A("s_mul_i32 s42, s36, %d" % (48 * 4096))
    A("s_lshl_b32 s43, s2, 4")
    A("s_add_u32 s42, s42, s43")
    A("v_lshlrev_b32 v37, 12, v35")
    A("s_cmp_eq_u32 s36, 1")
    A("s_cbranch_scc1 L_pubmax")
    A("s_waitcnt lgkmcnt(2)")
    A(f"v_pk_add_f32 v[{T}:{T+1}], v[{T}:{T+1}], v[{T+4}:{T+5}]")
    A(f"v_pk_add_f32 v[{T+2}:{T+3}], v[{T+2}:{T+3}], v[{T+6}:{T+7}]")
    A("s_waitcnt lgkmcnt(0)")
    A(f"v_pk_add_f32 v[{T+8}:{T+9}], v[{T+8}:{T+9}], v[{T+12}:{T+13}]")
    A(f"v_pk_add_f32 v[{T+10}:{T+11}], v[{T+10}:{T+11}], v[{T+14}:{T+15}]")
    A(f"v_pk_add_f32 v[{T}:{T+1}], v[{T}:{T+1}], v[{T+8}:{T+9}]")
    A(f"v_pk_add_f32 v[{T+2}:{T+3}], v[{T+2}:{T+3}], v[{T+10}:{T+11}]")
    A("s_branch L_pub")
    A("L_pubmax:")
    A("s_waitcnt lgkmcnt(0)")
    for i in range(4):
        A(f"v_max3_f32 v{T+i}, v{T+i}, v{T+4+i}, v{T+8+i}")
    for i in range(4):
        A(f"v_max_f32 v{T+i}, v{T+i}, v{T+12+i}")
    A("L_pub:")
    A(f"buffer_store_dwordx4 v[{T}:{T+3}], v37, s[20:23], s42 offen sc1")
    A("s_mov_b64 exec, -1")
    A("s_branch L_common")
    A("L_role2:")
    A("s_cmp_ge_u32 s36, 4")
    A("s_cbranch_scc1 L_role4")
    A("s_mov_b32 s45, 0")
    A("L_cnt:")
    A("v_readfirstlane_b32 s42, v34")
    A("s_cmp_ge_u32 s42, 256")
    A("s_cbranch_scc1 L_cntok")
    A("v_mov_b32 v34, 0")
    A("buffer_load_dword v34, v34, s[16:19], 0 offen sc1")
    A("s_add_u32 s45, s45, 1")
    A("s_waitcnt vmcnt(0)")
    A(f"s_cmp_lt_u32 s45, {SPIN}")
    A("s_cbranch_scc1 L_cnt")
    A("L_cntok:")
    A("s_cmp_eq_u32 s36, 3")
    A("s_cbranch_scc1 L_pollF")
    A("s_cmp_ge_u32 s2, 96")
    A("s_cbranch_scc1 L_common")
    A("s_lshl_b32 s42, s2, 12")
    A("v_lshlrev_b32 v36, 4, v35")
    A("L_pollA:")
    for k in range(4):
        A(f"buffer_load_dwordx4 v[{T+4*k}:{T+4*k+3}], v36, s[20:23], s42 offen offset:{k*1024} sc1")
    A("s_add_u32 s45, s45, 1")
    A("s_waitcnt vmcnt(3)")
    A(f"v_max3_u32 v2, v{T}, v{T+1}, v{T+2}")
    A("s_waitcnt vmcnt(2)")
    A(f"v_max3_u32 v2, v2, v{T+3}, v{T+4}")
    A(f"v_max3_u32 v2, v2, v{T+5}, v{T+6}")
    A("s_waitcnt vmcnt(1)")
    A(f"v_max3_u32 v2, v2, v{T+7}, v{T+8}")
    A(f"v_max3_u32 v2, v2, v{T+9}, v{T+10}")
    A("s_waitcnt vmcnt(0)")
    A(f"v_max3_u32 v3, v{T+11}, v{T+12}, v{T+13}")
    A(f"v_max3_u32 v2, v2, v{T+14}, v{T+15}")
    A("v_max_u32 v2, v2, v3")
    A("v_cmp_eq_u32 vcc, -1, v2")
    A("s_cbranch_vccz L_gotA")
    if sleepA:
        A(f"s_sleep {sleepA}")
    A(f"s_cmp_lt_u32 s45, {SPIN}")
    A("s_cbranch_scc1 L_pollA")
    A("L_gotA:")
    A("s_cmp_ge_u32 s2, 48")
    A("s_cbranch_scc1 L_redmax")
    def xreduce(op):
        A("s_nop 1")
        A(f"v_permlane32_swap_b32 v{T}, v{T+2}")
        A(f"v_permlane32_swap_b32 v{T+1}, v{T+3}")
        A(f"v_{op}_f32 v2, v{T}, v{T+2}")
        A(f"v_{op}_f32 v3, v{T+1}, v{T+3}")
        A(f"v_{op}_f32 v4, v{T}, v{T+2}")
        A(f"v_{op}_f32 v5, v{T+1}, v{T+3}")
        A("s_nop 0")
        A("v_permlane16_swap_b32 v2, v4")
        A("v_permlane16_swap_b32 v3, v5")
        A(f"v_{op}_f32 v2, v2, v4")
        A(f"v_{op}_f32 v3, v3, v5")
        for r in (8, 4, 2, 1):
            A("s_nop 0")
            A(f"v_{op}_f32_dpp v2, v2, v2 row_ror:{r} row_mask:0xf bank_mask:0xf")
            A(f"v_{op}_f32_dpp v3, v3, v3 row_ror:{r} row_mask:0xf bank_mask:0xf")
    A(f"v_pk_add_f32 v[{T}:{T+1}], v[{T}:{T+1}], v[{T+4}:{T+5}]")
    A(f"v_pk_add_f32 v[{T+2}:{T+3}], v[{T+2}:{T+3}], v[{T+6}:{T+7}]")
    A(f"v_pk_add_f32 v[{T+8}:{T+9}], v[{T+8}:{T+9}], v[{T+12}:{T+13}]")
    A(f"v_pk_add_f32 v[{T+10}:{T+11}], v[{T+10}:{T+11}], v[{T+14}:{T+15}]")
    A(f"v_pk_add_f32 v[{T}:{T+1}], v[{T}:{T+1}], v[{T+8}:{T+9}]")
    A(f"v_pk_add_f32 v[{T+2}:{T+3}], v[{T+2}:{T+3}], v[{T+10}:{T+11}]")
    xreduce("add")
    A("v_mul_f32 v2, 0x36800000, v2")
    A("v_mul_f32 v3, 0x36800000, v3")
    A("s_branch L_pubF")
    A("L_redmax:")
    for i in range(4):
        A(f"v_max3_f32 v{T+i}, v{T+i}, v{T+4+i}, v{T+8+i}")
    for i in range(4):
        A(f"v_max_f32 v{T+i}, v{T+i}, v{T+12+i}")
    xreduce("max")
    A("L_pubF:")
    A("v_and_b32 v4, 31, v35")
    A(f"v_mul_u32_u24 v4, {repstride}, v4")
    A("v_lshrrev_b32 v5, 5, v35")
    A("v_cvt_pk_bf16_f32 v2, v2, v3")
    A("v_lshl_add_u32 v4, v5, 2, v4")
    A("v_min_u32 v2, -2, v2")
    A("s_lshl_b32 s42, s2, 3")
    A(f"s_add_u32 s42, s42, {W_F}")
    m = (1 << nrep) - 1
    A(f"s_mov_b32 exec_lo, {m}")
    A(f"s_mov_b32 exec_hi, {m}")
    A("buffer_store_dword v2, v4, s[20:23], s42 offen sc1")
    A("s_mov_b64 exec, -1")
    A("s_branch L_common")
    A("L_pollF:")
    A(f"s_and_b32 s42, s2, {nrep-1}")
    A(f"s_mul_i32 s42, s42, {repstride}")
    A(f"s_add_u32 s42, s42, {W_F}")
    A("v_lshlrev_b32 v36, 4, v35")
    A("s_mov_b32 exec_hi, 0xffff")
    A("L_pollF2:")
    A(f"buffer_load_dwordx4 v[{T}:{T+3}], v36, s[20:23], s42 offen sc1")
    A("s_add_u32 s45, s45, 1")
    A("s_waitcnt vmcnt(0)")
    A(f"v_max3_u32 v2, v{T}, v{T+1}, v{T+2}")
    A(f"v_max_u32 v2, v2, v{T+3}")
    A("v_cmp_eq_u32 vcc, -1, v2")
    A("s_cbranch_vccz L_gotF")
    if sleepF:
        A(f"s_sleep {sleepF}")
    A(f"s_cmp_lt_u32 s45, {SPIN}")
    A("s_cbranch_scc1 L_pollF2")
    A("L_gotF:")
    A(f"ds_write_b128 v36, v[{T}:{T+3}] offset:{L_G}")
    A("s_mov_b64 exec, -1")
    A("s_branch L_common")
    A("L_role4:")
    A("s_cmp_ge_u32 s36, 7")
    A("s_cbranch_scc1 L_common")
    A("s_sub_u32 s46, s36, 4")
    A("s_mul_i32 s42, s46, 6144")
    A(f"s_add_u32 s42, s42, {L_SP}")
    A("v_lshl_add_u32 v38, v35, 4, s42")
    VS = VD + 4 * (NL - 6)
    for k in range(6):
        A(f"ds_write_b128 v38, v[{VS+4*k}:{VS+4*k+3}] offset:{k*1024}")
    A("v_lshrrev_b32 v2, 4, v35")
    A("v_lshlrev_b32 v2, 3, v2")
    A("v_bfe_u32 v3, v35, 2, 2")
    A("v_add_u32 v2, v2, v3")
    A("v_mul_u32_u24 v2, 96, v2")
    A("v_and_b32 v3, 3, v35")
    A("v_lshl_add_u32 v2, v3, 3, v2")
    A("s_lshl_b32 s42, s46, 5")
    A("v_add_u32 v2, s42, v2")
    A("s_waitcnt lgkmcnt(0)")
    for k in range(6):
        A(f"ds_read_b64_tr_b16 v[{VS+4*k}:{VS+4*k+1}], v2 offset:{L_W1 + k*3072}")
        A(f"ds_read_b64_tr_b16 v[{VS+4*k+2}:{VS+4*k+3}], v2 offset:{L_W1 + k*3072 + 384}")
    A("v_and_b32 v2, 1, v35")
    A("v_mul_u32_u24 v2, 384, v2")
    A("v_lshrrev_b32 v3, 4, v35")
    A("v_lshl_add_u32 v39, v3, 4, v2")
    A("L_common:")
    A("v_lshrrev_b32 v2, 2, v35")
    A("v_mul_u32_u24 v2, 384, v2")
    A("v_and_b32 v3, 3, v35")
    A("v_lshl_add_u32 v2, v3, 3, v2")
    A("s_lshl_b32 s42, s36, 5")
    A("v_add_u32 v2, s42, v2")
    W2F = 28
    for k in range(3):
        A(f"ds_read_b64_tr_b16 v[{W2F+2*k}:{W2F+2*k+1}], v2 offset:{L_W2 + k*6144}")
    A("v_lshlrev_b32 v37, 3, v35")
    A("s_waitcnt lgkmcnt(0)")
    A("s_barrier")
    stamp(4)
    A("s_sub_u32 s42, s36, 4")
    A("s_cmp_ge_u32 s42, 3")
    A("s_cbranch_scc1 L_l2")
    BF = 4
    for k in range(6):
        A(f"ds_read_b128 v[{BF+4*k}:{BF+4*k+3}], v39 offset:{L_G + k*64}")
    A("s_lshl_b32 s42, s42, 9")
    A("v_add_u32 v36, s42, v37")
    for k in range(6):
        A(f"s_waitcnt lgkmcnt({5-k})")
        c = "0" if k == 0 else f"v[{BF}:{BF+3}]"
        if k == 0:
            A(f"v_mfma_f32_16x16x32_bf16 v[0:3], v[{VS}:{VS+3}], v[{BF}:{BF+3}], 0")
        else:
            A(f"v_mfma_f32_16x16x32_bf16 v[0:3], v[{VS+4*k}:{VS+4*k+3}], v[{BF+4*k}:{BF+4*k+3}], v[0:3]")
    A("s_nop 7")
    A("v_cvt_pk_bf16_f32 v4, v0, v1")
    A("v_cvt_pk_bf16_f32 v5, v2, v3")
    A("v_lshlrev_b32 v0, 16, v4"); A("v_and_b32 v1, s44, v4")
    A("v_lshlrev_b32 v2, 16, v5"); A("v_and_b32 v3, s44, v5")
    for i in range(4):
        A(f"v_cmp_lt_f32 s[{48+2*i}:{49+2*i}], 0, v{i}")
    for i in range(4):
        A(f"v_cndmask_b32 v{6+i}, 0, 1.0, s[{48+2*i}:{49+2*i}]")
    A("v_pk_mul_f32 v[0:1], v[0:1], v[6:7]")
    A("v_pk_mul_f32 v[2:3], v[2:3], v[8:9]")
    A("v_cvt_pk_bf16_f32 v4, v0, v1")
    A("v_cvt_pk_bf16_f32 v5, v2, v3")
    A(f"ds_write_b64 v36, v[4:5] offset:{L_H}")
    A("v_lshrrev_b32 v6, 3, v35")
    A("v_mul_u32_u24 v6, 384, v6")
    A("v_and_b32 v7, 7, v35")
    A("v_lshl_add_u32 v1, v7, 4, v6")
    A("s_waitcnt lgkmcnt(0)")
    A("L_l2:")
    A("s_barrier")
    for k in range(3):
        A(f"ds_read_b64 v[{4+2*k}:{5+2*k}], v37 offset:{L_H + k*512}")
    A("v_bfe_u32 v2, v35, 1, 2")
    A("v_cmp_eq_u32 s[48:49], 1, v2")
    A("v_cmp_eq_u32 s[50:51], 2, v2")
    A("v_cmp_eq_u32 s[52:53], 3, v2")
    A("v_lshrrev_b32 v3, 4, v35")
    A("v_lshl_add_u32 v2, v3, 2, v2")
    A("s_lshl_b32 s42, s36, 6")
    A("v_lshl_add_u32 v36, v2, 2, s42")
    for k in range(3):
        A(f"s_waitcnt lgkmcnt({2-k})")
        c = "0" if k == 0 else "v[12:15]"
        A(f"v_mfma_f32_16x16x16_bf16 v[12:15], v[{W2F+2*k}:{W2F+2*k+1}], v[{4+2*k}:{5+2*k}], {c}")
    A("v_and_b32 v2, 7, v35")
    A("s_lshl_b32 s42, s38, 8")
    A("v_lshl_add_u32 v39, v2, 5, s42")
    A("s_mov_b32 s43, 0xbfb8aa3b")
    A("s_nop 4")
    A("v_cndmask_b32 v12, v12, v13, s[48:49]")
    A("v_cndmask_b32 v12, v12, v14, s[50:51]")
    A("v_cndmask_b32 v12, v12, v15, s[52:53]")
    A("v_cvt_pk_bf16_f32 v12, v12, v12")
    A("v_and_b32 v12, s44, v12")
    A("s_nop 1")
    A("v_add_f32_dpp v12, v12, v12 quad_perm:[1,0,3,2] row_mask:0xf bank_mask:0xf")
    A("v_cvt_pk_bf16_f32 v12, v12, v12")
    A("v_and_b32 v12, s44, v12")
    A("v_mul_f32 v12, s43, v12")
    A("v_exp_f32 v12, v12")
    A("s_nop 0")
    A("v_add_f32 v12, 1.0, v12")
    A("v_rcp_f32 v12, v12")
    A("s_nop 0")
    A("v_cvt_pk_bf16_f32 v12, v12, v12")
    A("v_and_b32 v12, s44, v12")
    A(f"ds_write_b32 v36, v12 offset:{L_SC}")
    A("s_waitcnt lgkmcnt(0)")
    A("s_barrier")
    SCR = 2
    A(f"ds_read_b128 v[{SCR}:{SCR+3}], v39 offset:{L_SC}")
    A(f"ds_read_b128 v[{SCR+4}:{SCR+7}], v39 offset:{L_SC+16}")
    stamp(5)
    A("s_mov_b32 s3, s41")
    T2 = 10
    first = True
    for j in range(NL):
        tb = T2 + 8 * (j % 3)
        for i in range(4):
            d = VD + 4 * j + i
            A(f"v_lshlrev_b32 v{tb+2*i}, 16, v{d}")
            A(f"v_and_b32 v{tb+2*i+1}, s44, v{d}")
        if first:
            A("s_waitcnt lgkmcnt(0)")
            first = False
        for i in range(4):
            A(f"v_pk_mul_f32 v[{tb+2*i}:{tb+2*i+1}], v[{tb+2*i}:{tb+2*i+1}], v[{SCR+2*i}:{SCR+2*i+1}]")
        for i in range(4):
            d = VD + 4 * j + i
            A(f"v_cvt_pk_bf16_f32 v{d}, v{tb+2*i}, v{tb+2*i+1}")
        r = VD + 4 * j
        A(f"buffer_store_dwordx4 v[{r}:{r+3}], v1, s[12:15], s3 offen {st}".rstrip())
        if j != NL - 1:
            A(f"s_add_u32 s3, s3, {s}")
        if j == 0:
            A("s_sub_u32 s42, s36, 4")
            A("s_cmp_ge_u32 s42, 3")
            A("s_cbranch_scc1 L_noreload")
            for k in range(6):
                A(f"ds_read_b128 v[{VS+4*k}:{VS+4*k+3}], v38 offset:{k*1024}")
            A("L_noreload:")
        if j == NL - 7:
            A("s_waitcnt lgkmcnt(0)")
    if stamps:
        stamp(6)
        A("s_waitcnt vmcnt(0)")
        stamp(7)
        A("s_waitcnt lgkmcnt(0)")
        A("s_mov_b64 exec, 1")
        if diag:
            idx, mul, base = diag[:3]
            dwg = diag[3] if len(diag) > 3 else 0
            A("s_barrier")
            A("s_cmp_lg_u32 s36, 0")
            A("s_cbranch_scc1 L_end")
            A("v_mov_b32 v9, 4")
            A("v_mov_b32 v10, 1")
            A("buffer_atomic_add v10, v9, s[16:19], 0 offen sc1")
            A(f"s_cmp_lg_u32 s2, {dwg}")
            A("s_cbranch_scc1 L_end")
            A("s_mov_b32 s45, 0")
            A("L_dg1:")
            A("buffer_load_dword v10, v9, s[16:19], 0 offen sc1")
            A("s_add_u32 s45, s45, 1")
            A("s_waitcnt vmcnt(0)")
            A("v_readfirstlane_b32 s42, v10")
            A(f"s_cmp_ge_u32 s45, {SPIN}")
            A("s_cbranch_scc1 L_dg2")
            A("s_cmp_lt_u32 s42, 256")
            A("s_cbranch_scc1 L_dg1")
            A("L_dg2:")
            A("s_memrealtime s[76:77]")
            A("s_waitcnt lgkmcnt(0)")
            if idx >= 0:
                A(f"s_sub_u32 s42, s{60+2*idx}, s60")
            else:
                A("s_mov_b32 s42, s80")
            A(f"s_mul_i32 s42, s42, {mul}")
            A(f"s_add_u32 s42, s42, {base}")
            A("s_min_u32 s42, s42, 200000")
            if want is not None:
                A("s_cmp_ge_u32 s89, 2")
                A("s_cselect_b32 s42, s42, 0" if want else "s_cselect_b32 s42, 0, s42")
            A("L_dg3:")
            A("s_memrealtime s[78:79]")
            A("s_waitcnt lgkmcnt(0)")
            A("s_sub_u32 s43, s78, %s" % ("s90" if (mprobe or predelay is not None) else "s60"))
            A("s_cmp_lt_u32 s43, s42")
            A("s_cbranch_scc1 L_dg3")
            A("s_branch L_end")
        A("s_mul_i32 s3, s2, 12")
        A("s_add_u32 s3, s3, s36")
        A("s_lshl_b32 s3, s3, 5")
        A(f"s_add_u32 s3, s3, {W_ST}")
        A("v_mov_b32 v1, 0")
        for i in range(8):
            A(f"v_mov_b32 v{4+i}, s{60+2*i}")
        A("buffer_store_dwordx4 v[4:7], v1, s[20:23], s3 offen")
        A("buffer_store_dwordx4 v[8:11], v1, s[20:23], s3 offen offset:16")
    A("L_end:")
    A("s_endpgm")
    A('.section .rodata,"a"')
    A(".p2align 6")
    A(".amdhsa_kernel standalone__channel_attn_cbam__vision_kernel")
    A("  .amdhsa_next_free_vgpr 168")
    A("  .amdhsa_next_free_sgpr 96")
    A("  .amdhsa_accum_offset 168")
    A("  .amdhsa_group_segment_fixed_size 0")
    A("  .amdhsa_kernarg_size 48")
    A("  .amdhsa_user_sgpr_count 2")
    A("  .amdhsa_user_sgpr_kernarg_segment_ptr 1")
    A("  .amdhsa_system_sgpr_workgroup_id_x 1")
    A("  .amdhsa_float_denorm_mode_32 3")
    A(".end_amdhsa_kernel")
    out = []
    for line in L:
        if line.startswith(("s_", "v_", "ds_", "buffer_")):
            out.append("    " + line)
        else:
            out.append(line)
    return "\n".join(out) + "\n"

if __name__ == "__main__":
    cfg = json.loads(sys.argv[1]) if len(sys.argv) > 1 else {}
    sys.stdout.write(gen(**cfg))
```

```python
import sys, json

HEADER = """; CBAM channel attention, x kept in registers across a grid-wide reduction (single pass over HBM)
"""

def gen(pat="contig", ld="nt", st="", nrep=8, repstride=4096, stamps=0, sleepA=0, sleepF=0, pat_st=None, diag=None, probe=None, mprobe=None, want=None, predelay=None, gmax=None):
    if diag: stamps = 1
    NW = 12
    NL = 32
    VD = 40
    XB = 100663296
    L_W1, L_W2 = 0, 18432
    L_RED = 36864
    L_G = L_RED + 6144
    L_H = L_G + 768
    L_SC = L_H + 1536
    L_SP = L_SC + 768
    L_END = L_SP + 3 * 6144
    W_A = 0
    W_F = 96 * 4096
    W_ST = 1 << 20
    SPIN = 1 << 20
    step = NW * 1024
    L = []
    A = L.append
    def stamp(i):
        if stamps:
            A(f"s_memrealtime s[{60+2*i}:{61+2*i}]")
    A(HEADER.rstrip())
    A(f"; @launch grid=(256,1,1) block=({NW*64},1,1) lds={L_END}")
    A('.amdgcn_target "amdgcn-amd-amdhsa--gfx950"')
    A(".text")
    A(".globl standalone__channel_attn_cbam__vision_kernel")
    A(".p2align 8")
    A(".type standalone__channel_attn_cbam__vision_kernel,@function")
    A("standalone__channel_attn_cbam__vision_kernel:")
    stamp(0)
    A("s_load_dwordx4 s[4:7], s[0:1], 0")
    A("s_load_dwordx4 s[24:27], s[0:1], 16")
    A("s_load_dwordx4 s[28:31], s[0:1], 32")
    A("s_cmp_ge_u32 s2, 256")
    A("s_cbranch_scc1 L_end")
    A("v_lshrrev_b32 v2, 6, v0")
    A("v_and_b32 v3, 63, v0")
    A("v_readfirstlane_b32 s36, v2")
    A("v_lshrrev_b32 v4, 3, v3")
    A("v_mul_u32_u24 v4, 384, v4")
    A("v_and_b32 v5, 7, v3")
    A("v_lshl_add_u32 v1, v5, 4, v4")
    A("s_mul_i32 s37, s36, 43691")
    A("s_lshr_b32 s37, s37, 17")
    A("s_mul_i32 s38, s37, 3")
    A("s_sub_u32 s38, s36, s38")
    A("s_mul_i32 s39, s37, 3072")
    A("s_lshl_b32 s40, s38, 7")
    A("s_add_u32 s39, s39, s40")
    def base_stride(p):
        if p == "contig":
            return 393216, step
        if p == "inter":
            return step, 256 * step
        raise ValueError
    b, s = base_stride(pat)
    A(f"s_mul_i32 s41, s2, {b}")
    A("s_add_u32 s41, s41, s39")
    A("s_mov_b32 s3, s41")
    A("s_mov_b32 s10, %d" % XB); A("s_mov_b32 s11, 0x20000")
    A("s_mov_b32 s14, %d" % XB); A("s_mov_b32 s15, 0x20000")
    A("s_mov_b32 s18, 256"); A("s_mov_b32 s19, 0x20000")
    A("s_mov_b32 s22, 402653184"); A("s_mov_b32 s23, 0x20000")
    A("s_mov_b32 s34, 18432"); A("s_mov_b32 s35, 0x20000")
    A("s_waitcnt lgkmcnt(0)")
    A("s_mov_b32 s8, s4"); A("s_mov_b32 s9, s5")
    A("s_mov_b32 s12, s26"); A("s_mov_b32 s13, s27")
    A("s_mov_b32 s16, s28"); A("s_mov_b32 s17, s29")
    A("s_mov_b32 s20, s30"); A("s_mov_b32 s21, s31")
    if mprobe:
        buf, start, stride, n, thr, warm, pol = mprobe
        srd = {"x": "s[8:11]", "out": "s[12:15]", "ws": "s[20:23]"}[buf]
        A("s_mov_b32 s80, 0")
        A("s_cmp_lg_u32 s36, 0")
        A("s_cbranch_scc1 L_mp_bar")
        A("s_mov_b64 exec, 1")
        A("v_mov_b32 v9, 8")
        A("s_cmp_lg_u32 s2, 0")
        A("s_cbranch_scc1 L_mp_wait")
        A("v_mov_b32 v11, 0")
        A("s_sleep 127")
        if want is not None:
            A("s_mov_b32 s81, 8192")
            A("s_mov_b32 s82, 0")
            A("s_mov_b32 s89, 0")
            A("L_sp_loop:")
            A(f"buffer_load_dword v10, v11, s[8:11], s81 offen offset:1024")
            A("s_waitcnt vmcnt(0)")
            A("s_memtime s[84:85]")
            A("s_waitcnt lgkmcnt(0)")
            A(f"buffer_load_dword v10, v11, s[8:11], s81 offen")
            A("s_waitcnt vmcnt(0)")
            A("s_memtime s[86:87]")
            A("s_waitcnt lgkmcnt(0)")
            A("s_sub_u32 s83, s86, s84")
            A(f"s_cmp_lt_u32 s83, 560")
            A("s_cselect_b32 s83, 1, 0")
            A("s_add_u32 s89, s89, s83")
            A(f"s_add_u32 s81, s81, {6160384+4096+128}")
            A("s_add_u32 s82, s82, 1")
            A(f"s_cmp_lt_u32 s82, 16")
            A("s_cbranch_scc1 L_sp_loop")
        A(f"s_mov_b32 s81, {start}")
        A("s_mov_b32 s82, 0")
        A("L_mp_loop:")
        A(f"buffer_load_dword v10, v11, {srd}, s81 offen offset:{warm} {pol}")
        A("s_waitcnt vmcnt(0)")
        A("s_memtime s[84:85]")
        A("s_waitcnt lgkmcnt(0)")
        A(f"buffer_load_dword v10, v11, {srd}, s81 offen {pol}")
        A("s_waitcnt vmcnt(0)")
        A("s_memtime s[86:87]")
        A("s_waitcnt lgkmcnt(0)")
        A("s_sub_u32 s83, s86, s84")
        if thr > 0:
            A(f"s_cmp_lt_u32 s83, {thr}")
            A("s_cselect_b32 s83, 1, 0")
        A("s_add_u32 s80, s80, s83")
        if not diag:
            A("v_mov_b32 v12, s83")
            A("s_lshl_b32 s88, s82, 2")
            A(f"s_add_u32 s88, s88, {2 << 20}")
            A("buffer_store_dword v12, v11, s[20:23], s88 offen")
        A(f"s_add_u32 s81, s81, {stride}")
        A("s_add_u32 s82, s82, 1")
        A(f"s_cmp_lt_u32 s82, {n}")
        A("s_cbranch_scc1 L_mp_loop")
        A("v_mov_b32 v10, 1")
        A("buffer_store_dword v10, v9, s[16:19], 0 offen sc1")
        A("s_branch L_mp_done")
        A("L_mp_wait:")
        A("s_mov_b32 s82, 0")
        A("L_mp_w2:")
        A("s_sleep 32")
        A("buffer_load_dword v10, v9, s[16:19], 0 offen sc1")
        A("s_add_u32 s82, s82, 1")
        A("s_waitcnt vmcnt(0)")
        A("v_readfirstlane_b32 s83, v10")
        A("s_cmp_ge_u32 s82, 200000")
        A("s_cbranch_scc1 L_mp_done")
        A("s_cmp_eq_u32 s83, 0")
        A("s_cbranch_scc1 L_mp_w2")
        A("L_mp_done:")
        A("s_mov_b64 exec, -1")
        A("L_mp_bar:")
        A("s_barrier")
        A("s_mov_b32 s90, s60")
        stamp(0)
        A("s_waitcnt lgkmcnt(0)")
    if predelay is not None:
        A("s_mov_b32 s90, s60")
        A("L_pd:")
        A("s_sleep 1")
        A("s_memrealtime s[60:61]")
        A("s_waitcnt lgkmcnt(0)")
        A("s_sub_u32 s43, s60, s90")
        A(f"s_cmp_lt_u32 s43, {predelay}")
        A("s_cbranch_scc1 L_pd")
    A("s_cmp_lg_u32 s36, 7")
    A("s_cbranch_scc1 L_noclear")
    A("v_mov_b32 v4, -1"); A("v_mov_b32 v5, -1"); A("v_mov_b32 v6, -1"); A("v_mov_b32 v7, -1")
    A("v_lshlrev_b32 v8, 12, v3")
    A("s_lshl_b32 s42, s2, 4")
    A(f"buffer_store_dwordx4 v[4:7], v8, s[20:23], s42 offen sc1")
    A("s_add_u32 s42, s42, %d" % (64 * 4096))
    A("s_mov_b32 exec_hi, 0")
    A(f"buffer_store_dwordx4 v[4:7], v8, s[20:23], s42 offen sc1")
    A("s_cmp_ge_u32 s2, 96")
    A("s_cbranch_scc1 L_noclearF")
    A(f"s_mov_b32 exec_lo, {(1 << nrep) - 1}")
    A(f"v_mul_u32_u24 v8, {repstride}, v3")
    A("s_lshl_b32 s42, s2, 3")
    A(f"s_add_u32 s42, s42, {W_F}")
    A(f"buffer_store_dwordx2 v[4:5], v8, s[20:23], s42 offen sc1")
    A("L_noclearF:")
    A("s_mov_b64 exec, 1")
    A("v_mov_b32 v9, 0")
    A("v_mov_b32 v10, 1")
    A("s_waitcnt vmcnt(0)")
    A("buffer_atomic_add v10, v9, s[16:19], 0 offen sc1")
    A("s_mov_b64 exec, -1")
    A("L_noclear:")
    ops = []
    for j in range(NL):
        r = VD + 4 * j
        A(f"buffer_load_dwordx4 v[{r}:{r+3}], v1, s[8:11], s3 offen {ld}".rstrip())
        ops.append(("d", j))
        if j != NL - 1:
            A(f"s_add_u32 s3, s3, {s}")
        if probe is not None and j == probe:
            A("s_waitcnt vmcnt(0)")
            stamp(1)
        if j == 3:
            A("s_cmp_ge_u32 s36, 6")
            A("s_cselect_b32 s32, s24, s6")
            A("s_cselect_b32 s33, s25, s7")
            A("s_cselect_b32 s42, 18432, 0")
            A("s_mul_i32 s43, s36, 3072")
            A("s_sub_u32 s42, s43, s42")
            A("s_mov_b32 m0, s43")
            A("v_lshlrev_b32 v2, 4, v3")
            for k in range(3):
                A(f"buffer_load_dwordx4 v2, s[32:35], s42 offen offset:{k*1024} lds")
                ops.append(("w", k))
    A("v_mov_b32 v34, 0")
    A("s_and_b32 s42, s36, 14")
    A("s_cmp_lg_u32 s42, 2")
    A("s_cbranch_scc1 L_nocnt")
    A("buffer_load_dword v34, v34, s[16:19], 0 offen sc1")
    A("L_nocnt:")
    if probe is None: stamp(1)
    S, M, T = 2, 10, 18
    for i in range(8):
        A(f"v_mov_b32 v{S+i}, 0")
        A(f"v_mov_b32 v{M+i}, 0xff800000")
    A("s_mov_b32 s44, 0xffff0000")
    def after(j):
        idx = ops.index(("d", j))
        return len(ops) - 1 - idx
    groups = [(j, j + 1) for j in range(0, NL - 2, 2)] + [(NL - 2,), (NL - 1,)]
    for g in groups:
        A(f"s_waitcnt vmcnt({after(g[-1])})")
        for gi, j in enumerate(g):
            for i in range(4):
                d = VD + 4 * j + i
                t = T + 8 * gi + 2 * i
                A(f"v_lshlrev_b32 v{t}, 16, v{d}")
                A(f"v_and_b32 v{t+1}, s44, v{d}")
        for gi, j in enumerate(g):
            for i in range(4):
                t = T + 8 * gi + 2 * i
                A(f"v_pk_add_f32 v[{S+2*i}:{S+2*i+1}], v[{S+2*i}:{S+2*i+1}], v[{t}:{t+1}]")
        for i in range(8):
            if len(g) == 2:
                A(f"v_max3_f32 v{M+i}, v{M+i}, v{T+i}, v{T+8+i}")
            else:
                A(f"v_max_f32 v{M+i}, v{M+i}, v{T+i}")
    stamp(2)
    A("v_and_b32 v35, 63, v0")
    A("s_nop 0")
    for i in range(4):
        A(f"v_permlane32_swap_b32 v{S+i}, v{S+i+4}")
    for i in range(4):
        A(f"v_permlane32_swap_b32 v{M+i}, v{M+i+4}")
    for i in range(4):
        A(f"v_add_f32 v{S+i}, v{S+i}, v{S+i+4}")
    for i in range(4):
        A(f"v_max_f32 v{M+i}, v{M+i}, v{M+i+4}")
    A("v_and_b32 v36, 7, v35")
    A("v_lshrrev_b32 v37, 3, v35")
    for i in range(2):
        A(f"v_permlane16_swap_b32 v{S+i}, v{S+i+2}")
    for i in range(2):
        A(f"v_permlane16_swap_b32 v{M+i}, v{M+i+2}")
    for i in range(2):
        A(f"v_add_f32 v{S+i}, v{S+i}, v{S+i+2}")
    for i in range(2):
        A(f"v_max_f32 v{M+i}, v{M+i}, v{M+i+2}")
    A("v_lshl_add_u32 v36, v36, 3, v37")
    A("s_mul_i32 s42, s37, 768")
    A("s_lshl_b32 s43, s38, 8")
    A("s_add_u32 s42, s42, s43")
    A(f"s_add_u32 s42, s42, {L_RED}")
    A(f"v_add_f32_dpp v{T}, v{S}, v{S} row_ror:8 row_mask:0xf bank_mask:0x3")
    A(f"v_max_f32_dpp v{T+1}, v{M}, v{M} row_ror:8 row_mask:0xf bank_mask:0x3")
    A("v_lshl_add_u32 v36, v36, 2, s42")
    A(f"v_add_f32_dpp v{T}, v{S+1}, v{S+1} row_ror:8 row_mask:0xf bank_mask:0xc")
    A(f"v_max_f32_dpp v{T+1}, v{M+1}, v{M+1} row_ror:8 row_mask:0xf bank_mask:0xc")
    A(f"ds_write2st64_b32 v36, v{T}, v{T+1} offset0:0 offset1:12")
    A("s_waitcnt lgkmcnt(0)")
    A("s_barrier")
    stamp(3)
    A("s_cmp_ge_u32 s36, 2")
    A("s_cbranch_scc1 L_role2")
    A("s_mul_i32 s42, s36, 3072")
    A(f"s_add_u32 s42, s42, {L_RED}")
    A("s_mov_b32 exec_hi, 0xffff")
    A("v_lshl_add_u32 v36, v35, 4, s42")
    for q in range(4):
        A(f"ds_read_b128 v[{T+4*q}:{T+4*q+3}], v36 offset:{q*768}")
    A("s_mul_i32 s42, s36, %d" % (48 * 4096))
    A("s_lshl_b32 s43, s2, 4")
    A("s_add_u32 s42, s42, s43")
    A("v_lshlrev_b32 v37, 12, v35")
    A("s_cmp_eq_u32 s36, 1")
    A("s_cbranch_scc1 L_pubmax")
    A("s_waitcnt lgkmcnt(2)")
    A(f"v_pk_add_f32 v[{T}:{T+1}], v[{T}:{T+1}], v[{T+4}:{T+5}]")
    A(f"v_pk_add_f32 v[{T+2}:{T+3}], v[{T+2}:{T+3}], v[{T+6}:{T+7}]")
    A("s_waitcnt lgkmcnt(0)")
    A(f"v_pk_add_f32 v[{T+8}:{T+9}], v[{T+8}:{T+9}], v[{T+12}:{T+13}]")
    A(f"v_pk_add_f32 v[{T+10}:{T+11}], v[{T+10}:{T+11}], v[{T+14}:{T+15}]")
    A(f"v_pk_add_f32 v[{T}:{T+1}], v[{T}:{T+1}], v[{T+8}:{T+9}]")
    A(f"v_pk_add_f32 v[{T+2}:{T+3}], v[{T+2}:{T+3}], v[{T+10}:{T+11}]")
    A("s_branch L_pub")
    A("L_pubmax:")
    A("s_waitcnt lgkmcnt(0)")
    for i in range(4):
        A(f"v_max3_f32 v{T+i}, v{T+i}, v{T+4+i}, v{T+8+i}")
    for i in range(4):
        A(f"v_max_f32 v{T+i}, v{T+i}, v{T+12+i}")
    A("L_pub:")
    A(f"buffer_store_dwordx4 v[{T}:{T+3}], v37, s[20:23], s42 offen sc1")
    A("s_mov_b64 exec, -1")
    A("s_branch L_common")
    A("L_role2:")
    A("s_cmp_ge_u32 s36, 4")
    A("s_cbranch_scc1 L_role4")
    A("s_mov_b32 s45, 0")
    A("L_cnt:")
    A("v_readfirstlane_b32 s42, v34")
    A("s_cmp_ge_u32 s42, 256")
    A("s_cbranch_scc1 L_cntok")
    A("v_mov_b32 v34, 0")
    A("buffer_load_dword v34, v34, s[16:19], 0 offen sc1")
    A("s_add_u32 s45, s45, 1")
    A("s_waitcnt vmcnt(0)")
    A(f"s_cmp_lt_u32 s45, {SPIN}")
    A("s_cbranch_scc1 L_cnt")
    A("L_cntok:")
    A("s_cmp_eq_u32 s36, 3")
    A("s_cbranch_scc1 L_pollF")
    A("s_cmp_ge_u32 s2, 96")
    A("s_cbranch_scc1 L_common")
    A("s_lshl_b32 s42, s2, 12")
    A("v_lshlrev_b32 v36, 4, v35")
    A("L_pollA:")
    for k in range(4):
        A(f"buffer_load_dwordx4 v[{T+4*k}:{T+4*k+3}], v36, s[20:23], s42 offen offset:{k*1024} sc1")
    A("s_add_u32 s45, s45, 1")
    A("s_waitcnt vmcnt(3)")
    A(f"v_max3_u32 v2, v{T}, v{T+1}, v{T+2}")
    A("s_waitcnt vmcnt(2)")
    A(f"v_max3_u32 v2, v2, v{T+3}, v{T+4}")
    A(f"v_max3_u32 v2, v2, v{T+5}, v{T+6}")
    A("s_waitcnt vmcnt(1)")
    A(f"v_max3_u32 v2, v2, v{T+7}, v{T+8}")
    A(f"v_max3_u32 v2, v2, v{T+9}, v{T+10}")
    A("s_waitcnt vmcnt(0)")
    A(f"v_max3_u32 v3, v{T+11}, v{T+12}, v{T+13}")
    A(f"v_max3_u32 v2, v2, v{T+14}, v{T+15}")
    A("v_max_u32 v2, v2, v3")
    A("v_cmp_eq_u32 vcc, -1, v2")
    A("s_cbranch_vccz L_gotA")
    if sleepA:
        A(f"s_sleep {sleepA}")
    A(f"s_cmp_lt_u32 s45, {SPIN}")
    A("s_cbranch_scc1 L_pollA")
    A("L_gotA:")
    A("s_cmp_ge_u32 s2, 48")
    A("s_cbranch_scc1 L_redmax")
    def xreduce(op):
        A("s_nop 1")
        A(f"v_permlane32_swap_b32 v{T}, v{T+2}")
        A(f"v_permlane32_swap_b32 v{T+1}, v{T+3}")
        A(f"v_{op}_f32 v2, v{T}, v{T+2}")
        A(f"v_{op}_f32 v3, v{T+1}, v{T+3}")
        A(f"v_{op}_f32 v4, v{T}, v{T+2}")
        A(f"v_{op}_f32 v5, v{T+1}, v{T+3}")
        A("s_nop 0")
        A("v_permlane16_swap_b32 v2, v4")
        A("v_permlane16_swap_b32 v3, v5")
        A(f"v_{op}_f32 v2, v2, v4")
        A(f"v_{op}_f32 v3, v3, v5")
        for r in (8, 4, 2, 1):
            A("s_nop 0")
            A(f"v_{op}_f32_dpp v2, v2, v2 row_ror:{r} row_mask:0xf bank_mask:0xf")
            A(f"v_{op}_f32_dpp v3, v3, v3 row_ror:{r} row_mask:0xf bank_mask:0xf")
    A(f"v_pk_add_f32 v[{T}:{T+1}], v[{T}:{T+1}], v[{T+4}:{T+5}]")
    A(f"v_pk_add_f32 v[{T+2}:{T+3}], v[{T+2}:{T+3}], v[{T+6}:{T+7}]")
    A(f"v_pk_add_f32 v[{T+8}:{T+9}], v[{T+8}:{T+9}], v[{T+12}:{T+13}]")
    A(f"v_pk_add_f32 v[{T+10}:{T+11}], v[{T+10}:{T+11}], v[{T+14}:{T+15}]")
    A(f"v_pk_add_f32 v[{T}:{T+1}], v[{T}:{T+1}], v[{T+8}:{T+9}]")
    A(f"v_pk_add_f32 v[{T+2}:{T+3}], v[{T+2}:{T+3}], v[{T+10}:{T+11}]")
    xreduce("add")
    A("v_mul_f32 v2, 0x36800000, v2")
    A("v_mul_f32 v3, 0x36800000, v3")
    A("s_branch L_pubF")
    A("L_redmax:")
    for i in range(4):
        A(f"v_max3_f32 v{T+i}, v{T+i}, v{T+4+i}, v{T+8+i}")
    for i in range(4):
        A(f"v_max_f32 v{T+i}, v{T+i}, v{T+12+i}")
    xreduce("max")
    A("L_pubF:")
    A("v_and_b32 v4, 31, v35")
    A(f"v_mul_u32_u24 v4, {repstride}, v4")
    A("v_lshrrev_b32 v5, 5, v35")
    A("v_cvt_pk_bf16_f32 v2, v2, v3")
    A("v_lshl_add_u32 v4, v5, 2, v4")
    A("v_min_u32 v2, -2, v2")
    A("s_lshl_b32 s42, s2, 3")
    A(f"s_add_u32 s42, s42, {W_F}")
    m = (1 << nrep) - 1
    A(f"s_mov_b32 exec_lo, {m}")
    A(f"s_mov_b32 exec_hi, {m}")
    A("buffer_store_dword v2, v4, s[20:23], s42 offen sc1")
    A("s_mov_b64 exec, -1")
    A("s_branch L_common")
    A("L_pollF:")
    A(f"s_and_b32 s42, s2, {nrep-1}")
    A(f"s_mul_i32 s42, s42, {repstride}")
    A(f"s_add_u32 s42, s42, {W_F}")
    A("v_lshlrev_b32 v36, 4, v35")
    A("s_mov_b32 exec_hi, 0xffff")
    A("L_pollF2:")
    A(f"buffer_load_dwordx4 v[{T}:{T+3}], v36, s[20:23], s42 offen sc1")
    A("s_add_u32 s45, s45, 1")
    A("s_waitcnt vmcnt(0)")
    A(f"v_max3_u32 v2, v{T}, v{T+1}, v{T+2}")
    A(f"v_max_u32 v2, v2, v{T+3}")
    A("v_cmp_eq_u32 vcc, -1, v2")
    A("s_cbranch_vccz L_gotF")
    if sleepF:
        A(f"s_sleep {sleepF}")
    A(f"s_cmp_lt_u32 s45, {SPIN}")
    A("s_cbranch_scc1 L_pollF2")
    A("L_gotF:")
    A(f"ds_write_b128 v36, v[{T}:{T+3}] offset:{L_G}")
    A("s_mov_b64 exec, -1")
    A("s_branch L_common")
    A("L_role4:")
    A("s_cmp_ge_u32 s36, 7")
    A("s_cbranch_scc1 L_common")
    A("s_sub_u32 s46, s36, 4")
    A("s_mul_i32 s42, s46, 6144")
    A(f"s_add_u32 s42, s42, {L_SP}")
    A("v_lshl_add_u32 v38, v35, 4, s42")
    VS = VD + 4 * (NL - 6)
    for k in range(6):
        A(f"ds_write_b128 v38, v[{VS+4*k}:{VS+4*k+3}] offset:{k*1024}")
    A("v_lshrrev_b32 v2, 4, v35")
    A("v_lshlrev_b32 v2, 3, v2")
    A("v_bfe_u32 v3, v35, 2, 2")
    A("v_add_u32 v2, v2, v3")
    A("v_mul_u32_u24 v2, 96, v2")
    A("v_and_b32 v3, 3, v35")
    A("v_lshl_add_u32 v2, v3, 3, v2")
    A("s_lshl_b32 s42, s46, 5")
    A("v_add_u32 v2, s42, v2")
    A("s_waitcnt lgkmcnt(0)")
    for k in range(6):
        A(f"ds_read_b64_tr_b16 v[{VS+4*k}:{VS+4*k+1}], v2 offset:{L_W1 + k*3072}")
        A(f"ds_read_b64_tr_b16 v[{VS+4*k+2}:{VS+4*k+3}], v2 offset:{L_W1 + k*3072 + 384}")
    A("v_and_b32 v2, 1, v35")
    A("v_mul_u32_u24 v2, 384, v2")
    A("v_lshrrev_b32 v3, 4, v35")
    A("v_lshl_add_u32 v39, v3, 4, v2")
    A("L_common:")
    A("v_lshrrev_b32 v2, 2, v35")
    A("v_mul_u32_u24 v2, 384, v2")
    A("v_and_b32 v3, 3, v35")
    A("v_lshl_add_u32 v2, v3, 3, v2")
    A("s_lshl_b32 s42, s36, 5")
    A("v_add_u32 v2, s42, v2")
    W2F = 28
    for k in range(3):
        A(f"ds_read_b64_tr_b16 v[{W2F+2*k}:{W2F+2*k+1}], v2 offset:{L_W2 + k*6144}")
    A("v_lshlrev_b32 v37, 3, v35")
    A("s_waitcnt lgkmcnt(0)")
    A("s_barrier")
    stamp(4)
    A("s_sub_u32 s42, s36, 4")
    A("s_cmp_ge_u32 s42, 3")
    A("s_cbranch_scc1 L_l2")
    BF = 4
    for k in range(6):
        A(f"ds_read_b128 v[{BF+4*k}:{BF+4*k+3}], v39 offset:{L_G + k*64}")
    A("s_lshl_b32 s42, s42, 9")
    A("v_add_u32 v36, s42, v37")
    for k in range(6):
        A(f"s_waitcnt lgkmcnt({5-k})")
        c = "0" if k == 0 else f"v[{BF}:{BF+3}]"
        if k == 0:
            A(f"v_mfma_f32_16x16x32_bf16 v[0:3], v[{VS}:{VS+3}], v[{BF}:{BF+3}], 0")
        else:
            A(f"v_mfma_f32_16x16x32_bf16 v[0:3], v[{VS+4*k}:{VS+4*k+3}], v[{BF+4*k}:{BF+4*k+3}], v[0:3]")
    A("s_nop 7")
    A("v_cvt_pk_bf16_f32 v4, v0, v1")
    A("v_cvt_pk_bf16_f32 v5, v2, v3")
    A("v_lshlrev_b32 v0, 16, v4"); A("v_and_b32 v1, s44, v4")
    A("v_lshlrev_b32 v2, 16, v5"); A("v_and_b32 v3, s44, v5")
    for i in range(4):
        A(f"v_cmp_lt_f32 s[{48+2*i}:{49+2*i}], 0, v{i}")
    for i in range(4):
        A(f"v_cndmask_b32 v{6+i}, 0, 1.0, s[{48+2*i}:{49+2*i}]")
    A("v_pk_mul_f32 v[0:1], v[0:1], v[6:7]")
    A("v_pk_mul_f32 v[2:3], v[2:3], v[8:9]")
    A("v_cvt_pk_bf16_f32 v4, v0, v1")
    A("v_cvt_pk_bf16_f32 v5, v2, v3")
    A(f"ds_write_b64 v36, v[4:5] offset:{L_H}")
    A("v_lshrrev_b32 v6, 3, v35")
    A("v_mul_u32_u24 v6, 384, v6")
    A("v_and_b32 v7, 7, v35")
    A("v_lshl_add_u32 v1, v7, 4, v6")
    A("s_waitcnt lgkmcnt(0)")
    A("L_l2:")
    A("s_barrier")
    for k in range(3):
        A(f"ds_read_b64 v[{4+2*k}:{5+2*k}], v37 offset:{L_H + k*512}")
    A("v_bfe_u32 v2, v35, 1, 2")
    A("v_cmp_eq_u32 s[48:49], 1, v2")
    A("v_cmp_eq_u32 s[50:51], 2, v2")
    A("v_cmp_eq_u32 s[52:53], 3, v2")
    A("v_lshrrev_b32 v3, 4, v35")
    A("v_lshl_add_u32 v2, v3, 2, v2")
    A("s_lshl_b32 s42, s36, 6")
    A("v_lshl_add_u32 v36, v2, 2, s42")
    for k in range(3):
        A(f"s_waitcnt lgkmcnt({2-k})")
        c = "0" if k == 0 else "v[12:15]"
        A(f"v_mfma_f32_16x16x16_bf16 v[12:15], v[{W2F+2*k}:{W2F+2*k+1}], v[{4+2*k}:{5+2*k}], {c}")
    A("v_and_b32 v2, 7, v35")
    A("s_lshl_b32 s42, s38, 8")
    A("v_lshl_add_u32 v39, v2, 5, s42")
    A("s_mov_b32 s43, 0xbfb8aa3b")
    A("s_nop 4")
    A("v_cndmask_b32 v12, v12, v13, s[48:49]")
    A("v_cndmask_b32 v12, v12, v14, s[50:51]")
    A("v_cndmask_b32 v12, v12, v15, s[52:53]")
    A("v_cvt_pk_bf16_f32 v12, v12, v12")
    A("v_and_b32 v12, s44, v12")
    A("s_nop 1")
    A("v_add_f32_dpp v12, v12, v12 quad_perm:[1,0,3,2] row_mask:0xf bank_mask:0xf")
    A("v_cvt_pk_bf16_f32 v12, v12, v12")
    A("v_and_b32 v12, s44, v12")
    A("v_mul_f32 v12, s43, v12")
    A("v_exp_f32 v12, v12")
    A("s_nop 0")
    A("v_add_f32 v12, 1.0, v12")
    A("v_rcp_f32 v12, v12")
    A("s_nop 0")
    A("v_cvt_pk_bf16_f32 v12, v12, v12")
    A("v_and_b32 v12, s44, v12")
    A(f"ds_write_b32 v36, v12 offset:{L_SC}")
    A("s_waitcnt lgkmcnt(0)")
    A("s_barrier")
    SCR = 2
    A(f"ds_read_b128 v[{SCR}:{SCR+3}], v39 offset:{L_SC}")
    A(f"ds_read_b128 v[{SCR+4}:{SCR+7}], v39 offset:{L_SC+16}")
    stamp(5)
    A("s_mov_b32 s3, s41")
    T2 = 10
    first = True
    for j in range(NL):
        tb = T2 + 8 * (j % 3)
        for i in range(4):
            d = VD + 4 * j + i
            A(f"v_lshlrev_b32 v{tb+2*i}, 16, v{d}")
            A(f"v_and_b32 v{tb+2*i+1}, s44, v{d}")
        if first:
            A("s_waitcnt lgkmcnt(0)")
            first = False
        for i in range(4):
            A(f"v_pk_mul_f32 v[{tb+2*i}:{tb+2*i+1}], v[{tb+2*i}:{tb+2*i+1}], v[{SCR+2*i}:{SCR+2*i+1}]")
        for i in range(4):
            d = VD + 4 * j + i
            A(f"v_cvt_pk_bf16_f32 v{d}, v{tb+2*i}, v{tb+2*i+1}")
        r = VD + 4 * j
        A(f"buffer_store_dwordx4 v[{r}:{r+3}], v1, s[12:15], s3 offen {st}".rstrip())
        if j != NL - 1:
            A(f"s_add_u32 s3, s3, {s}")
        if j == 0:
            A("s_sub_u32 s42, s36, 4")
            A("s_cmp_ge_u32 s42, 3")
            A("s_cbranch_scc1 L_noreload")
            for k in range(6):
                A(f"ds_read_b128 v[{VS+4*k}:{VS+4*k+3}], v38 offset:{k*1024}")
            A("L_noreload:")
        if j == NL - 7:
            A("s_waitcnt lgkmcnt(0)")
    if stamps:
        stamp(6)
        A("s_waitcnt vmcnt(0)")
        stamp(7)
        A("s_waitcnt lgkmcnt(0)")
        A("s_mov_b64 exec, 1")
        if diag:
            idx, mul, base = diag[:3]
            dwg = diag[3] if len(diag) > 3 else 0
            if gmax is not None:
                A("v_mov_b32 v9, 16")
                if gmax[1] == 'max':
                    A(f"v_mov_b32 v10, s{60+2*gmax[0]}")
                elif gmax[1] == 'min':
                    A(f"v_not_b32 v10, s{60+2*gmax[0]}")
                else:
                    A(f"s_sub_u32 s42, s{60+2*gmax[0]}, s{60+2*gmax[2]}")
                    A("v_mov_b32 v10, s42")
                A("v_not_b32 v11, s60")
                A("buffer_atomic_umax v10, v9, s[16:19], 0 offen sc1")
                A("buffer_atomic_umax v11, v9, s[16:19], 0 offen offset:4 sc1")
                A("s_waitcnt vmcnt(0)")
            A("s_barrier")
            A("s_cmp_lg_u32 s36, 0")
            A("s_cbranch_scc1 L_end")
            A("v_mov_b32 v9, 4")
            A("v_mov_b32 v10, 1")
            A("buffer_atomic_add v10, v9, s[16:19], 0 offen sc1")
            A(f"s_cmp_lg_u32 s2, {dwg}")
            A("s_cbranch_scc1 L_end")
            A("s_mov_b32 s45, 0")
            A("L_dg1:")
            A("buffer_load_dword v10, v9, s[16:19], 0 offen sc1")
            A("s_add_u32 s45, s45, 1")
            A("s_waitcnt vmcnt(0)")
            A("v_readfirstlane_b32 s42, v10")
            A(f"s_cmp_ge_u32 s45, {SPIN}")
            A("s_cbranch_scc1 L_dg2")
            A("s_cmp_lt_u32 s42, 256")
            A("s_cbranch_scc1 L_dg1")
            A("L_dg2:")
            A("s_memrealtime s[76:77]")
            A("s_waitcnt lgkmcnt(0)")
            if gmax is not None:
                A("v_mov_b32 v9, 16")
                A("buffer_load_dwordx2 v[10:11], v9, s[16:19], 0 offen sc1")
                A("s_waitcnt vmcnt(0)")
                A("v_readfirstlane_b32 s42, v10")
                A("v_readfirstlane_b32 s43, v11")
                A("s_not_b32 s43, s43")
                if gmax[1] == 'min':
                    A("s_not_b32 s42, s42")
                if gmax[1] != 'rel':
                    A("s_sub_u32 s42, s42, s43")
            elif idx >= 0:
                A(f"s_sub_u32 s42, s{60+2*idx}, s60")
            else:
                A("s_mov_b32 s42, s80")
            A(f"s_mul_i32 s42, s42, {mul}")
            A(f"s_add_u32 s42, s42, {base}")
            A("s_min_u32 s42, s42, 200000")
            if want is not None:
                A("s_cmp_ge_u32 s89, 2")
                A("s_cselect_b32 s42, s42, 0" if want else "s_cselect_b32 s42, 0, s42")
            A("L_dg3:")
            A("s_memrealtime s[78:79]")
            A("s_waitcnt lgkmcnt(0)")
            A("s_sub_u32 s43, s78, %s" % ("s90" if (mprobe or predelay is not None) else "s60"))
            A("s_cmp_lt_u32 s43, s42")
            A("s_cbranch_scc1 L_dg3")
            A("s_branch L_end")
        A("s_mul_i32 s3, s2, 12")
        A("s_add_u32 s3, s3, s36")
        A("s_lshl_b32 s3, s3, 5")
        A(f"s_add_u32 s3, s3, {W_ST}")
        A("v_mov_b32 v1, 0")
        for i in range(8):
            A(f"v_mov_b32 v{4+i}, s{60+2*i}")
        A("buffer_store_dwordx4 v[4:7], v1, s[20:23], s3 offen")
        A("buffer_store_dwordx4 v[8:11], v1, s[20:23], s3 offen offset:16")
    A("L_end:")
    A("s_endpgm")
    A('.section .rodata,"a"')
    A(".p2align 6")
    A(".amdhsa_kernel standalone__channel_attn_cbam__vision_kernel")
    A("  .amdhsa_next_free_vgpr 168")
    A("  .amdhsa_next_free_sgpr 96")
    A("  .amdhsa_accum_offset 168")
    A("  .amdhsa_group_segment_fixed_size 0")
    A("  .amdhsa_kernarg_size 48")
    A("  .amdhsa_user_sgpr_count 2")
    A("  .amdhsa_user_sgpr_kernarg_segment_ptr 1")
    A("  .amdhsa_system_sgpr_workgroup_id_x 1")
    A("  .amdhsa_float_denorm_mode_32 3")
    A(".end_amdhsa_kernel")
    out = []
    for line in L:
        if line.startswith(("s_", "v_", "ds_", "buffer_")):
            out.append("    " + line)
        else:
            out.append(line)
    return "\n".join(out) + "\n"

if __name__ == "__main__":
    cfg = json.loads(sys.argv[1]) if len(sys.argv) > 1 else {}
    sys.stdout.write(gen(**cfg))
```

```python
import sys, json

HEADER = """; CBAM channel attention, x kept in registers across a grid-wide reduction (single pass over HBM)
"""

def gen(pat="contig", ld="nt", st="", nrep=8, repstride=4096, stamps=0, sleepA=0, sleepF=0, pat_st=None, diag=None, probe=None, mprobe=None, want=None, predelay=None, gmax=None, warm_dbg=0, wpos=3, warm_out=0, cw=7):
    if diag: stamps = 1
    NW = 12
    NL = 32
    VD = 40
    XB = 100663296
    L_W1, L_W2 = 0, 18432
    L_RED = 36864
    L_G = L_RED + 6144
    L_H = L_G + 768
    L_SC = L_H + 1536
    L_SP = L_SC + 768
    L_END = L_SP + 3 * 6144
    W_A = 0
    W_F = 96 * 4096
    W_ST = 1 << 20
    SPIN = 1 << 20
    step = NW * 1024
    L = []
    A = L.append
    def stamp(i):
        if stamps:
            A(f"s_memrealtime s[{60+2*i}:{61+2*i}]")
    A(HEADER.rstrip())
    A(f"; @launch grid=(256,1,1) block=({NW*64},1,1) lds={L_END}")
    A('.amdgcn_target "amdgcn-amd-amdhsa--gfx950"')
    A(".text")
    A(".globl standalone__channel_attn_cbam__vision_kernel")
    A(".p2align 8")
    A(".type standalone__channel_attn_cbam__vision_kernel,@function")
    A("standalone__channel_attn_cbam__vision_kernel:")
    stamp(0)
    A("s_load_dwordx4 s[4:7], s[0:1], 0")
    A("s_load_dwordx4 s[24:27], s[0:1], 16")
    A("s_load_dwordx4 s[28:31], s[0:1], 32")
    A("s_cmp_ge_u32 s2, 256")
    A("s_cbranch_scc1 L_end")
    A("v_lshrrev_b32 v2, 6, v0")
    A("v_and_b32 v3, 63, v0")
    A("v_readfirstlane_b32 s36, v2")
    A("v_lshrrev_b32 v4, 3, v3")
    A("v_mul_u32_u24 v4, 384, v4")
    A("v_and_b32 v5, 7, v3")
    A("v_lshl_add_u32 v1, v5, 4, v4")
    A("s_mul_i32 s37, s36, 43691")
    A("s_lshr_b32 s37, s37, 17")
    A("s_mul_i32 s38, s37, 3")
    A("s_sub_u32 s38, s36, s38")
    A("s_mul_i32 s39, s37, 3072")
    A("s_lshl_b32 s40, s38, 7")
    A("s_add_u32 s39, s39, s40")
    def base_stride(p):
        if p == "contig":
            return 393216, step
        if p == "inter":
            return step, 256 * step
        raise ValueError
    b, s = base_stride(pat)
    A(f"s_mul_i32 s41, s2, {b}")
    A("s_add_u32 s41, s41, s39")
    A("s_mov_b32 s3, s41")
    A("s_mov_b32 s10, %d" % XB); A("s_mov_b32 s11, 0x20000")
    A("s_mov_b32 s14, %d" % XB); A("s_mov_b32 s15, 0x20000")
    A("s_mov_b32 s18, 256"); A("s_mov_b32 s19, 0x20000")
    A("s_mov_b32 s22, 402653184"); A("s_mov_b32 s23, 0x20000")
    A("s_mov_b32 s34, 18432"); A("s_mov_b32 s35, 0x20000")
    A("s_waitcnt lgkmcnt(0)")
    A("s_mov_b32 s8, s4"); A("s_mov_b32 s9, s5")
    A("s_mov_b32 s12, s26"); A("s_mov_b32 s13, s27")
    A("s_mov_b32 s16, s28"); A("s_mov_b32 s17, s29")
    A("s_mov_b32 s20, s30"); A("s_mov_b32 s21, s31")
    if mprobe:
        buf, start, stride, n, thr, warm, pol = mprobe
        srd = {"x": "s[8:11]", "out": "s[12:15]", "ws": "s[20:23]"}[buf]
        A("s_mov_b32 s80, 0")
        A("s_cmp_lg_u32 s36, 0")
        A("s_cbranch_scc1 L_mp_bar")
        A("s_mov_b64 exec, 1")
        A("v_mov_b32 v9, 8")
        A("s_cmp_lg_u32 s2, 0")
        A("s_cbranch_scc1 L_mp_wait")
        A("v_mov_b32 v11, 0")
        A("s_sleep 127")
        if want is not None:
            A("s_mov_b32 s81, 8192")
            A("s_mov_b32 s82, 0")
            A("s_mov_b32 s89, 0")
            A("L_sp_loop:")
            A(f"buffer_load_dword v10, v11, s[8:11], s81 offen offset:1024")
            A("s_waitcnt vmcnt(0)")
            A("s_memtime s[84:85]")
            A("s_waitcnt lgkmcnt(0)")
            A(f"buffer_load_dword v10, v11, s[8:11], s81 offen")
            A("s_waitcnt vmcnt(0)")
            A("s_memtime s[86:87]")
            A("s_waitcnt lgkmcnt(0)")
            A("s_sub_u32 s83, s86, s84")
            A(f"s_cmp_lt_u32 s83, 560")
            A("s_cselect_b32 s83, 1, 0")
            A("s_add_u32 s89, s89, s83")
            A(f"s_add_u32 s81, s81, {6160384+4096+128}")
            A("s_add_u32 s82, s82, 1")
            A(f"s_cmp_lt_u32 s82, 16")
            A("s_cbranch_scc1 L_sp_loop")
        A(f"s_mov_b32 s81, {start}")
        A("s_mov_b32 s82, 0")
        A("L_mp_loop:")
        A(f"buffer_load_dword v10, v11, {srd}, s81 offen offset:{warm} {pol}")
        A("s_waitcnt vmcnt(0)")
        A("s_memtime s[84:85]")
        A("s_waitcnt lgkmcnt(0)")
        A(f"buffer_load_dword v10, v11, {srd}, s81 offen {pol}")
        A("s_waitcnt vmcnt(0)")
        A("s_memtime s[86:87]")
        A("s_waitcnt lgkmcnt(0)")
        A("s_sub_u32 s83, s86, s84")
        if thr > 0:
            A(f"s_cmp_lt_u32 s83, {thr}")
            A("s_cselect_b32 s83, 1, 0")
        A("s_add_u32 s80, s80, s83")
        if not diag:
            A("v_mov_b32 v12, s83")
            A("s_lshl_b32 s88, s82, 2")
            A(f"s_add_u32 s88, s88, {2 << 20}")
            A("buffer_store_dword v12, v11, s[20:23], s88 offen")
        A(f"s_add_u32 s81, s81, {stride}")
        A("s_add_u32 s82, s82, 1")
        A(f"s_cmp_lt_u32 s82, {n}")
        A("s_cbranch_scc1 L_mp_loop")
        A("v_mov_b32 v10, 1")
        A("buffer_store_dword v10, v9, s[16:19], 0 offen sc1")
        A("s_branch L_mp_done")
        A("L_mp_wait:")
        A("s_mov_b32 s82, 0")
        A("L_mp_w2:")
        A("s_sleep 32")
        A("buffer_load_dword v10, v9, s[16:19], 0 offen sc1")
        A("s_add_u32 s82, s82, 1")
        A("s_waitcnt vmcnt(0)")
        A("v_readfirstlane_b32 s83, v10")
        A("s_cmp_ge_u32 s82, 200000")
        A("s_cbranch_scc1 L_mp_done")
        A("s_cmp_eq_u32 s83, 0")
        A("s_cbranch_scc1 L_mp_w2")
        A("L_mp_done:")
        A("s_mov_b64 exec, -1")
        A("L_mp_bar:")
        A("s_barrier")
        A("s_mov_b32 s90, s60")
        stamp(0)
        A("s_waitcnt lgkmcnt(0)")
    if predelay is not None:
        A("s_mov_b32 s90, s60")
        A("L_pd:")
        A("s_sleep 1")
        A("s_memrealtime s[60:61]")
        A("s_waitcnt lgkmcnt(0)")
        A("s_sub_u32 s43, s60, s90")
        A(f"s_cmp_lt_u32 s43, {predelay}")
        A("s_cbranch_scc1 L_pd")
    A(f"s_cmp_lg_u32 s36, {cw}")
    A("s_cbranch_scc1 L_noclear")
    if warm_dbg:
        A("v_mov_b32 v9, 0")
        A("buffer_load_dword v11, v9, s[16:19], 0 offen sc1")
    if warm_out:
        A("v_mov_b32 v9, 0")
        A("buffer_load_dword v12, v9, s[12:15], s41 offen")
        A(f"s_add_u32 s42, s41, {s*(NL-1)}")
        A("buffer_load_dword v13, v9, s[12:15], s42 offen")
        A("buffer_load_dword v14, v9, s[8:11], s42 offen")
    A("v_mov_b32 v4, -1"); A("v_mov_b32 v5, -1"); A("v_mov_b32 v6, -1"); A("v_mov_b32 v7, -1")
    A("v_lshlrev_b32 v8, 12, v3")
    A("s_lshl_b32 s42, s2, 4")
    A(f"buffer_store_dwordx4 v[4:7], v8, s[20:23], s42 offen sc1")
    A("s_add_u32 s42, s42, %d" % (64 * 4096))
    A("s_mov_b32 exec_hi, 0")
    A(f"buffer_store_dwordx4 v[4:7], v8, s[20:23], s42 offen sc1")
    A("s_cmp_ge_u32 s2, 96")
    A("s_cbranch_scc1 L_noclearF")
    A(f"s_mov_b32 exec_lo, {(1 << nrep) - 1}")
    A(f"v_mul_u32_u24 v8, {repstride}, v3")
    A("s_lshl_b32 s42, s2, 3")
    A(f"s_add_u32 s42, s42, {W_F}")
    A(f"buffer_store_dwordx2 v[4:5], v8, s[20:23], s42 offen sc1")
    A("L_noclearF:")
    A("s_mov_b64 exec, 1")
    A("v_mov_b32 v9, 0")
    A("v_mov_b32 v10, 1")
    A("s_waitcnt vmcnt(0)")
    A("buffer_atomic_add v10, v9, s[16:19], 0 offen sc1")
    A("s_mov_b64 exec, -1")
    A("L_noclear:")
    ops = []
    def weights():
        A("s_cmp_ge_u32 s36, 6")
        A("s_cselect_b32 s32, s24, s6")
        A("s_cselect_b32 s33, s25, s7")
        A("s_cselect_b32 s42, 18432, 0")
        A("s_mul_i32 s43, s36, 3072")
        A("s_sub_u32 s42, s43, s42")
        A("s_mov_b32 m0, s43")
        A("v_lshlrev_b32 v2, 4, v3")
        for k in range(3):
            A(f"buffer_load_dwordx4 v2, s[32:35], s42 offen offset:{k*1024} lds")
            ops.append(("w", k))
    if wpos < 0:
        weights()
    for j in range(NL):
        r = VD + 4 * j
        A(f"buffer_load_dwordx4 v[{r}:{r+3}], v1, s[8:11], s3 offen {ld}".rstrip())
        ops.append(("d", j))
        if j != NL - 1:
            A(f"s_add_u32 s3, s3, {s}")
        if probe is not None and j == probe:
            A("s_waitcnt vmcnt(0)")
            stamp(1)
        if j == wpos:
            weights()
    A("v_mov_b32 v34, 0")
    A("s_and_b32 s42, s36, 14")
    A("s_cmp_lg_u32 s42, 2")
    A("s_cbranch_scc1 L_nocnt")
    A("buffer_load_dword v34, v34, s[16:19], 0 offen sc1")
    A("L_nocnt:")
    if probe is None: stamp(1)
    S, M, T = 2, 10, 18
    for i in range(8):
        A(f"v_mov_b32 v{S+i}, 0")
        A(f"v_mov_b32 v{M+i}, 0xff800000")
    A("s_mov_b32 s44, 0xffff0000")
    def after(j):
        idx = ops.index(("d", j))
        return len(ops) - 1 - idx
    groups = [(j, j + 1) for j in range(0, NL - 2, 2)] + [(NL - 2,), (NL - 1,)]
    for g in groups:
        A(f"s_waitcnt vmcnt({after(g[-1])})")
        for gi, j in enumerate(g):
            for i in range(4):
                d = VD + 4 * j + i
                t = T + 8 * gi + 2 * i
                A(f"v_lshlrev_b32 v{t}, 16, v{d}")
                A(f"v_and_b32 v{t+1}, s44, v{d}")
        for gi, j in enumerate(g):
            for i in range(4):
                t = T + 8 * gi + 2 * i
                A(f"v_pk_add_f32 v[{S+2*i}:{S+2*i+1}], v[{S+2*i}:{S+2*i+1}], v[{t}:{t+1}]")
        for i in range(8):
            if len(g) == 2:
                A(f"v_max3_f32 v{M+i}, v{M+i}, v{T+i}, v{T+8+i}")
            else:
                A(f"v_max_f32 v{M+i}, v{M+i}, v{T+i}")
    stamp(2)
    A("v_and_b32 v35, 63, v0")
    A("s_nop 0")
    for i in range(4):
        A(f"v_permlane32_swap_b32 v{S+i}, v{S+i+4}")
    for i in range(4):
        A(f"v_permlane32_swap_b32 v{M+i}, v{M+i+4}")
    for i in range(4):
        A(f"v_add_f32 v{S+i}, v{S+i}, v{S+i+4}")
    for i in range(4):
        A(f"v_max_f32 v{M+i}, v{M+i}, v{M+i+4}")
    A("v_and_b32 v36, 7, v35")
    A("v_lshrrev_b32 v37, 3, v35")
    for i in range(2):
        A(f"v_permlane16_swap_b32 v{S+i}, v{S+i+2}")
    for i in range(2):
        A(f"v_permlane16_swap_b32 v{M+i}, v{M+i+2}")
    for i in range(2):
        A(f"v_add_f32 v{S+i}, v{S+i}, v{S+i+2}")
    for i in range(2):
        A(f"v_max_f32 v{M+i}, v{M+i}, v{M+i+2}")
    A("v_lshl_add_u32 v36, v36, 3, v37")
    A("s_mul_i32 s42, s37, 768")
    A("s_lshl_b32 s43, s38, 8")
    A("s_add_u32 s42, s42, s43")
    A(f"s_add_u32 s42, s42, {L_RED}")
    A(f"v_add_f32_dpp v{T}, v{S}, v{S} row_ror:8 row_mask:0xf bank_mask:0x3")
    A(f"v_max_f32_dpp v{T+1}, v{M}, v{M} row_ror:8 row_mask:0xf bank_mask:0x3")
    A("v_lshl_add_u32 v36, v36, 2, s42")
    A(f"v_add_f32_dpp v{T}, v{S+1}, v{S+1} row_ror:8 row_mask:0xf bank_mask:0xc")
    A(f"v_max_f32_dpp v{T+1}, v{M+1}, v{M+1} row_ror:8 row_mask:0xf bank_mask:0xc")
    A(f"ds_write2st64_b32 v36, v{T}, v{T+1} offset0:0 offset1:12")
    A("s_waitcnt lgkmcnt(0)")
    A("s_barrier")
    stamp(3)
    A("s_cmp_ge_u32 s36, 2")
    A("s_cbranch_scc1 L_role2")
    A("s_mul_i32 s42, s36, 3072")
    A(f"s_add_u32 s42, s42, {L_RED}")
    A("s_mov_b32 exec_hi, 0xffff")
    A("v_lshl_add_u32 v36, v35, 4, s42")
    for q in range(4):
        A(f"ds_read_b128 v[{T+4*q}:{T+4*q+3}], v36 offset:{q*768}")
    A("s_mul_i32 s42, s36, %d" % (48 * 4096))
    A("s_lshl_b32 s43, s2, 4")
    A("s_add_u32 s42, s42, s43")
    A("v_lshlrev_b32 v37, 12, v35")
    A("s_cmp_eq_u32 s36, 1")
    A("s_cbranch_scc1 L_pubmax")
    A("s_waitcnt lgkmcnt(2)")
    A(f"v_pk_add_f32 v[{T}:{T+1}], v[{T}:{T+1}], v[{T+4}:{T+5}]")
    A(f"v_pk_add_f32 v[{T+2}:{T+3}], v[{T+2}:{T+3}], v[{T+6}:{T+7}]")
    A("s_waitcnt lgkmcnt(0)")
    A(f"v_pk_add_f32 v[{T+8}:{T+9}], v[{T+8}:{T+9}], v[{T+12}:{T+13}]")
    A(f"v_pk_add_f32 v[{T+10}:{T+11}], v[{T+10}:{T+11}], v[{T+14}:{T+15}]")
    A(f"v_pk_add_f32 v[{T}:{T+1}], v[{T}:{T+1}], v[{T+8}:{T+9}]")
    A(f"v_pk_add_f32 v[{T+2}:{T+3}], v[{T+2}:{T+3}], v[{T+10}:{T+11}]")
    A("s_branch L_pub")
    A("L_pubmax:")
    A("s_waitcnt lgkmcnt(0)")
    for i in range(4):
        A(f"v_max3_f32 v{T+i}, v{T+i}, v{T+4+i}, v{T+8+i}")
    for i in range(4):
        A(f"v_max_f32 v{T+i}, v{T+i}, v{T+12+i}")
    A("L_pub:")
    A(f"buffer_store_dwordx4 v[{T}:{T+3}], v37, s[20:23], s42 offen sc1")
    A("s_mov_b64 exec, -1")
    A("s_branch L_common")
    A("L_role2:")
    A("s_cmp_ge_u32 s36, 4")
    A("s_cbranch_scc1 L_role4")
    A("s_mov_b32 s45, 0")
    A("L_cnt:")
    A("v_readfirstlane_b32 s42, v34")
    A("s_cmp_ge_u32 s42, 256")
    A("s_cbranch_scc1 L_cntok")
    A("v_mov_b32 v34, 0")
    A("buffer_load_dword v34, v34, s[16:19], 0 offen sc1")
    A("s_add_u32 s45, s45, 1")
    A("s_waitcnt vmcnt(0)")
    A(f"s_cmp_lt_u32 s45, {SPIN}")
    A("s_cbranch_scc1 L_cnt")
    A("L_cntok:")
    A("s_cmp_eq_u32 s36, 3")
    A("s_cbranch_scc1 L_pollF")
    A("s_cmp_ge_u32 s2, 96")
    A("s_cbranch_scc1 L_common")
    A("s_lshl_b32 s42, s2, 12")
    A("v_lshlrev_b32 v36, 4, v35")
    A("L_pollA:")
    for k in range(4):
        A(f"buffer_load_dwordx4 v[{T+4*k}:{T+4*k+3}], v36, s[20:23], s42 offen offset:{k*1024} sc1")
    A("s_add_u32 s45, s45, 1")
    A("s_waitcnt vmcnt(3)")
    A(f"v_max3_u32 v2, v{T}, v{T+1}, v{T+2}")
    A("s_waitcnt vmcnt(2)")
    A(f"v_max3_u32 v2, v2, v{T+3}, v{T+4}")
    A(f"v_max3_u32 v2, v2, v{T+5}, v{T+6}")
    A("s_waitcnt vmcnt(1)")
    A(f"v_max3_u32 v2, v2, v{T+7}, v{T+8}")
    A(f"v_max3_u32 v2, v2, v{T+9}, v{T+10}")
    A("s_waitcnt vmcnt(0)")
    A(f"v_max3_u32 v3, v{T+11}, v{T+12}, v{T+13}")
    A(f"v_max3_u32 v2, v2, v{T+14}, v{T+15}")
    A("v_max_u32 v2, v2, v3")
    A("v_cmp_eq_u32 vcc, -1, v2")
    A("s_cbranch_vccz L_gotA")
    if sleepA:
        A(f"s_sleep {sleepA}")
    A(f"s_cmp_lt_u32 s45, {SPIN}")
    A("s_cbranch_scc1 L_pollA")
    A("L_gotA:")
    A("s_cmp_ge_u32 s2, 48")
    A("s_cbranch_scc1 L_redmax")
    def xreduce(op):
        A("s_nop 1")
        A(f"v_permlane32_swap_b32 v{T}, v{T+2}")
        A(f"v_permlane32_swap_b32 v{T+1}, v{T+3}")
        A(f"v_{op}_f32 v2, v{T}, v{T+2}")
        A(f"v_{op}_f32 v3, v{T+1}, v{T+3}")
        A(f"v_{op}_f32 v4, v{T}, v{T+2}")
        A(f"v_{op}_f32 v5, v{T+1}, v{T+3}")
        A("s_nop 0")
        A("v_permlane16_swap_b32 v2, v4")
        A("v_permlane16_swap_b32 v3, v5")
        A(f"v_{op}_f32 v2, v2, v4")
        A(f"v_{op}_f32 v3, v3, v5")
        for r in (8, 4, 2, 1):
            A("s_nop 0")
            A(f"v_{op}_f32_dpp v2, v2, v2 row_ror:{r} row_mask:0xf bank_mask:0xf")
            A(f"v_{op}_f32_dpp v3, v3, v3 row_ror:{r} row_mask:0xf bank_mask:0xf")
    A(f"v_pk_add_f32 v[{T}:{T+1}], v[{T}:{T+1}], v[{T+4}:{T+5}]")
    A(f"v_pk_add_f32 v[{T+2}:{T+3}], v[{T+2}:{T+3}], v[{T+6}:{T+7}]")
    A(f"v_pk_add_f32 v[{T+8}:{T+9}], v[{T+8}:{T+9}], v[{T+12}:{T+13}]")
    A(f"v_pk_add_f32 v[{T+10}:{T+11}], v[{T+10}:{T+11}], v[{T+14}:{T+15}]")
    A(f"v_pk_add_f32 v[{T}:{T+1}], v[{T}:{T+1}], v[{T+8}:{T+9}]")
    A(f"v_pk_add_f32 v[{T+2}:{T+3}], v[{T+2}:{T+3}], v[{T+10}:{T+11}]")
    xreduce("add")
    A("v_mul_f32 v2, 0x36800000, v2")
    A("v_mul_f32 v3, 0x36800000, v3")
    A("s_branch L_pubF")
    A("L_redmax:")
    for i in range(4):
        A(f"v_max3_f32 v{T+i}, v{T+i}, v{T+4+i}, v{T+8+i}")
    for i in range(4):
        A(f"v_max_f32 v{T+i}, v{T+i}, v{T+12+i}")
    xreduce("max")
    A("L_pubF:")
    A("v_and_b32 v4, 31, v35")
    A(f"v_mul_u32_u24 v4, {repstride}, v4")
    A("v_lshrrev_b32 v5, 5, v35")
    A("v_cvt_pk_bf16_f32 v2, v2, v3")
    A("v_lshl_add_u32 v4, v5, 2, v4")
    A("v_min_u32 v2, -2, v2")
    A("s_lshl_b32 s42, s2, 3")
    A(f"s_add_u32 s42, s42, {W_F}")
    m = (1 << nrep) - 1
    A(f"s_mov_b32 exec_lo, {m}")
    A(f"s_mov_b32 exec_hi, {m}")
    A("buffer_store_dword v2, v4, s[20:23], s42 offen sc1")
    A("s_mov_b64 exec, -1")
    A("s_branch L_common")
    A("L_pollF:")
    A(f"s_and_b32 s42, s2, {nrep-1}")
    A(f"s_mul_i32 s42, s42, {repstride}")
    A(f"s_add_u32 s42, s42, {W_F}")
    A("v_lshlrev_b32 v36, 4, v35")
    A("s_mov_b32 exec_hi, 0xffff")
    A("L_pollF2:")
    A(f"buffer_load_dwordx4 v[{T}:{T+3}], v36, s[20:23], s42 offen sc1")
    A("s_add_u32 s45, s45, 1")
    A("s_waitcnt vmcnt(0)")
    A(f"v_max3_u32 v2, v{T}, v{T+1}, v{T+2}")
    A(f"v_max_u32 v2, v2, v{T+3}")
    A("v_cmp_eq_u32 vcc, -1, v2")
    A("s_cbranch_vccz L_gotF")
    if sleepF:
        A(f"s_sleep {sleepF}")
    A(f"s_cmp_lt_u32 s45, {SPIN}")
    A("s_cbranch_scc1 L_pollF2")
    A("L_gotF:")
    A(f"ds_write_b128 v36, v[{T}:{T+3}] offset:{L_G}")
    A("s_mov_b64 exec, -1")
    A("s_branch L_common")
    A("L_role4:")
    A("s_cmp_ge_u32 s36, 7")
    A("s_cbranch_scc1 L_common")
    A("s_sub_u32 s46, s36, 4")
    A("s_mul_i32 s42, s46, 6144")
    A(f"s_add_u32 s42, s42, {L_SP}")
    A("v_lshl_add_u32 v38, v35, 4, s42")
    VS = VD + 4 * (NL - 6)
    for k in range(6):
        A(f"ds_write_b128 v38, v[{VS+4*k}:{VS+4*k+3}] offset:{k*1024}")
    A("v_lshrrev_b32 v2, 4, v35")
    A("v_lshlrev_b32 v2, 3, v2")
    A("v_bfe_u32 v3, v35, 2, 2")
    A("v_add_u32 v2, v2, v3")
    A("v_mul_u32_u24 v2, 96, v2")
    A("v_and_b32 v3, 3, v35")
    A("v_lshl_add_u32 v2, v3, 3, v2")
    A("s_lshl_b32 s42, s46, 5")
    A("v_add_u32 v2, s42, v2")
    A("s_waitcnt lgkmcnt(0)")
    for k in range(6):
        A(f"ds_read_b64_tr_b16 v[{VS+4*k}:{VS+4*k+1}], v2 offset:{L_W1 + k*3072}")
        A(f"ds_read_b64_tr_b16 v[{VS+4*k+2}:{VS+4*k+3}], v2 offset:{L_W1 + k*3072 + 384}")
    A("v_and_b32 v2, 1, v35")
    A("v_mul_u32_u24 v2, 384, v2")
    A("v_lshrrev_b32 v3, 4, v35")
    A("v_lshl_add_u32 v39, v3, 4, v2")
    A("L_common:")
    A("v_lshrrev_b32 v2, 2, v35")
    A("v_mul_u32_u24 v2, 384, v2")
    A("v_and_b32 v3, 3, v35")
    A("v_lshl_add_u32 v2, v3, 3, v2")
    A("s_lshl_b32 s42, s36, 5")
    A("v_add_u32 v2, s42, v2")
    W2F = 28
    for k in range(3):
        A(f"ds_read_b64_tr_b16 v[{W2F+2*k}:{W2F+2*k+1}], v2 offset:{L_W2 + k*6144}")
    A("v_lshlrev_b32 v37, 3, v35")
    A("s_waitcnt lgkmcnt(0)")
    A("s_barrier")
    stamp(4)
    A("s_sub_u32 s42, s36, 4")
    A("s_cmp_ge_u32 s42, 3")
    A("s_cbranch_scc1 L_l2")
    BF = 4
    for k in range(6):
        A(f"ds_read_b128 v[{BF+4*k}:{BF+4*k+3}], v39 offset:{L_G + k*64}")
    A("s_lshl_b32 s42, s42, 9")
    A("v_add_u32 v36, s42, v37")
    for k in range(6):
        A(f"s_waitcnt lgkmcnt({5-k})")
        c = "0" if k == 0 else f"v[{BF}:{BF+3}]"
        if k == 0:
            A(f"v_mfma_f32_16x16x32_bf16 v[0:3], v[{VS}:{VS+3}], v[{BF}:{BF+3}], 0")
        else:
            A(f"v_mfma_f32_16x16x32_bf16 v[0:3], v[{VS+4*k}:{VS+4*k+3}], v[{BF+4*k}:{BF+4*k+3}], v[0:3]")
    A("s_nop 7")
    A("v_cvt_pk_bf16_f32 v4, v0, v1")
    A("v_cvt_pk_bf16_f32 v5, v2, v3")
    A("v_lshlrev_b32 v0, 16, v4"); A("v_and_b32 v1, s44, v4")
    A("v_lshlrev_b32 v2, 16, v5"); A("v_and_b32 v3, s44, v5")
    for i in range(4):
        A(f"v_cmp_lt_f32 s[{48+2*i}:{49+2*i}], 0, v{i}")
    for i in range(4):
        A(f"v_cndmask_b32 v{6+i}, 0, 1.0, s[{48+2*i}:{49+2*i}]")
    A("v_pk_mul_f32 v[0:1], v[0:1], v[6:7]")
    A("v_pk_mul_f32 v[2:3], v[2:3], v[8:9]")
    A("v_cvt_pk_bf16_f32 v4, v0, v1")
    A("v_cvt_pk_bf16_f32 v5, v2, v3")
    A(f"ds_write_b64 v36, v[4:5] offset:{L_H}")
    A("v_lshrrev_b32 v6, 3, v35")
    A("v_mul_u32_u24 v6, 384, v6")
    A("v_and_b32 v7, 7, v35")
    A("v_lshl_add_u32 v1, v7, 4, v6")
    A("s_waitcnt lgkmcnt(0)")
    A("L_l2:")
    A("s_barrier")
    for k in range(3):
        A(f"ds_read_b64 v[{4+2*k}:{5+2*k}], v37 offset:{L_H + k*512}")
    A("v_bfe_u32 v2, v35, 1, 2")
    A("v_cmp_eq_u32 s[48:49], 1, v2")
    A("v_cmp_eq_u32 s[50:51], 2, v2")
    A("v_cmp_eq_u32 s[52:53], 3, v2")
    A("v_lshrrev_b32 v3, 4, v35")
    A("v_lshl_add_u32 v2, v3, 2, v2")
    A("s_lshl_b32 s42, s36, 6")
    A("v_lshl_add_u32 v36, v2, 2, s42")
    for k in range(3):
        A(f"s_waitcnt lgkmcnt({2-k})")
        c = "0" if k == 0 else "v[12:15]"
        A(f"v_mfma_f32_16x16x16_bf16 v[12:15], v[{W2F+2*k}:{W2F+2*k+1}], v[{4+2*k}:{5+2*k}], {c}")
    A("v_and_b32 v2, 7, v35")
    A("s_lshl_b32 s42, s38, 8")
    A("v_lshl_add_u32 v39, v2, 5, s42")
    A("s_mov_b32 s43, 0xbfb8aa3b")
    A("s_nop 4")
    A("v_cndmask_b32 v12, v12, v13, s[48:49]")
    A("v_cndmask_b32 v12, v12, v14, s[50:51]")
    A("v_cndmask_b32 v12, v12, v15, s[52:53]")
    A("v_cvt_pk_bf16_f32 v12, v12, v12")
    A("v_and_b32 v12, s44, v12")
    A("s_nop 1")
    A("v_add_f32_dpp v12, v12, v12 quad_perm:[1,0,3,2] row_mask:0xf bank_mask:0xf")
    A("v_cvt_pk_bf16_f32 v12, v12, v12")
    A("v_and_b32 v12, s44, v12")
    A("v_mul_f32 v12, s43, v12")
    A("v_exp_f32 v12, v12")
    A("s_nop 0")
    A("v_add_f32 v12, 1.0, v12")
    A("v_rcp_f32 v12, v12")
    A("s_nop 0")
    A("v_cvt_pk_bf16_f32 v12, v12, v12")
    A("v_and_b32 v12, s44, v12")
    A(f"ds_write_b32 v36, v12 offset:{L_SC}")
    A("s_waitcnt lgkmcnt(0)")
    A("s_barrier")
    SCR = 2
    A(f"ds_read_b128 v[{SCR}:{SCR+3}], v39 offset:{L_SC}")
    A(f"ds_read_b128 v[{SCR+4}:{SCR+7}], v39 offset:{L_SC+16}")
    stamp(5)
    A("s_mov_b32 s3, s41")
    T2 = 10
    first = True
    for j in range(NL):
        tb = T2 + 8 * (j % 3)
        for i in range(4):
            d = VD + 4 * j + i
            A(f"v_lshlrev_b32 v{tb+2*i}, 16, v{d}")
            A(f"v_and_b32 v{tb+2*i+1}, s44, v{d}")
        if first:
            A("s_waitcnt lgkmcnt(0)")
            first = False
        for i in range(4):
            A(f"v_pk_mul_f32 v[{tb+2*i}:{tb+2*i+1}], v[{tb+2*i}:{tb+2*i+1}], v[{SCR+2*i}:{SCR+2*i+1}]")
        for i in range(4):
            d = VD + 4 * j + i
            A(f"v_cvt_pk_bf16_f32 v{d}, v{tb+2*i}, v{tb+2*i+1}")
        r = VD + 4 * j
        A(f"buffer_store_dwordx4 v[{r}:{r+3}], v1, s[12:15], s3 offen {st}".rstrip())
        if j != NL - 1:
            A(f"s_add_u32 s3, s3, {s}")
        if j == 0:
            A("s_sub_u32 s42, s36, 4")
            A("s_cmp_ge_u32 s42, 3")
            A("s_cbranch_scc1 L_noreload")
            for k in range(6):
                A(f"ds_read_b128 v[{VS+4*k}:{VS+4*k+3}], v38 offset:{k*1024}")
            A("L_noreload:")
        if j == NL - 7:
            A("s_waitcnt lgkmcnt(0)")
    if stamps:
        stamp(6)
        A("s_waitcnt vmcnt(0)")
        stamp(7)
        A("s_waitcnt lgkmcnt(0)")
        A("s_mov_b64 exec, 1")
        if diag:
            idx, mul, base = diag[:3]
            dwg = diag[3] if len(diag) > 3 else 0
            if gmax is not None:
                A("v_mov_b32 v9, 16")
                if gmax[1] == 'max':
                    A(f"v_mov_b32 v10, s{60+2*gmax[0]}")
                elif gmax[1] == 'min':
                    A(f"v_not_b32 v10, s{60+2*gmax[0]}")
                else:
                    A(f"s_sub_u32 s42, s{60+2*gmax[0]}, s{60+2*gmax[2]}")
                    A("v_mov_b32 v10, s42")
                A("v_not_b32 v11, s60")
                A("buffer_atomic_umax v10, v9, s[16:19], 0 offen sc1")
                A("buffer_atomic_umax v11, v9, s[16:19], 0 offen offset:4 sc1")
                A("s_waitcnt vmcnt(0)")
            A("s_barrier")
            A("s_cmp_lg_u32 s36, 0")
            A("s_cbranch_scc1 L_end")
            A("v_mov_b32 v9, 4")
            A("v_mov_b32 v10, 1")
            A("buffer_atomic_add v10, v9, s[16:19], 0 offen sc1")
            A(f"s_cmp_lg_u32 s2, {dwg}")
            A("s_cbranch_scc1 L_end")
            A("s_mov_b32 s45, 0")
            A("L_dg1:")
            A("buffer_load_dword v10, v9, s[16:19], 0 offen sc1")
            A("s_add_u32 s45, s45, 1")
            A("s_waitcnt vmcnt(0)")
            A("v_readfirstlane_b32 s42, v10")
            A(f"s_cmp_ge_u32 s45, {SPIN}")
            A("s_cbranch_scc1 L_dg2")
            A("s_cmp_lt_u32 s42, 256")
            A("s_cbranch_scc1 L_dg1")
            A("L_dg2:")
            A("s_memrealtime s[76:77]")
            A("s_waitcnt lgkmcnt(0)")
            if gmax is not None:
                A("v_mov_b32 v9, 16")
                A("buffer_load_dwordx2 v[10:11], v9, s[16:19], 0 offen sc1")
                A("s_waitcnt vmcnt(0)")
                A("v_readfirstlane_b32 s42, v10")
                A("v_readfirstlane_b32 s43, v11")
                A("s_not_b32 s43, s43")
                if gmax[1] == 'min':
                    A("s_not_b32 s42, s42")
                if gmax[1] != 'rel':
                    A("s_sub_u32 s42, s42, s43")
            elif idx >= 0:
                A(f"s_sub_u32 s42, s{60+2*idx}, s60")
            else:
                A("s_mov_b32 s42, s80")
            A(f"s_mul_i32 s42, s42, {mul}")
            A(f"s_add_u32 s42, s42, {base}")
            A("s_min_u32 s42, s42, 200000")
            if want is not None:
                A("s_cmp_ge_u32 s89, 2")
                A("s_cselect_b32 s42, s42, 0" if want else "s_cselect_b32 s42, 0, s42")
            A("L_dg3:")
            A("s_memrealtime s[78:79]")
            A("s_waitcnt lgkmcnt(0)")
            A("s_sub_u32 s43, s78, %s" % ("s90" if (mprobe or predelay is not None) else "s60"))
            A("s_cmp_lt_u32 s43, s42")
            A("s_cbranch_scc1 L_dg3")
            A("s_branch L_end")
        A("s_mul_i32 s3, s2, 12")
        A("s_add_u32 s3, s3, s36")
        A("s_lshl_b32 s3, s3, 5")
        A(f"s_add_u32 s3, s3, {W_ST}")
        A("v_mov_b32 v1, 0")
        for i in range(8):
            A(f"v_mov_b32 v{4+i}, s{60+2*i}")
        A("buffer_store_dwordx4 v[4:7], v1, s[20:23], s3 offen")
        A("buffer_store_dwordx4 v[8:11], v1, s[20:23], s3 offen offset:16")
    A("L_end:")
    A("s_endpgm")
    A('.section .rodata,"a"')
    A(".p2align 6")
    A(".amdhsa_kernel standalone__channel_attn_cbam__vision_kernel")
    A("  .amdhsa_next_free_vgpr 168")
    A("  .amdhsa_next_free_sgpr 96")
    A("  .amdhsa_accum_offset 168")
    A("  .amdhsa_group_segment_fixed_size 0")
    A("  .amdhsa_kernarg_size 48")
    A("  .amdhsa_user_sgpr_count 2")
    A("  .amdhsa_user_sgpr_kernarg_segment_ptr 1")
    A("  .amdhsa_system_sgpr_workgroup_id_x 1")
    A("  .amdhsa_float_denorm_mode_32 3")
    A(".end_amdhsa_kernel")
    out = []
    for line in L:
        if line.startswith(("s_", "v_", "ds_", "buffer_")):
            out.append("    " + line)
        else:
            out.append(line)
    return "\n".join(out) + "\n"

if __name__ == "__main__":
    cfg = json.loads(sys.argv[1]) if len(sys.argv) > 1 else {}
    sys.stdout.write(gen(**cfg))
```

```python
import sys, json

HEADER = """; CBAM channel attention, x kept in registers across a grid-wide reduction (single pass over HBM)
"""

def gen(pat="contig", ld="nt", st="", nrep=8, repstride=4096, stamps=0, sleepA=0, sleepF=0, pat_st=None, diag=None, probe=None, mprobe=None, want=None, predelay=None, gmax=None, warm_dbg=0, wpos=3, warm_out=0, cw=7, warm_w=0):
    if diag: stamps = 1
    NW = 12
    NL = 32
    VD = 40
    XB = 100663296
    L_W1, L_W2 = 0, 18432
    L_RED = 36864
    L_G = L_RED + 6144
    L_H = L_G + 768
    L_SC = L_H + 1536
    L_SP = L_SC + 768
    L_END = L_SP + 3 * 6144
    W_A = 0
    W_F = 96 * 4096
    W_ST = 1 << 20
    SPIN = 1 << 20
    step = NW * 1024
    L = []
    A = L.append
    def stamp(i):
        if stamps:
            A(f"s_memrealtime s[{60+2*i}:{61+2*i}]")
    A(HEADER.rstrip())
    A(f"; @launch grid=(256,1,1) block=({NW*64},1,1) lds={L_END}")
    A('.amdgcn_target "amdgcn-amd-amdhsa--gfx950"')
    A(".text")
    A(".globl standalone__channel_attn_cbam__vision_kernel")
    A(".p2align 8")
    A(".type standalone__channel_attn_cbam__vision_kernel,@function")
    A("standalone__channel_attn_cbam__vision_kernel:")
    stamp(0)
    A("s_load_dwordx4 s[4:7], s[0:1], 0")
    A("s_load_dwordx4 s[24:27], s[0:1], 16")
    A("s_load_dwordx4 s[28:31], s[0:1], 32")
    A("s_cmp_ge_u32 s2, 256")
    A("s_cbranch_scc1 L_end")
    A("v_lshrrev_b32 v2, 6, v0")
    A("v_and_b32 v3, 63, v0")
    A("v_readfirstlane_b32 s36, v2")
    A("v_lshrrev_b32 v4, 3, v3")
    A("v_mul_u32_u24 v4, 384, v4")
    A("v_and_b32 v5, 7, v3")
    A("v_lshl_add_u32 v1, v5, 4, v4")
    A("s_mul_i32 s37, s36, 43691")
    A("s_lshr_b32 s37, s37, 17")
    A("s_mul_i32 s38, s37, 3")
    A("s_sub_u32 s38, s36, s38")
    A("s_mul_i32 s39, s37, 3072")
    A("s_lshl_b32 s40, s38, 7")
    A("s_add_u32 s39, s39, s40")
    def base_stride(p):
        if p == "contig":
            return 393216, step
        if p == "inter":
            return step, 256 * step
        raise ValueError
    b, s = base_stride(pat)
    A(f"s_mul_i32 s41, s2, {b}")
    A("s_add_u32 s41, s41, s39")
    A("s_mov_b32 s3, s41")
    A("s_mov_b32 s10, %d" % XB); A("s_mov_b32 s11, 0x20000")
    A("s_mov_b32 s14, %d" % XB); A("s_mov_b32 s15, 0x20000")
    A("s_mov_b32 s18, 256"); A("s_mov_b32 s19, 0x20000")
    A("s_mov_b32 s22, 402653184"); A("s_mov_b32 s23, 0x20000")
    A("s_mov_b32 s34, 18432"); A("s_mov_b32 s35, 0x20000")
    A("s_waitcnt lgkmcnt(0)")
    A("s_mov_b32 s8, s4"); A("s_mov_b32 s9, s5")
    A("s_mov_b32 s12, s26"); A("s_mov_b32 s13, s27")
    A("s_mov_b32 s16, s28"); A("s_mov_b32 s17, s29")
    A("s_mov_b32 s20, s30"); A("s_mov_b32 s21, s31")
    if mprobe:
        buf, start, stride, n, thr, warm, pol = mprobe
        srd = {"x": "s[8:11]", "out": "s[12:15]", "ws": "s[20:23]"}[buf]
        A("s_mov_b32 s80, 0")
        A("s_cmp_lg_u32 s36, 0")
        A("s_cbranch_scc1 L_mp_bar")
        A("s_mov_b64 exec, 1")
        A("v_mov_b32 v9, 8")
        A("s_cmp_lg_u32 s2, 0")
        A("s_cbranch_scc1 L_mp_wait")
        A("v_mov_b32 v11, 0")
        A("s_sleep 127")
        if want is not None:
            A("s_mov_b32 s81, 8192")
            A("s_mov_b32 s82, 0")
            A("s_mov_b32 s89, 0")
            A("L_sp_loop:")
            A(f"buffer_load_dword v10, v11, s[8:11], s81 offen offset:1024")
            A("s_waitcnt vmcnt(0)")
            A("s_memtime s[84:85]")
            A("s_waitcnt lgkmcnt(0)")
            A(f"buffer_load_dword v10, v11, s[8:11], s81 offen")
            A("s_waitcnt vmcnt(0)")
            A("s_memtime s[86:87]")
            A("s_waitcnt lgkmcnt(0)")
            A("s_sub_u32 s83, s86, s84")
            A(f"s_cmp_lt_u32 s83, 560")
            A("s_cselect_b32 s83, 1, 0")
            A("s_add_u32 s89, s89, s83")
            A(f"s_add_u32 s81, s81, {6160384+4096+128}")
            A("s_add_u32 s82, s82, 1")
            A(f"s_cmp_lt_u32 s82, 16")
            A("s_cbranch_scc1 L_sp_loop")
        A(f"s_mov_b32 s81, {start}")
        A("s_mov_b32 s82, 0")
        A("L_mp_loop:")
        A(f"buffer_load_dword v10, v11, {srd}, s81 offen offset:{warm} {pol}")
        A("s_waitcnt vmcnt(0)")
        A("s_memtime s[84:85]")
        A("s_waitcnt lgkmcnt(0)")
        A(f"buffer_load_dword v10, v11, {srd}, s81 offen {pol}")
        A("s_waitcnt vmcnt(0)")
        A("s_memtime s[86:87]")
        A("s_waitcnt lgkmcnt(0)")
        A("s_sub_u32 s83, s86, s84")
        if thr > 0:
            A(f"s_cmp_lt_u32 s83, {thr}")
            A("s_cselect_b32 s83, 1, 0")
        A("s_add_u32 s80, s80, s83")
        if not diag:
            A("v_mov_b32 v12, s83")
            A("s_lshl_b32 s88, s82, 2")
            A(f"s_add_u32 s88, s88, {2 << 20}")
            A("buffer_store_dword v12, v11, s[20:23], s88 offen")
        A(f"s_add_u32 s81, s81, {stride}")
        A("s_add_u32 s82, s82, 1")
        A(f"s_cmp_lt_u32 s82, {n}")
        A("s_cbranch_scc1 L_mp_loop")
        A("v_mov_b32 v10, 1")
        A("buffer_store_dword v10, v9, s[16:19], 0 offen sc1")
        A("s_branch L_mp_done")
        A("L_mp_wait:")
        A("s_mov_b32 s82, 0")
        A("L_mp_w2:")
        A("s_sleep 32")
        A("buffer_load_dword v10, v9, s[16:19], 0 offen sc1")
        A("s_add_u32 s82, s82, 1")
        A("s_waitcnt vmcnt(0)")
        A("v_readfirstlane_b32 s83, v10")
        A("s_cmp_ge_u32 s82, 200000")
        A("s_cbranch_scc1 L_mp_done")
        A("s_cmp_eq_u32 s83, 0")
        A("s_cbranch_scc1 L_mp_w2")
        A("L_mp_done:")
        A("s_mov_b64 exec, -1")
        A("L_mp_bar:")
        A("s_barrier")
        A("s_mov_b32 s90, s60")
        stamp(0)
        A("s_waitcnt lgkmcnt(0)")
    if predelay is not None:
        A("s_mov_b32 s90, s60")
        A("L_pd:")
        A("s_sleep 1")
        A("s_memrealtime s[60:61]")
        A("s_waitcnt lgkmcnt(0)")
        A("s_sub_u32 s43, s60, s90")
        A(f"s_cmp_lt_u32 s43, {predelay}")
        A("s_cbranch_scc1 L_pd")
    A(f"s_cmp_lg_u32 s36, {cw}")
    A("s_cbranch_scc1 L_noclear")
    if warm_dbg:
        A("v_mov_b32 v9, 0")
        A("buffer_load_dword v11, v9, s[16:19], 0 offen sc1")
    if warm_w:
        A("v_mov_b32 v9, 0")
        A("s_mov_b32 s32, s24")
        A("s_mov_b32 s33, s25")
        A("buffer_load_dword v15, v9, s[32:35], 0 offen")
        A("s_mov_b32 s32, s6")
        A("s_mov_b32 s33, s7")
        A("buffer_load_dword v16, v9, s[32:35], 0 offen")
    if warm_out:
        A("v_mov_b32 v9, 0")
        A("buffer_load_dword v12, v9, s[12:15], s41 offen")
        A(f"s_add_u32 s42, s41, {s*(NL-1)}")
        A("buffer_load_dword v13, v9, s[12:15], s42 offen")
        A("buffer_load_dword v14, v9, s[8:11], s42 offen")
    A("v_mov_b32 v4, -1"); A("v_mov_b32 v5, -1"); A("v_mov_b32 v6, -1"); A("v_mov_b32 v7, -1")
    A("v_lshlrev_b32 v8, 12, v3")
    A("s_lshl_b32 s42, s2, 4")
    A(f"buffer_store_dwordx4 v[4:7], v8, s[20:23], s42 offen sc1")
    A("s_add_u32 s42, s42, %d" % (64 * 4096))
    A("s_mov_b32 exec_hi, 0")
    A(f"buffer_store_dwordx4 v[4:7], v8, s[20:23], s42 offen sc1")
    A("s_cmp_ge_u32 s2, 96")
    A("s_cbranch_scc1 L_noclearF")
    A(f"s_mov_b32 exec_lo, {(1 << nrep) - 1}")
    A(f"v_mul_u32_u24 v8, {repstride}, v3")
    A("s_lshl_b32 s42, s2, 3")
    A(f"s_add_u32 s42, s42, {W_F}")
    A(f"buffer_store_dwordx2 v[4:5], v8, s[20:23], s42 offen sc1")
    A("L_noclearF:")
    A("s_mov_b64 exec, 1")
    A("v_mov_b32 v9, 0")
    A("v_mov_b32 v10, 1")
    A("s_waitcnt vmcnt(0)")
    A("buffer_atomic_add v10, v9, s[16:19], 0 offen sc1")
    A("s_mov_b64 exec, -1")
    A("L_noclear:")
    ops = []
    def weights():
        A("s_cmp_ge_u32 s36, 6")
        A("s_cselect_b32 s32, s24, s6")
        A("s_cselect_b32 s33, s25, s7")
        A("s_cselect_b32 s42, 18432, 0")
        A("s_mul_i32 s43, s36, 3072")
        A("s_sub_u32 s42, s43, s42")
        A("s_mov_b32 m0, s43")
        A("v_lshlrev_b32 v2, 4, v3")
        for k in range(3):
            A(f"buffer_load_dwordx4 v2, s[32:35], s42 offen offset:{k*1024} lds")
            ops.append(("w", k))
    if wpos < 0:
        weights()
    for j in range(NL):
        r = VD + 4 * j
        A(f"buffer_load_dwordx4 v[{r}:{r+3}], v1, s[8:11], s3 offen {ld}".rstrip())
        ops.append(("d", j))
        if j != NL - 1:
            A(f"s_add_u32 s3, s3, {s}")
        if probe is not None and j == probe:
            A("s_waitcnt vmcnt(0)")
            stamp(1)
        if j == wpos:
            weights()
    A("v_mov_b32 v34, 0")
    A("s_and_b32 s42, s36, 14")
    A("s_cmp_lg_u32 s42, 2")
    A("s_cbranch_scc1 L_nocnt")
    A("buffer_load_dword v34, v34, s[16:19], 0 offen sc1")
    A("L_nocnt:")
    if probe is None: stamp(1)
    S, M, T = 2, 10, 18
    for i in range(8):
        A(f"v_mov_b32 v{S+i}, 0")
        A(f"v_mov_b32 v{M+i}, 0xff800000")
    A("s_mov_b32 s44, 0xffff0000")
    def after(j):
        idx = ops.index(("d", j))
        return len(ops) - 1 - idx
    groups = [(j, j + 1) for j in range(0, NL - 2, 2)] + [(NL - 2,), (NL - 1,)]
    for g in groups:
        A(f"s_waitcnt vmcnt({after(g[-1])})")
        for gi, j in enumerate(g):
            for i in range(4):
                d = VD + 4 * j + i
                t = T + 8 * gi + 2 * i
                A(f"v_lshlrev_b32 v{t}, 16, v{d}")
                A(f"v_and_b32 v{t+1}, s44, v{d}")
        for gi, j in enumerate(g):
            for i in range(4):
                t = T + 8 * gi + 2 * i
                A(f"v_pk_add_f32 v[{S+2*i}:{S+2*i+1}], v[{S+2*i}:{S+2*i+1}], v[{t}:{t+1}]")
        for i in range(8):
            if len(g) == 2:
                A(f"v_max3_f32 v{M+i}, v{M+i}, v{T+i}, v{T+8+i}")
            else:
                A(f"v_max_f32 v{M+i}, v{M+i}, v{T+i}")
    stamp(2)
    A("v_and_b32 v35, 63, v0")
    A("s_nop 0")
    for i in range(4):
        A(f"v_permlane32_swap_b32 v{S+i}, v{S+i+4}")
    for i in range(4):
        A(f"v_permlane32_swap_b32 v{M+i}, v{M+i+4}")
    for i in range(4):
        A(f"v_add_f32 v{S+i}, v{S+i}, v{S+i+4}")
    for i in range(4):
        A(f"v_max_f32 v{M+i}, v{M+i}, v{M+i+4}")
    A("v_and_b32 v36, 7, v35")
    A("v_lshrrev_b32 v37, 3, v35")
    for i in range(2):
        A(f"v_permlane16_swap_b32 v{S+i}, v{S+i+2}")
    for i in range(2):
        A(f"v_permlane16_swap_b32 v{M+i}, v{M+i+2}")
    for i in range(2):
        A(f"v_add_f32 v{S+i}, v{S+i}, v{S+i+2}")
    for i in range(2):
        A(f"v_max_f32 v{M+i}, v{M+i}, v{M+i+2}")
    A("v_lshl_add_u32 v36, v36, 3, v37")
    A("s_mul_i32 s42, s37, 768")
    A("s_lshl_b32 s43, s38, 8")
    A("s_add_u32 s42, s42, s43")
    A(f"s_add_u32 s42, s42, {L_RED}")
    A(f"v_add_f32_dpp v{T}, v{S}, v{S} row_ror:8 row_mask:0xf bank_mask:0x3")
    A(f"v_max_f32_dpp v{T+1}, v{M}, v{M} row_ror:8 row_mask:0xf bank_mask:0x3")
    A("v_lshl_add_u32 v36, v36, 2, s42")
    A(f"v_add_f32_dpp v{T}, v{S+1}, v{S+1} row_ror:8 row_mask:0xf bank_mask:0xc")
    A(f"v_max_f32_dpp v{T+1}, v{M+1}, v{M+1} row_ror:8 row_mask:0xf bank_mask:0xc")
    A(f"ds_write2st64_b32 v36, v{T}, v{T+1} offset0:0 offset1:12")
    A("s_waitcnt lgkmcnt(0)")
    A("s_barrier")
    stamp(3)
    A("s_cmp_ge_u32 s36, 2")
    A("s_cbranch_scc1 L_role2")
    A("s_mul_i32 s42, s36, 3072")
    A(f"s_add_u32 s42, s42, {L_RED}")
    A("s_mov_b32 exec_hi, 0xffff")
    A("v_lshl_add_u32 v36, v35, 4, s42")
    for q in range(4):
        A(f"ds_read_b128 v[{T+4*q}:{T+4*q+3}], v36 offset:{q*768}")
    A("s_mul_i32 s42, s36, %d" % (48 * 4096))
    A("s_lshl_b32 s43, s2, 4")
    A("s_add_u32 s42, s42, s43")
    A("v_lshlrev_b32 v37, 12, v35")
    A("s_cmp_eq_u32 s36, 1")
    A("s_cbranch_scc1 L_pubmax")
    A("s_waitcnt lgkmcnt(2)")
    A(f"v_pk_add_f32 v[{T}:{T+1}], v[{T}:{T+1}], v[{T+4}:{T+5}]")
    A(f"v_pk_add_f32 v[{T+2}:{T+3}], v[{T+2}:{T+3}], v[{T+6}:{T+7}]")
    A("s_waitcnt lgkmcnt(0)")
    A(f"v_pk_add_f32 v[{T+8}:{T+9}], v[{T+8}:{T+9}], v[{T+12}:{T+13}]")
    A(f"v_pk_add_f32 v[{T+10}:{T+11}], v[{T+10}:{T+11}], v[{T+14}:{T+15}]")
    A(f"v_pk_add_f32 v[{T}:{T+1}], v[{T}:{T+1}], v[{T+8}:{T+9}]")
    A(f"v_pk_add_f32 v[{T+2}:{T+3}], v[{T+2}:{T+3}], v[{T+10}:{T+11}]")
    A("s_branch L_pub")
    A("L_pubmax:")
    A("s_waitcnt lgkmcnt(0)")
    for i in range(4):
        A(f"v_max3_f32 v{T+i}, v{T+i}, v{T+4+i}, v{T+8+i}")
    for i in range(4):
        A(f"v_max_f32 v{T+i}, v{T+i}, v{T+12+i}")
    A("L_pub:")
    A(f"buffer_store_dwordx4 v[{T}:{T+3}], v37, s[20:23], s42 offen sc1")
    A("s_mov_b64 exec, -1")
    A("s_branch L_common")
    A("L_role2:")
    A("s_cmp_ge_u32 s36, 4")
    A("s_cbranch_scc1 L_role4")
    A("s_mov_b32 s45, 0")
    A("L_cnt:")
    A("v_readfirstlane_b32 s42, v34")
    A("s_cmp_ge_u32 s42, 256")
    A("s_cbranch_scc1 L_cntok")
    A("v_mov_b32 v34, 0")
    A("buffer_load_dword v34, v34, s[16:19], 0 offen sc1")
    A("s_add_u32 s45, s45, 1")
    A("s_waitcnt vmcnt(0)")
    A(f"s_cmp_lt_u32 s45, {SPIN}")
    A("s_cbranch_scc1 L_cnt")
    A("L_cntok:")
    A("s_cmp_eq_u32 s36, 3")
    A("s_cbranch_scc1 L_pollF")
    A("s_cmp_ge_u32 s2, 96")
    A("s_cbranch_scc1 L_common")
    A("s_lshl_b32 s42, s2, 12")
    A("v_lshlrev_b32 v36, 4, v35")
    A("L_pollA:")
    for k in range(4):
        A(f"buffer_load_dwordx4 v[{T+4*k}:{T+4*k+3}], v36, s[20:23], s42 offen offset:{k*1024} sc1")
    A("s_add_u32 s45, s45, 1")
    A("s_waitcnt vmcnt(3)")
    A(f"v_max3_u32 v2, v{T}, v{T+1}, v{T+2}")
    A("s_waitcnt vmcnt(2)")
    A(f"v_max3_u32 v2, v2, v{T+3}, v{T+4}")
    A(f"v_max3_u32 v2, v2, v{T+5}, v{T+6}")
    A("s_waitcnt vmcnt(1)")
    A(f"v_max3_u32 v2, v2, v{T+7}, v{T+8}")
    A(f"v_max3_u32 v2, v2, v{T+9}, v{T+10}")
    A("s_waitcnt vmcnt(0)")
    A(f"v_max3_u32 v3, v{T+11}, v{T+12}, v{T+13}")
    A(f"v_max3_u32 v2, v2, v{T+14}, v{T+15}")
    A("v_max_u32 v2, v2, v3")
    A("v_cmp_eq_u32 vcc, -1, v2")
    A("s_cbranch_vccz L_gotA")
    if sleepA:
        A(f"s_sleep {sleepA}")
    A(f"s_cmp_lt_u32 s45, {SPIN}")
    A("s_cbranch_scc1 L_pollA")
    A("L_gotA:")
    A("s_cmp_ge_u32 s2, 48")
    A("s_cbranch_scc1 L_redmax")
    def xreduce(op):
        A("s_nop 1")
        A(f"v_permlane32_swap_b32 v{T}, v{T+2}")
        A(f"v_permlane32_swap_b32 v{T+1}, v{T+3}")
        A(f"v_{op}_f32 v2, v{T}, v{T+2}")
        A(f"v_{op}_f32 v3, v{T+1}, v{T+3}")
        A(f"v_{op}_f32 v4, v{T}, v{T+2}")
        A(f"v_{op}_f32 v5, v{T+1}, v{T+3}")
        A("s_nop 0")
        A("v_permlane16_swap_b32 v2, v4")
        A("v_permlane16_swap_b32 v3, v5")
        A(f"v_{op}_f32 v2, v2, v4")
        A(f"v_{op}_f32 v3, v3, v5")
        for r in (8, 4, 2, 1):
            A("s_nop 0")
            A(f"v_{op}_f32_dpp v2, v2, v2 row_ror:{r} row_mask:0xf bank_mask:0xf")
            A(f"v_{op}_f32_dpp v3, v3, v3 row_ror:{r} row_mask:0xf bank_mask:0xf")
    A(f"v_pk_add_f32 v[{T}:{T+1}], v[{T}:{T+1}], v[{T+4}:{T+5}]")
    A(f"v_pk_add_f32 v[{T+2}:{T+3}], v[{T+2}:{T+3}], v[{T+6}:{T+7}]")
    A(f"v_pk_add_f32 v[{T+8}:{T+9}], v[{T+8}:{T+9}], v[{T+12}:{T+13}]")
    A(f"v_pk_add_f32 v[{T+10}:{T+11}], v[{T+10}:{T+11}], v[{T+14}:{T+15}]")
    A(f"v_pk_add_f32 v[{T}:{T+1}], v[{T}:{T+1}], v[{T+8}:{T+9}]")
    A(f"v_pk_add_f32 v[{T+2}:{T+3}], v[{T+2}:{T+3}], v[{T+10}:{T+11}]")
    xreduce("add")
    A("v_mul_f32 v2, 0x36800000, v2")
    A("v_mul_f32 v3, 0x36800000, v3")
    A("s_branch L_pubF")
    A("L_redmax:")
    for i in range(4):
        A(f"v_max3_f32 v{T+i}, v{T+i}, v{T+4+i}, v{T+8+i}")
    for i in range(4):
        A(f"v_max_f32 v{T+i}, v{T+i}, v{T+12+i}")
    xreduce("max")
    A("L_pubF:")
    A("v_and_b32 v4, 31, v35")
    A(f"v_mul_u32_u24 v4, {repstride}, v4")
    A("v_lshrrev_b32 v5, 5, v35")
    A("v_cvt_pk_bf16_f32 v2, v2, v3")
    A("v_lshl_add_u32 v4, v5, 2, v4")
    A("v_min_u32 v2, -2, v2")
    A("s_lshl_b32 s42, s2, 3")
    A(f"s_add_u32 s42, s42, {W_F}")
    m = (1 << nrep) - 1
    A(f"s_mov_b32 exec_lo, {m}")
    A(f"s_mov_b32 exec_hi, {m}")
    A("buffer_store_dword v2, v4, s[20:23], s42 offen sc1")
    A("s_mov_b64 exec, -1")
    A("s_branch L_common")
    A("L_pollF:")
    A(f"s_and_b32 s42, s2, {nrep-1}")
    A(f"s_mul_i32 s42, s42, {repstride}")
    A(f"s_add_u32 s42, s42, {W_F}")
    A("v_lshlrev_b32 v36, 4, v35")
    A("s_mov_b32 exec_hi, 0xffff")
    A("L_pollF2:")
    A(f"buffer_load_dwordx4 v[{T}:{T+3}], v36, s[20:23], s42 offen sc1")
    A("s_add_u32 s45, s45, 1")
    A("s_waitcnt vmcnt(0)")
    A(f"v_max3_u32 v2, v{T}, v{T+1}, v{T+2}")
    A(f"v_max_u32 v2, v2, v{T+3}")
    A("v_cmp_eq_u32 vcc, -1, v2")
    A("s_cbranch_vccz L_gotF")
    if sleepF:
        A(f"s_sleep {sleepF}")
    A(f"s_cmp_lt_u32 s45, {SPIN}")
    A("s_cbranch_scc1 L_pollF2")
    A("L_gotF:")
    A(f"ds_write_b128 v36, v[{T}:{T+3}] offset:{L_G}")
    A("s_mov_b64 exec, -1")
    A("s_branch L_common")
    A("L_role4:")
    A("s_cmp_ge_u32 s36, 7")
    A("s_cbranch_scc1 L_common")
    A("s_sub_u32 s46, s36, 4")
    A("s_mul_i32 s42, s46, 6144")
    A(f"s_add_u32 s42, s42, {L_SP}")
    A("v_lshl_add_u32 v38, v35, 4, s42")
    VS = VD + 4 * (NL - 6)
    for k in range(6):
        A(f"ds_write_b128 v38, v[{VS+4*k}:{VS+4*k+3}] offset:{k*1024}")
    A("v_lshrrev_b32 v2, 4, v35")
    A("v_lshlrev_b32 v2, 3, v2")
    A("v_bfe_u32 v3, v35, 2, 2")
    A("v_add_u32 v2, v2, v3")
    A("v_mul_u32_u24 v2, 96, v2")
    A("v_and_b32 v3, 3, v35")
    A("v_lshl_add_u32 v2, v3, 3, v2")
    A("s_lshl_b32 s42, s46, 5")
    A("v_add_u32 v2, s42, v2")
    A("s_waitcnt lgkmcnt(0)")
    for k in range(6):
        A(f"ds_read_b64_tr_b16 v[{VS+4*k}:{VS+4*k+1}], v2 offset:{L_W1 + k*3072}")
        A(f"ds_read_b64_tr_b16 v[{VS+4*k+2}:{VS+4*k+3}], v2 offset:{L_W1 + k*3072 + 384}")
    A("v_and_b32 v2, 1, v35")
    A("v_mul_u32_u24 v2, 384, v2")
    A("v_lshrrev_b32 v3, 4, v35")
    A("v_lshl_add_u32 v39, v3, 4, v2")
    A("L_common:")
    A("v_lshrrev_b32 v2, 2, v35")
    A("v_mul_u32_u24 v2, 384, v2")
    A("v_and_b32 v3, 3, v35")
    A("v_lshl_add_u32 v2, v3, 3, v2")
    A("s_lshl_b32 s42, s36, 5")
    A("v_add_u32 v2, s42, v2")
    W2F = 28
    for k in range(3):
        A(f"ds_read_b64_tr_b16 v[{W2F+2*k}:{W2F+2*k+1}], v2 offset:{L_W2 + k*6144}")
    A("v_lshlrev_b32 v37, 3, v35")
    A("s_waitcnt lgkmcnt(0)")
    A("s_barrier")
    stamp(4)
    A("s_sub_u32 s42, s36, 4")
    A("s_cmp_ge_u32 s42, 3")
    A("s_cbranch_scc1 L_l2")
    BF = 4
    for k in range(6):
        A(f"ds_read_b128 v[{BF+4*k}:{BF+4*k+3}], v39 offset:{L_G + k*64}")
    A("s_lshl_b32 s42, s42, 9")
    A("v_add_u32 v36, s42, v37")
    for k in range(6):
        A(f"s_waitcnt lgkmcnt({5-k})")
        c = "0" if k == 0 else f"v[{BF}:{BF+3}]"
        if k == 0:
            A(f"v_mfma_f32_16x16x32_bf16 v[0:3], v[{VS}:{VS+3}], v[{BF}:{BF+3}], 0")
        else:
            A(f"v_mfma_f32_16x16x32_bf16 v[0:3], v[{VS+4*k}:{VS+4*k+3}], v[{BF+4*k}:{BF+4*k+3}], v[0:3]")
    A("s_nop 7")
    A("v_cvt_pk_bf16_f32 v4, v0, v1")
    A("v_cvt_pk_bf16_f32 v5, v2, v3")
    A("v_lshlrev_b32 v0, 16, v4"); A("v_and_b32 v1, s44, v4")
    A("v_lshlrev_b32 v2, 16, v5"); A("v_and_b32 v3, s44, v5")
    for i in range(4):
        A(f"v_cmp_lt_f32 s[{48+2*i}:{49+2*i}], 0, v{i}")
    for i in range(4):
        A(f"v_cndmask_b32 v{6+i}, 0, 1.0, s[{48+2*i}:{49+2*i}]")
    A("v_pk_mul_f32 v[0:1], v[0:1], v[6:7]")
    A("v_pk_mul_f32 v[2:3], v[2:3], v[8:9]")
    A("v_cvt_pk_bf16_f32 v4, v0, v1")
    A("v_cvt_pk_bf16_f32 v5, v2, v3")
    A(f"ds_write_b64 v36, v[4:5] offset:{L_H}")
    A("v_lshrrev_b32 v6, 3, v35")
    A("v_mul_u32_u24 v6, 384, v6")
    A("v_and_b32 v7, 7, v35")
    A("v_lshl_add_u32 v1, v7, 4, v6")
    A("s_waitcnt lgkmcnt(0)")
    A("L_l2:")
    A("s_barrier")
    for k in range(3):
        A(f"ds_read_b64 v[{4+2*k}:{5+2*k}], v37 offset:{L_H + k*512}")
    A("v_bfe_u32 v2, v35, 1, 2")
    A("v_cmp_eq_u32 s[48:49], 1, v2")
    A("v_cmp_eq_u32 s[50:51], 2, v2")
    A("v_cmp_eq_u32 s[52:53], 3, v2")
    A("v_lshrrev_b32 v3, 4, v35")
    A("v_lshl_add_u32 v2, v3, 2, v2")
    A("s_lshl_b32 s42, s36, 6")
    A("v_lshl_add_u32 v36, v2, 2, s42")
    for k in range(3):
        A(f"s_waitcnt lgkmcnt({2-k})")
        c = "0" if k == 0 else "v[12:15]"
        A(f"v_mfma_f32_16x16x16_bf16 v[12:15], v[{W2F+2*k}:{W2F+2*k+1}], v[{4+2*k}:{5+2*k}], {c}")
    A("v_and_b32 v2, 7, v35")
    A("s_lshl_b32 s42, s38, 8")
    A("v_lshl_add_u32 v39, v2, 5, s42")
    A("s_mov_b32 s43, 0xbfb8aa3b")
    A("s_nop 4")
    A("v_cndmask_b32 v12, v12, v13, s[48:49]")
    A("v_cndmask_b32 v12, v12, v14, s[50:51]")
    A("v_cndmask_b32 v12, v12, v15, s[52:53]")
    A("v_cvt_pk_bf16_f32 v12, v12, v12")
    A("v_and_b32 v12, s44, v12")
    A("s_nop 1")
    A("v_add_f32_dpp v12, v12, v12 quad_perm:[1,0,3,2] row_mask:0xf bank_mask:0xf")
    A("v_cvt_pk_bf16_f32 v12, v12, v12")
    A("v_and_b32 v12, s44, v12")
    A("v_mul_f32 v12, s43, v12")
    A("v_exp_f32 v12, v12")
    A("s_nop 0")
    A("v_add_f32 v12, 1.0, v12")
    A("v_rcp_f32 v12, v12")
    A("s_nop 0")
    A("v_cvt_pk_bf16_f32 v12, v12, v12")
    A("v_and_b32 v12, s44, v12")
    A(f"ds_write_b32 v36, v12 offset:{L_SC}")
    A("s_waitcnt lgkmcnt(0)")
    A("s_barrier")
    SCR = 2
    A(f"ds_read_b128 v[{SCR}:{SCR+3}], v39 offset:{L_SC}")
    A(f"ds_read_b128 v[{SCR+4}:{SCR+7}], v39 offset:{L_SC+16}")
    stamp(5)
    A("s_mov_b32 s3, s41")
    T2 = 10
    first = True
    for j in range(NL):
        tb = T2 + 8 * (j % 3)
        for i in range(4):
            d = VD + 4 * j + i
            A(f"v_lshlrev_b32 v{tb+2*i}, 16, v{d}")
            A(f"v_and_b32 v{tb+2*i+1}, s44, v{d}")
        if first:
            A("s_waitcnt lgkmcnt(0)")
            first = False
        for i in range(4):
            A(f"v_pk_mul_f32 v[{tb+2*i}:{tb+2*i+1}], v[{tb+2*i}:{tb+2*i+1}], v[{SCR+2*i}:{SCR+2*i+1}]")
        for i in range(4):
            d = VD + 4 * j + i
            A(f"v_cvt_pk_bf16_f32 v{d}, v{tb+2*i}, v{tb+2*i+1}")
        r = VD + 4 * j
        A(f"buffer_store_dwordx4 v[{r}:{r+3}], v1, s[12:15], s3 offen {st}".rstrip())
        if j != NL - 1:
            A(f"s_add_u32 s3, s3, {s}")
        if j == 0:
            A("s_sub_u32 s42, s36, 4")
            A("s_cmp_ge_u32 s42, 3")
            A("s_cbranch_scc1 L_noreload")
            for k in range(6):
                A(f"ds_read_b128 v[{VS+4*k}:{VS+4*k+3}], v38 offset:{k*1024}")
            A("L_noreload:")
        if j == NL - 7:
            A("s_waitcnt lgkmcnt(0)")
    if stamps:
        stamp(6)
        A("s_waitcnt vmcnt(0)")
        stamp(7)
        A("s_waitcnt lgkmcnt(0)")
        A("s_mov_b64 exec, 1")
        if diag:
            idx, mul, base = diag[:3]
            dwg = diag[3] if len(diag) > 3 else 0
            if gmax is not None:
                A("v_mov_b32 v9, 16")
                if gmax[1] == 'max':
                    A(f"v_mov_b32 v10, s{60+2*gmax[0]}")
                elif gmax[1] == 'min':
                    A(f"v_not_b32 v10, s{60+2*gmax[0]}")
                else:
                    A(f"s_sub_u32 s42, s{60+2*gmax[0]}, s{60+2*gmax[2]}")
                    A("v_mov_b32 v10, s42")
                A("v_not_b32 v11, s60")
                A("buffer_atomic_umax v10, v9, s[16:19], 0 offen sc1")
                A("buffer_atomic_umax v11, v9, s[16:19], 0 offen offset:4 sc1")
                A("s_waitcnt vmcnt(0)")
            A("s_barrier")
            A("s_cmp_lg_u32 s36, 0")
            A("s_cbranch_scc1 L_end")
            A("v_mov_b32 v9, 4")
            A("v_mov_b32 v10, 1")
            A("buffer_atomic_add v10, v9, s[16:19], 0 offen sc1")
            A(f"s_cmp_lg_u32 s2, {dwg}")
            A("s_cbranch_scc1 L_end")
            A("s_mov_b32 s45, 0")
            A("L_dg1:")
            A("buffer_load_dword v10, v9, s[16:19], 0 offen sc1")
            A("s_add_u32 s45, s45, 1")
            A("s_waitcnt vmcnt(0)")
            A("v_readfirstlane_b32 s42, v10")
            A(f"s_cmp_ge_u32 s45, {SPIN}")
            A("s_cbranch_scc1 L_dg2")
            A("s_cmp_lt_u32 s42, 256")
            A("s_cbranch_scc1 L_dg1")
            A("L_dg2:")
            A("s_memrealtime s[76:77]")
            A("s_waitcnt lgkmcnt(0)")
            if gmax is not None:
                A("v_mov_b32 v9, 16")
                A("buffer_load_dwordx2 v[10:11], v9, s[16:19], 0 offen sc1")
                A("s_waitcnt vmcnt(0)")
                A("v_readfirstlane_b32 s42, v10")
                A("v_readfirstlane_b32 s43, v11")
                A("s_not_b32 s43, s43")
                if gmax[1] == 'min':
                    A("s_not_b32 s42, s42")
                if gmax[1] != 'rel':
                    A("s_sub_u32 s42, s42, s43")
            elif idx >= 0:
                A(f"s_sub_u32 s42, s{60+2*idx}, s60")
            else:
                A("s_mov_b32 s42, s80")
            A(f"s_mul_i32 s42, s42, {mul}")
            A(f"s_add_u32 s42, s42, {base}")
            A("s_min_u32 s42, s42, 200000")
            if want is not None:
                A("s_cmp_ge_u32 s89, 2")
                A("s_cselect_b32 s42, s42, 0" if want else "s_cselect_b32 s42, 0, s42")
            A("L_dg3:")
            A("s_memrealtime s[78:79]")
            A("s_waitcnt lgkmcnt(0)")
            A("s_sub_u32 s43, s78, %s" % ("s90" if (mprobe or predelay is not None) else "s60"))
            A("s_cmp_lt_u32 s43, s42")
            A("s_cbranch_scc1 L_dg3")
            A("s_branch L_end")
        A("s_mul_i32 s3, s2, 12")
        A("s_add_u32 s3, s3, s36")
        A("s_lshl_b32 s3, s3, 5")
        A(f"s_add_u32 s3, s3, {W_ST}")
        A("v_mov_b32 v1, 0")
        for i in range(8):
            A(f"v_mov_b32 v{4+i}, s{60+2*i}")
        A("buffer_store_dwordx4 v[4:7], v1, s[20:23], s3 offen")
        A("buffer_store_dwordx4 v[8:11], v1, s[20:23], s3 offen offset:16")
    A("L_end:")
    A("s_endpgm")
    A('.section .rodata,"a"')
    A(".p2align 6")
    A(".amdhsa_kernel standalone__channel_attn_cbam__vision_kernel")
    A("  .amdhsa_next_free_vgpr 168")
    A("  .amdhsa_next_free_sgpr 96")
    A("  .amdhsa_accum_offset 168")
    A("  .amdhsa_group_segment_fixed_size 0")
    A("  .amdhsa_kernarg_size 48")
    A("  .amdhsa_user_sgpr_count 2")
    A("  .amdhsa_user_sgpr_kernarg_segment_ptr 1")
    A("  .amdhsa_system_sgpr_workgroup_id_x 1")
    A("  .amdhsa_float_denorm_mode_32 3")
    A(".end_amdhsa_kernel")
    out = []
    for line in L:
        if line.startswith(("s_", "v_", "ds_", "buffer_")):
            out.append("    " + line)
        else:
            out.append(line)
    return "\n".join(out) + "\n"

if __name__ == "__main__":
    cfg = json.loads(sys.argv[1]) if len(sys.argv) > 1 else {}
    sys.stdout.write(gen(**cfg))
```

```python
import sys, json

HEADER = """; CBAM channel attention, x kept in registers across a grid-wide reduction (single pass over HBM)
"""

def gen(pat="contig", ld="nt", st="", nrep=8, repstride=4096, stamps=0, sleepA=0, sleepF=0, pat_st=None, diag=None, probe=None, mprobe=None, want=None, predelay=None, gmax=None, warm_dbg=0, wpos=3, warm_out=0, cw=7, warm_w=0, atime=0):
    if diag: stamps = 1
    NW = 12
    NL = 32
    VD = 40
    XB = 100663296
    L_W1, L_W2 = 0, 18432
    L_RED = 36864
    L_G = L_RED + 6144
    L_H = L_G + 768
    L_SC = L_H + 1536
    L_SP = L_SC + 768
    L_END = L_SP + 3 * 6144
    W_A = 0
    W_F = 96 * 4096
    W_ST = 1 << 20
    SPIN = 1 << 20
    step = NW * 1024
    L = []
    A = L.append
    def stamp(i):
        if stamps:
            A(f"s_memrealtime s[{60+2*i}:{61+2*i}]")
    A(HEADER.rstrip())
    A(f"; @launch grid=(256,1,1) block=({NW*64},1,1) lds={L_END}")
    A('.amdgcn_target "amdgcn-amd-amdhsa--gfx950"')
    A(".text")
    A(".globl standalone__channel_attn_cbam__vision_kernel")
    A(".p2align 8")
    A(".type standalone__channel_attn_cbam__vision_kernel,@function")
    A("standalone__channel_attn_cbam__vision_kernel:")
    stamp(0)
    A("s_load_dwordx4 s[4:7], s[0:1], 0")
    A("s_load_dwordx4 s[24:27], s[0:1], 16")
    A("s_load_dwordx4 s[28:31], s[0:1], 32")
    A("s_cmp_ge_u32 s2, 256")
    A("s_cbranch_scc1 L_end")
    A("v_lshrrev_b32 v2, 6, v0")
    A("v_and_b32 v3, 63, v0")
    A("v_readfirstlane_b32 s36, v2")
    A("v_lshrrev_b32 v4, 3, v3")
    A("v_mul_u32_u24 v4, 384, v4")
    A("v_and_b32 v5, 7, v3")
    A("v_lshl_add_u32 v1, v5, 4, v4")
    A("s_mul_i32 s37, s36, 43691")
    A("s_lshr_b32 s37, s37, 17")
    A("s_mul_i32 s38, s37, 3")
    A("s_sub_u32 s38, s36, s38")
    A("s_mul_i32 s39, s37, 3072")
    A("s_lshl_b32 s40, s38, 7")
    A("s_add_u32 s39, s39, s40")
    def base_stride(p):
        if p == "contig":
            return 393216, step
        if p == "inter":
            return step, 256 * step
        raise ValueError
    b, s = base_stride(pat)
    A(f"s_mul_i32 s41, s2, {b}")
    A("s_add_u32 s41, s41, s39")
    A("s_mov_b32 s3, s41")
    A("s_mov_b32 s10, %d" % XB); A("s_mov_b32 s11, 0x20000")
    A("s_mov_b32 s14, %d" % XB); A("s_mov_b32 s15, 0x20000")
    A("s_mov_b32 s18, 256"); A("s_mov_b32 s19, 0x20000")
    A("s_mov_b32 s22, 402653184"); A("s_mov_b32 s23, 0x20000")
    A("s_mov_b32 s34, 18432"); A("s_mov_b32 s35, 0x20000")
    A("s_waitcnt lgkmcnt(0)")
    A("s_mov_b32 s8, s4"); A("s_mov_b32 s9, s5")
    A("s_mov_b32 s12, s26"); A("s_mov_b32 s13, s27")
    A("s_mov_b32 s16, s28"); A("s_mov_b32 s17, s29")
    A("s_mov_b32 s20, s30"); A("s_mov_b32 s21, s31")
    if mprobe:
        buf, start, stride, n, thr, warm, pol = mprobe
        srd = {"x": "s[8:11]", "out": "s[12:15]", "ws": "s[20:23]", "dbg": "s[16:19]"}[buf]
        A("s_mov_b32 s80, 0")
        A("s_cmp_lg_u32 s36, 0")
        A("s_cbranch_scc1 L_mp_bar")
        A("s_mov_b64 exec, 1")
        A("v_mov_b32 v9, 8")
        A("s_cmp_lg_u32 s2, 0")
        A("s_cbranch_scc1 L_mp_wait")
        A("v_mov_b32 v11, 0")
        A("s_sleep 127")
        if want is not None:
            A("s_mov_b32 s81, 8192")
            A("s_mov_b32 s82, 0")
            A("s_mov_b32 s89, 0")
            A("L_sp_loop:")
            A(f"buffer_load_dword v10, v11, s[8:11], s81 offen offset:1024")
            A("s_waitcnt vmcnt(0)")
            A("s_memtime s[84:85]")
            A("s_waitcnt lgkmcnt(0)")
            A(f"buffer_load_dword v10, v11, s[8:11], s81 offen")
            A("s_waitcnt vmcnt(0)")
            A("s_memtime s[86:87]")
            A("s_waitcnt lgkmcnt(0)")
            A("s_sub_u32 s83, s86, s84")
            A(f"s_cmp_lt_u32 s83, 560")
            A("s_cselect_b32 s83, 1, 0")
            A("s_add_u32 s89, s89, s83")
            A(f"s_add_u32 s81, s81, {6160384+4096+128}")
            A("s_add_u32 s82, s82, 1")
            A(f"s_cmp_lt_u32 s82, 16")
            A("s_cbranch_scc1 L_sp_loop")
        A(f"s_mov_b32 s81, {start}")
        A("s_mov_b32 s82, 0")
        A("L_mp_loop:")
        A(f"buffer_load_dword v10, v11, {srd}, s81 offen offset:{warm} {pol}")
        A("s_waitcnt vmcnt(0)")
        A("s_memtime s[84:85]")
        A("s_waitcnt lgkmcnt(0)")
        A(f"buffer_load_dword v10, v11, {srd}, s81 offen {pol}")
        A("s_waitcnt vmcnt(0)")
        A("s_memtime s[86:87]")
        A("s_waitcnt lgkmcnt(0)")
        A("s_sub_u32 s83, s86, s84")
        if thr > 0:
            A(f"s_cmp_lt_u32 s83, {thr}")
            A("s_cselect_b32 s83, 1, 0")
        A("s_add_u32 s80, s80, s83")
        if not diag:
            A("v_mov_b32 v12, s83")
            A("s_lshl_b32 s88, s82, 2")
            A(f"s_add_u32 s88, s88, {2 << 20}")
            A("buffer_store_dword v12, v11, s[20:23], s88 offen")
        A(f"s_add_u32 s81, s81, {stride}")
        A("s_add_u32 s82, s82, 1")
        A(f"s_cmp_lt_u32 s82, {n}")
        A("s_cbranch_scc1 L_mp_loop")
        A("v_mov_b32 v10, 1")
        A("buffer_store_dword v10, v9, s[16:19], 0 offen sc1")
        A("s_branch L_mp_done")
        A("L_mp_wait:")
        A("s_mov_b32 s82, 0")
        A("L_mp_w2:")
        A("s_sleep 32")
        A("buffer_load_dword v10, v9, s[16:19], 0 offen sc1")
        A("s_add_u32 s82, s82, 1")
        A("s_waitcnt vmcnt(0)")
        A("v_readfirstlane_b32 s83, v10")
        A("s_cmp_ge_u32 s82, 200000")
        A("s_cbranch_scc1 L_mp_done")
        A("s_cmp_eq_u32 s83, 0")
        A("s_cbranch_scc1 L_mp_w2")
        A("L_mp_done:")
        A("s_mov_b64 exec, -1")
        A("L_mp_bar:")
        A("s_barrier")
        A("s_mov_b32 s90, s60")
        stamp(0)
        A("s_waitcnt lgkmcnt(0)")
    if predelay is not None:
        A("s_mov_b32 s90, s60")
        A("L_pd:")
        A("s_sleep 1")
        A("s_memrealtime s[60:61]")
        A("s_waitcnt lgkmcnt(0)")
        A("s_sub_u32 s43, s60, s90")
        A(f"s_cmp_lt_u32 s43, {predelay}")
        A("s_cbranch_scc1 L_pd")
    if atime:
        stamp(1)
        A("s_waitcnt lgkmcnt(0)")
    A(f"s_cmp_lg_u32 s36, {cw}")
    A("s_cbranch_scc1 L_noclear")
    if warm_dbg:
        A("v_mov_b32 v9, 0")
        A("buffer_load_dword v11, v9, s[16:19], 0 offen sc1")
    if warm_w:
        A("v_mov_b32 v9, 0")
        A("s_mov_b32 s32, s24")
        A("s_mov_b32 s33, s25")
        A("buffer_load_dword v15, v9, s[32:35], 0 offen")
        A("s_mov_b32 s32, s6")
        A("s_mov_b32 s33, s7")
        A("buffer_load_dword v16, v9, s[32:35], 0 offen")
    if warm_out:
        A("v_mov_b32 v9, 0")
        A("buffer_load_dword v12, v9, s[12:15], s41 offen")
        A(f"s_add_u32 s42, s41, {s*(NL-1)}")
        A("buffer_load_dword v13, v9, s[12:15], s42 offen")
        A("buffer_load_dword v14, v9, s[8:11], s42 offen")
    A("v_mov_b32 v4, -1"); A("v_mov_b32 v5, -1"); A("v_mov_b32 v6, -1"); A("v_mov_b32 v7, -1")
    A("v_lshlrev_b32 v8, 12, v3")
    A("s_lshl_b32 s42, s2, 4")
    A(f"buffer_store_dwordx4 v[4:7], v8, s[20:23], s42 offen sc1")
    A("s_add_u32 s42, s42, %d" % (64 * 4096))
    A("s_mov_b32 exec_hi, 0")
    A(f"buffer_store_dwordx4 v[4:7], v8, s[20:23], s42 offen sc1")
    A("s_cmp_ge_u32 s2, 96")
    A("s_cbranch_scc1 L_noclearF")
    A(f"s_mov_b32 exec_lo, {(1 << nrep) - 1}")
    A(f"v_mul_u32_u24 v8, {repstride}, v3")
    A("s_lshl_b32 s42, s2, 3")
    A(f"s_add_u32 s42, s42, {W_F}")
    A(f"buffer_store_dwordx2 v[4:5], v8, s[20:23], s42 offen sc1")
    A("L_noclearF:")
    A("s_mov_b64 exec, 1")
    A("v_mov_b32 v9, 0")
    A("v_mov_b32 v10, 1")
    A("s_waitcnt vmcnt(0)")
    if atime == 1: stamp(1)
    A("buffer_atomic_add v10, v9, s[16:19], 0 offen sc1")
    if atime == 2:
        A("s_waitcnt vmcnt(0)")
        stamp(1)
    A("s_mov_b64 exec, -1")
    A("L_noclear:")
    ops = []
    def weights():
        A("s_cmp_ge_u32 s36, 6")
        A("s_cselect_b32 s32, s24, s6")
        A("s_cselect_b32 s33, s25, s7")
        A("s_cselect_b32 s42, 18432, 0")
        A("s_mul_i32 s43, s36, 3072")
        A("s_sub_u32 s42, s43, s42")
        A("s_mov_b32 m0, s43")
        A("v_lshlrev_b32 v2, 4, v3")
        for k in range(3):
            A(f"buffer_load_dwordx4 v2, s[32:35], s42 offen offset:{k*1024} lds")
            ops.append(("w", k))
    if wpos < 0:
        weights()
    for j in range(NL):
        r = VD + 4 * j
        A(f"buffer_load_dwordx4 v[{r}:{r+3}], v1, s[8:11], s3 offen {ld}".rstrip())
        ops.append(("d", j))
        if j != NL - 1:
            A(f"s_add_u32 s3, s3, {s}")
        if probe is not None and j == probe:
            A("s_waitcnt vmcnt(0)")
            stamp(1)
        if j == wpos:
            weights()
    A("v_mov_b32 v34, 0")
    A("s_and_b32 s42, s36, 14")
    A("s_cmp_lg_u32 s42, 2")
    A("s_cbranch_scc1 L_nocnt")
    A("buffer_load_dword v34, v34, s[16:19], 0 offen sc1")
    A("L_nocnt:")
    if probe is None and not atime: stamp(1)
    S, M, T = 2, 10, 18
    for i in range(8):
        A(f"v_mov_b32 v{S+i}, 0")
        A(f"v_mov_b32 v{M+i}, 0xff800000")
    A("s_mov_b32 s44, 0xffff0000")
    def after(j):
        idx = ops.index(("d", j))
        return len(ops) - 1 - idx
    groups = [(j, j + 1) for j in range(0, NL - 2, 2)] + [(NL - 2,), (NL - 1,)]
    for g in groups:
        A(f"s_waitcnt vmcnt({after(g[-1])})")
        for gi, j in enumerate(g):
            for i in range(4):
                d = VD + 4 * j + i
                t = T + 8 * gi + 2 * i
                A(f"v_lshlrev_b32 v{t}, 16, v{d}")
                A(f"v_and_b32 v{t+1}, s44, v{d}")
        for gi, j in enumerate(g):
            for i in range(4):
                t = T + 8 * gi + 2 * i
                A(f"v_pk_add_f32 v[{S+2*i}:{S+2*i+1}], v[{S+2*i}:{S+2*i+1}], v[{t}:{t+1}]")
        for i in range(8):
            if len(g) == 2:
                A(f"v_max3_f32 v{M+i}, v{M+i}, v{T+i}, v{T+8+i}")
            else:
                A(f"v_max_f32 v{M+i}, v{M+i}, v{T+i}")
    stamp(2)
    A("v_and_b32 v35, 63, v0")
    A("s_nop 0")
    for i in range(4):
        A(f"v_permlane32_swap_b32 v{S+i}, v{S+i+4}")
    for i in range(4):
        A(f"v_permlane32_swap_b32 v{M+i}, v{M+i+4}")
    for i in range(4):
        A(f"v_add_f32 v{S+i}, v{S+i}, v{S+i+4}")
    for i in range(4):
        A(f"v_max_f32 v{M+i}, v{M+i}, v{M+i+4}")
    A("v_and_b32 v36, 7, v35")
    A("v_lshrrev_b32 v37, 3, v35")
    for i in range(2):
        A(f"v_permlane16_swap_b32 v{S+i}, v{S+i+2}")
    for i in range(2):
        A(f"v_permlane16_swap_b32 v{M+i}, v{M+i+2}")
    for i in range(2):
        A(f"v_add_f32 v{S+i}, v{S+i}, v{S+i+2}")
    for i in range(2):
        A(f"v_max_f32 v{M+i}, v{M+i}, v{M+i+2}")
    A("v_lshl_add_u32 v36, v36, 3, v37")
    A("s_mul_i32 s42, s37, 768")
    A("s_lshl_b32 s43, s38, 8")
    A("s_add_u32 s42, s42, s43")
    A(f"s_add_u32 s42, s42, {L_RED}")
    A(f"v_add_f32_dpp v{T}, v{S}, v{S} row_ror:8 row_mask:0xf bank_mask:0x3")
    A(f"v_max_f32_dpp v{T+1}, v{M}, v{M} row_ror:8 row_mask:0xf bank_mask:0x3")
    A("v_lshl_add_u32 v36, v36, 2, s42")
    A(f"v_add_f32_dpp v{T}, v{S+1}, v{S+1} row_ror:8 row_mask:0xf bank_mask:0xc")
    A(f"v_max_f32_dpp v{T+1}, v{M+1}, v{M+1} row_ror:8 row_mask:0xf bank_mask:0xc")
    A(f"ds_write2st64_b32 v36, v{T}, v{T+1} offset0:0 offset1:12")
    A("s_waitcnt lgkmcnt(0)")
    A("s_barrier")
    stamp(3)
    A("s_cmp_ge_u32 s36, 2")
    A("s_cbranch_scc1 L_role2")
    A("s_mul_i32 s42, s36, 3072")
    A(f"s_add_u32 s42, s42, {L_RED}")
    A("s_mov_b32 exec_hi, 0xffff")
    A("v_lshl_add_u32 v36, v35, 4, s42")
    for q in range(4):
        A(f"ds_read_b128 v[{T+4*q}:{T+4*q+3}], v36 offset:{q*768}")
    A("s_mul_i32 s42, s36, %d" % (48 * 4096))
    A("s_lshl_b32 s43, s2, 4")
    A("s_add_u32 s42, s42, s43")
    A("v_lshlrev_b32 v37, 12, v35")
    A("s_cmp_eq_u32 s36, 1")
    A("s_cbranch_scc1 L_pubmax")
    A("s_waitcnt lgkmcnt(2)")
    A(f"v_pk_add_f32 v[{T}:{T+1}], v[{T}:{T+1}], v[{T+4}:{T+5}]")
    A(f"v_pk_add_f32 v[{T+2}:{T+3}], v[{T+2}:{T+3}], v[{T+6}:{T+7}]")
    A("s_waitcnt lgkmcnt(0)")
    A(f"v_pk_add_f32 v[{T+8}:{T+9}], v[{T+8}:{T+9}], v[{T+12}:{T+13}]")
    A(f"v_pk_add_f32 v[{T+10}:{T+11}], v[{T+10}:{T+11}], v[{T+14}:{T+15}]")
    A(f"v_pk_add_f32 v[{T}:{T+1}], v[{T}:{T+1}], v[{T+8}:{T+9}]")
    A(f"v_pk_add_f32 v[{T+2}:{T+3}], v[{T+2}:{T+3}], v[{T+10}:{T+11}]")
    A("s_branch L_pub")
    A("L_pubmax:")
    A("s_waitcnt lgkmcnt(0)")
    for i in range(4):
        A(f"v_max3_f32 v{T+i}, v{T+i}, v{T+4+i}, v{T+8+i}")
    for i in range(4):
        A(f"v_max_f32 v{T+i}, v{T+i}, v{T+12+i}")
    A("L_pub:")
    A(f"buffer_store_dwordx4 v[{T}:{T+3}], v37, s[20:23], s42 offen sc1")
    A("s_mov_b64 exec, -1")
    A("s_branch L_common")
    A("L_role2:")
    A("s_cmp_ge_u32 s36, 4")
    A("s_cbranch_scc1 L_role4")
    A("s_mov_b32 s45, 0")
    A("L_cnt:")
    A("v_readfirstlane_b32 s42, v34")
    A("s_cmp_ge_u32 s42, 256")
    A("s_cbranch_scc1 L_cntok")
    A("v_mov_b32 v34, 0")
    A("buffer_load_dword v34, v34, s[16:19], 0 offen sc1")
    A("s_add_u32 s45, s45, 1")
    A("s_waitcnt vmcnt(0)")
    A(f"s_cmp_lt_u32 s45, {SPIN}")
    A("s_cbranch_scc1 L_cnt")
    A("L_cntok:")
    A("s_cmp_eq_u32 s36, 3")
    A("s_cbranch_scc1 L_pollF")
    A("s_cmp_ge_u32 s2, 96")
    A("s_cbranch_scc1 L_common")
    A("s_lshl_b32 s42, s2, 12")
    A("v_lshlrev_b32 v36, 4, v35")
    A("L_pollA:")
    for k in range(4):
        A(f"buffer_load_dwordx4 v[{T+4*k}:{T+4*k+3}], v36, s[20:23], s42 offen offset:{k*1024} sc1")
    A("s_add_u32 s45, s45, 1")
    A("s_waitcnt vmcnt(3)")
    A(f"v_max3_u32 v2, v{T}, v{T+1}, v{T+2}")
    A("s_waitcnt vmcnt(2)")
    A(f"v_max3_u32 v2, v2, v{T+3}, v{T+4}")
    A(f"v_max3_u32 v2, v2, v{T+5}, v{T+6}")
    A("s_waitcnt vmcnt(1)")
    A(f"v_max3_u32 v2, v2, v{T+7}, v{T+8}")
    A(f"v_max3_u32 v2, v2, v{T+9}, v{T+10}")
    A("s_waitcnt vmcnt(0)")
    A(f"v_max3_u32 v3, v{T+11}, v{T+12}, v{T+13}")
    A(f"v_max3_u32 v2, v2, v{T+14}, v{T+15}")
    A("v_max_u32 v2, v2, v3")
    A("v_cmp_eq_u32 vcc, -1, v2")
    A("s_cbranch_vccz L_gotA")
    if sleepA:
        A(f"s_sleep {sleepA}")
    A(f"s_cmp_lt_u32 s45, {SPIN}")
    A("s_cbranch_scc1 L_pollA")
    A("L_gotA:")
    A("s_cmp_ge_u32 s2, 48")
    A("s_cbranch_scc1 L_redmax")
    def xreduce(op):
        A("s_nop 1")
        A(f"v_permlane32_swap_b32 v{T}, v{T+2}")
        A(f"v_permlane32_swap_b32 v{T+1}, v{T+3}")
        A(f"v_{op}_f32 v2, v{T}, v{T+2}")
        A(f"v_{op}_f32 v3, v{T+1}, v{T+3}")
        A(f"v_{op}_f32 v4, v{T}, v{T+2}")
        A(f"v_{op}_f32 v5, v{T+1}, v{T+3}")
        A("s_nop 0")
        A("v_permlane16_swap_b32 v2, v4")
        A("v_permlane16_swap_b32 v3, v5")
        A(f"v_{op}_f32 v2, v2, v4")
        A(f"v_{op}_f32 v3, v3, v5")
        for r in (8, 4, 2, 1):
            A("s_nop 0")
            A(f"v_{op}_f32_dpp v2, v2, v2 row_ror:{r} row_mask:0xf bank_mask:0xf")
            A(f"v_{op}_f32_dpp v3, v3, v3 row_ror:{r} row_mask:0xf bank_mask:0xf")
    A(f"v_pk_add_f32 v[{T}:{T+1}], v[{T}:{T+1}], v[{T+4}:{T+5}]")
    A(f"v_pk_add_f32 v[{T+2}:{T+3}], v[{T+2}:{T+3}], v[{T+6}:{T+7}]")
    A(f"v_pk_add_f32 v[{T+8}:{T+9}], v[{T+8}:{T+9}], v[{T+12}:{T+13}]")
    A(f"v_pk_add_f32 v[{T+10}:{T+11}], v[{T+10}:{T+11}], v[{T+14}:{T+15}]")
    A(f"v_pk_add_f32 v[{T}:{T+1}], v[{T}:{T+1}], v[{T+8}:{T+9}]")
    A(f"v_pk_add_f32 v[{T+2}:{T+3}], v[{T+2}:{T+3}], v[{T+10}:{T+11}]")
    xreduce("add")
    A("v_mul_f32 v2, 0x36800000, v2")
    A("v_mul_f32 v3, 0x36800000, v3")
    A("s_branch L_pubF")
    A("L_redmax:")
    for i in range(4):
        A(f"v_max3_f32 v{T+i}, v{T+i}, v{T+4+i}, v{T+8+i}")
    for i in range(4):
        A(f"v_max_f32 v{T+i}, v{T+i}, v{T+12+i}")
    xreduce("max")
    A("L_pubF:")
    A("v_and_b32 v4, 31, v35")
    A(f"v_mul_u32_u24 v4, {repstride}, v4")
    A("v_lshrrev_b32 v5, 5, v35")
    A("v_cvt_pk_bf16_f32 v2, v2, v3")
    A("v_lshl_add_u32 v4, v5, 2, v4")
    A("v_min_u32 v2, -2, v2")
    A("s_lshl_b32 s42, s2, 3")
    A(f"s_add_u32 s42, s42, {W_F}")
    m = (1 << nrep) - 1
    A(f"s_mov_b32 exec_lo, {m}")
    A(f"s_mov_b32 exec_hi, {m}")
    A("buffer_store_dword v2, v4, s[20:23], s42 offen sc1")
    A("s_mov_b64 exec, -1")
    A("s_branch L_common")
    A("L_pollF:")
    A(f"s_and_b32 s42, s2, {nrep-1}")
    A(f"s_mul_i32 s42, s42, {repstride}")
    A(f"s_add_u32 s42, s42, {W_F}")
    A("v_lshlrev_b32 v36, 4, v35")
    A("s_mov_b32 exec_hi, 0xffff")
    A("L_pollF2:")
    A(f"buffer_load_dwordx4 v[{T}:{T+3}], v36, s[20:23], s42 offen sc1")
    A("s_add_u32 s45, s45, 1")
    A("s_waitcnt vmcnt(0)")
    A(f"v_max3_u32 v2, v{T}, v{T+1}, v{T+2}")
    A(f"v_max_u32 v2, v2, v{T+3}")
    A("v_cmp_eq_u32 vcc, -1, v2")
    A("s_cbranch_vccz L_gotF")
    if sleepF:
        A(f"s_sleep {sleepF}")
    A(f"s_cmp_lt_u32 s45, {SPIN}")
    A("s_cbranch_scc1 L_pollF2")
    A("L_gotF:")
    A(f"ds_write_b128 v36, v[{T}:{T+3}] offset:{L_G}")
    A("s_mov_b64 exec, -1")
    A("s_branch L_common")
    A("L_role4:")
    A("s_cmp_ge_u32 s36, 7")
    A("s_cbranch_scc1 L_common")
    A("s_sub_u32 s46, s36, 4")
    A("s_mul_i32 s42, s46, 6144")
    A(f"s_add_u32 s42, s42, {L_SP}")
    A("v_lshl_add_u32 v38, v35, 4, s42")
    VS = VD + 4 * (NL - 6)
    for k in range(6):
        A(f"ds_write_b128 v38, v[{VS+4*k}:{VS+4*k+3}] offset:{k*1024}")
    A("v_lshrrev_b32 v2, 4, v35")
    A("v_lshlrev_b32 v2, 3, v2")
    A("v_bfe_u32 v3, v35, 2, 2")
    A("v_add_u32 v2, v2, v3")
    A("v_mul_u32_u24 v2, 96, v2")
    A("v_and_b32 v3, 3, v35")
    A("v_lshl_add_u32 v2, v3, 3, v2")
    A("s_lshl_b32 s42, s46, 5")
    A("v_add_u32 v2, s42, v2")
    A("s_waitcnt lgkmcnt(0)")
    for k in range(6):
        A(f"ds_read_b64_tr_b16 v[{VS+4*k}:{VS+4*k+1}], v2 offset:{L_W1 + k*3072}")
        A(f"ds_read_b64_tr_b16 v[{VS+4*k+2}:{VS+4*k+3}], v2 offset:{L_W1 + k*3072 + 384}")
    A("v_and_b32 v2, 1, v35")
    A("v_mul_u32_u24 v2, 384, v2")
    A("v_lshrrev_b32 v3, 4, v35")
    A("v_lshl_add_u32 v39, v3, 4, v2")
    A("L_common:")
    A("v_lshrrev_b32 v2, 2, v35")
    A("v_mul_u32_u24 v2, 384, v2")
    A("v_and_b32 v3, 3, v35")
    A("v_lshl_add_u32 v2, v3, 3, v2")
    A("s_lshl_b32 s42, s36, 5")
    A("v_add_u32 v2, s42, v2")
    W2F = 28
    for k in range(3):
        A(f"ds_read_b64_tr_b16 v[{W2F+2*k}:{W2F+2*k+1}], v2 offset:{L_W2 + k*6144}")
    A("v_lshlrev_b32 v37, 3, v35")
    A("s_waitcnt lgkmcnt(0)")
    A("s_barrier")
    stamp(4)
    A("s_sub_u32 s42, s36, 4")
    A("s_cmp_ge_u32 s42, 3")
    A("s_cbranch_scc1 L_l2")
    BF = 4
    for k in range(6):
        A(f"ds_read_b128 v[{BF+4*k}:{BF+4*k+3}], v39 offset:{L_G + k*64}")
    A("s_lshl_b32 s42, s42, 9")
    A("v_add_u32 v36, s42, v37")
    for k in range(6):
        A(f"s_waitcnt lgkmcnt({5-k})")
        c = "0" if k == 0 else f"v[{BF}:{BF+3}]"
        if k == 0:
            A(f"v_mfma_f32_16x16x32_bf16 v[0:3], v[{VS}:{VS+3}], v[{BF}:{BF+3}], 0")
        else:
            A(f"v_mfma_f32_16x16x32_bf16 v[0:3], v[{VS+4*k}:{VS+4*k+3}], v[{BF+4*k}:{BF+4*k+3}], v[0:3]")
    A("s_nop 7")
    A("v_cvt_pk_bf16_f32 v4, v0, v1")
    A("v_cvt_pk_bf16_f32 v5, v2, v3")
    A("v_lshlrev_b32 v0, 16, v4"); A("v_and_b32 v1, s44, v4")
    A("v_lshlrev_b32 v2, 16, v5"); A("v_and_b32 v3, s44, v5")
    for i in range(4):
        A(f"v_cmp_lt_f32 s[{48+2*i}:{49+2*i}], 0, v{i}")
    for i in range(4):
        A(f"v_cndmask_b32 v{6+i}, 0, 1.0, s[{48+2*i}:{49+2*i}]")
    A("v_pk_mul_f32 v[0:1], v[0:1], v[6:7]")
    A("v_pk_mul_f32 v[2:3], v[2:3], v[8:9]")
    A("v_cvt_pk_bf16_f32 v4, v0, v1")
    A("v_cvt_pk_bf16_f32 v5, v2, v3")
    A(f"ds_write_b64 v36, v[4:5] offset:{L_H}")
    A("v_lshrrev_b32 v6, 3, v35")
    A("v_mul_u32_u24 v6, 384, v6")
    A("v_and_b32 v7, 7, v35")
    A("v_lshl_add_u32 v1, v7, 4, v6")
    A("s_waitcnt lgkmcnt(0)")
    A("L_l2:")
    A("s_barrier")
    for k in range(3):
        A(f"ds_read_b64 v[{4+2*k}:{5+2*k}], v37 offset:{L_H + k*512}")
    A("v_bfe_u32 v2, v35, 1, 2")
    A("v_cmp_eq_u32 s[48:49], 1, v2")
    A("v_cmp_eq_u32 s[50:51], 2, v2")
    A("v_cmp_eq_u32 s[52:53], 3, v2")
    A("v_lshrrev_b32 v3, 4, v35")
    A("v_lshl_add_u32 v2, v3, 2, v2")
    A("s_lshl_b32 s42, s36, 6")
    A("v_lshl_add_u32 v36, v2, 2, s42")
    for k in range(3):
        A(f"s_waitcnt lgkmcnt({2-k})")
        c = "0" if k == 0 else "v[12:15]"
        A(f"v_mfma_f32_16x16x16_bf16 v[12:15], v[{W2F+2*k}:{W2F+2*k+1}], v[{4+2*k}:{5+2*k}], {c}")
    A("v_and_b32 v2, 7, v35")
    A("s_lshl_b32 s42, s38, 8")
    A("v_lshl_add_u32 v39, v2, 5, s42")
    A("s_mov_b32 s43, 0xbfb8aa3b")
    A("s_nop 4")
    A("v_cndmask_b32 v12, v12, v13, s[48:49]")
    A("v_cndmask_b32 v12, v12, v14, s[50:51]")
    A("v_cndmask_b32 v12, v12, v15, s[52:53]")
    A("v_cvt_pk_bf16_f32 v12, v12, v12")
    A("v_and_b32 v12, s44, v12")
    A("s_nop 1")
    A("v_add_f32_dpp v12, v12, v12 quad_perm:[1,0,3,2] row_mask:0xf bank_mask:0xf")
    A("v_cvt_pk_bf16_f32 v12, v12, v12")
    A("v_and_b32 v12, s44, v12")
    A("v_mul_f32 v12, s43, v12")
    A("v_exp_f32 v12, v12")
    A("s_nop 0")
    A("v_add_f32 v12, 1.0, v12")
    A("v_rcp_f32 v12, v12")
    A("s_nop 0")
    A("v_cvt_pk_bf16_f32 v12, v12, v12")
    A("v_and_b32 v12, s44, v12")
    A(f"ds_write_b32 v36, v12 offset:{L_SC}")
    A("s_waitcnt lgkmcnt(0)")
    A("s_barrier")
    SCR = 2
    A(f"ds_read_b128 v[{SCR}:{SCR+3}], v39 offset:{L_SC}")
    A(f"ds_read_b128 v[{SCR+4}:{SCR+7}], v39 offset:{L_SC+16}")
    stamp(5)
    A("s_mov_b32 s3, s41")
    T2 = 10
    first = True
    for j in range(NL):
        tb = T2 + 8 * (j % 3)
        for i in range(4):
            d = VD + 4 * j + i
            A(f"v_lshlrev_b32 v{tb+2*i}, 16, v{d}")
            A(f"v_and_b32 v{tb+2*i+1}, s44, v{d}")
        if first:
            A("s_waitcnt lgkmcnt(0)")
            first = False
        for i in range(4):
            A(f"v_pk_mul_f32 v[{tb+2*i}:{tb+2*i+1}], v[{tb+2*i}:{tb+2*i+1}], v[{SCR+2*i}:{SCR+2*i+1}]")
        for i in range(4):
            d = VD + 4 * j + i
            A(f"v_cvt_pk_bf16_f32 v{d}, v{tb+2*i}, v{tb+2*i+1}")
        r = VD + 4 * j
        A(f"buffer_store_dwordx4 v[{r}:{r+3}], v1, s[12:15], s3 offen {st}".rstrip())
        if j != NL - 1:
            A(f"s_add_u32 s3, s3, {s}")
        if j == 0:
            A("s_sub_u32 s42, s36, 4")
            A("s_cmp_ge_u32 s42, 3")
            A("s_cbranch_scc1 L_noreload")
            for k in range(6):
                A(f"ds_read_b128 v[{VS+4*k}:{VS+4*k+3}], v38 offset:{k*1024}")
            A("L_noreload:")
        if j == NL - 7:
            A("s_waitcnt lgkmcnt(0)")
    if stamps:
        stamp(6)
        A("s_waitcnt vmcnt(0)")
        stamp(7)
        A("s_waitcnt lgkmcnt(0)")
        A("s_mov_b64 exec, 1")
        if diag:
            idx, mul, base = diag[:3]
            dwg = diag[3] if len(diag) > 3 else 0
            if gmax is not None:
                A("v_mov_b32 v9, 16")
                if gmax[1] == 'max':
                    A(f"v_mov_b32 v10, s{60+2*gmax[0]}")
                elif gmax[1] == 'min':
                    A(f"v_not_b32 v10, s{60+2*gmax[0]}")
                else:
                    A(f"s_sub_u32 s42, s{60+2*gmax[0]}, s{60+2*gmax[2]}")
                    A("v_mov_b32 v10, s42")
                A("v_not_b32 v11, s60")
                A("buffer_atomic_umax v10, v9, s[16:19], 0 offen sc1")
                A("buffer_atomic_umax v11, v9, s[16:19], 0 offen offset:4 sc1")
                A("s_waitcnt vmcnt(0)")
            A("s_barrier")
            A("s_cmp_lg_u32 s36, 0")
            A("s_cbranch_scc1 L_end")
            A("v_mov_b32 v9, 4")
            A("v_mov_b32 v10, 1")
            A("buffer_atomic_add v10, v9, s[16:19], 0 offen sc1")
            A(f"s_cmp_lg_u32 s2, {dwg}")
            A("s_cbranch_scc1 L_end")
            A("s_mov_b32 s45, 0")
            A("L_dg1:")
            A("buffer_load_dword v10, v9, s[16:19], 0 offen sc1")
            A("s_add_u32 s45, s45, 1")
            A("s_waitcnt vmcnt(0)")
            A("v_readfirstlane_b32 s42, v10")
            A(f"s_cmp_ge_u32 s45, {SPIN}")
            A("s_cbranch_scc1 L_dg2")
            A("s_cmp_lt_u32 s42, 256")
            A("s_cbranch_scc1 L_dg1")
            A("L_dg2:")
            A("s_memrealtime s[76:77]")
            A("s_waitcnt lgkmcnt(0)")
            if gmax is not None:
                A("v_mov_b32 v9, 16")
                A("buffer_load_dwordx2 v[10:11], v9, s[16:19], 0 offen sc1")
                A("s_waitcnt vmcnt(0)")
                A("v_readfirstlane_b32 s42, v10")
                A("v_readfirstlane_b32 s43, v11")
                A("s_not_b32 s43, s43")
                if gmax[1] == 'min':
                    A("s_not_b32 s42, s42")
                if gmax[1] != 'rel':
                    A("s_sub_u32 s42, s42, s43")
            elif idx >= 0:
                A(f"s_sub_u32 s42, s{60+2*idx}, s60")
            else:
                A("s_mov_b32 s42, s80")
            A(f"s_mul_i32 s42, s42, {mul}")
            A(f"s_add_u32 s42, s42, {base}")
            A("s_min_u32 s42, s42, 200000")
            if want is not None:
                A("s_cmp_ge_u32 s89, 2")
                A("s_cselect_b32 s42, s42, 0" if want else "s_cselect_b32 s42, 0, s42")
            A("L_dg3:")
            A("s_memrealtime s[78:79]")
            A("s_waitcnt lgkmcnt(0)")
            A("s_sub_u32 s43, s78, %s" % ("s90" if (mprobe or predelay is not None) else "s60"))
            A("s_cmp_lt_u32 s43, s42")
            A("s_cbranch_scc1 L_dg3")
            A("s_branch L_end")
        A("s_mul_i32 s3, s2, 12")
        A("s_add_u32 s3, s3, s36")
        A("s_lshl_b32 s3, s3, 5")
        A(f"s_add_u32 s3, s3, {W_ST}")
        A("v_mov_b32 v1, 0")
        for i in range(8):
            A(f"v_mov_b32 v{4+i}, s{60+2*i}")
        A("buffer_store_dwordx4 v[4:7], v1, s[20:23], s3 offen")
        A("buffer_store_dwordx4 v[8:11], v1, s[20:23], s3 offen offset:16")
    A("L_end:")
    A("s_endpgm")
    A('.section .rodata,"a"')
    A(".p2align 6")
    A(".amdhsa_kernel standalone__channel_attn_cbam__vision_kernel")
    A("  .amdhsa_next_free_vgpr 168")
    A("  .amdhsa_next_free_sgpr 96")
    A("  .amdhsa_accum_offset 168")
    A("  .amdhsa_group_segment_fixed_size 0")
    A("  .amdhsa_kernarg_size 48")
    A("  .amdhsa_user_sgpr_count 2")
    A("  .amdhsa_user_sgpr_kernarg_segment_ptr 1")
    A("  .amdhsa_system_sgpr_workgroup_id_x 1")
    A("  .amdhsa_float_denorm_mode_32 3")
    A(".end_amdhsa_kernel")
    out = []
    for line in L:
        if line.startswith(("s_", "v_", "ds_", "buffer_")):
            out.append("    " + line)
        else:
            out.append(line)
    return "\n".join(out) + "\n"

if __name__ == "__main__":
    cfg = json.loads(sys.argv[1]) if len(sys.argv) > 1 else {}
    sys.stdout.write(gen(**cfg))
```

```python
import sys, json

HEADER = """; CBAM channel attention, x kept in registers across a grid-wide reduction (single pass over HBM)
"""

def gen(pat="inter", ld="nt", st="sc1", W=8, nrep=1, stamps=0, sleepA=0, sleepF=0, diag=None, gmax=None,
        wpos=-1, warm_out=1, flagpos=26, grp=2, prio=0):
    if diag: stamps = 1
    NW = 12
    NL = 32
    VD = 40
    XB = 100663296
    L_W1, L_W2 = 0, 18432
    L_RED = 36864
    L_G = L_RED + 6144
    L_H = L_G + 768
    L_SC = L_H + 1536
    L_R2 = L_SC + 768
    L_CNT = L_R2 + 256
    L_SP = L_CNT + 64
    L_END = L_SP + 3 * 6144
    W_F = 256 * 1536
    REPS = 48 * 128
    W_ST = 1 << 20
    SPIN = 1 << 20
    step = NW * 1024
    L = []
    A = L.append
    def stamp(i):
        if stamps:
            A(f"s_memrealtime s[{60+2*i}:{61+2*i}]")
    A(HEADER.rstrip())
    A(f"; @launch grid=(256,1,1) block=({NW*64},1,1) lds={L_END}")
    A('.amdgcn_target "amdgcn-amd-amdhsa--gfx950"')
    A(".text")
    A(".globl standalone__channel_attn_cbam__vision_kernel")
    A(".p2align 8")
    A(".type standalone__channel_attn_cbam__vision_kernel,@function")
    A("standalone__channel_attn_cbam__vision_kernel:")
    stamp(0)
    A("s_load_dwordx4 s[4:7], s[0:1], 0")
    A("s_load_dwordx4 s[24:27], s[0:1], 16")
    A("s_load_dwordx4 s[28:31], s[0:1], 32")
    A("s_cmp_ge_u32 s2, 256")
    A("s_cbranch_scc1 L_end")
    A("v_lshrrev_b32 v2, 6, v0")
    A("v_and_b32 v35, 63, v0")
    A("v_readfirstlane_b32 s36, v2")
    A("v_lshrrev_b32 v4, 3, v35")
    A("v_mul_u32_u24 v4, 384, v4")
    A("v_and_b32 v5, 7, v35")
    A("v_lshl_add_u32 v1, v5, 4, v4")
    A("v_lshlrev_b32 v36, 4, v35")
    A("s_mul_i32 s37, s36, 43691")
    A("s_lshr_b32 s37, s37, 17")
    A("s_mul_i32 s38, s37, 3")
    A("s_sub_u32 s38, s36, s38")
    A("s_mul_i32 s39, s37, 3072")
    A("s_lshl_b32 s40, s38, 7")
    A("s_add_u32 s39, s39, s40")
    b, s = {"contig": (393216, step), "inter": (step, 256 * step)}[pat]
    A(f"s_mul_i32 s41, s2, {b}")
    A("s_add_u32 s41, s41, s39")
    A("s_mov_b32 s3, s41")
    A("s_mov_b32 s10, %d" % XB); A("s_mov_b32 s11, 0x20000")
    A("s_mov_b32 s14, %d" % XB); A("s_mov_b32 s15, 0x20000")
    A("s_mov_b32 s18, 256"); A("s_mov_b32 s19, 0x20000")
    A("s_mov_b32 s22, 402653184"); A("s_mov_b32 s23, 0x20000")
    A("s_mov_b32 s34, 18432"); A("s_mov_b32 s35, 0x20000")
    A("s_lshr_b32 s42, s2, 5")
    A("s_lshl_b32 s42, s42, 3")
    A("s_and_b32 s43, s2, 7")
    A("s_add_u32 s42, s42, s43")
    A("s_lshl_b32 s42, s42, 2")
    A("s_bfe_u32 s43, s2, 0x20003")
    A("s_add_u32 s47, s42, s43")
    A("s_lshr_b32 s42, s2, 6")
    A("s_or_b32 s42, s42, s36")
    A("s_cmp_eq_u32 s42, 0")
    A("s_cselect_b32 s46, 1, 0")
    A("s_waitcnt lgkmcnt(0)")
    A("s_mov_b32 s8, s4"); A("s_mov_b32 s9, s5")
    A("s_mov_b32 s20, s30"); A("s_mov_b32 s21, s31")
    A("s_mov_b32 s12, s26"); A("s_mov_b32 s13, s27")
    A("s_mov_b32 s16, s28"); A("s_mov_b32 s17, s29")
    A("s_cbranch_scc0 L_noclear")
    A("v_mov_b32 v4, -1"); A("v_mov_b32 v5, -1"); A("v_mov_b32 v6, -1"); A("v_mov_b32 v7, -1")
    A("s_mul_i32 s42, s2, 6144")
    for k in range(6):
        if k == 4:
            A("s_add_u32 s42, s42, 4096")
        A(f"buffer_store_dwordx4 v[4:7], v36, s[20:23], s42 offen offset:{(k%4)*1024} sc1")
    A("s_cmp_ge_u32 s2, 48")
    A("s_cbranch_scc1 L_noclear")
    A(f"v_mul_u32_u24 v8, {REPS}, v35")
    A("s_lshl_b32 s42, s2, 7")
    A(f"s_add_u32 s42, s42, {W_F}")
    A(f"s_mov_b64 exec, {(1 << nrep) - 1}")
    A(f"buffer_store_dwordx4 v[4:7], v8, s[20:23], s42 offen sc1")
    A("s_mov_b64 exec, -1")
    A("L_noclear:")
    ops = []
    def weights():
        A("s_cmp_ge_u32 s36, 6")
        A("s_cselect_b32 s32, s24, s6")
        A("s_cselect_b32 s33, s25, s7")
        A("s_cselect_b32 s42, 18432, 0")
        A("s_mul_i32 s43, s36, 3072")
        A("s_mov_b32 m0, s43")
        A("s_sub_u32 s42, s43, s42")
        for k in range(3):
            A(f"buffer_load_dwordx4 v36, s[32:35], s42 offen offset:{k*1024} lds")
            ops.append(("w", k))
    def issue(j):
        r = VD + 4 * j
        A(f"buffer_load_dwordx4 v[{r}:{r+3}], v1, s[8:11], s3 offen {ld}".rstrip())
        ops.append(("d", j))
        if j != NL - 1:
            A(f"s_add_u32 s3, s3, {s}")
        if j == wpos:
            weights()
        if j == flagpos:
            A("s_cmp_lg_u32 s36, 2")
            A("s_cbranch_scc1 L_noflag")
            A("v_lshlrev_b32 v34, 2, v35")
            A("buffer_load_dword v34, v34, s[16:19], 0 offen sc1")
            A("L_noflag:")
    def after(j):
        return len(ops) - 1 - ops.index(("d", j))
    if wpos < 0:
        weights()
    for j in range(min(W, NL)):
        issue(j)
    nxt = min(W, NL)
    S, M, T = 2, 10, 18
    for i in range(8):
        A(f"v_mov_b32 v{S+i}, 0")
        A(f"v_mov_b32 v{M+i}, 0xff800000")
    A("s_mov_b32 s44, 0xffff0000")
    A(f"ds_write_b32 v{S}, v{S} offset:{L_CNT}")
    if grp == 2:
        groups = [(j, j + 1) for j in range(0, NL - 2, 2)] + [(NL - 2,), (NL - 1,)]
    else:
        groups = [(j,) for j in range(NL)]
    for gi0, g in enumerate(groups):
        A(f"s_waitcnt vmcnt({after(g[-1])})")
        if gi0 == 0:
            A("s_cmp_eq_u32 s46, 0")
            A("s_cbranch_scc1 L_noraise")
            A("s_lshl_b32 s42, s2, 2")
            A("s_mov_b64 exec, 1")
            A(f"buffer_store_dword v{M}, v{S}, s[16:19], s42 offen sc1")
            A("s_mov_b64 exec, -1")
            A("L_noraise:")
        for _ in g:
            if nxt < NL:
                issue(nxt); nxt += 1
        if nxt == NL and not any(o == ("stamp", 1) for o in L):
            if stamps and "done1" not in ops:
                pass
        for gi, j in enumerate(g):
            for i in range(4):
                d = VD + 4 * j + i
                t = T + 8 * gi + 2 * i
                A(f"v_lshlrev_b32 v{t}, 16, v{d}")
                A(f"v_and_b32 v{t+1}, s44, v{d}")
        for gi, j in enumerate(g):
            for i in range(4):
                t = T + 8 * gi + 2 * i
                A(f"v_pk_add_f32 v[{S+2*i}:{S+2*i+1}], v[{S+2*i}:{S+2*i+1}], v[{t}:{t+1}]")
        for i in range(8):
            if len(g) == 2:
                A(f"v_max3_f32 v{M+i}, v{M+i}, v{T+i}, v{T+8+i}")
            else:
                A(f"v_max_f32 v{M+i}, v{M+i}, v{T+i}")
    stamp(2)
    A("v_and_b32 v37, 7, v35")
    A("v_lshrrev_b32 v38, 3, v35")
    for i in range(4):
        A(f"v_permlane32_swap_b32 v{S+i}, v{S+i+4}")
    for i in range(4):
        A(f"v_permlane32_swap_b32 v{M+i}, v{M+i+4}")
    for i in range(2):
        A(f"v_pk_add_f32 v[{S+2*i}:{S+2*i+1}], v[{S+2*i}:{S+2*i+1}], v[{S+4+2*i}:{S+5+2*i}]")
    for i in range(4):
        A(f"v_max_f32 v{M+i}, v{M+i}, v{M+i+4}")
    for i in range(2):
        A(f"v_permlane16_swap_b32 v{S+i}, v{S+i+2}")
    for i in range(2):
        A(f"v_permlane16_swap_b32 v{M+i}, v{M+i+2}")
    A(f"v_pk_add_f32 v[{S}:{S+1}], v[{S}:{S+1}], v[{S+2}:{S+3}]")
    for i in range(2):
        A(f"v_max_f32 v{M+i}, v{M+i}, v{M+i+2}")
    A("v_lshl_add_u32 v37, v37, 3, v38")
    A("s_mul_i32 s42, s37, 768")
    A("s_lshl_b32 s43, s38, 8")
    A("s_add_u32 s42, s42, s43")
    A(f"v_add_f32_dpp v{T}, v{S}, v{S} row_ror:8 row_mask:0xf bank_mask:0x3")
    A(f"v_max_f32_dpp v{T+1}, v{M}, v{M} row_ror:8 row_mask:0xf bank_mask:0x3")
    A("v_lshl_add_u32 v37, v37, 2, s42")
    A(f"v_add_f32_dpp v{T}, v{S+1}, v{S+1} row_ror:8 row_mask:0xf bank_mask:0xc")
    A(f"v_max_f32_dpp v{T+1}, v{M+1}, v{M+1} row_ror:8 row_mask:0xf bank_mask:0xc")
    assert L_RED % 256 == 0
    A(f"ds_write2st64_b32 v37, v{T}, v{T+1} offset0:{L_RED//256} offset1:{L_RED//256+12}")
    A("s_mov_b32 s45, 0")
    A("s_cmp_lg_u32 s36, 2")
    A("s_cbranch_scc1 L_flagok")
    A("L_flag:")
    A("v_cmp_eq_u32 vcc, 0, v34")
    A("s_cbranch_vccz L_flagok")
    A("v_lshlrev_b32 v34, 2, v35")
    A("buffer_load_dword v34, v34, s[16:19], 0 offen sc1")
    A("s_add_u32 s45, s45, 1")
    A("s_waitcnt vmcnt(0)")
    A(f"s_cmp_lt_u32 s45, {SPIN}")
    A("s_cbranch_scc1 L_flag")
    A("L_flagok:")
    A("s_waitcnt lgkmcnt(0)")
    A("s_barrier")
    stamp(3)
    if stamps:
        A("s_mov_b32 s62, s60")
    A("s_cmp_ge_u32 s36, 2")
    A("s_cbranch_scc1 L_role2")
    A("s_mul_i32 s42, s36, 3072")
    A("s_mov_b32 exec_hi, 0xffff")
    A("v_add_u32 v37, s42, v36")
    for q in range(4):
        A(f"ds_read_b128 v[{T+4*q}:{T+4*q+3}], v37 offset:{L_RED+q*768}")
    A("s_mul_i32 s42, s2, 1536")
    A("s_mul_i32 s43, s36, 768")
    A("s_add_u32 s42, s42, s43")
    A("s_cmp_eq_u32 s36, 1")
    A("s_cbranch_scc1 L_pubmax")
    A("s_waitcnt lgkmcnt(2)")
    A(f"v_pk_add_f32 v[{T}:{T+1}], v[{T}:{T+1}], v[{T+4}:{T+5}]")
    A(f"v_pk_add_f32 v[{T+2}:{T+3}], v[{T+2}:{T+3}], v[{T+6}:{T+7}]")
    A("s_waitcnt lgkmcnt(0)")
    A(f"v_pk_add_f32 v[{T+8}:{T+9}], v[{T+8}:{T+9}], v[{T+12}:{T+13}]")
    A(f"v_pk_add_f32 v[{T+10}:{T+11}], v[{T+10}:{T+11}], v[{T+14}:{T+15}]")
    A(f"v_pk_add_f32 v[{T}:{T+1}], v[{T}:{T+1}], v[{T+8}:{T+9}]")
    A(f"v_pk_add_f32 v[{T+2}:{T+3}], v[{T+2}:{T+3}], v[{T+10}:{T+11}]")
    A(f"buffer_store_dwordx4 v[{T}:{T+3}], v36, s[20:23], s42 offen sc1")
    A("s_mov_b64 exec, -1")
    A("s_branch L_common")
    A("L_pubmax:")
    A("s_waitcnt lgkmcnt(0)")
    for i in range(4):
        A(f"v_max3_f32 v{T+i}, v{T+i}, v{T+4+i}, v{T+8+i}")
    for i in range(4):
        A(f"v_max_f32 v{T+i}, v{T+i}, v{T+12+i}")
    A(f"buffer_store_dwordx4 v[{T}:{T+3}], v36, s[20:23], s42 offen sc1")
    A("s_mov_b64 exec, -1")
    A("s_branch L_common")
    A("L_role2:")
    A("s_cmp_eq_u32 s36, 3")
    A("s_cbranch_scc1 L_common")
    A("s_cmp_eq_u32 s36, 2")
    A("s_cbranch_scc0 L_role4")
    if warm_out:
        if pat == "inter":
            A(f"v_mul_u32_u24 v2, {s >> 10}, v35")
            A("v_lshlrev_b32 v2, 10, v2")
            A("s_mov_b32 exec_hi, 0")
        else:
            A(f"v_mul_u32_u24 v2, {s * (NL - 1)}, v35")
            A("s_mov_b64 exec, 3")
        A("buffer_load_dword v3, v2, s[12:15], s41 offen")
        A("s_mov_b64 exec, -1")
        A("s_waitcnt vmcnt(0)")
    A("s_branch L_common")
    A("L_role4:")
    VS = VD + 4 * (NL - 6)
    A("s_cmp_ge_u32 s36, 7")
    A("s_cbranch_scc1 L_role7")
    A("s_sub_u32 s43, s36, 4")
    A("s_mul_i32 s42, s43, 6144")
    A(f"s_add_u32 s42, s42, {L_SP}")
    A("v_add_u32 v38, s42, v36")
    for k in range(6):
        A(f"ds_write_b128 v38, v[{VS+4*k}:{VS+4*k+3}] offset:{k*1024}")
    A("v_lshrrev_b32 v2, 4, v35")
    A("v_lshlrev_b32 v2, 3, v2")
    A("v_bfe_u32 v3, v35, 2, 2")
    A("v_add_u32 v2, v2, v3")
    A("v_mul_u32_u24 v2, 96, v2")
    A("v_and_b32 v3, 3, v35")
    A("v_lshl_add_u32 v2, v3, 3, v2")
    A("s_lshl_b32 s42, s43, 5")
    A("v_add_u32 v2, s42, v2")
    A("s_waitcnt lgkmcnt(0)")
    for k in range(6):
        A(f"ds_read_b64_tr_b16 v[{VS+4*k}:{VS+4*k+1}], v2 offset:{L_W1 + k*3072}")
        A(f"ds_read_b64_tr_b16 v[{VS+4*k+2}:{VS+4*k+3}], v2 offset:{L_W1 + k*3072 + 384}")
    A("v_and_b32 v2, 1, v35")
    A("v_mul_u32_u24 v2, 384, v2")
    A("v_lshrrev_b32 v3, 4, v35")
    A("v_lshl_add_u32 v39, v3, 4, v2")
    A("L_role7:")
    A("s_cmp_ge_u32 s47, 48")
    A("s_cbranch_scc1 L_common")
    A("v_lshrrev_b32 v2, 1, v35")
    A("v_mul_u32_u24 v2, 1536, v2")
    A("v_and_b32 v3, 1, v35")
    A("v_lshl_add_u32 v2, v3, 4, v2")
    A("s_sub_u32 s43, s36, 4")
    A("s_mul_i32 s42, s43, 49152")
    A("s_lshl_b32 s48, s47, 5")
    A("s_add_u32 s42, s42, s48")
    A("v_lshrrev_b32 v9, 4, v35")
    A("v_lshl_add_u32 v9, v3, 2, v9")
    A("s_lshl_b32 s43, s43, 5")
    A("v_lshl_add_u32 v9, v9, 2, s43")
    A("v_mov_b32 v10, 1")
    A("v_mov_b32 v11, 0")
    A("L_pollA:")
    A(f"buffer_load_dwordx4 v[4:7], v2, s[20:23], s42 offen sc1")
    A("s_add_u32 s45, s45, 1")
    A("s_waitcnt vmcnt(0)")
    A("v_max3_u32 v8, v4, v5, v6")
    A("v_max_u32 v8, v8, v7")
    A("v_cmp_eq_u32 vcc, -1, v8")
    A("s_cbranch_vccz L_gotA")
    A("s_mov_b64 exec, vcc")
    if sleepA:
        A(f"s_sleep {sleepA}")
    A(f"s_cmp_lt_u32 s45, {SPIN}")
    A("s_cbranch_scc1 L_pollA")
    A("L_gotA:")
    A("s_mov_b64 exec, -1")
    stamp(1)
    A("s_cmp_ge_u32 s47, 24")
    A("s_cbranch_scc1 L_redmax")
    def red(op):
        A("v_permlane32_swap_b32 v4, v6")
        A("v_permlane32_swap_b32 v5, v7")
        A(f"v_{op}_f32 v4, v4, v6")
        A(f"v_{op}_f32 v5, v5, v7")
        A("s_nop 1")
        A("v_permlane16_swap_b32 v4, v5")
        A(f"v_{op}_f32 v4, v4, v5")
        for r in (8, 4, 2):
            A("s_nop 1")
            A(f"v_{op}_f32_dpp v4, v4, v4 row_ror:{r} row_mask:0xf bank_mask:0xf")
        A(f"ds_write_b32 v9, v4 offset:{L_R2}")
        A("s_mov_b64 exec, 1")
        A(f"ds_add_rtn_u32 v10, v11, v10 offset:{L_CNT}")
        A("s_mov_b64 exec, -1")
        A("v_and_b32 v2, 31, v35")
        A("v_lshlrev_b32 v2, 3, v2")
        A("s_waitcnt lgkmcnt(0)")
        A("v_readfirstlane_b32 s42, v10")
        A("s_cmp_lg_u32 s42, 7")
        A("s_cbranch_scc1 L_common")
        A(f"ds_read_b64 v[4:5], v2 offset:{L_R2}")
        A("v_lshrrev_b32 v2, 2, v35")
        A(f"v_mul_u32_u24 v2, {REPS}, v2")
        A("v_and_b32 v3, 3, v35")
        A("v_lshl_add_u32 v2, v3, 2, v2")
        A("s_lshl_b32 s42, s47, 7")
        A(f"s_add_u32 s42, s42, {W_F}")
        A("s_waitcnt lgkmcnt(0)")
        for r in (4, 8):
            A(f"v_{op}_f32_dpp v4, v4, v4 row_ror:{r} row_mask:0xf bank_mask:0xf")
            A(f"v_{op}_f32_dpp v5, v5, v5 row_ror:{r} row_mask:0xf bank_mask:0xf")
            A("s_nop 0")
        A("v_mov_b32 v6, v4")
        A("v_mov_b32 v7, v5")
        A("s_nop 0")
        A("v_permlane16_swap_b32 v4, v6")
        A("v_permlane16_swap_b32 v5, v7")
        A(f"v_{op}_f32 v4, v4, v6")
        A(f"v_{op}_f32 v5, v5, v7")
    red("add")
    A("v_mul_f32 v4, 0x36800000, v4")
    A("v_mul_f32 v5, 0x36800000, v5")
    A("s_branch L_pubF")
    A("L_redmax:")
    red("max")
    A("L_pubF:")
    A("v_cvt_pk_bf16_f32 v4, v4, v5")
    A(f"s_mov_b32 exec_lo, {hex((1 << (4*nrep)) - 1)}")
    A("s_mov_b32 exec_hi, 0")
    A("v_min_u32 v4, -2, v4")
    A("buffer_store_dword v4, v2, s[20:23], s42 offen sc1")
    A("s_mov_b64 exec, -1")
    A("L_common:")
    A("v_lshrrev_b32 v2, 2, v35")
    A("v_mul_u32_u24 v2, 384, v2")
    A("v_and_b32 v3, 3, v35")
    A("v_lshl_add_u32 v2, v3, 3, v2")
    A("s_lshl_b32 s42, s36, 5")
    A("v_add_u32 v2, s42, v2")
    W2F = 28
    for k in range(3):
        A(f"ds_read_b64_tr_b16 v[{W2F+2*k}:{W2F+2*k+1}], v2 offset:{L_W2 + k*6144}")
    A("v_lshlrev_b32 v37, 3, v35")
    A("s_cmp_lg_u32 s36, 3")
    A("s_cbranch_scc1 L_b2")
    A(f"s_and_b32 s42, s2, {nrep-1}")
    A(f"s_mul_i32 s42, s42, {REPS}")
    A(f"s_add_u32 s42, s42, {W_F}")
    A("v_lshlrev_b32 v2, 7, v35")
    A("s_mov_b32 exec_hi, 0xffff")
    A("L_pollF:")
    A(f"buffer_load_dwordx4 v[4:7], v2, s[20:23], s42 offen sc1")
    A("s_add_u32 s45, s45, 1")
    A("s_waitcnt vmcnt(0)")
    A("v_max3_u32 v8, v4, v5, v6")
    A("v_max_u32 v8, v8, v7")
    A("v_cmp_eq_u32 vcc, -1, v8")
    A("s_cbranch_vccz L_gotF")
    A("s_mov_b64 exec, vcc")
    if sleepF:
        A(f"s_sleep {sleepF}")
    A(f"s_cmp_lt_u32 s45, {SPIN}")
    A("s_cbranch_scc1 L_pollF")
    A("L_gotF:")
    A("s_mov_b32 exec_lo, -1")
    A("s_mov_b32 exec_hi, 0xffff")
    A(f"ds_write_b128 v36, v[4:7] offset:{L_G}")
    A("s_mov_b64 exec, -1")
    A("L_b2:")
    A("s_waitcnt lgkmcnt(0)")
    A("s_barrier")
    stamp(4)
    A("s_sub_u32 s42, s36, 4")
    A("s_cmp_ge_u32 s42, 3")
    A("s_cbranch_scc1 L_l2")
    BF = 4
    for k in range(6):
        A(f"ds_read_b128 v[{BF+4*k}:{BF+4*k+3}], v39 offset:{L_G + k*64}")
    A("s_lshl_b32 s42, s42, 9")
    A("v_add_u32 v36, s42, v37")
    for k in range(6):
        A(f"s_waitcnt lgkmcnt({5-k})")
        c = "0" if k == 0 else "v[0:3]"
        A(f"v_mfma_f32_16x16x32_bf16 v[0:3], v[{VS+4*k}:{VS+4*k+3}], v[{BF+4*k}:{BF+4*k+3}], {c}")
    A("s_nop 7")
    A("v_cvt_pk_bf16_f32 v4, v0, v1")
    A("v_cvt_pk_bf16_f32 v5, v2, v3")
    A("v_lshlrev_b32 v0, 16, v4"); A("v_and_b32 v1, s44, v4")
    A("v_lshlrev_b32 v2, 16, v5"); A("v_and_b32 v3, s44, v5")
    for i in range(4):
        A(f"v_cmp_lt_f32 s[{48+2*i}:{49+2*i}], 0, v{i}")
    for i in range(4):
        A(f"v_cndmask_b32 v{6+i}, 0, 1.0, s[{48+2*i}:{49+2*i}]")
    A("v_pk_mul_f32 v[0:1], v[0:1], v[6:7]")
    A("v_pk_mul_f32 v[2:3], v[2:3], v[8:9]")
    A("v_cvt_pk_bf16_f32 v4, v0, v1")
    A("v_cvt_pk_bf16_f32 v5, v2, v3")
    A(f"ds_write_b64 v36, v[4:5] offset:{L_H}")
    A("v_lshrrev_b32 v6, 3, v35")
    A("v_mul_u32_u24 v6, 384, v6")
    A("v_and_b32 v7, 7, v35")
    A("v_lshl_add_u32 v1, v7, 4, v6")
    A("s_waitcnt lgkmcnt(0)")
    A("L_l2:")
    A("s_barrier")
    for k in range(3):
        A(f"ds_read_b64 v[{4+2*k}:{5+2*k}], v37 offset:{L_H + k*512}")
    A("v_bfe_u32 v2, v35, 1, 2")
    A("v_cmp_eq_u32 s[48:49], 1, v2")
    A("v_cmp_eq_u32 s[50:51], 2, v2")
    A("v_cmp_eq_u32 s[52:53], 3, v2")
    A("v_lshrrev_b32 v3, 4, v35")
    A("v_lshl_add_u32 v2, v3, 2, v2")
    A("s_lshl_b32 s42, s36, 6")
    A("v_lshl_add_u32 v36, v2, 2, s42")
    for k in range(3):
        A(f"s_waitcnt lgkmcnt({2-k})")
        c = "0" if k == 0 else "v[12:15]"
        A(f"v_mfma_f32_16x16x16_bf16 v[12:15], v[{W2F+2*k}:{W2F+2*k+1}], v[{4+2*k}:{5+2*k}], {c}")
    A("v_and_b32 v2, 7, v35")
    A("s_lshl_b32 s42, s38, 8")
    A("v_lshl_add_u32 v39, v2, 5, s42")
    A("s_mov_b32 s43, 0xbfb8aa3b")
    A("s_nop 4")
    A("v_cndmask_b32 v12, v12, v13, s[48:49]")
    A("v_cndmask_b32 v12, v12, v14, s[50:51]")
    A("v_cndmask_b32 v12, v12, v15, s[52:53]")
    A("v_cvt_pk_bf16_f32 v12, v12, v12")
    A("v_and_b32 v12, s44, v12")
    A("s_nop 1")
    A("v_add_f32_dpp v12, v12, v12 quad_perm:[1,0,3,2] row_mask:0xf bank_mask:0xf")
    A("v_cvt_pk_bf16_f32 v12, v12, v12")
    A("v_and_b32 v12, s44, v12")
    A("v_mul_f32 v12, s43, v12")
    A("v_exp_f32 v12, v12")
    A("s_nop 0")
    A("v_add_f32 v12, 1.0, v12")
    A("v_rcp_f32 v12, v12")
    A("s_nop 0")
    A("v_cvt_pk_bf16_f32 v12, v12, v12")
    A("v_and_b32 v12, s44, v12")
    A(f"ds_write_b32 v36, v12 offset:{L_SC}")
    A("s_waitcnt lgkmcnt(0)")
    A("s_barrier")
    SCR = 2
    A(f"ds_read_b128 v[{SCR}:{SCR+3}], v39 offset:{L_SC}")
    A(f"ds_read_b128 v[{SCR+4}:{SCR+7}], v39 offset:{L_SC+16}")
    stamp(5)
    A("s_mov_b32 s3, s41")
    T2 = 10
    for j in range(NL):
        tb = T2 + 8 * (j % 3)
        for i in range(4):
            d = VD + 4 * j + i
            A(f"v_lshlrev_b32 v{tb+2*i}, 16, v{d}")
            A(f"v_and_b32 v{tb+2*i+1}, s44, v{d}")
        if j == 0:
            A("s_waitcnt lgkmcnt(0)")
        for i in range(4):
            A(f"v_pk_mul_f32 v[{tb+2*i}:{tb+2*i+1}], v[{tb+2*i}:{tb+2*i+1}], v[{SCR+2*i}:{SCR+2*i+1}]")
        for i in range(4):
            d = VD + 4 * j + i
            A(f"v_cvt_pk_bf16_f32 v{d}, v{tb+2*i}, v{tb+2*i+1}")
        r = VD + 4 * j
        A(f"buffer_store_dwordx4 v[{r}:{r+3}], v1, s[12:15], s3 offen {st}".rstrip())
        if j != NL - 1:
            A(f"s_add_u32 s3, s3, {s}")
        if j == 0:
            A("s_sub_u32 s42, s36, 4")
            A("s_cmp_ge_u32 s42, 3")
            A("s_cbranch_scc1 L_noreload")
            for k in range(6):
                A(f"ds_read_b128 v[{VS+4*k}:{VS+4*k+3}], v38 offset:{k*1024}")
            A("L_noreload:")
        if j == NL - 7:
            A("s_waitcnt lgkmcnt(0)")
    if stamps:
        stamp(6)
        A("s_waitcnt vmcnt(0)")
        stamp(7)
        A("s_waitcnt lgkmcnt(0)")
        A("s_mov_b64 exec, 1")
        if diag:
            diag_tail(A, diag, gmax, SPIN)
        A("s_mul_i32 s3, s2, 12")
        A("s_add_u32 s3, s3, s36")
        A("s_lshl_b32 s3, s3, 5")
        A(f"s_add_u32 s3, s3, {W_ST}")
        A("v_mov_b32 v1, 0")
        for i in range(8):
            A(f"v_mov_b32 v{4+i}, s{60+2*i}")
        A("buffer_store_dwordx4 v[4:7], v1, s[20:23], s3 offen")
        A("buffer_store_dwordx4 v[8:11], v1, s[20:23], s3 offen offset:16")
    A("L_end:")
    A("s_endpgm")
    A('.section .rodata,"a"')
    A(".p2align 6")
    A(".amdhsa_kernel standalone__channel_attn_cbam__vision_kernel")
    A("  .amdhsa_next_free_vgpr 168")
    A("  .amdhsa_next_free_sgpr 96")
    A("  .amdhsa_accum_offset 168")
    A("  .amdhsa_group_segment_fixed_size 0")
    A("  .amdhsa_kernarg_size 48")
    A("  .amdhsa_user_sgpr_count 2")
    A("  .amdhsa_user_sgpr_kernarg_segment_ptr 1")
    A("  .amdhsa_system_sgpr_workgroup_id_x 1")
    A("  .amdhsa_float_denorm_mode_32 3")
    A(".end_amdhsa_kernel")
    out = []
    for line in L:
        if line.startswith(("s_", "v_", "ds_", "buffer_")):
            out.append("    " + line)
        else:
            out.append(line)
    return "\n".join(out) + "\n"

def diag_tail(A, diag, gmax, SPIN):
    idx, mul, base = diag[:3]
    dwg = diag[3] if len(diag) > 3 else 0
    A("s_cmp_lg_u32 s36, 0")
    A("s_cbranch_scc1 L_end")
    A(f"s_cmp_lg_u32 s2, {dwg}")
    A("s_cbranch_scc1 L_end")
    A(f"s_sub_u32 s42, s{60+2*idx}, s60")
    A(f"s_mul_i32 s42, s42, {mul}")
    A(f"s_add_u32 s42, s42, {base}")
    A("s_min_u32 s42, s42, 200000")
    A("L_dg3:")
    A("s_memrealtime s[78:79]")
    A("s_waitcnt lgkmcnt(0)")
    A("s_sub_u32 s43, s78, s60")
    A("s_cmp_lt_u32 s43, s42")
    A("s_cbranch_scc1 L_dg3")
    A("s_branch L_end")

if __name__ == "__main__":
    cfg = json.loads(sys.argv[1]) if len(sys.argv) > 1 else {}
    sys.stdout.write(gen(**cfg))
```

```python
import sys, json

HEADER = """; CBAM channel attention, x kept in registers across a grid-wide reduction (single pass over HBM)
"""

def gen(ld="nt", st="sc1", W=4, stamps=0, sleepA=0, sleepF=0, diag=None,
        wpos=-1, warm_out=1, STRIDE=5, ROT=5, MIX=0xAAAA, nstatic=4, maplead=0, grp=2, cpf=0, stop1=0,
        sset=1, THR=100, tagpos=24, poff=4096 * 33 + 640, ppol="nt", usemap=1, oracle=None, glc0=0, rawd=0, rnd=0):
    if diag: stamps = 1
    NW, NL, VD = 12, 32, 40
    XB = 100663296
    L_W1, L_W2 = 0, 18432
    L_RED = 36864
    L_G = L_RED + 6144
    L_H = L_G + 768
    L_SC = L_H + 1536
    L_R2 = L_SC + 768
    L_CNT = L_R2 + 256
    L_PB = L_CNT + 16
    L_SP = L_CNT + 64
    L_END = L_SP + 3 * 6144
    W_F = 256 * 1536
    REPS = 48 * 128
    W_ST = 1 << 20
    SPIN = 1 << 20
    SW = 6 << 20
    TAB = 80
    assert 2 * nstatic >= W and (grp == 1 or W % 2 == 0)
    NS = 24
    L = []
    A = L.append
    def stamp(i):
        if stamps:
            A(f"s_memrealtime s[{60+2*i}:{61+2*i}]")
    A(HEADER.rstrip())
    A(f"; @launch grid=(256,1,1) block=({NW*64},1,1) lds={L_END}")
    A('.amdgcn_target "amdgcn-amd-amdhsa--gfx950"')
    A(".text")
    A(".globl standalone__channel_attn_cbam__vision_kernel")
    A(".p2align 8")
    A(".type standalone__channel_attn_cbam__vision_kernel,@function")
    A("standalone__channel_attn_cbam__vision_kernel:")
    stamp(0)
    A("s_load_dwordx4 s[4:7], s[0:1], 0")
    A("s_load_dwordx4 s[24:27], s[0:1], 16")
    A("s_load_dwordx4 s[28:31], s[0:1], 32")
    if rnd: A("s_memtime s[58:59]")
    A("s_cmp_ge_u32 s2, 256")
    A("s_cbranch_scc1 L_end")
    A("v_lshrrev_b32 v2, 6, v0")
    A("v_and_b32 v35, 63, v0")
    A("v_readfirstlane_b32 s36, v2")
    A("v_lshlrev_b32 v36, 4, v35")
    if sset == 0:
        A("s_mov_b32 s40, s2")
    else:
        A("s_lshr_b32 s40, s2, 2")
        A("s_and_b32 s42, s2, 1")
        A("s_or_b32 s40, s40, s42")
        A("s_and_b32 s42, s2, 6")
        A(f"s_cselect_b32 s40, {NS}, s40")
    if cpf:
        A(f"s_sub_u32 s42, s2, 96")
        A(f"s_cmp_ge_u32 s42, {cpf}")
        A("s_cbranch_scc1 L_nocpf")
        A("s_cmp_ge_u32 s36, 2")
        A("s_cbranch_scc1 L_nocpf")
        A("s_getpc_b64 s[56:57]")
        A("L_pc:")
        A("v_lshlrev_b32 v2, 7, v0")
        A("v_min_u32 v2, L_end-L_pc, v2")
        A("global_load_dword v34, v2, s[56:57]")
        A("L_nocpf:")
    A("s_mul_i32 s37, s36, 43691")
    A("s_lshr_b32 s37, s37, 17")
    A("s_mul_i32 s38, s37, 3")
    A("s_sub_u32 s38, s36, s38")
    A("s_mul_i32 s39, s37, 3072")
    A("s_lshl_b32 s42, s38, 7")
    A("s_add_u32 s39, s39, s42")
    def lane_offsets(b0, d0, b1, d1):
        A(f"v_lshrrev_b32 v{d0}, 3, v35")
        A(f"v_mul_u32_u24 v{d0}, 384, v{d0}")
        A(f"v_and_b32 v{d1}, 7, v35")
        A(f"v_lshl_add_u32 v{d0}, v{d1}, 4, v{d0}")
        A(f"v_add_u32 v{b0}, s39, v{d0}")
        A(f"v_add_u32 v{b1}, 12288, v{b0}")
        A(f"v_bfe_u32 v{d0}, v{b0}, 13, 1")
        A(f"v_bfe_u32 v{d1}, v{b1}, 13, 1")
        A(f"v_mul_u32_u24 v{d0}, 24576, v{d0}")
        A(f"v_mul_u32_u24 v{d1}, 24576, v{d1}")
        A(f"v_add_u32 v{b0}, v{b0}, v{d0}")
        A(f"v_add_u32 v{b1}, v{b1}, v{d1}")
        A(f"v_lshlrev_b32 v{d0}, 1, v{d0}")
        A(f"v_lshlrev_b32 v{d1}, 1, v{d1}")
        A(f"v_sub_u32 v{d0}, 24576, v{d0}")
        A(f"v_sub_u32 v{d1}, 24576, v{d1}")
    lane_offsets(0, 1, 37, 38)
    A("s_lshr_b32 s42, s2, 3")
    A("s_and_b32 s43, s2, 3")
    A("s_lshl_b32 s42, s42, 2")
    A("s_add_u32 s51, s42, s43")
    A("s_mul_i32 s41, s51, 49152")
    A("s_lshr_b32 s52, s41, 21")
    A(f"s_mul_i32 s42, s52, {ROT}")
    A("s_and_b32 s53, s42, 15")
    A(f"s_mul_i32 s42, s53, {SW}")
    A(f"s_add_u32 s{TAB}, s42, s41")
    A("s_bfe_i32 s49, s2, 0x10002")
    A("s_mov_b32 s10, %d" % XB); A("s_mov_b32 s11, 0x20000")
    A("s_mov_b32 s14, %d" % XB); A("s_mov_b32 s15, 0x20000")
    A("s_mov_b32 s18, 256"); A("s_mov_b32 s19, 0x20000")
    A("s_mov_b32 s22, 402653184"); A("s_mov_b32 s23, 0x20000")
    A("s_mov_b32 s35, 0x20000")
    A("s_mov_b32 s45, 0")
    A(f"s_cmp_ge_u32 s40, {NS}")
    A("s_waitcnt lgkmcnt(0)")
    A("s_mov_b32 s8, s4"); A("s_mov_b32 s9, s5")
    A("s_mov_b32 s20, s30"); A("s_mov_b32 s21, s31")
    A("s_mov_b32 s12, s26"); A("s_mov_b32 s13, s27")
    A("s_mov_b32 s16, s28"); A("s_mov_b32 s17, s29")
    A("s_cbranch_scc1 L_noscout")
    A("s_cmp_lg_u32 s36, 0")
    A("s_cbranch_scc1 L_scoutwait")
    A("s_cmp_ge_u32 s40, 12")
    A("s_cselect_b32 s32, s26, s4")
    A("s_cselect_b32 s33, s27, s5")
    A("s_cselect_b32 s42, 12, 0")
    A(f"s_mov_b32 s34, {XB}")
    A("s_sub_u32 s42, s40, s42")
    A("s_lshl_b32 s42, s42, 23")
    A(f"s_add_u32 s42, s42, {(2 << 21) + (poff & ~8192)}")
    if rnd:
        A("s_lshl_b32 s43, s58, 5")
        A(f"s_and_b32 s43, s43, {0x1fff80 & ~8192}")
        A("s_xor_b32 s42, s42, s43")
    A("s_add_u32 s43, s42, 8192")
    A("v_mov_b32 v2, 0")
    for i in range(4):
        A(f"v_mov_b32 v{8+i}, -1")
    A("v_lshlrev_b32 v6, 7, v35")
    A("s_lshl_b32 s55, s40, 11")
    A(f"s_add_u32 s55, s55, {W_F}")
    A("s_getreg_b32 s48, hwreg(HW_REG_XCC_ID, 0, 3)")
    A("s_lshr_b32 s3, s48, 2")
    A("s_lshl_b32 s3, s3, s40")
    A("s_bitset1_b32 s3, 24")
    A("s_lshl_b32 s48, s48, 29")
    A("s_cmp_eq_u32 s40, 0")
    A("s_cselect_b32 s48, s48, 0")
    A("s_cselect_b32 s54, 0xffff, 0")
    A("s_or_b32 s3, s3, s48")
    A("s_lshl_b32 s48, 1, s40")
    A("s_xor_b32 s48, s48, s3")
    A("s_mov_b64 exec, 0xffff")
    A("s_branch L_probe")
    A(".p2align 7")
    A("L_probe:")
    A(f"buffer_load_dword v3, v2, s[32:35], s42 offen {ppol}".rstrip())
    A(f"buffer_load_dword v4, v2, s[32:35], s43 offen {ppol}".rstrip())
    A("buffer_load_dword v5, v2, s[20:23], 0 offen offset:4 sc1")
    A("buffer_store_dwordx4 v[8:11], v6, s[20:23], s55 offen sc1")
    A("s_waitcnt vmcnt(3)")
    A("s_memtime s[56:57]")
    A("s_waitcnt vmcnt(2)")
    A("s_memtime s[58:59]")
    A("s_mov_b64 exec, 1")
    A("s_waitcnt lgkmcnt(0)")
    A("s_sub_u32 s42, s58, s56")
    A(f"s_cmp_le_u32 s42, {THR}")
    A("s_cselect_b32 s43, s48, s3")
    A("v_mov_b32 v4, s43")
    A("buffer_atomic_add v4, v2, s[16:19], 0 offen sc1")
    A("s_barrier")
    A("s_waitcnt vmcnt(1)")
    A("v_add_u32 v5, 1, v5")
    A("v_and_b32 v5, s54, v5")
    A("v_or_b32 v5, 0x1000000, v5")
    A("buffer_atomic_add v5, v2, s[16:19], 0 offen offset:128 sc1")
    if rawd:
        A("v_mov_b32 v7, s42")
        A("s_lshl_b32 s55, s40, 2")
        A(f"s_add_u32 s55, s55, {2 << 20}")
        A("buffer_store_dword v7, v2, s[20:23], s55 offen")
    A("s_mov_b64 exec, -1")
    A("s_branch L_noscout")
    A("L_scoutwait:")
    A("s_barrier")
    A("L_noscout:")
    ops = []
    def weights():
        A("s_cmp_ge_u32 s36, 6")
        A("s_cselect_b32 s32, s24, s6")
        A("s_cselect_b32 s33, s25, s7")
        A("s_cselect_b32 s42, 18432, 0")
        A("s_mov_b32 s34, 18432")
        A("s_mul_i32 s43, s36, 3072")
        A("s_mov_b32 m0, s43")
        A("s_sub_u32 s42, s43, s42")
        for k in range(3):
            A(f"buffer_load_dwordx4 v36, s[32:35], s42 offen offset:{k*1024} lds")
            ops.append(("w", k))
    def issue(j):
        r = VD + 4 * j
        i, h = j >> 1, j & 1
        if h == 0:
            A(f"s_bfe_u32 s50, s49, {hex(0x10000 | i)}")
            A("v_mad_i32_i24 v39, s50, v1, v0")
        else:
            A("v_mad_i32_i24 v39, s50, v38, v37")
        A(f"buffer_load_dwordx4 v[{r}:{r+3}], v39, s[8:11], s{TAB+i} offen {ld}".rstrip())
        ops.append(("d", j))
        if h == 0 and i < 15:
            A(f"s_add_u32 s42, s{TAB+i}, {STRIDE*SW}")
            A(f"s_sub_u32 s43, s42, {XB}")
            A(f"s_cselect_b32 s{TAB+i+1}, s42, s43")
        if j == wpos:
            weights()
    def after(j):
        return len(ops) - 1 - ops.index(("d", j))
    def map_load():
        A("s_load_dword s56, s[28:29], 0")
    def word_wait(reg, off, name):
        A("s_waitcnt lgkmcnt(0)")
        A(f"s_bfe_u32 s42, s{reg}, 0x50018")
        A(f"s_cmp_eq_u32 s42, {NS}")
        A(f"s_cbranch_scc1 L_{name}ok")
        A("v_mov_b32 v22, 0")
        A(f"L_{name}:")
        A(f"buffer_load_dword v21, v22, s[16:19], 0 offen offset:{off} sc1")
        A("s_add_u32 s45, s45, 1")
        A("s_waitcnt vmcnt(0)")
        A(f"v_readfirstlane_b32 s{reg}, v21")
        A(f"s_bfe_u32 s42, s{reg}, 0x50018")
        A(f"s_cmp_eq_u32 s42, {NS}")
        A(f"s_cbranch_scc1 L_{name}ok")
        A(f"s_cmp_lt_u32 s45, {SPIN}")
        A(f"s_cbranch_scc1 L_{name}")
        A(f"L_{name}ok:")
    def map_use():
        A(f"v_mul_u32_u24 v18, {STRIDE}, v35")
        A("v_add_u32 v18, s53, v18")
        A("v_and_b32 v18, 15, v18")
        A("v_mul_u32_u24 v18, 3, v18")
        A("v_add_u32 v18, s52, v18")
        A("v_add_u32 v19, s51, v35")
        A("v_and_b32 v19, 15, v19")
        A(f"s_mov_b32 s42, {MIX}")
        A("v_bfe_u32 v19, s42, v19, 1")
        A("v_mul_u32_u24 v19, 12, v19")
        A("v_lshrrev_b32 v20, 2, v18")
        A("v_add_u32 v19, v19, v20")
        word_wait(56, 0, "map")
        stamp(1)
        if not usemap:
            return
        A("s_lshr_b32 s42, s56, 29")
        if oracle:
            om = sum(((oracle[0] >> (4 * k + 2)) & 1) << k for k in range(12)) | sum(((oracle[1] >> (4 * k + 2)) & 1) << (12 + k) for k in range(12))
            A(f"s_mov_b32 s56, {om}")
        A("s_add_u32 s42, s42, s2")
        A("s_lshr_b32 s42, s42, 2")
        A("v_lshrrev_b32 v19, v19, s56")
        A("v_xor_b32 v18, s42, v18")
        A("v_xor_b32 v19, v18, v19")
        A("v_and_b32 v19, 1, v19")
        A("v_cmp_ne_u32 vcc, 0, v19")
        A(f"s_and_b32 s49, s49, {(1 << nstatic) - 1}")
        A(f"s_andn2_b32 s42, vcc_lo, {(1 << nstatic) - 1}")
        A("s_or_b32 s49, s49, s42")
    if wpos < 0:
        weights()
    for j in range(W):
        issue(j)
    nxt = W
    S, M, T = 2, 10, 18
    for i in range(8):
        A(f"v_mov_b32 v{S+i}, 0")
        A(f"v_mov_b32 v{M+i}, 0xff800000")
    A("s_mov_b32 s44, 0xffff0000")
    A(f"ds_write_b32 v{S}, v{S} offset:{L_CNT}")
    A("s_lshr_b32 s42, s2, 5")
    A("s_lshl_b32 s42, s42, 3")
    A("s_and_b32 s43, s2, 7")
    A("s_add_u32 s42, s42, s43")
    A("s_lshl_b32 s42, s42, 2")
    A("s_bfe_u32 s43, s2, 0x20003")
    A("s_add_u32 s47, s42, s43")
    if grp == 2:
        groups = [(j, j + 1) for j in range(0, NL - 2, 2)] + [(NL - 2,), (NL - 1,)]
        guse = nstatic - W // 2
    else:
        groups = [(j,) for j in range(NL)]
        guse = 2 * nstatic - W
    gld = max(guse - maplead, 0)
    for gi0, g in enumerate(groups):
        A(f"s_waitcnt vmcnt({after(g[-1])})")
        if gi0 == gld:
            map_load()
        if gi0 == guse:
            map_use()
        if g[0] == tagpos:
            A("s_load_dword s46, s[28:29], 128")
        if g[0] == tagpos + 2:
            word_wait(46, 128, "tag")
            A("s_and_b32 s46, s46, 0xffff")
        for _ in g:
            if nxt < NL:
                issue(nxt); nxt += 1
        for gi, j in enumerate(g):
            for i in range(4):
                d = VD + 4 * j + i
                t = T + 8 * gi + 2 * i
                A(f"v_lshlrev_b32 v{t}, 16, v{d}")
                A(f"v_and_b32 v{t+1}, s44, v{d}")
        for gi, j in enumerate(g):
            for i in range(4):
                t = T + 8 * gi + 2 * i
                A(f"v_pk_add_f32 v[{S+2*i}:{S+2*i+1}], v[{S+2*i}:{S+2*i+1}], v[{t}:{t+1}]")
        for i in range(8):
            if len(g) == 2:
                A(f"v_max3_f32 v{M+i}, v{M+i}, v{T+i}, v{T+8+i}")
            else:
                A(f"v_max_f32 v{M+i}, v{M+i}, v{T+i}")
        if gi0 == len(groups) - 2:
            A("v_and_b32 v37, 7, v35")
            A("v_lshrrev_b32 v38, 3, v35")
            A("v_lshl_add_u32 v37, v37, 3, v38")
            A("s_mul_i32 s42, s37, 1536")
            A("s_lshl_b32 s43, s38, 9")
            A("s_add_u32 s42, s42, s43")
            A("v_lshl_add_u32 v37, v37, 3, s42")
            A("s_mul_i32 s43, s36, 768")
            A("v_add_u32 v38, s43, v36")
            A("s_mul_i32 s48, s2, 1536")
            A("s_add_u32 s48, s48, s43")
    stamp(2)
    for i in range(4):
        A(f"v_permlane32_swap_b32 v{S+i}, v{S+i+4}")
    for i in range(4):
        A(f"v_permlane32_swap_b32 v{M+i}, v{M+i+4}")
    for i in range(2):
        A(f"v_pk_add_f32 v[{S+2*i}:{S+2*i+1}], v[{S+2*i}:{S+2*i+1}], v[{S+4+2*i}:{S+5+2*i}]")
    for i in range(4):
        A(f"v_max_f32 v{M+i}, v{M+i}, v{M+i+4}")
    for i in range(2):
        A(f"v_permlane16_swap_b32 v{S+i}, v{S+i+2}")
    for i in range(2):
        A(f"v_permlane16_swap_b32 v{M+i}, v{M+i+2}")
    A(f"v_pk_add_f32 v[{S}:{S+1}], v[{S}:{S+1}], v[{S+2}:{S+3}]")
    for i in range(2):
        A(f"v_max_f32 v{M+i}, v{M+i}, v{M+i+2}")
    A(f"v_add_f32_dpp v{T}, v{S}, v{S} row_ror:8 row_mask:0xf bank_mask:0x3")
    A(f"v_max_f32_dpp v{T+1}, v{M}, v{M} row_ror:8 row_mask:0xf bank_mask:0x3")
    A("s_nop 0")
    A(f"v_add_f32_dpp v{T}, v{S+1}, v{S+1} row_ror:8 row_mask:0xf bank_mask:0xc")
    A(f"v_max_f32_dpp v{T+1}, v{M+1}, v{M+1} row_ror:8 row_mask:0xf bank_mask:0xc")
    A(f"ds_write_b64 v37, v[{T}:{T+1}] offset:{L_RED}")
    A("s_cmp_ge_u32 s36, 2")
    A("s_waitcnt lgkmcnt(0)")
    A("s_barrier")
    stamp(3)
    if stop1:
        for i in (4, 5): stamp(i)
        A("s_branch L_out")
    A("s_cbranch_scc1 L_role2")
    A("s_mov_b32 exec_hi, 0xffff")
    for q in range(4):
        A(f"ds_read_b128 v[{T+4*q}:{T+4*q+3}], v38 offset:{L_RED+q*1536}")
    A("s_waitcnt lgkmcnt(2)")
    A(f"v_add_f32 v{T}, v{T}, v{T+4}")
    A(f"v_add_f32 v{T+2}, v{T+2}, v{T+6}")
    A(f"v_max_f32 v{T+1}, v{T+1}, v{T+5}")
    A(f"v_max_f32 v{T+3}, v{T+3}, v{T+7}")
    A("s_waitcnt lgkmcnt(0)")
    A(f"v_add_f32 v{T+8}, v{T+8}, v{T+12}")
    A(f"v_add_f32 v{T+10}, v{T+10}, v{T+14}")
    A(f"v_max3_f32 v{T+1}, v{T+1}, v{T+9}, v{T+13}")
    A(f"v_max3_f32 v{T+3}, v{T+3}, v{T+11}, v{T+15}")
    A(f"v_add_f32 v{T}, v{T}, v{T+8}")
    A(f"v_add_f32 v{T+2}, v{T+2}, v{T+10}")
    A(f"v_or_b32 v{T+1}, s46, v{T+1}")
    A(f"v_or_b32 v{T+3}, s46, v{T+3}")
    A(f"buffer_store_dwordx4 v[{T}:{T+3}], v36, s[20:23], s48 offen sc1")
    A("s_mov_b64 exec, -1")
    A("s_branch L_common")
    A("L_role2:")
    A("s_cmp_eq_u32 s36, 3")
    A("s_cbranch_scc1 L_common")
    A("s_cmp_eq_u32 s36, 2")
    A("s_cbranch_scc0 L_role4")
    if warm_out:
        A(f"v_mul_u32_u24 v2, {SW}, v35")
        A("s_mov_b64 exec, 0xffff")
        A("buffer_load_dword v3, v2, s[12:15], s41 offen")
        A("s_mov_b64 exec, -1")
        A("s_waitcnt vmcnt(0)")
    A("s_branch L_common")
    A("L_role4:")
    VS = VD + 4 * (NL - 6)
    A("s_cmp_ge_u32 s36, 7")
    A("s_cbranch_scc1 L_role7")
    A("s_sub_u32 s43, s36, 4")
    A("s_mul_i32 s42, s43, 6144")
    A(f"s_add_u32 s42, s42, {L_SP}")
    A("v_add_u32 v38, s42, v36")
    for k in range(6):
        A(f"ds_write_b128 v38, v[{VS+4*k}:{VS+4*k+3}] offset:{k*1024}")
    A("v_lshrrev_b32 v2, 4, v35")
    A("v_lshlrev_b32 v2, 3, v2")
    A("v_bfe_u32 v3, v35, 2, 2")
    A("v_add_u32 v2, v2, v3")
    A("v_mul_u32_u24 v2, 96, v2")
    A("v_and_b32 v3, 3, v35")
    A("v_lshl_add_u32 v2, v3, 3, v2")
    A("s_lshl_b32 s42, s43, 5")
    A("v_add_u32 v2, s42, v2")
    A("s_waitcnt lgkmcnt(0)")
    for k in range(6):
        A(f"ds_read_b64_tr_b16 v[{VS+4*k}:{VS+4*k+1}], v2 offset:{L_W1 + k*3072}")
        A(f"ds_read_b64_tr_b16 v[{VS+4*k+2}:{VS+4*k+3}], v2 offset:{L_W1 + k*3072 + 384}")
    A("v_and_b32 v2, 1, v35")
    A("v_mul_u32_u24 v2, 384, v2")
    A("v_lshrrev_b32 v3, 4, v35")
    A("v_lshl_add_u32 v39, v3, 4, v2")
    A("L_role7:")
    A("s_cmp_ge_u32 s47, 48")
    A("s_cbranch_scc1 L_common")
    A("v_lshrrev_b32 v2, 1, v35")
    A("v_mul_u32_u24 v2, 1536, v2")
    A("v_and_b32 v3, 1, v35")
    A("v_lshl_add_u32 v2, v3, 4, v2")
    A("s_sub_u32 s43, s36, 4")
    A("s_mul_i32 s42, s43, 49152")
    A("s_lshl_b32 s48, s47, 5")
    A("s_add_u32 s42, s42, s48")
    A("v_lshrrev_b32 v9, 5, v35")
    A("v_lshl_add_u32 v9, v3, 1, v9")
    A("s_lshl_b32 s43, s43, 5")
    A("v_lshl_add_u32 v9, v9, 3, s43")
    A("v_mov_b32 v10, 1")
    A("v_mov_b32 v11, 0")
    A("v_and_b32 v12, 0xf0, v36")
    A("v_bfe_u32 v13, v35, 1, 3")
    A(f"v_mul_u32_u24 v13, {REPS}, v13")
    A("v_lshl_add_u32 v13, v3, 3, v13")
    A("s_lshl_b32 s48, s47, 7")
    A(f"s_add_u32 s48, s48, {W_F}")
    A("L_pollA:")
    A(f"buffer_load_dwordx4 v[4:7], v2, s[20:23], s42 offen sc1")
    A("s_add_u32 s45, s45, 1")
    A("s_waitcnt vmcnt(0)")
    A("v_cmp_ne_u16 vcc, s46, v5")
    A("v_cmp_ne_u16 s[4:5], s46, v7")
    A("s_or_b64 vcc, vcc, s[4:5]")
    A("s_cbranch_scc0 L_gotA")
    A("s_mov_b64 exec, vcc")
    if sleepA:
        A(f"s_sleep {sleepA}")
    A(f"s_cmp_lt_u32 s45, {SPIN}")
    A("s_cbranch_scc1 L_pollA")
    A("L_gotA:")
    A("s_mov_b64 exec, -1")
    A("v_and_b32 v5, s44, v5")
    A("v_and_b32 v7, s44, v7")
    A("v_permlane32_swap_b32 v4, v6")
    A("v_add_f32 v4, v4, v6")
    A("v_permlane32_swap_b32 v5, v7")
    A("v_mov_b32 v6, v4")
    A("v_max_f32 v5, v5, v7")
    A("v_mov_b32 v7, v5")
    A("v_permlane16_swap_b32 v4, v6")
    A("v_add_f32 v4, v4, v6")
    A("v_permlane16_swap_b32 v5, v7")
    A("v_max_f32 v5, v5, v7")
    for r in (8, 4, 2):
        A(f"v_add_f32_dpp v4, v4, v4 row_ror:{r} row_mask:0xf bank_mask:0xf")
        A("s_nop 0")
        A(f"v_max_f32_dpp v5, v5, v5 row_ror:{r} row_mask:0xf bank_mask:0xf")
    A(f"ds_write_b64 v9, v[4:5] offset:{L_R2}")
    A("s_mov_b64 exec, 1")
    A(f"ds_add_rtn_u32 v10, v11, v10 offset:{L_CNT}")
    A("s_mov_b64 exec, -1")
    A(f"ds_read_b128 v[4:7], v12 offset:{L_R2}")
    A("s_waitcnt lgkmcnt(1)")
    A("v_readfirstlane_b32 s42, v10")
    A("s_cmp_lg_u32 s42, 7")
    A("s_waitcnt lgkmcnt(0)")
    A("s_cbranch_scc1 L_common")
    for r in (2, 4, 8):
        A(f"v_add_f32_dpp v4, v4, v4 row_ror:{r} row_mask:0xf bank_mask:0xf")
        A(f"v_add_f32_dpp v6, v6, v6 row_ror:{r} row_mask:0xf bank_mask:0xf")
        A(f"v_max_f32_dpp v5, v5, v5 row_ror:{r} row_mask:0xf bank_mask:0xf")
        A(f"v_max_f32_dpp v7, v7, v7 row_ror:{r} row_mask:0xf bank_mask:0xf")
    A("v_mul_f32 v4, 0x36800000, v4")
    A("v_mul_f32 v6, 0x36800000, v6")
    A("v_cvt_pk_bf16_f32 v5, v5, v7")
    A("v_cvt_pk_bf16_f32 v4, v4, v6")
    A("s_mov_b64 exec, 0xffff")
    A("v_min_u32 v5, -2, v5")
    A("v_min_u32 v4, -2, v4")
    A("buffer_store_dwordx2 v[4:5], v13, s[20:23], s48 offen sc1")
    A("s_mov_b64 exec, -1")
    A("L_common:")
    A("v_lshrrev_b32 v2, 2, v35")
    A("v_mul_u32_u24 v2, 384, v2")
    A("v_and_b32 v3, 3, v35")
    A("v_lshl_add_u32 v2, v3, 3, v2")
    A("s_lshl_b32 s42, s36, 5")
    A("v_add_u32 v2, s42, v2")
    W2F = 28
    for k in range(3):
        A(f"ds_read_b64_tr_b16 v[{W2F+2*k}:{W2F+2*k+1}], v2 offset:{L_W2 + k*6144}")
    A("v_lshlrev_b32 v37, 3, v35")
    A("s_cmp_lg_u32 s36, 3")
    A("s_cbranch_scc1 L_b2")
    A("s_and_b32 s42, s2, 7")
    A(f"s_mul_i32 s42, s42, {REPS}")
    A(f"s_add_u32 s42, s42, {W_F}")
    A("v_lshlrev_b32 v2, 7, v35")
    A(f"v_add_u32 v3, {L_G}, v37")
    A("s_mov_b32 exec_hi, 0xffff")
    A("L_pollF:")
    A(f"buffer_load_dwordx4 v[4:7], v2, s[20:23], s42 offen sc1")
    A("s_add_u32 s45, s45, 1")
    A("s_waitcnt vmcnt(0)")
    A("v_max3_u32 v8, v4, v5, v6")
    A("v_max_u32 v8, v8, v7")
    A("v_cmp_eq_u32 vcc, -1, v8")
    A("s_cbranch_vccz L_gotF")
    A("s_mov_b64 exec, vcc")
    if sleepF:
        A(f"s_sleep {sleepF}")
    A(f"s_cmp_lt_u32 s45, {SPIN}")
    A("s_cbranch_scc1 L_pollF")
    A("L_gotF:")
    A("s_mov_b32 exec_lo, -1")
    A("s_mov_b32 exec_hi, 0xffff")
    A("ds_write2_b32 v3, v4, v6 offset0:0 offset1:1")
    A("ds_write2_b32 v3, v5, v7 offset0:96 offset1:97")
    A("s_mov_b64 exec, -1")
    A("L_b2:")
    A("s_sub_u32 s42, s36, 4")
    A("s_cmp_ge_u32 s42, 3")
    A("s_waitcnt lgkmcnt(0)")
    A("s_barrier")
    stamp(4)
    A("s_cbranch_scc1 L_l2")
    BF = 4
    for k in range(6):
        A(f"ds_read_b128 v[{BF+4*k}:{BF+4*k+3}], v39 offset:{L_G + k*64}")
    A("s_lshl_b32 s42, s42, 9")
    A("v_add_u32 v36, s42, v37")
    for k in range(6):
        A(f"s_waitcnt lgkmcnt({5-k})")
        c = "0" if k == 0 else "v[0:3]"
        A(f"v_mfma_f32_16x16x32_bf16 v[0:3], v[{VS+4*k}:{VS+4*k+3}], v[{BF+4*k}:{BF+4*k+3}], {c}")
    A("s_nop 7")
    MK = (4, 6, 24, 26)
    A("v_cvt_pk_bf16_f32 v4, v0, v1")
    A("v_cvt_pk_bf16_f32 v5, v2, v3")
    A("v_lshlrev_b32 v0, 16, v4"); A("v_and_b32 v1, s44, v4")
    A("v_lshlrev_b32 v2, 16, v5"); A("v_and_b32 v3, s44, v5")
    for i in range(4):
        A(f"v_cmp_lt_f32 s[{MK[i]}:{MK[i]+1}], 0, v{i}")
    for i in range(4):
        A(f"v_cndmask_b32 v{6+i}, 0, 1.0, s[{MK[i]}:{MK[i]+1}]")
    A("v_pk_mul_f32 v[0:1], v[0:1], v[6:7]")
    A("v_pk_mul_f32 v[2:3], v[2:3], v[8:9]")
    A("v_cvt_pk_bf16_f32 v4, v0, v1")
    A("v_cvt_pk_bf16_f32 v5, v2, v3")
    A(f"ds_write_b64 v36, v[4:5] offset:{L_H}")
    A("L_l2:")
    lane_offsets(0, 1, 26, 27)
    A("s_waitcnt lgkmcnt(0)")
    A("s_barrier")
    for k in range(3):
        A(f"ds_read_b64 v[{4+2*k}:{5+2*k}], v37 offset:{L_H + k*512}")
    A("v_bfe_u32 v2, v35, 1, 2")
    A("v_cmp_eq_u32 s[4:5], 1, v2")
    A("v_cmp_eq_u32 s[6:7], 2, v2")
    A("v_cmp_eq_u32 s[24:25], 3, v2")
    A("v_lshrrev_b32 v3, 4, v35")
    A("v_lshl_add_u32 v2, v3, 2, v2")
    A("s_lshl_b32 s42, s36, 6")
    A("v_lshl_add_u32 v36, v2, 2, s42")
    for k in range(3):
        A(f"s_waitcnt lgkmcnt({2-k})")
        c = "0" if k == 0 else "v[12:15]"
        A(f"v_mfma_f32_16x16x16_bf16 v[12:15], v[{W2F+2*k}:{W2F+2*k+1}], v[{4+2*k}:{5+2*k}], {c}")
    A("v_and_b32 v2, 7, v35")
    A("s_lshl_b32 s42, s38, 8")
    A("v_lshl_add_u32 v39, v2, 5, s42")
    A("s_mov_b32 s43, 0xbfb8aa3b")
    A("s_nop 4")
    A("v_cndmask_b32 v12, v12, v13, s[4:5]")
    A("v_cndmask_b32 v12, v12, v14, s[6:7]")
    A("v_cndmask_b32 v12, v12, v15, s[24:25]")
    A("v_cvt_pk_bf16_f32 v12, v12, v12")
    A("v_and_b32 v12, s44, v12")
    A("s_nop 1")
    A("v_add_f32_dpp v12, v12, v12 quad_perm:[1,0,3,2] row_mask:0xf bank_mask:0xf")
    A("v_cvt_pk_bf16_f32 v12, v12, v12")
    A("v_and_b32 v12, s44, v12")
    A("v_mul_f32 v12, s43, v12")
    A("v_exp_f32 v12, v12")
    A("s_nop 0")
    A("v_add_f32 v12, 1.0, v12")
    A("v_rcp_f32 v12, v12")
    A("s_nop 0")
    A("v_cvt_pk_bf16_f32 v12, v12, v12")
    A("v_and_b32 v12, s44, v12")
    A(f"ds_write_b32 v36, v12 offset:{L_SC}")
    A("s_waitcnt lgkmcnt(0)")
    A("s_barrier")
    SCR = 2
    A(f"ds_read_b128 v[{SCR}:{SCR+3}], v39 offset:{L_SC}")
    A(f"ds_read_b128 v[{SCR+4}:{SCR+7}], v39 offset:{L_SC+16}")
    stamp(5)
    T2 = 10
    for j in range(NL):
        tb = T2 + 8 * (j % 2)
        i2, h = j >> 1, j & 1
        for i in range(4):
            d = VD + 4 * j + i
            A(f"v_lshlrev_b32 v{tb+2*i}, 16, v{d}")
            A(f"v_and_b32 v{tb+2*i+1}, s44, v{d}")
        if h == 0:
            A(f"s_bfe_u32 s50, s49, {hex(0x10000 | i2)}")
            A("v_mad_i32_i24 v28, s50, v1, v0")
        else:
            A("v_mad_i32_i24 v29, s50, v27, v26")
        if j == 0:
            A("s_waitcnt lgkmcnt(0)")
        for i in range(4):
            A(f"v_pk_mul_f32 v[{tb+2*i}:{tb+2*i+1}], v[{tb+2*i}:{tb+2*i+1}], v[{SCR+2*i}:{SCR+2*i+1}]")
        for i in range(4):
            d = VD + 4 * j + i
            A(f"v_cvt_pk_bf16_f32 v{d}, v{tb+2*i}, v{tb+2*i+1}")
        r = VD + 4 * j
        A(f"buffer_store_dwordx4 v[{r}:{r+3}], v{28+h}, s[12:15], s{TAB+i2} offen {st}".rstrip())
        if j == 0:
            A("s_sub_u32 s42, s36, 4")
            A("s_cmp_ge_u32 s42, 3")
            A("s_cbranch_scc1 L_noreload")
            for k in range(6):
                A(f"ds_read_b128 v[{VS+4*k}:{VS+4*k+3}], v38 offset:{k*1024}")
            A("L_noreload:")
        if j == NL - 7:
            A("s_waitcnt lgkmcnt(0)")
    if stamps:
        A("L_out:")
        stamp(6)
        A("s_waitcnt vmcnt(0)")
        stamp(7)
        A("s_waitcnt lgkmcnt(0)")
        A("s_mov_b64 exec, 1")
        if diag:
            diag_tail(A, diag)
        A("s_mul_i32 s3, s2, 12")
        A("s_add_u32 s3, s3, s36")
        A("s_lshl_b32 s3, s3, 5")
        A(f"s_add_u32 s3, s3, {W_ST}")
        A("v_mov_b32 v1, 0")
        for i in range(8):
            A(f"v_mov_b32 v{4+i}, s{60+2*i}")
        A("buffer_store_dwordx4 v[4:7], v1, s[20:23], s3 offen")
        A("buffer_store_dwordx4 v[8:11], v1, s[20:23], s3 offen offset:16")
    A("L_end:")
    A("s_endpgm")
    A('.section .rodata,"a"')
    A(".p2align 6")
    A(".amdhsa_kernel standalone__channel_attn_cbam__vision_kernel")
    A("  .amdhsa_next_free_vgpr 168")
    A("  .amdhsa_next_free_sgpr 96")
    A("  .amdhsa_accum_offset 168")
    A("  .amdhsa_group_segment_fixed_size 0")
    A("  .amdhsa_kernarg_size 48")
    A("  .amdhsa_user_sgpr_count 2")
    A("  .amdhsa_user_sgpr_kernarg_segment_ptr 1")
    A("  .amdhsa_system_sgpr_workgroup_id_x 1")
    A("  .amdhsa_float_denorm_mode_32 3")
    A(".end_amdhsa_kernel")
    out = []
    for line in L:
        if line.startswith(("s_", "v_", "ds_", "buffer_", "global_")):
            out.append("    " + line)
        else:
            out.append(line)
    return "\n".join(out) + "\n"

def diag_tail(A, diag):
    idx, mul, base = diag[:3]
    dwg = diag[3] if len(diag) > 3 else 0
    A("s_cmp_lg_u32 s36, 0")
    A("s_cbranch_scc1 L_end")
    A(f"s_cmp_lg_u32 s2, {dwg}")
    A("s_cbranch_scc1 L_end")
    A(f"s_sub_u32 s42, s{60+2*idx}, s60")
    A(f"s_mul_i32 s42, s42, {mul}")
    A(f"s_add_u32 s42, s42, {base}")
    A("s_min_u32 s42, s42, 200000")
    A("L_dg3:")
    A("s_memrealtime s[78:79]")
    A("s_waitcnt lgkmcnt(0)")
    A("s_sub_u32 s43, s78, s60")
    A("s_cmp_lt_u32 s43, s42")
    A("s_cbranch_scc1 L_dg3")
    A("s_branch L_end")

if __name__ == "__main__":
    cfg = json.loads(sys.argv[1]) if len(sys.argv) > 1 else {}
    sys.stdout.write(gen(**cfg))
```

```python
import sys, json

HEADER = """; CBAM channel attention, x kept in registers across a grid-wide reduction (single pass over HBM)
"""

def gen(ld="nt", st="sc1", W=4, stamps=0, sleepA=0, sleepF=0, diag=None,
        wpos=-1, warm_out=1, STRIDE=5, ROT=5, MIX=0xAAAA, nstatic=4, maplead=0, grp=2, cpf=0, stop1=0,
        sset=1, THR=100, tagpos=24, poff=4096 * 33 + 640, ppol="nt", usemap=1, oracle=None, glc0=0, rawd=0, rnd=0):
    if diag: stamps = 1
    NW, NL, VD = 12, 32, 40
    XB = 100663296
    L_W1, L_W2 = 0, 18432
    L_RED = 36864
    L_G = L_RED + 6144
    L_H = L_G + 768
    L_SC = L_H + 1536
    L_R2 = L_SC + 768
    L_CNT = L_R2 + 256
    L_PB = L_CNT + 16
    L_SP = L_CNT + 64
    L_END = L_SP + 3 * 6144
    W_F = 256 * 1536
    REPS = 48 * 128
    W_ST = 1 << 20
    SPIN = 1 << 16
    SW = 6 << 20
    TAB = 80
    assert 2 * nstatic >= W and (grp == 1 or W % 2 == 0)
    NS = 24
    L = []
    A = L.append
    def stamp(i):
        if stamps:
            A(f"s_memrealtime s[{60+2*i}:{61+2*i}]")
    A(HEADER.rstrip())
    A(f"; @launch grid=(256,1,1) block=({NW*64},1,1) lds={L_END}")
    A('.amdgcn_target "amdgcn-amd-amdhsa--gfx950"')
    A(".text")
    A(".globl standalone__channel_attn_cbam__vision_kernel")
    A(".p2align 8")
    A(".type standalone__channel_attn_cbam__vision_kernel,@function")
    A("standalone__channel_attn_cbam__vision_kernel:")
    stamp(0)
    A("s_load_dwordx4 s[4:7], s[0:1], 0")
    A("s_load_dwordx4 s[24:27], s[0:1], 16")
    A("s_load_dwordx4 s[28:31], s[0:1], 32")
    if rnd: A("s_memtime s[58:59]")
    A("s_cmp_ge_u32 s2, 256")
    A("s_cbranch_scc1 L_end")
    A("v_lshrrev_b32 v2, 6, v0")
    A("v_and_b32 v35, 63, v0")
    A("v_readfirstlane_b32 s36, v2")
    A("v_lshlrev_b32 v36, 4, v35")
    if sset == 0:
        A("s_mov_b32 s40, s2")
    else:
        A("s_lshr_b32 s40, s2, 2")
        A("s_and_b32 s42, s2, 1")
        A("s_or_b32 s40, s40, s42")
        A("s_and_b32 s42, s2, 6")
        A(f"s_cselect_b32 s40, {NS}, s40")
    if cpf:
        A(f"s_sub_u32 s42, s2, 96")
        A(f"s_cmp_ge_u32 s42, {cpf}")
        A("s_cbranch_scc1 L_nocpf")
        A("s_cmp_ge_u32 s36, 2")
        A("s_cbranch_scc1 L_nocpf")
        A("s_getpc_b64 s[56:57]")
        A("L_pc:")
        A("v_lshlrev_b32 v2, 7, v0")
        A("v_min_u32 v2, L_end-L_pc, v2")
        A("global_load_dword v34, v2, s[56:57]")
        A("L_nocpf:")
    A("s_mul_i32 s37, s36, 43691")
    A("s_lshr_b32 s37, s37, 17")
    A("s_mul_i32 s38, s37, 3")
    A("s_sub_u32 s38, s36, s38")
    A("s_mul_i32 s39, s37, 3072")
    A("s_lshl_b32 s42, s38, 7")
    A("s_add_u32 s39, s39, s42")
    def lane_offsets(b0, d0, b1, d1):
        A(f"v_lshrrev_b32 v{d0}, 3, v35")
        A(f"v_mul_u32_u24 v{d0}, 384, v{d0}")
        A(f"v_and_b32 v{d1}, 7, v35")
        A(f"v_lshl_add_u32 v{d0}, v{d1}, 4, v{d0}")
        A(f"v_add_u32 v{b0}, s39, v{d0}")
        A(f"v_add_u32 v{b1}, 12288, v{b0}")
        A(f"v_bfe_u32 v{d0}, v{b0}, 13, 1")
        A(f"v_bfe_u32 v{d1}, v{b1}, 13, 1")
        A(f"v_mul_u32_u24 v{d0}, 24576, v{d0}")
        A(f"v_mul_u32_u24 v{d1}, 24576, v{d1}")
        A(f"v_add_u32 v{b0}, v{b0}, v{d0}")
        A(f"v_add_u32 v{b1}, v{b1}, v{d1}")
        A(f"v_lshlrev_b32 v{d0}, 1, v{d0}")
        A(f"v_lshlrev_b32 v{d1}, 1, v{d1}")
        A(f"v_sub_u32 v{d0}, 24576, v{d0}")
        A(f"v_sub_u32 v{d1}, 24576, v{d1}")
    lane_offsets(0, 1, 37, 38)
    A("s_lshr_b32 s42, s2, 3")
    A("s_and_b32 s43, s2, 3")
    A("s_lshl_b32 s42, s42, 2")
    A("s_add_u32 s51, s42, s43")
    A("s_mul_i32 s41, s51, 49152")
    A("s_lshr_b32 s52, s41, 21")
    A(f"s_mul_i32 s42, s52, {ROT}")
    A("s_and_b32 s53, s42, 15")
    A(f"s_mul_i32 s42, s53, {SW}")
    A(f"s_add_u32 s{TAB}, s42, s41")
    A("s_bfe_i32 s49, s2, 0x10002")
    A("s_mov_b32 s10, %d" % XB); A("s_mov_b32 s11, 0x20000")
    A("s_mov_b32 s14, %d" % XB); A("s_mov_b32 s15, 0x20000")
    A("s_mov_b32 s18, 256"); A("s_mov_b32 s19, 0x20000")
    A("s_mov_b32 s22, 402653184"); A("s_mov_b32 s23, 0x20000")
    A("s_mov_b32 s35, 0x20000")
    A("s_mov_b32 s45, 0")
    A(f"s_cmp_ge_u32 s40, {NS}")
    A("s_waitcnt lgkmcnt(0)")
    A("s_mov_b32 s8, s4"); A("s_mov_b32 s9, s5")
    A("s_mov_b32 s20, s30"); A("s_mov_b32 s21, s31")
    A("s_mov_b32 s12, s26"); A("s_mov_b32 s13, s27")
    A("s_mov_b32 s16, s28"); A("s_mov_b32 s17, s29")
    A("s_cbranch_scc1 L_noscout")
    A("s_cmp_lg_u32 s36, 0")
    A("s_cbranch_scc1 L_scoutwait")
    A("s_cmp_ge_u32 s40, 12")
    A("s_cselect_b32 s32, s26, s4")
    A("s_cselect_b32 s33, s27, s5")
    A("s_cselect_b32 s42, 12, 0")
    A(f"s_mov_b32 s34, {XB}")
    A("s_sub_u32 s42, s40, s42")
    A("s_lshl_b32 s42, s42, 23")
    A(f"s_add_u32 s42, s42, {(2 << 21) + (poff & ~8192)}")
    if rnd:
        A("s_lshl_b32 s43, s58, 5")
        A(f"s_and_b32 s43, s43, {0x1fff80 & ~8192}")
        A("s_xor_b32 s42, s42, s43")
    A("s_add_u32 s43, s42, 8192")
    A("v_mov_b32 v2, 0")
    for i in range(4):
        A(f"v_mov_b32 v{8+i}, -1")
    A("v_lshlrev_b32 v6, 7, v35")
    A("s_lshl_b32 s55, s40, 11")
    A(f"s_add_u32 s55, s55, {W_F}")
    A("s_getreg_b32 s48, hwreg(HW_REG_XCC_ID, 0, 3)")
    A("s_lshr_b32 s3, s48, 2")
    A("s_lshl_b32 s3, s3, s40")
    A("s_bitset1_b32 s3, 24")
    A("s_lshl_b32 s48, s48, 29")
    A("s_cmp_eq_u32 s40, 0")
    A("s_cselect_b32 s48, s48, 0")
    A("s_cselect_b32 s54, 0xffff, 0")
    A("s_or_b32 s3, s3, s48")
    A("s_lshl_b32 s48, 1, s40")
    A("s_xor_b32 s48, s48, s3")
    A("s_mov_b64 exec, 0xffff")
    A("s_branch L_probe")
    A(".p2align 7")
    A("L_probe:")
    A(f"buffer_load_dword v3, v2, s[32:35], s42 offen {ppol}".rstrip())
    A(f"buffer_load_dword v4, v2, s[32:35], s43 offen {ppol}".rstrip())
    A("buffer_load_dword v5, v2, s[20:23], 0 offen offset:4 sc1")
    A("buffer_store_dwordx4 v[8:11], v6, s[20:23], s55 offen sc1")
    A("s_waitcnt vmcnt(3)")
    A("s_memtime s[56:57]")
    A("s_waitcnt vmcnt(2)")
    A("s_memtime s[58:59]")
    A("s_mov_b64 exec, 1")
    A("s_waitcnt lgkmcnt(0)")
    A("s_sub_u32 s42, s58, s56")
    A(f"s_cmp_le_u32 s42, {THR}")
    A("s_cselect_b32 s43, s48, s3")
    A("v_mov_b32 v4, s43")
    A("buffer_atomic_add v4, v2, s[16:19], 0 offen sc1")
    A("s_barrier")
    A("s_waitcnt vmcnt(1)")
    A("v_add_u32 v5, 1, v5")
    A("v_and_b32 v5, s54, v5")
    A("v_or_b32 v5, 0x1000000, v5")
    A("buffer_atomic_add v5, v2, s[16:19], 0 offen offset:128 sc1")
    if rawd:
        A("v_mov_b32 v7, s42")
        A("s_lshl_b32 s55, s40, 2")
        A(f"s_add_u32 s55, s55, {2 << 20}")
        A("buffer_store_dword v7, v2, s[20:23], s55 offen")
    A("s_mov_b64 exec, -1")
    A("s_branch L_noscout")
    A("L_scoutwait:")
    A("s_barrier")
    A("L_noscout:")
    ops = []
    def weights():
        A("s_cmp_ge_u32 s36, 6")
        A("s_cselect_b32 s32, s24, s6")
        A("s_cselect_b32 s33, s25, s7")
        A("s_cselect_b32 s42, 18432, 0")
        A("s_mov_b32 s34, 18432")
        A("s_mul_i32 s43, s36, 3072")
        A("s_mov_b32 m0, s43")
        A("s_sub_u32 s42, s43, s42")
        for k in range(3):
            A(f"buffer_load_dwordx4 v36, s[32:35], s42 offen offset:{k*1024} lds")
            ops.append(("w", k))
    def issue(j):
        r = VD + 4 * j
        i, h = j >> 1, j & 1
        if h == 0:
            A(f"s_bfe_u32 s50, s49, {hex(0x10000 | i)}")
            A("v_mad_i32_i24 v39, s50, v1, v0")
        else:
            A("v_mad_i32_i24 v39, s50, v38, v37")
        A(f"buffer_load_dwordx4 v[{r}:{r+3}], v39, s[8:11], s{TAB+i} offen {ld}".rstrip())
        ops.append(("d", j))
        if h == 0 and i < 15:
            A(f"s_add_u32 s42, s{TAB+i}, {STRIDE*SW}")
            A(f"s_sub_u32 s43, s42, {XB}")
            A(f"s_cselect_b32 s{TAB+i+1}, s42, s43")
        if j == wpos:
            weights()
    def after(j):
        return len(ops) - 1 - ops.index(("d", j))
    def map_load():
        A("s_load_dword s56, s[28:29], 0")
    def word_wait(reg, off, name):
        A("s_waitcnt lgkmcnt(0)")
        A(f"s_bfe_u32 s42, s{reg}, 0x50018")
        A(f"s_cmp_eq_u32 s42, {NS}")
        A(f"s_cbranch_scc1 L_{name}ok")
        A("v_mov_b32 v22, 0")
        A(f"L_{name}:")
        A(f"buffer_load_dword v21, v22, s[16:19], 0 offen offset:{off} sc1")
        A("s_add_u32 s45, s45, 1")
        A("s_waitcnt vmcnt(0)")
        A(f"v_readfirstlane_b32 s{reg}, v21")
        A(f"s_bfe_u32 s42, s{reg}, 0x50018")
        A(f"s_cmp_eq_u32 s42, {NS}")
        A(f"s_cbranch_scc1 L_{name}ok")
        A(f"s_cmp_lt_u32 s45, {SPIN}")
        A(f"s_cbranch_scc1 L_{name}")
        A(f"L_{name}ok:")
    def map_use():
        A(f"v_mul_u32_u24 v18, {STRIDE}, v35")
        A("v_add_u32 v18, s53, v18")
        A("v_and_b32 v18, 15, v18")
        A("v_mul_u32_u24 v18, 3, v18")
        A("v_add_u32 v18, s52, v18")
        A("v_add_u32 v19, s51, v35")
        A("v_and_b32 v19, 15, v19")
        A(f"s_mov_b32 s42, {MIX}")
        A("v_bfe_u32 v19, s42, v19, 1")
        A("v_mul_u32_u24 v19, 12, v19")
        A("v_lshrrev_b32 v20, 2, v18")
        A("v_add_u32 v19, v19, v20")
        word_wait(56, 0, "map")
        stamp(1)
        if not usemap:
            return
        A("s_lshr_b32 s42, s56, 29")
        if oracle:
            om = sum(((oracle[0] >> (4 * k + 2)) & 1) << k for k in range(12)) | sum(((oracle[1] >> (4 * k + 2)) & 1) << (12 + k) for k in range(12))
            A(f"s_mov_b32 s56, {om}")
        A("s_add_u32 s42, s42, s2")
        A("s_lshr_b32 s42, s42, 2")
        A("v_lshrrev_b32 v19, v19, s56")
        A("v_xor_b32 v18, s42, v18")
        A("v_xor_b32 v19, v18, v19")
        A("v_and_b32 v19, 1, v19")
        A("v_cmp_ne_u32 vcc, 0, v19")
        A(f"s_and_b32 s49, s49, {(1 << nstatic) - 1}")
        A(f"s_andn2_b32 s42, vcc_lo, {(1 << nstatic) - 1}")
        A("s_or_b32 s49, s49, s42")
    if wpos < 0:
        weights()
    for j in range(W):
        issue(j)
    nxt = W
    S, M, T = 2, 10, 18
    for i in range(8):
        A(f"v_mov_b32 v{S+i}, 0")
        A(f"v_mov_b32 v{M+i}, 0xff800000")
    A("s_mov_b32 s44, 0xffff0000")
    A(f"ds_write_b32 v{S}, v{S} offset:{L_CNT}")
    A("s_lshr_b32 s42, s2, 5")
    A("s_lshl_b32 s42, s42, 3")
    A("s_and_b32 s43, s2, 7")
    A("s_add_u32 s42, s42, s43")
    A("s_lshl_b32 s42, s42, 2")
    A("s_bfe_u32 s43, s2, 0x20003")
    A("s_add_u32 s47, s42, s43")
    if grp == 2:
        groups = [(j, j + 1) for j in range(0, NL - 2, 2)] + [(NL - 2,), (NL - 1,)]
        guse = nstatic - W // 2
    else:
        groups = [(j,) for j in range(NL)]
        guse = 2 * nstatic - W
    gld = max(guse - maplead, 0)
    for gi0, g in enumerate(groups):
        A(f"s_waitcnt vmcnt({after(g[-1])})")
        if gi0 == gld:
            map_load()
        if gi0 == guse:
            map_use()
        if g[0] == tagpos:
            A("s_load_dword s46, s[28:29], 128")
        if g[0] == tagpos + 2:
            word_wait(46, 128, "tag")
            A("s_and_b32 s46, s46, 0xffff")
        for _ in g:
            if nxt < NL:
                issue(nxt); nxt += 1
        for gi, j in enumerate(g):
            for i in range(4):
                d = VD + 4 * j + i
                t = T + 8 * gi + 2 * i
                A(f"v_lshlrev_b32 v{t}, 16, v{d}")
                A(f"v_and_b32 v{t+1}, s44, v{d}")
        for gi, j in enumerate(g):
            for i in range(4):
                t = T + 8 * gi + 2 * i
                A(f"v_pk_add_f32 v[{S+2*i}:{S+2*i+1}], v[{S+2*i}:{S+2*i+1}], v[{t}:{t+1}]")
        for i in range(8):
            if len(g) == 2:
                A(f"v_max3_f32 v{M+i}, v{M+i}, v{T+i}, v{T+8+i}")
            else:
                A(f"v_max_f32 v{M+i}, v{M+i}, v{T+i}")
        if gi0 == len(groups) - 2:
            A("v_and_b32 v37, 7, v35")
            A("v_lshrrev_b32 v38, 3, v35")
            A("v_lshl_add_u32 v37, v37, 3, v38")
            A("s_mul_i32 s42, s37, 1536")
            A("s_lshl_b32 s43, s38, 9")
            A("s_add_u32 s42, s42, s43")
            A("v_lshl_add_u32 v37, v37, 3, s42")
            A("s_mul_i32 s43, s36, 768")
            A("v_add_u32 v38, s43, v36")
            A("s_mul_i32 s48, s2, 1536")
            A("s_add_u32 s48, s48, s43")
    stamp(2)
    for i in range(4):
        A(f"v_permlane32_swap_b32 v{S+i}, v{S+i+4}")
    for i in range(4):
        A(f"v_permlane32_swap_b32 v{M+i}, v{M+i+4}")
    for i in range(2):
        A(f"v_pk_add_f32 v[{S+2*i}:{S+2*i+1}], v[{S+2*i}:{S+2*i+1}], v[{S+4+2*i}:{S+5+2*i}]")
    for i in range(4):
        A(f"v_max_f32 v{M+i}, v{M+i}, v{M+i+4}")
    for i in range(2):
        A(f"v_permlane16_swap_b32 v{S+i}, v{S+i+2}")
    for i in range(2):
        A(f"v_permlane16_swap_b32 v{M+i}, v{M+i+2}")
    A(f"v_pk_add_f32 v[{S}:{S+1}], v[{S}:{S+1}], v[{S+2}:{S+3}]")
    for i in range(2):
        A(f"v_max_f32 v{M+i}, v{M+i}, v{M+i+2}")
    A(f"v_add_f32_dpp v{T}, v{S}, v{S} row_ror:8 row_mask:0xf bank_mask:0x3")
    A(f"v_max_f32_dpp v{T+1}, v{M}, v{M} row_ror:8 row_mask:0xf bank_mask:0x3")
    A("s_nop 0")
    A(f"v_add_f32_dpp v{T}, v{S+1}, v{S+1} row_ror:8 row_mask:0xf bank_mask:0xc")
    A(f"v_max_f32_dpp v{T+1}, v{M+1}, v{M+1} row_ror:8 row_mask:0xf bank_mask:0xc")
    A(f"ds_write_b64 v37, v[{T}:{T+1}] offset:{L_RED}")
    A("s_cmp_ge_u32 s36, 2")
    A("s_waitcnt lgkmcnt(0)")
    A("s_barrier")
    stamp(3)
    if stop1:
        for i in (4, 5): stamp(i)
        A("s_branch L_out")
    A("s_cbranch_scc1 L_role2")
    A("s_mov_b32 exec_hi, 0xffff")
    for q in range(4):
        A(f"ds_read_b128 v[{T+4*q}:{T+4*q+3}], v38 offset:{L_RED+q*1536}")
    A("s_waitcnt lgkmcnt(2)")
    A(f"v_add_f32 v{T}, v{T}, v{T+4}")
    A(f"v_add_f32 v{T+2}, v{T+2}, v{T+6}")
    A(f"v_max_f32 v{T+1}, v{T+1}, v{T+5}")
    A(f"v_max_f32 v{T+3}, v{T+3}, v{T+7}")
    A("s_waitcnt lgkmcnt(0)")
    A(f"v_add_f32 v{T+8}, v{T+8}, v{T+12}")
    A(f"v_add_f32 v{T+10}, v{T+10}, v{T+14}")
    A(f"v_max3_f32 v{T+1}, v{T+1}, v{T+9}, v{T+13}")
    A(f"v_max3_f32 v{T+3}, v{T+3}, v{T+11}, v{T+15}")
    A(f"v_add_f32 v{T}, v{T}, v{T+8}")
    A(f"v_add_f32 v{T+2}, v{T+2}, v{T+10}")
    A(f"v_or_b32 v{T+1}, s46, v{T+1}")
    A(f"v_or_b32 v{T+3}, s46, v{T+3}")
    A(f"buffer_store_dwordx4 v[{T}:{T+3}], v36, s[20:23], s48 offen sc1")
    A("s_mov_b64 exec, -1")
    A("s_branch L_common")
    A("L_role2:")
    A("s_cmp_eq_u32 s36, 3")
    A("s_cbranch_scc1 L_common")
    A("s_cmp_eq_u32 s36, 2")
    A("s_cbranch_scc0 L_role4")
    if warm_out:
        A(f"v_mul_u32_u24 v2, {SW}, v35")
        A("s_mov_b64 exec, 0xffff")
        A("buffer_load_dword v3, v2, s[12:15], s41 offen")
        A("s_mov_b64 exec, -1")
        A("s_waitcnt vmcnt(0)")
    A("s_branch L_common")
    A("L_role4:")
    VS = VD + 4 * (NL - 6)
    A("s_cmp_ge_u32 s36, 7")
    A("s_cbranch_scc1 L_role7")
    A("s_sub_u32 s43, s36, 4")
    A("s_mul_i32 s42, s43, 6144")
    A(f"s_add_u32 s42, s42, {L_SP}")
    A("v_add_u32 v38, s42, v36")
    for k in range(6):
        A(f"ds_write_b128 v38, v[{VS+4*k}:{VS+4*k+3}] offset:{k*1024}")
    A("v_lshrrev_b32 v2, 4, v35")
    A("v_lshlrev_b32 v2, 3, v2")
    A("v_bfe_u32 v3, v35, 2, 2")
    A("v_add_u32 v2, v2, v3")
    A("v_mul_u32_u24 v2, 96, v2")
    A("v_and_b32 v3, 3, v35")
    A("v_lshl_add_u32 v2, v3, 3, v2")
    A("s_lshl_b32 s42, s43, 5")
    A("v_add_u32 v2, s42, v2")
    A("s_waitcnt lgkmcnt(0)")
    for k in range(6):
        A(f"ds_read_b64_tr_b16 v[{VS+4*k}:{VS+4*k+1}], v2 offset:{L_W1 + k*3072}")
        A(f"ds_read_b64_tr_b16 v[{VS+4*k+2}:{VS+4*k+3}], v2 offset:{L_W1 + k*3072 + 384}")
    A("v_and_b32 v2, 1, v35")
    A("v_mul_u32_u24 v2, 384, v2")
    A("v_lshrrev_b32 v3, 4, v35")
    A("v_lshl_add_u32 v39, v3, 4, v2")
    A("L_role7:")
    A("s_cmp_ge_u32 s47, 48")
    A("s_cbranch_scc1 L_common")
    A("v_lshrrev_b32 v2, 1, v35")
    A("v_mul_u32_u24 v2, 1536, v2")
    A("v_and_b32 v3, 1, v35")
    A("v_lshl_add_u32 v2, v3, 4, v2")
    A("s_sub_u32 s43, s36, 4")
    A("s_mul_i32 s42, s43, 49152")
    A("s_lshl_b32 s48, s47, 5")
    A("s_add_u32 s42, s42, s48")
    A("v_lshrrev_b32 v9, 5, v35")
    A("v_lshl_add_u32 v9, v3, 1, v9")
    A("s_lshl_b32 s43, s43, 5")
    A("v_lshl_add_u32 v9, v9, 3, s43")
    A("v_mov_b32 v10, 1")
    A("v_mov_b32 v11, 0")
    A("v_and_b32 v12, 0xf0, v36")
    A("v_bfe_u32 v13, v35, 1, 3")
    A(f"v_mul_u32_u24 v13, {REPS}, v13")
    A("v_lshl_add_u32 v13, v3, 3, v13")
    A("s_lshl_b32 s48, s47, 7")
    A(f"s_add_u32 s48, s48, {W_F}")
    A("L_pollA:")
    A(f"buffer_load_dwordx4 v[4:7], v2, s[20:23], s42 offen sc1")
    A("s_add_u32 s45, s45, 1")
    A("s_waitcnt vmcnt(0)")
    A("v_cmp_ne_u16 vcc, s46, v5")
    A("v_cmp_ne_u16 s[4:5], s46, v7")
    A("s_or_b64 vcc, vcc, s[4:5]")
    A("s_cbranch_scc0 L_gotA")
    A("s_mov_b64 exec, vcc")
    if sleepA:
        A(f"s_sleep {sleepA}")
    A(f"s_cmp_lt_u32 s45, {SPIN}")
    A("s_cbranch_scc1 L_pollA")
    A("L_gotA:")
    A("s_mov_b64 exec, -1")
    A("v_and_b32 v5, s44, v5")
    A("v_and_b32 v7, s44, v7")
    A("v_permlane32_swap_b32 v4, v6")
    A("v_add_f32 v4, v4, v6")
    A("v_permlane32_swap_b32 v5, v7")
    A("v_mov_b32 v6, v4")
    A("v_max_f32 v5, v5, v7")
    A("v_mov_b32 v7, v5")
    A("v_permlane16_swap_b32 v4, v6")
    A("v_add_f32 v4, v4, v6")
    A("v_permlane16_swap_b32 v5, v7")
    A("v_max_f32 v5, v5, v7")
    for r in (8, 4, 2):
        A(f"v_add_f32_dpp v4, v4, v4 row_ror:{r} row_mask:0xf bank_mask:0xf")
        A("s_nop 0")
        A(f"v_max_f32_dpp v5, v5, v5 row_ror:{r} row_mask:0xf bank_mask:0xf")
    A(f"ds_write_b64 v9, v[4:5] offset:{L_R2}")
    A("s_mov_b64 exec, 1")
    A(f"ds_add_rtn_u32 v10, v11, v10 offset:{L_CNT}")
    A("s_mov_b64 exec, -1")
    A(f"ds_read_b128 v[4:7], v12 offset:{L_R2}")
    A("s_waitcnt lgkmcnt(1)")
    A("v_readfirstlane_b32 s42, v10")
    A("s_cmp_lg_u32 s42, 7")
    A("s_waitcnt lgkmcnt(0)")
    A("s_cbranch_scc1 L_common")
    for r in (2, 4, 8):
        A(f"v_add_f32_dpp v4, v4, v4 row_ror:{r} row_mask:0xf bank_mask:0xf")
        A(f"v_add_f32_dpp v6, v6, v6 row_ror:{r} row_mask:0xf bank_mask:0xf")
        A(f"v_max_f32_dpp v5, v5, v5 row_ror:{r} row_mask:0xf bank_mask:0xf")
        A(f"v_max_f32_dpp v7, v7, v7 row_ror:{r} row_mask:0xf bank_mask:0xf")
    A("v_mul_f32 v4, 0x36800000, v4")
    A("v_mul_f32 v6, 0x36800000, v6")
    A("v_cvt_pk_bf16_f32 v5, v5, v7")
    A("v_cvt_pk_bf16_f32 v4, v4, v6")
    A("s_mov_b64 exec, 0xffff")
    A("v_min_u32 v5, -2, v5")
    A("v_min_u32 v4, -2, v4")
    A("buffer_store_dwordx2 v[4:5], v13, s[20:23], s48 offen sc1")
    A("s_mov_b64 exec, -1")
    A("L_common:")
    A("v_lshrrev_b32 v2, 2, v35")
    A("v_mul_u32_u24 v2, 384, v2")
    A("v_and_b32 v3, 3, v35")
    A("v_lshl_add_u32 v2, v3, 3, v2")
    A("s_lshl_b32 s42, s36, 5")
    A("v_add_u32 v2, s42, v2")
    W2F = 28
    for k in range(3):
        A(f"ds_read_b64_tr_b16 v[{W2F+2*k}:{W2F+2*k+1}], v2 offset:{L_W2 + k*6144}")
    A("v_lshlrev_b32 v37, 3, v35")
    A("s_cmp_lg_u32 s36, 3")
    A("s_cbranch_scc1 L_b2")
    A("s_and_b32 s42, s2, 7")
    A(f"s_mul_i32 s42, s42, {REPS}")
    A(f"s_add_u32 s42, s42, {W_F}")
    A("v_lshlrev_b32 v2, 7, v35")
    A(f"v_add_u32 v3, {L_G}, v37")
    A("s_mov_b32 exec_hi, 0xffff")
    A("L_pollF:")
    A(f"buffer_load_dwordx4 v[4:7], v2, s[20:23], s42 offen sc1")
    A("s_add_u32 s45, s45, 1")
    A("s_waitcnt vmcnt(0)")
    A("v_max3_u32 v8, v4, v5, v6")
    A("v_max_u32 v8, v8, v7")
    A("v_cmp_eq_u32 vcc, -1, v8")
    A("s_cbranch_vccz L_gotF")
    A("s_mov_b64 exec, vcc")
    if sleepF:
        A(f"s_sleep {sleepF}")
    A(f"s_cmp_lt_u32 s45, {SPIN}")
    A("s_cbranch_scc1 L_pollF")
    A("L_gotF:")
    A("s_mov_b32 exec_lo, -1")
    A("s_mov_b32 exec_hi, 0xffff")
    A("ds_write2_b32 v3, v4, v6 offset0:0 offset1:1")
    A("ds_write2_b32 v3, v5, v7 offset0:96 offset1:97")
    A("s_mov_b64 exec, -1")
    A("L_b2:")
    A("s_sub_u32 s42, s36, 4")
    A("s_cmp_ge_u32 s42, 3")
    A("s_waitcnt lgkmcnt(0)")
    A("s_barrier")
    stamp(4)
    A("s_cbranch_scc1 L_l2")
    BF = 4
    for k in range(6):
        A(f"ds_read_b128 v[{BF+4*k}:{BF+4*k+3}], v39 offset:{L_G + k*64}")
    A("s_lshl_b32 s42, s42, 9")
    A("v_add_u32 v36, s42, v37")
    for k in range(6):
        A(f"s_waitcnt lgkmcnt({5-k})")
        c = "0" if k == 0 else "v[0:3]"
        A(f"v_mfma_f32_16x16x32_bf16 v[0:3], v[{VS+4*k}:{VS+4*k+3}], v[{BF+4*k}:{BF+4*k+3}], {c}")
    A("s_nop 7")
    MK = (4, 6, 24, 26)
    A("v_cvt_pk_bf16_f32 v4, v0, v1")
    A("v_cvt_pk_bf16_f32 v5, v2, v3")
    A("v_lshlrev_b32 v0, 16, v4"); A("v_and_b32 v1, s44, v4")
    A("v_lshlrev_b32 v2, 16, v5"); A("v_and_b32 v3, s44, v5")
    for i in range(4):
        A(f"v_cmp_lt_f32 s[{MK[i]}:{MK[i]+1}], 0, v{i}")
    for i in range(4):
        A(f"v_cndmask_b32 v{6+i}, 0, 1.0, s[{MK[i]}:{MK[i]+1}]")
    A("v_pk_mul_f32 v[0:1], v[0:1], v[6:7]")
    A("v_pk_mul_f32 v[2:3], v[2:3], v[8:9]")
    A("v_cvt_pk_bf16_f32 v4, v0, v1")
    A("v_cvt_pk_bf16_f32 v5, v2, v3")
    A(f"ds_write_b64 v36, v[4:5] offset:{L_H}")
    A("L_l2:")
    lane_offsets(0, 1, 26, 27)
    A("s_waitcnt lgkmcnt(0)")
    A("s_barrier")
    for k in range(3):
        A(f"ds_read_b64 v[{4+2*k}:{5+2*k}], v37 offset:{L_H + k*512}")
    A("v_bfe_u32 v2, v35, 1, 2")
    A("v_cmp_eq_u32 s[4:5], 1, v2")
    A("v_cmp_eq_u32 s[6:7], 2, v2")
    A("v_cmp_eq_u32 s[24:25], 3, v2")
    A("v_lshrrev_b32 v3, 4, v35")
    A("v_lshl_add_u32 v2, v3, 2, v2")
    A("s_lshl_b32 s42, s36, 6")
    A("v_lshl_add_u32 v36, v2, 2, s42")
    for k in range(3):
        A(f"s_waitcnt lgkmcnt({2-k})")
        c = "0" if k == 0 else "v[12:15]"
        A(f"v_mfma_f32_16x16x16_bf16 v[12:15], v[{W2F+2*k}:{W2F+2*k+1}], v[{4+2*k}:{5+2*k}], {c}")
    A("v_and_b32 v2, 7, v35")
    A("s_lshl_b32 s42, s38, 8")
    A("v_lshl_add_u32 v39, v2, 5, s42")
    A("s_mov_b32 s43, 0xbfb8aa3b")
    A("s_nop 4")
    A("v_cndmask_b32 v12, v12, v13, s[4:5]")
    A("v_cndmask_b32 v12, v12, v14, s[6:7]")
    A("v_cndmask_b32 v12, v12, v15, s[24:25]")
    A("v_cvt_pk_bf16_f32 v12, v12, v12")
    A("v_and_b32 v12, s44, v12")
    A("s_nop 1")
    A("v_add_f32_dpp v12, v12, v12 quad_perm:[1,0,3,2] row_mask:0xf bank_mask:0xf")
    A("v_cvt_pk_bf16_f32 v12, v12, v12")
    A("v_and_b32 v12, s44, v12")
    A("v_mul_f32 v12, s43, v12")
    A("v_exp_f32 v12, v12")
    A("s_nop 0")
    A("v_add_f32 v12, 1.0, v12")
    A("v_rcp_f32 v12, v12")
    A("s_nop 0")
    A("v_cvt_pk_bf16_f32 v12, v12, v12")
    A("v_and_b32 v12, s44, v12")
    A(f"ds_write_b32 v36, v12 offset:{L_SC}")
    A("s_waitcnt lgkmcnt(0)")
    A("s_barrier")
    SCR = 2
    A(f"ds_read_b128 v[{SCR}:{SCR+3}], v39 offset:{L_SC}")
    A(f"ds_read_b128 v[{SCR+4}:{SCR+7}], v39 offset:{L_SC+16}")
    stamp(5)
    T2 = 10
    for j in range(NL):
        tb = T2 + 8 * (j % 2)
        i2, h = j >> 1, j & 1
        for i in range(4):
            d = VD + 4 * j + i
            A(f"v_lshlrev_b32 v{tb+2*i}, 16, v{d}")
            A(f"v_and_b32 v{tb+2*i+1}, s44, v{d}")
        if h == 0:
            A(f"s_bfe_u32 s50, s49, {hex(0x10000 | i2)}")
            A("v_mad_i32_i24 v28, s50, v1, v0")
        else:
            A("v_mad_i32_i24 v29, s50, v27, v26")
        if j == 0:
            A("s_waitcnt lgkmcnt(0)")
        for i in range(4):
            A(f"v_pk_mul_f32 v[{tb+2*i}:{tb+2*i+1}], v[{tb+2*i}:{tb+2*i+1}], v[{SCR+2*i}:{SCR+2*i+1}]")
        for i in range(4):
            d = VD + 4 * j + i
            A(f"v_cvt_pk_bf16_f32 v{d}, v{tb+2*i}, v{tb+2*i+1}")
        r = VD + 4 * j
        A(f"buffer_store_dwordx4 v[{r}:{r+3}], v{28+h}, s[12:15], s{TAB+i2} offen {st}".rstrip())
        if j == 0:
            A("s_sub_u32 s42, s36, 4")
            A("s_cmp_ge_u32 s42, 3")
            A("s_cbranch_scc1 L_noreload")
            for k in range(6):
                A(f"ds_read_b128 v[{VS+4*k}:{VS+4*k+3}], v38 offset:{k*1024}")
            A("L_noreload:")
        if j == NL - 7:
            A("s_waitcnt lgkmcnt(0)")
    if stamps:
        A("L_out:")
        stamp(6)
        A("s_waitcnt vmcnt(0)")
        stamp(7)
        A("s_waitcnt lgkmcnt(0)")
        A("s_mov_b64 exec, 1")
        if diag:
            diag_tail(A, diag)
        A("s_mul_i32 s3, s2, 12")
        A("s_add_u32 s3, s3, s36")
        A("s_lshl_b32 s3, s3, 5")
        A(f"s_add_u32 s3, s3, {W_ST}")
        A("v_mov_b32 v1, 0")
        for i in range(8):
            A(f"v_mov_b32 v{4+i}, s{60+2*i}")
        A("buffer_store_dwordx4 v[4:7], v1, s[20:23], s3 offen")
        A("buffer_store_dwordx4 v[8:11], v1, s[20:23], s3 offen offset:16")
    A("L_end:")
    A("s_endpgm")
    A('.section .rodata,"a"')
    A(".p2align 6")
    A(".amdhsa_kernel standalone__channel_attn_cbam__vision_kernel")
    A("  .amdhsa_next_free_vgpr 168")
    A("  .amdhsa_next_free_sgpr 96")
    A("  .amdhsa_accum_offset 168")
    A("  .amdhsa_group_segment_fixed_size 0")
    A("  .amdhsa_kernarg_size 48")
    A("  .amdhsa_user_sgpr_count 2")
    A("  .amdhsa_user_sgpr_kernarg_segment_ptr 1")
    A("  .amdhsa_system_sgpr_workgroup_id_x 1")
    A("  .amdhsa_float_denorm_mode_32 3")
    A(".end_amdhsa_kernel")
    out = []
    for line in L:
        if line.startswith(("s_", "v_", "ds_", "buffer_", "global_")):
            out.append("    " + line)
        else:
            out.append(line)
    return "\n".join(out) + "\n"

def diag_tail(A, diag):
    idx, mul, base = diag[:3]
    dwg = diag[3] if len(diag) > 3 else 0
    dwv = diag[4] if len(diag) > 4 else 0
    A(f"s_cmp_lg_u32 s36, {dwv}")
    A("s_cbranch_scc1 L_end")
    A(f"s_cmp_lg_u32 s2, {dwg}")
    A("s_cbranch_scc1 L_end")
    if idx == -1:
        A("s_lshr_b32 s42, s56, 1")
        A("s_xor_b32 s42, s42, s56")
        A("s_and_b32 s42, s42, 0x7ff7ff")
        A("s_bcnt1_i32_b32 s42, s42")
    elif idx == -2:
        A("s_lshr_b32 s42, s56, 12")
        A("s_xor_b32 s42, s42, s56")
        A("s_and_b32 s42, s42, 0xfff")
        A("s_bcnt1_i32_b32 s42, s42")
    elif idx == -3:
        A("s_mov_b32 s42, s45")
    elif idx >= 100:
        A(f"s_sub_u32 s42, s{60+2*(idx//10%10)}, s{60+2*(idx%10)}")
    else:
        A(f"s_sub_u32 s42, s{60+2*idx}, s60")
    A(f"s_mul_i32 s42, s42, {mul}")
    A(f"s_add_u32 s42, s42, {base}")
    A("s_min_u32 s42, s42, 200000")
    A("L_dg3:")
    A("s_memrealtime s[78:79]")
    A("s_waitcnt lgkmcnt(0)")
    A("s_sub_u32 s43, s78, s60")
    A("s_cmp_lt_u32 s43, s42")
    A("s_cbranch_scc1 L_dg3")
    A("s_branch L_end")

if __name__ == "__main__":
    cfg = json.loads(sys.argv[1]) if len(sys.argv) > 1 else {}
    sys.stdout.write(gen(**cfg))
```

```python
import sys, json

HEADER = """; CBAM channel attention, x kept in registers across a grid-wide reduction (single pass over HBM)
"""

def gen(ld="nt", st="sc1", W=4, stamps=0, sleepA=0, sleepF=0, diag=None,
        wpos=-1, warm_out=1, STRIDE=5, ROT=5, MIX=0xAAAA, nstatic=4, maplead=0, grp=2, cpf=0, stop1=0,
        sset=1, THR=100, tagpos=24, poff=4096 * 33 + 640, ppol="nt", usemap=1, oracle=None, glc0=0, rawd=0, rnd=0):
    if diag: stamps = 1
    NW, NL, VD = 12, 32, 40
    XB = 100663296
    L_W1, L_W2 = 0, 18432
    L_RED = 36864
    L_G = L_RED + 6144
    L_H = L_G + 768
    L_SC = L_H + 1536
    L_R2 = L_SC + 768
    L_CNT = L_R2 + 256
    L_PB = L_CNT + 16
    L_SP = L_CNT + 64
    L_END = L_SP + 3 * 6144
    W_F = 256 * 1536
    REPS = 48 * 128
    W_ST = 1 << 20
    SPIN = 1 << 16
    SW = 6 << 20
    TAB = 80
    assert 2 * nstatic >= W and (grp == 1 or W % 2 == 0)
    NS = 24
    L = []
    A = L.append
    def stamp(i):
        if stamps:
            A(f"s_memrealtime s[{60+2*i}:{61+2*i}]")
    A(HEADER.rstrip())
    A(f"; @launch grid=(256,1,1) block=({NW*64},1,1) lds={L_END}")
    A('.amdgcn_target "amdgcn-amd-amdhsa--gfx950"')
    A(".text")
    A(".globl standalone__channel_attn_cbam__vision_kernel")
    A(".p2align 8")
    A(".type standalone__channel_attn_cbam__vision_kernel,@function")
    A("standalone__channel_attn_cbam__vision_kernel:")
    stamp(0)
    A("s_load_dwordx4 s[4:7], s[0:1], 0")
    A("s_load_dwordx4 s[24:27], s[0:1], 16")
    A("s_load_dwordx4 s[28:31], s[0:1], 32")
    if rnd: A("s_memtime s[58:59]")
    A("s_cmp_ge_u32 s2, 256")
    A("s_cbranch_scc1 L_end")
    A("v_lshrrev_b32 v2, 6, v0")
    A("v_and_b32 v35, 63, v0")
    A("v_readfirstlane_b32 s36, v2")
    A("v_lshlrev_b32 v36, 4, v35")
    if sset == 0:
        A("s_mov_b32 s40, s2")
    else:
        A("s_lshr_b32 s40, s2, 2")
        A("s_and_b32 s42, s2, 1")
        A("s_or_b32 s40, s40, s42")
        A("s_and_b32 s42, s2, 6")
        A(f"s_cselect_b32 s40, {NS}, s40")
    if cpf:
        A(f"s_sub_u32 s42, s2, 96")
        A(f"s_cmp_ge_u32 s42, {cpf}")
        A("s_cbranch_scc1 L_nocpf")
        A("s_cmp_ge_u32 s36, 2")
        A("s_cbranch_scc1 L_nocpf")
        A("s_getpc_b64 s[56:57]")
        A("L_pc:")
        A("v_lshlrev_b32 v2, 7, v0")
        A("v_min_u32 v2, L_end-L_pc, v2")
        A("global_load_dword v34, v2, s[56:57]")
        A("L_nocpf:")
    A("s_mul_i32 s37, s36, 43691")
    A("s_lshr_b32 s37, s37, 17")
    A("s_mul_i32 s38, s37, 3")
    A("s_sub_u32 s38, s36, s38")
    A("s_mul_i32 s39, s37, 3072")
    A("s_lshl_b32 s42, s38, 7")
    A("s_add_u32 s39, s39, s42")
    def lane_offsets(b0, d0, b1, d1):
        A(f"v_lshrrev_b32 v{d0}, 3, v35")
        A(f"v_mul_u32_u24 v{d0}, 384, v{d0}")
        A(f"v_and_b32 v{d1}, 7, v35")
        A(f"v_lshl_add_u32 v{d0}, v{d1}, 4, v{d0}")
        A(f"v_add_u32 v{b0}, s39, v{d0}")
        A(f"v_add_u32 v{b1}, 12288, v{b0}")
        A(f"v_bfe_u32 v{d0}, v{b0}, 13, 1")
        A(f"v_bfe_u32 v{d1}, v{b1}, 13, 1")
        A(f"v_mul_u32_u24 v{d0}, 24576, v{d0}")
        A(f"v_mul_u32_u24 v{d1}, 24576, v{d1}")
        A(f"v_add_u32 v{b0}, v{b0}, v{d0}")
        A(f"v_add_u32 v{b1}, v{b1}, v{d1}")
        A(f"v_lshlrev_b32 v{d0}, 1, v{d0}")
        A(f"v_lshlrev_b32 v{d1}, 1, v{d1}")
        A(f"v_sub_u32 v{d0}, 24576, v{d0}")
        A(f"v_sub_u32 v{d1}, 24576, v{d1}")
    lane_offsets(0, 1, 37, 38)
    A("s_lshr_b32 s42, s2, 3")
    A("s_and_b32 s43, s2, 3")
    A("s_lshl_b32 s42, s42, 2")
    A("s_add_u32 s51, s42, s43")
    A("s_mul_i32 s41, s51, 49152")
    A("s_lshr_b32 s52, s41, 21")
    A(f"s_mul_i32 s42, s52, {ROT}")
    A("s_and_b32 s53, s42, 15")
    A(f"s_mul_i32 s42, s53, {SW}")
    A(f"s_add_u32 s{TAB}, s42, s41")
    A("s_bfe_i32 s49, s2, 0x10002")
    A("s_mov_b32 s10, %d" % XB); A("s_mov_b32 s11, 0x20000")
    A("s_mov_b32 s14, %d" % XB); A("s_mov_b32 s15, 0x20000")
    A("s_mov_b32 s18, 256"); A("s_mov_b32 s19, 0x20000")
    A("s_mov_b32 s22, 402653184"); A("s_mov_b32 s23, 0x20000")
    A("s_mov_b32 s35, 0x20000")
    A("s_mov_b32 s45, 0")
    A(f"s_cmp_ge_u32 s40, {NS}")
    A("s_waitcnt lgkmcnt(0)")
    A("s_mov_b32 s8, s4"); A("s_mov_b32 s9, s5")
    A("s_mov_b32 s20, s30"); A("s_mov_b32 s21, s31")
    A("s_mov_b32 s12, s26"); A("s_mov_b32 s13, s27")
    A("s_mov_b32 s16, s28"); A("s_mov_b32 s17, s29")
    A("s_cbranch_scc1 L_noscout")
    A("s_cmp_lg_u32 s36, 0")
    A("s_cbranch_scc1 L_scoutwait")
    A("s_cmp_ge_u32 s40, 12")
    A("s_cselect_b32 s32, s26, s4")
    A("s_cselect_b32 s33, s27, s5")
    A("s_cselect_b32 s42, 12, 0")
    A(f"s_mov_b32 s34, {XB}")
    A("s_sub_u32 s42, s40, s42")
    A("s_lshl_b32 s42, s42, 23")
    A(f"s_add_u32 s42, s42, {(2 << 21) + (poff & ~8192)}")
    if rnd:
        A("s_lshl_b32 s43, s58, 5")
        A(f"s_and_b32 s43, s43, {0x1fff80 & ~8192}")
        A("s_xor_b32 s42, s42, s43")
    A("s_add_u32 s43, s42, 8192")
    A("v_mov_b32 v2, 0")
    for i in range(4):
        A(f"v_mov_b32 v{8+i}, -1")
    A("v_lshlrev_b32 v6, 7, v35")
    A("s_lshl_b32 s55, s40, 11")
    A(f"s_add_u32 s55, s55, {W_F}")
    A("s_getreg_b32 s48, hwreg(HW_REG_XCC_ID, 0, 3)")
    A("s_lshr_b32 s3, s48, 2")
    A("s_lshl_b32 s3, s3, s40")
    A("s_bitset1_b32 s3, 24")
    A("s_lshl_b32 s48, s48, 29")
    A("s_cmp_eq_u32 s40, 0")
    A("s_cselect_b32 s48, s48, 0")
    A("s_cselect_b32 s54, 0xffff, 0")
    A("s_or_b32 s3, s3, s48")
    A("s_lshl_b32 s48, 1, s40")
    A("s_xor_b32 s48, s48, s3")
    A("s_mov_b64 exec, 0xffff")
    A("s_branch L_probe")
    A(".p2align 7")
    A("L_probe:")
    A(f"buffer_load_dword v3, v2, s[32:35], s42 offen {ppol}".rstrip())
    A(f"buffer_load_dword v4, v2, s[32:35], s43 offen {ppol}".rstrip())
    A("buffer_load_dword v5, v2, s[20:23], 0 offen offset:4 sc1")
    A("buffer_store_dwordx4 v[8:11], v6, s[20:23], s55 offen sc1")
    A("s_waitcnt vmcnt(3)")
    A("s_memtime s[56:57]")
    A("s_waitcnt vmcnt(2)")
    A("s_memtime s[58:59]")
    A("s_mov_b64 exec, 1")
    A("s_waitcnt lgkmcnt(0)")
    A("s_sub_u32 s42, s58, s56")
    A(f"s_cmp_le_u32 s42, {THR}")
    A("s_cselect_b32 s43, s48, s3")
    A("v_mov_b32 v4, s43")
    A("buffer_atomic_add v4, v2, s[16:19], 0 offen sc1")
    A("s_barrier")
    A("s_waitcnt vmcnt(1)")
    A("v_add_u32 v5, 1, v5")
    A("v_and_b32 v5, s54, v5")
    A("v_or_b32 v5, 0x1000000, v5")
    A("buffer_atomic_add v5, v2, s[16:19], 0 offen offset:128 sc1")
    if rawd:
        A("v_mov_b32 v7, s42")
        A("s_lshl_b32 s55, s40, 2")
        A(f"s_add_u32 s55, s55, {2 << 20}")
        A("buffer_store_dword v7, v2, s[20:23], s55 offen")
    A("s_mov_b64 exec, -1")
    A("s_branch L_noscout")
    A("L_scoutwait:")
    A("s_barrier")
    A("L_noscout:")
    ops = []
    def weights():
        A("s_cmp_ge_u32 s36, 6")
        A("s_cselect_b32 s32, s24, s6")
        A("s_cselect_b32 s33, s25, s7")
        A("s_cselect_b32 s42, 18432, 0")
        A("s_mov_b32 s34, 18432")
        A("s_mul_i32 s43, s36, 3072")
        A("s_mov_b32 m0, s43")
        A("s_sub_u32 s42, s43, s42")
        for k in range(3):
            A(f"buffer_load_dwordx4 v36, s[32:35], s42 offen offset:{k*1024} lds")
            ops.append(("w", k))
    def issue(j):
        r = VD + 4 * j
        i, h = j >> 1, j & 1
        if h == 0:
            A(f"s_bfe_u32 s50, s49, {hex(0x10000 | i)}")
            A("v_mad_i32_i24 v39, s50, v1, v0")
        else:
            A("v_mad_i32_i24 v39, s50, v38, v37")
        A(f"buffer_load_dwordx4 v[{r}:{r+3}], v39, s[8:11], s{TAB+i} offen {ld}".rstrip())
        ops.append(("d", j))
        if h == 0 and i < 15:
            A(f"s_add_u32 s42, s{TAB+i}, {STRIDE*SW}")
            A(f"s_sub_u32 s43, s42, {XB}")
            A(f"s_cselect_b32 s{TAB+i+1}, s42, s43")
        if j == wpos:
            weights()
    def after(j):
        return len(ops) - 1 - ops.index(("d", j))
    def map_load():
        A("s_load_dword s56, s[28:29], 0")
    def word_wait(reg, off, name):
        A("s_waitcnt lgkmcnt(0)")
        A(f"s_bfe_u32 s42, s{reg}, 0x50018")
        A(f"s_cmp_eq_u32 s42, {NS}")
        A(f"s_cbranch_scc1 L_{name}ok")
        A("v_mov_b32 v22, 0")
        A(f"L_{name}:")
        A(f"buffer_load_dword v21, v22, s[16:19], 0 offen offset:{off} sc1")
        A("s_add_u32 s45, s45, 1")
        A("s_waitcnt vmcnt(0)")
        A(f"v_readfirstlane_b32 s{reg}, v21")
        A(f"s_bfe_u32 s42, s{reg}, 0x50018")
        A(f"s_cmp_eq_u32 s42, {NS}")
        A(f"s_cbranch_scc1 L_{name}ok")
        A(f"s_cmp_lt_u32 s45, {SPIN}")
        A(f"s_cbranch_scc1 L_{name}")
        A(f"L_{name}ok:")
    def map_use():
        A(f"v_mul_u32_u24 v18, {STRIDE}, v35")
        A("v_add_u32 v18, s53, v18")
        A("v_and_b32 v18, 15, v18")
        A("v_mul_u32_u24 v18, 3, v18")
        A("v_add_u32 v18, s52, v18")
        A("v_add_u32 v19, s51, v35")
        A("v_and_b32 v19, 15, v19")
        A(f"s_mov_b32 s42, {MIX}")
        A("v_bfe_u32 v19, s42, v19, 1")
        A("v_mul_u32_u24 v19, 12, v19")
        A("v_lshrrev_b32 v20, 2, v18")
        A("v_add_u32 v19, v19, v20")
        word_wait(56, 0, "map")
        stamp(1)
        if not usemap:
            return
        A("s_lshr_b32 s42, s56, 29")
        if oracle:
            om = sum(((oracle[0] >> (4 * k + 2)) & 1) << k for k in range(12)) | sum(((oracle[1] >> (4 * k + 2)) & 1) << (12 + k) for k in range(12))
            A(f"s_mov_b32 s56, {om}")
        A("s_add_u32 s42, s42, s2")
        A("s_lshr_b32 s42, s42, 2")
        A("v_lshrrev_b32 v19, v19, s56")
        A("v_xor_b32 v18, s42, v18")
        A("v_xor_b32 v19, v18, v19")
        A("v_and_b32 v19, 1, v19")
        A("v_cmp_ne_u32 vcc, 0, v19")
        A(f"s_and_b32 s49, s49, {(1 << nstatic) - 1}")
        A(f"s_andn2_b32 s42, vcc_lo, {(1 << nstatic) - 1}")
        A("s_or_b32 s49, s49, s42")
    if wpos < 0:
        weights()
    for j in range(W):
        issue(j)
    nxt = W
    S, M, T = 2, 10, 18
    for i in range(8):
        A(f"v_mov_b32 v{S+i}, 0")
        A(f"v_mov_b32 v{M+i}, 0xff800000")
    A("s_mov_b32 s44, 0xffff0000")
    A(f"ds_write_b32 v{S}, v{S} offset:{L_CNT}")
    A("s_lshr_b32 s42, s2, 5")
    A("s_lshl_b32 s42, s42, 3")
    A("s_and_b32 s43, s2, 7")
    A("s_add_u32 s42, s42, s43")
    A("s_lshl_b32 s42, s42, 2")
    A("s_bfe_u32 s43, s2, 0x20003")
    A("s_add_u32 s47, s42, s43")
    if grp == 2:
        groups = [(j, j + 1) for j in range(0, NL - 2, 2)] + [(NL - 2,), (NL - 1,)]
        guse = nstatic - W // 2
    else:
        groups = [(j,) for j in range(NL)]
        guse = 2 * nstatic - W
    gld = max(guse - maplead, 0)
    for gi0, g in enumerate(groups):
        A(f"s_waitcnt vmcnt({after(g[-1])})")
        if gi0 == gld:
            map_load()
        if gi0 == guse:
            map_use()
        if g[0] == tagpos:
            A("s_load_dword s46, s[28:29], 128")
        if g[0] == tagpos + 2:
            word_wait(46, 128, "tag")
            A("s_and_b32 s46, s46, 0xffff")
        for _ in g:
            if nxt < NL:
                issue(nxt); nxt += 1
        for gi, j in enumerate(g):
            for i in range(4):
                d = VD + 4 * j + i
                t = T + 8 * gi + 2 * i
                A(f"v_lshlrev_b32 v{t}, 16, v{d}")
                A(f"v_and_b32 v{t+1}, s44, v{d}")
        for gi, j in enumerate(g):
            for i in range(4):
                t = T + 8 * gi + 2 * i
                A(f"v_pk_add_f32 v[{S+2*i}:{S+2*i+1}], v[{S+2*i}:{S+2*i+1}], v[{t}:{t+1}]")
        for i in range(8):
            if len(g) == 2:
                A(f"v_max3_f32 v{M+i}, v{M+i}, v{T+i}, v{T+8+i}")
            else:
                A(f"v_max_f32 v{M+i}, v{M+i}, v{T+i}")
        if gi0 == len(groups) - 2:
            A("v_and_b32 v37, 7, v35")
            A("v_lshrrev_b32 v38, 3, v35")
            A("v_lshl_add_u32 v37, v37, 3, v38")
            A("s_mul_i32 s42, s37, 1536")
            A("s_lshl_b32 s43, s38, 9")
            A("s_add_u32 s42, s42, s43")
            A("v_lshl_add_u32 v37, v37, 3, s42")
            A("s_mul_i32 s43, s36, 768")
            A("v_add_u32 v38, s43, v36")
            A("s_mul_i32 s48, s2, 1536")
            A("s_add_u32 s48, s48, s43")
    stamp(2)
    for i in range(4):
        A(f"v_permlane32_swap_b32 v{S+i}, v{S+i+4}")
    for i in range(4):
        A(f"v_permlane32_swap_b32 v{M+i}, v{M+i+4}")
    for i in range(2):
        A(f"v_pk_add_f32 v[{S+2*i}:{S+2*i+1}], v[{S+2*i}:{S+2*i+1}], v[{S+4+2*i}:{S+5+2*i}]")
    for i in range(4):
        A(f"v_max_f32 v{M+i}, v{M+i}, v{M+i+4}")
    for i in range(2):
        A(f"v_permlane16_swap_b32 v{S+i}, v{S+i+2}")
    for i in range(2):
        A(f"v_permlane16_swap_b32 v{M+i}, v{M+i+2}")
    A(f"v_pk_add_f32 v[{S}:{S+1}], v[{S}:{S+1}], v[{S+2}:{S+3}]")
    for i in range(2):
        A(f"v_max_f32 v{M+i}, v{M+i}, v{M+i+2}")
    A(f"v_add_f32_dpp v{T}, v{S}, v{S} row_ror:8 row_mask:0xf bank_mask:0x3")
    A(f"v_max_f32_dpp v{T+1}, v{M}, v{M} row_ror:8 row_mask:0xf bank_mask:0x3")
    A("s_nop 0")
    A(f"v_add_f32_dpp v{T}, v{S+1}, v{S+1} row_ror:8 row_mask:0xf bank_mask:0xc")
    A(f"v_max_f32_dpp v{T+1}, v{M+1}, v{M+1} row_ror:8 row_mask:0xf bank_mask:0xc")
    A(f"ds_write_b64 v37, v[{T}:{T+1}] offset:{L_RED}")
    A("s_cmp_ge_u32 s36, 2")
    A("s_waitcnt lgkmcnt(0)")
    A("s_barrier")
    stamp(3)
    if stop1:
        for i in (4, 5): stamp(i)
        A("s_branch L_out")
    A("s_cbranch_scc1 L_role2")
    A("s_mov_b32 exec_hi, 0xffff")
    for q in range(4):
        A(f"ds_read_b128 v[{T+4*q}:{T+4*q+3}], v38 offset:{L_RED+q*1536}")
    A("s_waitcnt lgkmcnt(2)")
    A(f"v_add_f32 v{T}, v{T}, v{T+4}")
    A(f"v_add_f32 v{T+2}, v{T+2}, v{T+6}")
    A(f"v_max_f32 v{T+1}, v{T+1}, v{T+5}")
    A(f"v_max_f32 v{T+3}, v{T+3}, v{T+7}")
    A("s_waitcnt lgkmcnt(0)")
    A(f"v_add_f32 v{T+8}, v{T+8}, v{T+12}")
    A(f"v_add_f32 v{T+10}, v{T+10}, v{T+14}")
    A(f"v_max3_f32 v{T+1}, v{T+1}, v{T+9}, v{T+13}")
    A(f"v_max3_f32 v{T+3}, v{T+3}, v{T+11}, v{T+15}")
    A(f"v_add_f32 v{T}, v{T}, v{T+8}")
    A(f"v_add_f32 v{T+2}, v{T+2}, v{T+10}")
    A(f"v_or_b32 v{T+1}, s46, v{T+1}")
    A(f"v_or_b32 v{T+3}, s46, v{T+3}")
    A(f"buffer_store_dwordx4 v[{T}:{T+3}], v36, s[20:23], s48 offen sc1")
    A("s_mov_b64 exec, -1")
    A("s_branch L_common")
    A("L_role2:")
    A("s_cmp_eq_u32 s36, 3")
    A("s_cbranch_scc1 L_common")
    A("s_cmp_eq_u32 s36, 2")
    A("s_cbranch_scc0 L_role4")
    if warm_out:
        A(f"v_mul_u32_u24 v2, {SW}, v35")
        A("s_mov_b64 exec, 0xffff")
        A("buffer_load_dword v3, v2, s[12:15], s41 offen")
        A("s_mov_b64 exec, -1")
        A("s_waitcnt vmcnt(0)")
    A("s_branch L_common")
    A("L_role4:")
    VS = VD + 4 * (NL - 6)
    A("s_cmp_ge_u32 s36, 7")
    A("s_cbranch_scc1 L_role7")
    A("s_sub_u32 s43, s36, 4")
    A("s_mul_i32 s42, s43, 6144")
    A(f"s_add_u32 s42, s42, {L_SP}")
    A("v_add_u32 v38, s42, v36")
    for k in range(6):
        A(f"ds_write_b128 v38, v[{VS+4*k}:{VS+4*k+3}] offset:{k*1024}")
    A("v_lshrrev_b32 v2, 4, v35")
    A("v_lshlrev_b32 v2, 3, v2")
    A("v_bfe_u32 v3, v35, 2, 2")
    A("v_add_u32 v2, v2, v3")
    A("v_mul_u32_u24 v2, 96, v2")
    A("v_and_b32 v3, 3, v35")
    A("v_lshl_add_u32 v2, v3, 3, v2")
    A("s_lshl_b32 s42, s43, 5")
    A("v_add_u32 v2, s42, v2")
    A("s_waitcnt lgkmcnt(0)")
    for k in range(6):
        A(f"ds_read_b64_tr_b16 v[{VS+4*k}:{VS+4*k+1}], v2 offset:{L_W1 + k*3072}")
        A(f"ds_read_b64_tr_b16 v[{VS+4*k+2}:{VS+4*k+3}], v2 offset:{L_W1 + k*3072 + 384}")
    A("v_and_b32 v2, 1, v35")
    A("v_mul_u32_u24 v2, 384, v2")
    A("v_lshrrev_b32 v3, 4, v35")
    A("v_lshl_add_u32 v39, v3, 4, v2")
    A("L_role7:")
    A("s_cmp_ge_u32 s47, 48")
    A("s_cbranch_scc1 L_common")
    A("v_lshrrev_b32 v2, 1, v35")
    A("v_mul_u32_u24 v2, 1536, v2")
    A("v_and_b32 v3, 1, v35")
    A("v_lshl_add_u32 v2, v3, 4, v2")
    A("s_sub_u32 s43, s36, 4")
    A("s_mul_i32 s42, s43, 49152")
    A("s_lshl_b32 s48, s47, 5")
    A("s_add_u32 s42, s42, s48")
    A("v_lshrrev_b32 v9, 5, v35")
    A("v_lshl_add_u32 v9, v3, 1, v9")
    A("s_lshl_b32 s43, s43, 5")
    A("v_lshl_add_u32 v9, v9, 3, s43")
    A("v_mov_b32 v10, 1")
    A("v_mov_b32 v11, 0")
    A("v_and_b32 v12, 0xf0, v36")
    A("v_bfe_u32 v13, v35, 1, 3")
    A(f"v_mul_u32_u24 v13, {REPS}, v13")
    A("v_lshl_add_u32 v13, v3, 3, v13")
    A("s_lshl_b32 s48, s47, 7")
    A(f"s_add_u32 s48, s48, {W_F}")
    A("L_pollA:")
    A(f"buffer_load_dwordx4 v[4:7], v2, s[20:23], s42 offen sc1")
    A("s_add_u32 s45, s45, 1")
    A("s_waitcnt vmcnt(0)")
    A("v_cmp_ne_u16 vcc, s46, v5")
    A("v_cmp_ne_u16 s[4:5], s46, v7")
    A("s_or_b64 vcc, vcc, s[4:5]")
    A("s_cbranch_scc0 L_gotA")
    A("s_mov_b64 exec, vcc")
    if sleepA:
        A(f"s_sleep {sleepA}")
    A(f"s_cmp_lt_u32 s45, {SPIN}")
    A("s_cbranch_scc1 L_pollA")
    A("L_gotA:")
    A("s_mov_b64 exec, -1")
    A("v_and_b32 v5, s44, v5")
    A("v_and_b32 v7, s44, v7")
    A("v_permlane32_swap_b32 v4, v6")
    A("v_add_f32 v4, v4, v6")
    A("v_permlane32_swap_b32 v5, v7")
    A("v_mov_b32 v6, v4")
    A("v_max_f32 v5, v5, v7")
    A("v_mov_b32 v7, v5")
    A("v_permlane16_swap_b32 v4, v6")
    A("v_add_f32 v4, v4, v6")
    A("v_permlane16_swap_b32 v5, v7")
    A("v_max_f32 v5, v5, v7")
    for r in (8, 4, 2):
        A(f"v_add_f32_dpp v4, v4, v4 row_ror:{r} row_mask:0xf bank_mask:0xf")
        A("s_nop 0")
        A(f"v_max_f32_dpp v5, v5, v5 row_ror:{r} row_mask:0xf bank_mask:0xf")
    A(f"ds_write_b64 v9, v[4:5] offset:{L_R2}")
    A("s_mov_b64 exec, 1")
    A(f"ds_add_rtn_u32 v10, v11, v10 offset:{L_CNT}")
    A("s_mov_b64 exec, -1")
    A(f"ds_read_b128 v[4:7], v12 offset:{L_R2}")
    A("s_waitcnt lgkmcnt(1)")
    A("v_readfirstlane_b32 s42, v10")
    A("s_cmp_lg_u32 s42, 7")
    A("s_waitcnt lgkmcnt(0)")
    A("s_cbranch_scc1 L_common")
    for r in (2, 4, 8):
        A(f"v_add_f32_dpp v4, v4, v4 row_ror:{r} row_mask:0xf bank_mask:0xf")
        A(f"v_add_f32_dpp v6, v6, v6 row_ror:{r} row_mask:0xf bank_mask:0xf")
        A(f"v_max_f32_dpp v5, v5, v5 row_ror:{r} row_mask:0xf bank_mask:0xf")
        A(f"v_max_f32_dpp v7, v7, v7 row_ror:{r} row_mask:0xf bank_mask:0xf")
    A("v_mul_f32 v4, 0x36800000, v4")
    A("v_mul_f32 v6, 0x36800000, v6")
    A("v_cvt_pk_bf16_f32 v5, v5, v7")
    A("v_cvt_pk_bf16_f32 v4, v4, v6")
    A("s_mov_b64 exec, 0xffff")
    A("v_min_u32 v5, -2, v5")
    A("v_min_u32 v4, -2, v4")
    A("buffer_store_dwordx2 v[4:5], v13, s[20:23], s48 offen sc1")
    A("s_mov_b64 exec, -1")
    A("L_common:")
    A("v_lshrrev_b32 v2, 2, v35")
    A("v_mul_u32_u24 v2, 384, v2")
    A("v_and_b32 v3, 3, v35")
    A("v_lshl_add_u32 v2, v3, 3, v2")
    A("s_lshl_b32 s42, s36, 5")
    A("v_add_u32 v2, s42, v2")
    W2F = 28
    for k in range(3):
        A(f"ds_read_b64_tr_b16 v[{W2F+2*k}:{W2F+2*k+1}], v2 offset:{L_W2 + k*6144}")
    A("v_lshlrev_b32 v37, 3, v35")
    A("s_cmp_lg_u32 s36, 3")
    A("s_cbranch_scc1 L_b2")
    A("s_and_b32 s42, s2, 7")
    A(f"s_mul_i32 s42, s42, {REPS}")
    A(f"s_add_u32 s42, s42, {W_F}")
    A("v_lshlrev_b32 v2, 7, v35")
    A(f"v_add_u32 v3, {L_G}, v37")
    A("s_mov_b32 exec_hi, 0xffff")
    A("L_pollF:")
    A(f"buffer_load_dwordx4 v[4:7], v2, s[20:23], s42 offen sc1")
    A("s_add_u32 s45, s45, 1")
    A("s_waitcnt vmcnt(0)")
    A("v_max3_u32 v8, v4, v5, v6")
    A("v_max_u32 v8, v8, v7")
    A("v_cmp_eq_u32 vcc, -1, v8")
    A("s_cbranch_vccz L_gotF")
    A("s_mov_b64 exec, vcc")
    if sleepF:
        A(f"s_sleep {sleepF}")
    A(f"s_cmp_lt_u32 s45, {SPIN}")
    A("s_cbranch_scc1 L_pollF")
    A("L_gotF:")
    A("s_mov_b32 exec_lo, -1")
    A("s_mov_b32 exec_hi, 0xffff")
    A("ds_write2_b32 v3, v4, v6 offset0:0 offset1:1")
    A("ds_write2_b32 v3, v5, v7 offset0:96 offset1:97")
    A("s_mov_b64 exec, -1")
    A("L_b2:")
    A("s_sub_u32 s42, s36, 4")
    A("s_cmp_ge_u32 s42, 3")
    A("s_waitcnt lgkmcnt(0)")
    A("s_barrier")
    stamp(4)
    A("s_cbranch_scc1 L_l2")
    BF = 4
    for k in range(6):
        A(f"ds_read_b128 v[{BF+4*k}:{BF+4*k+3}], v39 offset:{L_G + k*64}")
    A("s_lshl_b32 s42, s42, 9")
    A("v_add_u32 v36, s42, v37")
    for k in range(6):
        A(f"s_waitcnt lgkmcnt({5-k})")
        c = "0" if k == 0 else "v[0:3]"
        A(f"v_mfma_f32_16x16x32_bf16 v[0:3], v[{VS+4*k}:{VS+4*k+3}], v[{BF+4*k}:{BF+4*k+3}], {c}")
    A("s_nop 7")
    MK = (4, 6, 24, 26)
    A("v_cvt_pk_bf16_f32 v4, v0, v1")
    A("v_cvt_pk_bf16_f32 v5, v2, v3")
    A("v_lshlrev_b32 v0, 16, v4"); A("v_and_b32 v1, s44, v4")
    A("v_lshlrev_b32 v2, 16, v5"); A("v_and_b32 v3, s44, v5")
    for i in range(4):
        A(f"v_cmp_lt_f32 s[{MK[i]}:{MK[i]+1}], 0, v{i}")
    for i in range(4):
        A(f"v_cndmask_b32 v{6+i}, 0, 1.0, s[{MK[i]}:{MK[i]+1}]")
    A("v_pk_mul_f32 v[0:1], v[0:1], v[6:7]")
    A("v_pk_mul_f32 v[2:3], v[2:3], v[8:9]")
    A("v_cvt_pk_bf16_f32 v4, v0, v1")
    A("v_cvt_pk_bf16_f32 v5, v2, v3")
    A(f"ds_write_b64 v36, v[4:5] offset:{L_H}")
    A("L_l2:")
    lane_offsets(0, 1, 26, 27)
    A("s_waitcnt lgkmcnt(0)")
    A("s_barrier")
    for k in range(3):
        A(f"ds_read_b64 v[{4+2*k}:{5+2*k}], v37 offset:{L_H + k*512}")
    A("v_bfe_u32 v2, v35, 1, 2")
    A("v_cmp_eq_u32 s[4:5], 1, v2")
    A("v_cmp_eq_u32 s[6:7], 2, v2")
    A("v_cmp_eq_u32 s[24:25], 3, v2")
    A("v_lshrrev_b32 v3, 4, v35")
    A("v_lshl_add_u32 v2, v3, 2, v2")
    A("s_lshl_b32 s42, s36, 6")
    A("v_lshl_add_u32 v36, v2, 2, s42")
    for k in range(3):
        A(f"s_waitcnt lgkmcnt({2-k})")
        c = "0" if k == 0 else "v[12:15]"
        A(f"v_mfma_f32_16x16x16_bf16 v[12:15], v[{W2F+2*k}:{W2F+2*k+1}], v[{4+2*k}:{5+2*k}], {c}")
    A("v_and_b32 v2, 7, v35")
    A("s_lshl_b32 s42, s38, 8")
    A("v_lshl_add_u32 v39, v2, 5, s42")
    A("s_mov_b32 s43, 0xbfb8aa3b")
    A("s_nop 4")
    A("v_cndmask_b32 v12, v12, v13, s[4:5]")
    A("v_cndmask_b32 v12, v12, v14, s[6:7]")
    A("v_cndmask_b32 v12, v12, v15, s[24:25]")
    A("v_cvt_pk_bf16_f32 v12, v12, v12")
    A("v_and_b32 v12, s44, v12")
    A("s_nop 1")
    A("v_add_f32_dpp v12, v12, v12 quad_perm:[1,0,3,2] row_mask:0xf bank_mask:0xf")
    A("v_cvt_pk_bf16_f32 v12, v12, v12")
    A("v_and_b32 v12, s44, v12")
    A("v_mul_f32 v12, s43, v12")
    A("v_exp_f32 v12, v12")
    A("s_nop 0")
    A("v_add_f32 v12, 1.0, v12")
    A("v_rcp_f32 v12, v12")
    A("s_nop 0")
    A("v_cvt_pk_bf16_f32 v12, v12, v12")
    A("v_and_b32 v12, s44, v12")
    A(f"ds_write_b32 v36, v12 offset:{L_SC}")
    A("s_waitcnt lgkmcnt(0)")
    A("s_barrier")
    SCR = 2
    A(f"ds_read_b128 v[{SCR}:{SCR+3}], v39 offset:{L_SC}")
    A(f"ds_read_b128 v[{SCR+4}:{SCR+7}], v39 offset:{L_SC+16}")
    stamp(5)
    T2 = 10
    for j in range(NL):
        tb = T2 + 8 * (j % 2)
        i2, h = j >> 1, j & 1
        for i in range(4):
            d = VD + 4 * j + i
            A(f"v_lshlrev_b32 v{tb+2*i}, 16, v{d}")
            A(f"v_and_b32 v{tb+2*i+1}, s44, v{d}")
        if h == 0:
            A(f"s_bfe_u32 s50, s49, {hex(0x10000 | i2)}")
            A("v_mad_i32_i24 v28, s50, v1, v0")
        else:
            A("v_mad_i32_i24 v29, s50, v27, v26")
        if j == 0:
            A("s_waitcnt lgkmcnt(0)")
        for i in range(4):
            A(f"v_pk_mul_f32 v[{tb+2*i}:{tb+2*i+1}], v[{tb+2*i}:{tb+2*i+1}], v[{SCR+2*i}:{SCR+2*i+1}]")
        for i in range(4):
            d = VD + 4 * j + i
            A(f"v_cvt_pk_bf16_f32 v{d}, v{tb+2*i}, v{tb+2*i+1}")
        r = VD + 4 * j
        A(f"buffer_store_dwordx4 v[{r}:{r+3}], v{28+h}, s[12:15], s{TAB+i2} offen {st}".rstrip())
        if j == 0:
            A("s_sub_u32 s42, s36, 4")
            A("s_cmp_ge_u32 s42, 3")
            A("s_cbranch_scc1 L_noreload")
            for k in range(6):
                A(f"ds_read_b128 v[{VS+4*k}:{VS+4*k+3}], v38 offset:{k*1024}")
            A("L_noreload:")
        if j == NL - 7:
            A("s_waitcnt lgkmcnt(0)")
    if stamps:
        A("L_out:")
        stamp(6)
        A("s_waitcnt vmcnt(0)")
        stamp(7)
        A("s_waitcnt lgkmcnt(0)")
        A("s_mov_b64 exec, 1")
        if diag:
            diag_tail(A, diag)
        A("s_mul_i32 s3, s2, 12")
        A("s_add_u32 s3, s3, s36")
        A("s_lshl_b32 s3, s3, 5")
        A(f"s_add_u32 s3, s3, {W_ST}")
        A("v_mov_b32 v1, 0")
        for i in range(8):
            A(f"v_mov_b32 v{4+i}, s{60+2*i}")
        A("buffer_store_dwordx4 v[4:7], v1, s[20:23], s3 offen")
        A("buffer_store_dwordx4 v[8:11], v1, s[20:23], s3 offen offset:16")
    A("L_end:")
    A("s_endpgm")
    A('.section .rodata,"a"')
    A(".p2align 6")
    A(".amdhsa_kernel standalone__channel_attn_cbam__vision_kernel")
    A("  .amdhsa_next_free_vgpr 168")
    A("  .amdhsa_next_free_sgpr 96")
    A("  .amdhsa_accum_offset 168")
    A("  .amdhsa_group_segment_fixed_size 0")
    A("  .amdhsa_kernarg_size 48")
    A("  .amdhsa_user_sgpr_count 2")
    A("  .amdhsa_user_sgpr_kernarg_segment_ptr 1")
    A("  .amdhsa_system_sgpr_workgroup_id_x 1")
    A("  .amdhsa_float_denorm_mode_32 3")
    A(".end_amdhsa_kernel")
    out = []
    for line in L:
        if line.startswith(("s_", "v_", "ds_", "buffer_", "global_")):
            out.append("    " + line)
        else:
            out.append(line)
    return "\n".join(out) + "\n"

def diag_tail(A, diag):
    idx, mul, base = diag[:3]
    dwg = diag[3] if len(diag) > 3 else 0
    dwv = diag[4] if len(diag) > 4 else 0
    A(f"s_cmp_lg_u32 s36, {dwv}")
    A("s_cbranch_scc1 L_end")
    A(f"s_cmp_lg_u32 s2, {dwg}")
    A("s_cbranch_scc1 L_end")
    if idx == -1:
        A("s_lshr_b32 s42, s56, 1")
        A("s_xor_b32 s42, s42, s56")
        A("s_and_b32 s42, s42, 0x7ff7ff")
        A("s_bcnt1_i32_b32 s42, s42")
    elif idx == -2:
        A("s_lshr_b32 s42, s56, 12")
        A("s_xor_b32 s42, s42, s56")
        A("s_and_b32 s42, s42, 0xfff")
        A("s_bcnt1_i32_b32 s42, s42")
    elif idx <= -10:
        reg, sel = (-idx) // 10, (-idx) % 10
        A(f"s_bfe_u32 s42, s{reg}, {hex([0x70000, 0x70007, 0x7000e][sel])}")
        A("v_mov_b32 v1, 0")
        for k, r in enumerate((8, 12, 16, 20)):
            A(f"v_mov_b32 v{4+k}, s{r}")
        A("buffer_store_dwordx4 v[4:7], v1, s[16:19], 0 offen offset:16")
    elif idx == -3:
        A("s_mov_b32 s42, s45")
    elif idx >= 100:
        A(f"s_sub_u32 s42, s{60+2*(idx//10%10)}, s{60+2*(idx%10)}")
    else:
        A(f"s_sub_u32 s42, s{60+2*idx}, s60")
    A(f"s_mul_i32 s42, s42, {mul}")
    A(f"s_add_u32 s42, s42, {base}")
    A("s_min_u32 s42, s42, 200000")
    A("L_dg3:")
    A("s_memrealtime s[78:79]")
    A("s_waitcnt lgkmcnt(0)")
    A("s_sub_u32 s43, s78, s60")
    A("s_cmp_lt_u32 s43, s42")
    A("s_cbranch_scc1 L_dg3")
    A("s_branch L_end")

if __name__ == "__main__":
    cfg = json.loads(sys.argv[1]) if len(sys.argv) > 1 else {}
    sys.stdout.write(gen(**cfg))
```

```python
import sys, json

HEADER = """; CBAM channel attention, x kept in registers across a grid-wide reduction (single pass over HBM)
"""

def gen(ld="nt", st="sc1", W=4, stamps=0, sleepA=0, sleepF=0, diag=None,
        wpos=-1, warm_out=1, STRIDE=5, ROT=5, MIX=0xAAAA, nstatic=4, maplead=0, grp=2, cpf=0, stop1=0,
        sset=1, THR=100, tagpos=24, poff=4096 * 33 + 640, ppol="nt", usemap=1, oracle=None, glc0=0, rawd=0, rnd=1, MIX2=0xFFFF, s1first=0, shash=1):
    if diag: stamps = 1
    NW, NL, VD = 12, 32, 40
    XB = 100663296
    L_W1, L_W2 = 0, 18432
    L_RED = 36864
    L_G = L_RED + 6144
    L_H = L_G + 768
    L_SC = L_H + 1536
    L_R2 = L_SC + 768
    L_CNT = L_R2 + 256
    L_PB = L_CNT + 16
    L_SP = L_CNT + 64
    L_END = L_SP + 3 * 6144
    W_F = 256 * 1536
    REPS = 48 * 128
    W_ST = 1 << 20
    SPIN = 1 << 16
    SW = 6 << 20
    TAB = 80
    assert 2 * nstatic >= W and (grp == 1 or W % 2 == 0)
    NS = 24
    L = []
    A = L.append
    def stamp(i):
        if stamps:
            A(f"s_memrealtime s[{60+2*i}:{61+2*i}]")
    A(HEADER.rstrip())
    A(f"; @launch grid=(256,1,1) block=({NW*64},1,1) lds={L_END}")
    A('.amdgcn_target "amdgcn-amd-amdhsa--gfx950"')
    A(".text")
    A(".globl standalone__channel_attn_cbam__vision_kernel")
    A(".p2align 8")
    A(".type standalone__channel_attn_cbam__vision_kernel,@function")
    A("standalone__channel_attn_cbam__vision_kernel:")
    stamp(0)
    A("s_load_dwordx4 s[4:7], s[0:1], 0")
    A("s_load_dwordx4 s[24:27], s[0:1], 16")
    A("s_load_dwordx4 s[28:31], s[0:1], 32")
    if rnd: A("s_memtime s[58:59]")
    A("s_cmp_ge_u32 s2, 256")
    A("s_cbranch_scc1 L_end")
    A("v_lshrrev_b32 v2, 6, v0")
    A("v_and_b32 v35, 63, v0")
    A("v_readfirstlane_b32 s36, v2")
    A("s_mov_b32 s22, 402653184"); A("s_mov_b32 s23, 0x20000")
    A("s_mov_b32 s18, 256"); A("s_mov_b32 s19, 0x20000")
    A("s_mov_b32 s35, 0x20000")
    if sset == 0:
        A("s_mov_b32 s40, s2")
    else:
        A("s_lshr_b32 s40, s2, 2")
        A("s_and_b32 s42, s2, 1")
        A("s_or_b32 s40, s40, s42")
        A("s_and_b32 s42, s2, 6")
        A(f"s_cselect_b32 s40, {NS}, s40")
    A("s_lshl_b32 s42, s36, 5")
    A("s_or_b32 s42, s42, s40")
    A(f"s_cmp_lt_u32 s42, {NS}")
    A("s_cbranch_scc1 L_scout")
    A("L_main:")
    A("v_lshlrev_b32 v36, 4, v35")
    A("s_mul_i32 s37, s36, 43691")
    A("s_lshr_b32 s37, s37, 17")
    A("s_mul_i32 s38, s37, 3")
    A("s_sub_u32 s38, s36, s38")
    A("s_mul_i32 s39, s37, 3072")
    A("s_lshl_b32 s42, s38, 7")
    A("s_add_u32 s39, s39, s42")
    def lane_offsets(b0, b1):
        A(f"v_lshrrev_b32 v{b0}, 3, v35")
        A(f"v_mul_u32_u24 v{b0}, 384, v{b0}")
        A(f"v_and_b32 v{b1}, 7, v35")
        A(f"v_lshl_add_u32 v{b0}, v{b1}, 4, v{b0}")
        A(f"v_add_u32 v{b0}, s39, v{b0}")
        A(f"v_add_u32 v{b1}, 12288, v{b0}")
    lane_offsets(0, 1)
    A("s_lshr_b32 s42, s2, 3")
    A("s_and_b32 s43, s2, 3")
    A("s_lshl_b32 s51, s42, 2")
    A("s_add_u32 s51, s51, s43")
    A("s_mul_i32 s41, s51, 49152")
    if ROT:
        A("s_lshr_b32 s43, s41, 21")
        A(f"s_mul_i32 s43, s43, {ROT}")
        A("s_and_b32 s53, s43, 15")
        A(f"s_mul_i32 s43, s53, {SW}")
        A(f"s_add_u32 s{TAB}, s43, s41")
    else:
        A("s_mov_b32 s53, 0")
        A(f"s_mov_b32 s{TAB}, s41")
    A("s_lshl_b32 s50, s2, 11")
    if shash:
        A("s_lshl_b32 s42, s42, 13")
        A("s_xor_b32 s50, s50, s42")
    A("s_and_b32 s50, s50, 0x2000")
    A("v_mov_b32 v34, s50")
    A("s_movk_i32 s49, 24576")
    A("s_mov_b32 s10, %d" % XB); A("s_mov_b32 s11, 0x20000")
    A(f"s_cmp_lt_u32 s40, {NS}")
    A("s_waitcnt lgkmcnt(0)")
    A("s_mov_b32 s8, s4"); A("s_mov_b32 s9, s5")
    A("s_cbranch_scc0 L_go")
    A("s_barrier")
    A("L_go:")
    if s1first: stamp(1)
    def late_setup():
        A("s_mov_b32 s20, s30"); A("s_mov_b32 s21, s31")
        A("s_mov_b32 s12, s26"); A("s_mov_b32 s13, s27")
        A("s_mov_b32 s16, s28"); A("s_mov_b32 s17, s29")
        A("s_mov_b32 s14, %d" % XB); A("s_mov_b32 s15, 0x20000")
        A("s_mov_b32 s45, 0")
    def scout():
        A(".p2align 6")
        A("L_scout:")
        A("s_getreg_b32 s48, hwreg(HW_REG_XCC_ID, 0, 3)")
        A("v_mov_b32 v2, 0")
        for i in range(4):
            A(f"v_mov_b32 v{8+i}, -1")
        A("v_lshlrev_b32 v6, 7, v35")
        A("s_lshl_b32 s55, s40, 11")
        A(f"s_add_u32 s55, s55, {W_F}")
        A(f"s_mov_b32 s34, {XB}")
        A("s_cmp_ge_u32 s40, 12")
        A("s_cselect_b32 s42, 12, 0")
        A("s_sub_u32 s42, s40, s42")
        A("s_lshl_b32 s42, s42, 23")
        A(f"s_add_u32 s42, s42, {(2 << 21) + (0 if rnd else poff & ~8192)}")
        A("s_mov_b64 exec, 0xffff")
        A("s_cmp_ge_u32 s40, 12")
        A("s_waitcnt lgkmcnt(0)")
        A("s_cselect_b32 s32, s26, s4")
        A("s_cselect_b32 s33, s27, s5")
        if rnd:
            A("s_lshl_b32 s43, s58, 5")
            A(f"s_and_b32 s43, s43, {0x1fff80 & ~8192}")
            A("s_add_u32 s42, s42, s43")
        A("s_and_b32 s43, s32, 0x1ffffc")
        A("s_sub_u32 s42, s42, s43")
        A("s_add_u32 s43, s42, 8192")
        A("s_mov_b32 s20, s30"); A("s_mov_b32 s21, s31")
        A("s_mov_b32 s16, s28"); A("s_mov_b32 s17, s29")
        A("s_lshl_b32 s3, 1, s40")
        A("v_mov_b32 v12, s3")
        A("s_lshl_b32 s52, s48, 29")
        A("s_cmp_eq_u32 s40, 0")
        A("s_cselect_b32 s52, s52, 0")
        A("s_cselect_b32 s54, -1, 0")
        A("v_or_b32 v14, s52, v12")
        A("s_cmp_ge_u32 s48, 4")
        A("s_cselect_b32 s48, s3, 0")
        A("s_xor_b32 s3, s3, s48")
        A(".p2align 6")
        A(f"buffer_load_dword v3, v2, s[32:35], s42 offen {ppol}".rstrip())
        A(f"buffer_load_dword v4, v2, s[32:35], s43 offen {ppol}".rstrip())
        A("buffer_load_dword v13, v2, s[20:23], 0 offen offset:4 sc1")
        A("buffer_store_dwordx4 v[8:11], v6, s[20:23], s55 offen sc1")
        A("s_waitcnt vmcnt(3)")
        A("s_memtime s[56:57]")
        A("s_waitcnt vmcnt(2)")
        A("s_memtime s[58:59]")
        A("s_mov_b64 exec, 1")
        A("s_waitcnt lgkmcnt(0)")
        A("s_sub_u32 s42, s58, s56")
        A(f"s_cmp_le_u32 s42, {THR}")
        A("s_cselect_b32 s48, s3, s48")
        A("v_mov_b32 v15, s48")
        A("buffer_atomic_or_x2 v[14:15], v2, s[16:19], 0 offen sc1")
        A("s_barrier")
        A("s_waitcnt vmcnt(1)")
        A("v_add_u32 v13, 1, v13")
        A("v_and_b32 v13, s54, v13")
        A("buffer_atomic_or_x2 v[12:13], v2, s[16:19], 0 offen offset:128 sc1")
        if rawd:
            A("v_mov_b32 v8, s42")
            A("s_lshl_b32 s55, s40, 2")
            A(f"s_add_u32 s55, s55, {2 << 20}")
            A("buffer_store_dword v8, v2, s[20:23], s55 offen")
        A("s_mov_b64 exec, -1")
        A(f"s_mov_b32 s40, {NS}")
        A("s_branch L_main")
    ops = []
    def weights():
        A("s_cmp_ge_u32 s36, 6")
        A("s_cselect_b32 s32, s24, s6")
        A("s_cselect_b32 s33, s25, s7")
        A("s_cselect_b32 s42, 18432, 0")
        A("s_mov_b32 s34, 18432")
        A("s_mul_i32 s43, s36, 3072")
        A("s_mov_b32 m0, s43")
        A("s_sub_u32 s42, s43, s42")
        for k in range(3):
            A(f"buffer_load_dwordx4 v36, s[32:35], s42 offen offset:{k*1024} lds")
            ops.append(("w", k))
    def addr(dst, src, i, h, fill):
        if h == 0 and i >= nstatic:
            A(f"v_readlane_b32 s50, v34, {i}")
            fill()
        A(f"v_add_u32 v{dst}, s50, v{src}")
        A(f"v_bfe_u32 v{dst}, v{dst}, 13, 1")
        A(f"v_mad_u32_u24 v{dst}, v{dst}, s49, v{src}")
    def issue(j):
        r = VD + 4 * j
        i, h = j >> 1, j & 1
        def nexttab():
            if i < 15:
                A(f"s_add_u32 s42, s{TAB+i}, {STRIDE*SW}")
                A(f"s_sub_u32 s43, s42, {XB}")
                A(f"s_cselect_b32 s{TAB+i+1}, s42, s43")
            else:
                A("s_nop 1")
        if i < nstatic:
            if i == 0:
                addr(38 + h, h, i, h, None)
            A(f"buffer_load_dwordx4 v[{r}:{r+3}], v{38+h}, s[8:11], s{TAB+i} offen {ld}".rstrip())
            if h == 0: nexttab()
        else:
            addr(39, h, i, h, nexttab)
            A(f"buffer_load_dwordx4 v[{r}:{r+3}], v39, s[8:11], s{TAB+i} offen {ld}".rstrip())
        ops.append(("d", j))
        if j == wpos:
            weights()
    def after(j):
        return len(ops) - 1 - ops.index(("d", j))
    def map_load():
        A("s_load_dwordx2 s[56:57], s[28:29], 0")
    def word_wait(reg, off, name):
        A("s_waitcnt lgkmcnt(0)")
        A(f"s_andn2_b32 s42, {hex((1 << NS) - 1)}, s{reg}")
        A(f"s_cbranch_scc0 L_{name}ok")
        A("v_mov_b32 v24, 0")
        A(f"L_{name}:")
        A(f"buffer_load_dwordx2 v[22:23], v24, s[16:19], 0 offen offset:{off} sc1")
        A("s_add_u32 s45, s45, 1")
        A("s_waitcnt vmcnt(0)")
        A(f"v_readfirstlane_b32 s{reg}, v22")
        A(f"v_readfirstlane_b32 s{reg+1}, v23")
        A(f"s_andn2_b32 s42, {hex((1 << NS) - 1)}, s{reg}")
        A(f"s_cbranch_scc0 L_{name}ok")
        A(f"s_cmp_lt_u32 s45, {SPIN}")
        A(f"s_cbranch_scc1 L_{name}")
        A(f"L_{name}ok:")
    def map_use():
        A("s_sub_u32 s42, s12, s8")
        A("s_add_u32 s42, s42, 0x800")
        A("s_bitcmp1_b32 s42, 12")
        A(f"s_mov_b32 s42, {MIX}")
        A(f"s_cmov_b32 s42, {MIX2}")
        A("v_add_u32 v19, s51, v35")
        A("v_and_b32 v19, 15, v19")
        A("v_bfe_u32 v19, s42, v19, 1")
        A("v_cmp_ne_u32 vcc, 0, v19")
        A("s_and_b32 s42, s8, 0x1fffff")
        A("s_and_b32 s43, s12, 0x1fffff")
        A("v_mov_b32 v20, s42")
        A("v_mov_b32 v21, s43")
        A("v_cndmask_b32 v20, v20, v21, vcc")
        A(f"v_mul_u32_u24 v18, {STRIDE}, v35")
        A("v_add_u32 v18, s53, v18")
        A("v_and_b32 v18, 15, v18")
        A("v_add_u32 v21, s41, v20")
        A("v_lshrrev_b32 v21, 21, v21")
        A("v_mad_u32_u24 v18, v18, 3, v21")
        A("v_lshrrev_b32 v21, 2, v18")
        A("v_min_u32 v21, 11, v21")
        A("v_mad_u32_u24 v19, v19, 12, v21")
        word_wait(56, 0, "map")
        if not s1first: stamp(1)
        if not usemap:
            return
        if oracle:
            om = sum(((oracle[0] >> (4 * k + 2)) & 1) << k for k in range(12)) | sum(((oracle[1] >> (4 * k + 2)) & 1) << (12 + k) for k in range(12))
            A(f"s_mov_b32 s57, {om}")
        A("s_lshr_b32 s42, s56, 29")
        A("s_add_u32 s42, s42, s2")
        A("s_lshr_b32 s42, s42, 2")
        A("v_lshrrev_b32 v19, v19, s57")
        A("v_xor_b32 v18, s42, v18")
        A("v_xor_b32 v19, v18, v19")
        A(f"s_mov_b32 exec_lo, {hex(0xffffffff & ~((1 << nstatic) - 1))}")
        A("v_lshl_add_u32 v34, v19, 13, v20")
        A("s_mov_b32 exec_lo, -1")
    if wpos < 0:
        weights()
    for j in range(W):
        issue(j)
    nxt = W
    late_setup()
    S, M, T = 2, 10, 18
    for i in range(8):
        A(f"v_mov_b32 v{S+i}, 0")
        A(f"v_mov_b32 v{M+i}, 0xff800000")
    A("s_mov_b32 s44, 0xffff0000")
    A(f"ds_write_b32 v{S}, v{S} offset:{L_CNT}")
    A("s_lshr_b32 s42, s2, 5")
    A("s_lshl_b32 s42, s42, 3")
    A("s_and_b32 s43, s2, 7")
    A("s_add_u32 s42, s42, s43")
    A("s_lshl_b32 s42, s42, 2")
    A("s_bfe_u32 s43, s2, 0x20003")
    A("s_add_u32 s47, s42, s43")
    if grp == 2:
        groups = [(j, j + 1) for j in range(0, NL - 2, 2)] + [(NL - 2,), (NL - 1,)]
        guse = nstatic - W // 2
    else:
        groups = [(j,) for j in range(NL)]
        guse = 2 * nstatic - W
    gld = max(guse - maplead, 0)
    for gi0, g in enumerate(groups):
        A(f"s_waitcnt vmcnt({after(g[-1])})")
        if gi0 == gld:
            map_load()
        if gi0 == guse:
            map_use()
        if g[0] == tagpos:
            A("s_load_dwordx2 s[58:59], s[28:29], 128")
        if g[0] == tagpos + 2:
            word_wait(58, 128, "tag")
            A("s_and_b32 s46, s59, 0xffff")
        for _ in g:
            if nxt < NL:
                issue(nxt); nxt += 1
        for gi, j in enumerate(g):
            for i in range(4):
                d = VD + 4 * j + i
                t = T + 8 * gi + 2 * i
                A(f"v_lshlrev_b32 v{t}, 16, v{d}")
                A(f"v_and_b32 v{t+1}, s44, v{d}")
        for gi, j in enumerate(g):
            for i in range(4):
                t = T + 8 * gi + 2 * i
                A(f"v_pk_add_f32 v[{S+2*i}:{S+2*i+1}], v[{S+2*i}:{S+2*i+1}], v[{t}:{t+1}]")
        for i in range(8):
            if len(g) == 2:
                A(f"v_max3_f32 v{M+i}, v{M+i}, v{T+i}, v{T+8+i}")
            else:
                A(f"v_max_f32 v{M+i}, v{M+i}, v{T+i}")
        if gi0 == len(groups) - 2:
            A("v_and_b32 v37, 7, v35")
            A("v_lshrrev_b32 v38, 3, v35")
            A("v_lshl_add_u32 v37, v37, 3, v38")
            A("s_mul_i32 s42, s37, 1536")
            A("s_lshl_b32 s43, s38, 9")
            A("s_add_u32 s42, s42, s43")
            A("v_lshl_add_u32 v37, v37, 3, s42")
            A("s_mul_i32 s43, s36, 768")
            A("v_add_u32 v38, s43, v36")
            A("s_mul_i32 s48, s2, 1536")
            A("s_add_u32 s48, s48, s43")
    stamp(2)
    for i in range(4):
        A(f"v_permlane32_swap_b32 v{S+i}, v{S+i+4}")
    for i in range(4):
        A(f"v_permlane32_swap_b32 v{M+i}, v{M+i+4}")
    for i in range(2):
        A(f"v_pk_add_f32 v[{S+2*i}:{S+2*i+1}], v[{S+2*i}:{S+2*i+1}], v[{S+4+2*i}:{S+5+2*i}]")
    for i in range(4):
        A(f"v_max_f32 v{M+i}, v{M+i}, v{M+i+4}")
    for i in range(2):
        A(f"v_permlane16_swap_b32 v{S+i}, v{S+i+2}")
    for i in range(2):
        A(f"v_permlane16_swap_b32 v{M+i}, v{M+i+2}")
    A(f"v_pk_add_f32 v[{S}:{S+1}], v[{S}:{S+1}], v[{S+2}:{S+3}]")
    for i in range(2):
        A(f"v_max_f32 v{M+i}, v{M+i}, v{M+i+2}")
    A(f"v_add_f32_dpp v{T}, v{S}, v{S} row_ror:8 row_mask:0xf bank_mask:0x3")
    A(f"v_max_f32_dpp v{T+1}, v{M}, v{M} row_ror:8 row_mask:0xf bank_mask:0x3")
    A("s_nop 0")
    A(f"v_add_f32_dpp v{T}, v{S+1}, v{S+1} row_ror:8 row_mask:0xf bank_mask:0xc")
    A(f"v_max_f32_dpp v{T+1}, v{M+1}, v{M+1} row_ror:8 row_mask:0xf bank_mask:0xc")
    A(f"ds_write_b64 v37, v[{T}:{T+1}] offset:{L_RED}")
    A("s_cmp_ge_u32 s36, 2")
    A("s_waitcnt lgkmcnt(0)")
    A("s_barrier")
    stamp(3)
    if stop1:
        for i in (4, 5): stamp(i)
        A("s_branch L_out")
    A("s_cbranch_scc1 L_role2")
    A("s_mov_b32 exec_hi, 0xffff")
    for q in range(4):
        A(f"ds_read_b128 v[{T+4*q}:{T+4*q+3}], v38 offset:{L_RED+q*1536}")
    A("s_waitcnt lgkmcnt(2)")
    A(f"v_add_f32 v{T}, v{T}, v{T+4}")
    A(f"v_add_f32 v{T+2}, v{T+2}, v{T+6}")
    A(f"v_max_f32 v{T+1}, v{T+1}, v{T+5}")
    A(f"v_max_f32 v{T+3}, v{T+3}, v{T+7}")
    A("s_waitcnt lgkmcnt(0)")
    A(f"v_add_f32 v{T+8}, v{T+8}, v{T+12}")
    A(f"v_add_f32 v{T+10}, v{T+10}, v{T+14}")
    A(f"v_max3_f32 v{T+1}, v{T+1}, v{T+9}, v{T+13}")
    A(f"v_max3_f32 v{T+3}, v{T+3}, v{T+11}, v{T+15}")
    A(f"v_add_f32 v{T}, v{T}, v{T+8}")
    A(f"v_add_f32 v{T+2}, v{T+2}, v{T+10}")
    A(f"v_or_b32 v{T+1}, s46, v{T+1}")
    A(f"v_or_b32 v{T+3}, s46, v{T+3}")
    A(f"buffer_store_dwordx4 v[{T}:{T+3}], v36, s[20:23], s48 offen sc1")
    A("s_mov_b64 exec, -1")
    A("s_branch L_common")
    A("L_role2:")
    A("s_cmp_eq_u32 s36, 3")
    A("s_cbranch_scc1 L_common")
    A("s_cmp_eq_u32 s36, 2")
    A("s_cbranch_scc0 L_role4")
    if warm_out:
        A(f"v_mul_u32_u24 v2, {SW}, v35")
        A("s_mov_b64 exec, 0xffff")
        A("buffer_load_dword v3, v2, s[12:15], s41 offen")
        A("s_mov_b64 exec, -1")
        A("s_waitcnt vmcnt(0)")
    A("s_branch L_common")
    A("L_role4:")
    VS = VD + 4 * (NL - 6)
    A("s_cmp_ge_u32 s36, 7")
    A("s_cbranch_scc1 L_role7")
    A("s_sub_u32 s43, s36, 4")
    A("s_mul_i32 s42, s43, 6144")
    A(f"s_add_u32 s42, s42, {L_SP}")
    A("v_add_u32 v38, s42, v36")
    for k in range(6):
        A(f"ds_write_b128 v38, v[{VS+4*k}:{VS+4*k+3}] offset:{k*1024}")
    A("v_lshrrev_b32 v2, 4, v35")
    A("v_lshlrev_b32 v2, 3, v2")
    A("v_bfe_u32 v3, v35, 2, 2")
    A("v_add_u32 v2, v2, v3")
    A("v_mul_u32_u24 v2, 96, v2")
    A("v_and_b32 v3, 3, v35")
    A("v_lshl_add_u32 v2, v3, 3, v2")
    A("s_lshl_b32 s42, s43, 5")
    A("v_add_u32 v2, s42, v2")
    A("s_waitcnt lgkmcnt(0)")
    for k in range(6):
        A(f"ds_read_b64_tr_b16 v[{VS+4*k}:{VS+4*k+1}], v2 offset:{L_W1 + k*3072}")
        A(f"ds_read_b64_tr_b16 v[{VS+4*k+2}:{VS+4*k+3}], v2 offset:{L_W1 + k*3072 + 384}")
    A("v_and_b32 v2, 1, v35")
    A("v_mul_u32_u24 v2, 384, v2")
    A("v_lshrrev_b32 v3, 4, v35")
    A("v_lshl_add_u32 v39, v3, 4, v2")
    A("L_role7:")
    A("s_cmp_ge_u32 s47, 48")
    A("s_cbranch_scc1 L_common")
    A("v_lshrrev_b32 v2, 1, v35")
    A("v_mul_u32_u24 v2, 1536, v2")
    A("v_and_b32 v3, 1, v35")
    A("v_lshl_add_u32 v2, v3, 4, v2")
    A("s_sub_u32 s43, s36, 4")
    A("s_mul_i32 s42, s43, 49152")
    A("s_lshl_b32 s48, s47, 5")
    A("s_add_u32 s42, s42, s48")
    A("v_lshrrev_b32 v9, 5, v35")
    A("v_lshl_add_u32 v9, v3, 1, v9")
    A("s_lshl_b32 s43, s43, 5")
    A("v_lshl_add_u32 v9, v9, 3, s43")
    A("v_mov_b32 v10, 1")
    A("v_mov_b32 v11, 0")
    A("v_and_b32 v12, 0xf0, v36")
    A("v_bfe_u32 v13, v35, 1, 3")
    A(f"v_mul_u32_u24 v13, {REPS}, v13")
    A("v_lshl_add_u32 v13, v3, 3, v13")
    A("s_lshl_b32 s48, s47, 7")
    A(f"s_add_u32 s48, s48, {W_F}")
    A("L_pollA:")
    A(f"buffer_load_dwordx4 v[4:7], v2, s[20:23], s42 offen sc1")
    A("s_add_u32 s45, s45, 1")
    A("s_waitcnt vmcnt(0)")
    A("v_cmp_ne_u16 vcc, s46, v5")
    A("v_cmp_ne_u16 s[4:5], s46, v7")
    A("s_or_b64 vcc, vcc, s[4:5]")
    A("s_cbranch_scc0 L_gotA")
    A("s_mov_b64 exec, vcc")
    if sleepA:
        A(f"s_sleep {sleepA}")
    A(f"s_cmp_lt_u32 s45, {SPIN}")
    A("s_cbranch_scc1 L_pollA")
    A("L_gotA:")
    A("s_mov_b64 exec, -1")
    A("v_and_b32 v5, s44, v5")
    A("v_and_b32 v7, s44, v7")
    A("v_permlane32_swap_b32 v4, v6")
    A("v_add_f32 v4, v4, v6")
    A("v_permlane32_swap_b32 v5, v7")
    A("v_mov_b32 v6, v4")
    A("v_max_f32 v5, v5, v7")
    A("v_mov_b32 v7, v5")
    A("v_permlane16_swap_b32 v4, v6")
    A("v_add_f32 v4, v4, v6")
    A("v_permlane16_swap_b32 v5, v7")
    A("v_max_f32 v5, v5, v7")
    for r in (8, 4, 2):
        A(f"v_add_f32_dpp v4, v4, v4 row_ror:{r} row_mask:0xf bank_mask:0xf")
        A("s_nop 0")
        A(f"v_max_f32_dpp v5, v5, v5 row_ror:{r} row_mask:0xf bank_mask:0xf")
    A(f"ds_write_b64 v9, v[4:5] offset:{L_R2}")
    A("s_mov_b64 exec, 1")
    A(f"ds_add_rtn_u32 v10, v11, v10 offset:{L_CNT}")
    A("s_mov_b64 exec, -1")
    A(f"ds_read_b128 v[4:7], v12 offset:{L_R2}")
    A("s_waitcnt lgkmcnt(1)")
    A("v_readfirstlane_b32 s42, v10")
    A("s_cmp_lg_u32 s42, 7")
    A("s_waitcnt lgkmcnt(0)")
    A("s_cbranch_scc1 L_common")
    for r in (2, 4, 8):
        A(f"v_add_f32_dpp v4, v4, v4 row_ror:{r} row_mask:0xf bank_mask:0xf")
        A(f"v_add_f32_dpp v6, v6, v6 row_ror:{r} row_mask:0xf bank_mask:0xf")
        A(f"v_max_f32_dpp v5, v5, v5 row_ror:{r} row_mask:0xf bank_mask:0xf")
        A(f"v_max_f32_dpp v7, v7, v7 row_ror:{r} row_mask:0xf bank_mask:0xf")
    A("v_mul_f32 v4, 0x36800000, v4")
    A("v_mul_f32 v6, 0x36800000, v6")
    A("v_cvt_pk_bf16_f32 v5, v5, v7")
    A("v_cvt_pk_bf16_f32 v4, v4, v6")
    A("s_mov_b64 exec, 0xffff")
    A("v_min_u32 v5, -2, v5")
    A("v_min_u32 v4, -2, v4")
    A("buffer_store_dwordx2 v[4:5], v13, s[20:23], s48 offen sc1")
    A("s_mov_b64 exec, -1")
    A("L_common:")
    A("v_lshrrev_b32 v2, 2, v35")
    A("v_mul_u32_u24 v2, 384, v2")
    A("v_and_b32 v3, 3, v35")
    A("v_lshl_add_u32 v2, v3, 3, v2")
    A("s_lshl_b32 s42, s36, 5")
    A("v_add_u32 v2, s42, v2")
    W2F = 28
    for k in range(3):
        A(f"ds_read_b64_tr_b16 v[{W2F+2*k}:{W2F+2*k+1}], v2 offset:{L_W2 + k*6144}")
    A("v_lshlrev_b32 v37, 3, v35")
    A("s_cmp_lg_u32 s36, 3")
    A("s_cbranch_scc1 L_b2")
    A("s_and_b32 s42, s2, 7")
    A(f"s_mul_i32 s42, s42, {REPS}")
    A(f"s_add_u32 s42, s42, {W_F}")
    A("v_lshlrev_b32 v2, 7, v35")
    A(f"v_add_u32 v3, {L_G}, v37")
    A("s_mov_b32 exec_hi, 0xffff")
    A("L_pollF:")
    A(f"buffer_load_dwordx4 v[4:7], v2, s[20:23], s42 offen sc1")
    A("s_add_u32 s45, s45, 1")
    A("s_waitcnt vmcnt(0)")
    A("v_max3_u32 v8, v4, v5, v6")
    A("v_max_u32 v8, v8, v7")
    A("v_cmp_eq_u32 vcc, -1, v8")
    A("s_cbranch_vccz L_gotF")
    A("s_mov_b64 exec, vcc")
    if sleepF:
        A(f"s_sleep {sleepF}")
    A(f"s_cmp_lt_u32 s45, {SPIN}")
    A("s_cbranch_scc1 L_pollF")
    A("L_gotF:")
    A("s_mov_b32 exec_lo, -1")
    A("s_mov_b32 exec_hi, 0xffff")
    A("ds_write2_b32 v3, v4, v6 offset0:0 offset1:1")
    A("ds_write2_b32 v3, v5, v7 offset0:96 offset1:97")
    A("s_mov_b64 exec, -1")
    A("L_b2:")
    A("s_sub_u32 s42, s36, 4")
    A("s_cmp_ge_u32 s42, 3")
    A("s_waitcnt lgkmcnt(0)")
    A("s_barrier")
    stamp(4)
    A("s_cbranch_scc1 L_l2")
    BF = 4
    for k in range(6):
        A(f"ds_read_b128 v[{BF+4*k}:{BF+4*k+3}], v39 offset:{L_G + k*64}")
    A("s_lshl_b32 s42, s42, 9")
    A("v_add_u32 v36, s42, v37")
    for k in range(6):
        A(f"s_waitcnt lgkmcnt({5-k})")
        c = "0" if k == 0 else "v[0:3]"
        A(f"v_mfma_f32_16x16x32_bf16 v[0:3], v[{VS+4*k}:{VS+4*k+3}], v[{BF+4*k}:{BF+4*k+3}], {c}")
    A("s_nop 7")
    MK = (4, 6, 24, 26)
    A("v_cvt_pk_bf16_f32 v4, v0, v1")
    A("v_cvt_pk_bf16_f32 v5, v2, v3")
    A("v_lshlrev_b32 v0, 16, v4"); A("v_and_b32 v1, s44, v4")
    A("v_lshlrev_b32 v2, 16, v5"); A("v_and_b32 v3, s44, v5")
    for i in range(4):
        A(f"v_cmp_lt_f32 s[{MK[i]}:{MK[i]+1}], 0, v{i}")
    for i in range(4):
        A(f"v_cndmask_b32 v{6+i}, 0, 1.0, s[{MK[i]}:{MK[i]+1}]")
    A("v_pk_mul_f32 v[0:1], v[0:1], v[6:7]")
    A("v_pk_mul_f32 v[2:3], v[2:3], v[8:9]")
    A("v_cvt_pk_bf16_f32 v4, v0, v1")
    A("v_cvt_pk_bf16_f32 v5, v2, v3")
    A(f"ds_write_b64 v36, v[4:5] offset:{L_H}")
    A("L_l2:")
    lane_offsets(0, 1)
    A("s_waitcnt lgkmcnt(0)")
    A("s_barrier")
    for k in range(3):
        A(f"ds_read_b64 v[{4+2*k}:{5+2*k}], v37 offset:{L_H + k*512}")
    A("v_bfe_u32 v2, v35, 1, 2")
    A("v_cmp_eq_u32 s[4:5], 1, v2")
    A("v_cmp_eq_u32 s[6:7], 2, v2")
    A("v_cmp_eq_u32 s[24:25], 3, v2")
    A("v_lshrrev_b32 v3, 4, v35")
    A("v_lshl_add_u32 v2, v3, 2, v2")
    A("s_lshl_b32 s42, s36, 6")
    A("v_lshl_add_u32 v36, v2, 2, s42")
    for k in range(3):
        A(f"s_waitcnt lgkmcnt({2-k})")
        c = "0" if k == 0 else "v[12:15]"
        A(f"v_mfma_f32_16x16x16_bf16 v[12:15], v[{W2F+2*k}:{W2F+2*k+1}], v[{4+2*k}:{5+2*k}], {c}")
    A("v_and_b32 v2, 7, v35")
    A("s_lshl_b32 s42, s38, 8")
    A("v_lshl_add_u32 v39, v2, 5, s42")
    A("s_mov_b32 s43, 0xbfb8aa3b")
    A("s_nop 4")
    A("v_cndmask_b32 v12, v12, v13, s[4:5]")
    A("v_cndmask_b32 v12, v12, v14, s[6:7]")
    A("v_cndmask_b32 v12, v12, v15, s[24:25]")
    A("v_cvt_pk_bf16_f32 v12, v12, v12")
    A("v_and_b32 v12, s44, v12")
    A("s_nop 1")
    A("v_add_f32_dpp v12, v12, v12 quad_perm:[1,0,3,2] row_mask:0xf bank_mask:0xf")
    A("v_cvt_pk_bf16_f32 v12, v12, v12")
    A("v_and_b32 v12, s44, v12")
    A("v_mul_f32 v12, s43, v12")
    A("v_exp_f32 v12, v12")
    A("s_nop 0")
    A("v_add_f32 v12, 1.0, v12")
    A("v_rcp_f32 v12, v12")
    A("s_nop 0")
    A("v_cvt_pk_bf16_f32 v12, v12, v12")
    A("v_and_b32 v12, s44, v12")
    A(f"ds_write_b32 v36, v12 offset:{L_SC}")
    A("s_waitcnt lgkmcnt(0)")
    A("s_barrier")
    SCR = 2
    A(f"ds_read_b128 v[{SCR}:{SCR+3}], v39 offset:{L_SC}")
    A(f"ds_read_b128 v[{SCR+4}:{SCR+7}], v39 offset:{L_SC+16}")
    stamp(5)
    T2 = 10
    for j in range(NL):
        tb = T2 + 8 * (j % 2)
        i2, h = j >> 1, j & 1
        if h == 0:
            A(f"v_readlane_b32 s50, v34, {i2}")
        for i in range(4):
            d = VD + 4 * j + i
            A(f"v_lshlrev_b32 v{tb+2*i}, 16, v{d}")
            A(f"v_and_b32 v{tb+2*i+1}, s44, v{d}")
        addr(28 + h, h, -1, h, None)
        if j == 0:
            A("s_waitcnt lgkmcnt(0)")
        for i in range(4):
            A(f"v_pk_mul_f32 v[{tb+2*i}:{tb+2*i+1}], v[{tb+2*i}:{tb+2*i+1}], v[{SCR+2*i}:{SCR+2*i+1}]")
        for i in range(4):
            d = VD + 4 * j + i
            A(f"v_cvt_pk_bf16_f32 v{d}, v{tb+2*i}, v{tb+2*i+1}")
        r = VD + 4 * j
        A(f"buffer_store_dwordx4 v[{r}:{r+3}], v{28+h}, s[12:15], s{TAB+i2} offen {st}".rstrip())
        if j == 0:
            A("s_sub_u32 s42, s36, 4")
            A("s_cmp_ge_u32 s42, 3")
            A("s_cbranch_scc1 L_noreload")
            for k in range(6):
                A(f"ds_read_b128 v[{VS+4*k}:{VS+4*k+3}], v38 offset:{k*1024}")
            A("L_noreload:")
        if j == NL - 7:
            A("s_waitcnt lgkmcnt(0)")
    if stamps:
        A("L_out:")
        stamp(6)
        A("s_waitcnt vmcnt(0)")
        stamp(7)
        A("s_waitcnt lgkmcnt(0)")
        A("s_mov_b64 exec, 1")
        if diag:
            diag_tail(A, diag)
        A("s_mul_i32 s3, s2, 12")
        A("s_add_u32 s3, s3, s36")
        A("s_lshl_b32 s3, s3, 5")
        A(f"s_add_u32 s3, s3, {W_ST}")
        A("v_mov_b32 v1, 0")
        for i in range(8):
            A(f"v_mov_b32 v{4+i}, s{60+2*i}")
        A("buffer_store_dwordx4 v[4:7], v1, s[20:23], s3 offen")
        A("buffer_store_dwordx4 v[8:11], v1, s[20:23], s3 offen offset:16")
    A("L_end:")
    A("s_endpgm")
    scout()
    A('.section .rodata,"a"')
    A(".p2align 6")
    A(".amdhsa_kernel standalone__channel_attn_cbam__vision_kernel")
    A("  .amdhsa_next_free_vgpr 168")
    A("  .amdhsa_next_free_sgpr 96")
    A("  .amdhsa_accum_offset 168")
    A("  .amdhsa_group_segment_fixed_size 0")
    A("  .amdhsa_kernarg_size 48")
    A("  .amdhsa_user_sgpr_count 2")
    A("  .amdhsa_user_sgpr_kernarg_segment_ptr 1")
    A("  .amdhsa_system_sgpr_workgroup_id_x 1")
    A("  .amdhsa_float_denorm_mode_32 3")
    A(".end_amdhsa_kernel")
    out = []
    for line in L:
        if line.startswith(("s_", "v_", "ds_", "buffer_", "global_")):
            out.append("    " + line)
        else:
            out.append(line)
    return "\n".join(out) + "\n"

def diag_tail(A, diag):
    idx, mul, base = diag[:3]
    dwg = diag[3] if len(diag) > 3 else 0
    dwv = diag[4] if len(diag) > 4 else 0
    A(f"s_cmp_lg_u32 s36, {dwv}")
    A("s_cbranch_scc1 L_end")
    A(f"s_cmp_lg_u32 s2, {dwg}")
    A("s_cbranch_scc1 L_end")
    if idx == -1:
        A("s_lshr_b32 s42, s57, 1")
        A("s_xor_b32 s42, s42, s57")
        A("s_and_b32 s42, s42, 0x7ff7ff")
        A("s_bcnt1_i32_b32 s42, s42")
    elif idx == -2:
        A("s_lshr_b32 s42, s56, 12")
        A("s_xor_b32 s42, s42, s56")
        A("s_and_b32 s42, s42, 0xfff")
        A("s_bcnt1_i32_b32 s42, s42")
    elif idx <= -10:
        reg, sel = (-idx) // 10, (-idx) % 10
        A(f"s_bfe_u32 s42, s{reg}, {hex([0x70000, 0x70007, 0x7000e][sel])}")
        A("v_mov_b32 v1, 0")
        for k, r in enumerate((8, 12, 16, 20)):
            A(f"v_mov_b32 v{4+k}, s{r}")
        A("buffer_store_dwordx4 v[4:7], v1, s[16:19], 0 offen offset:16")
    elif idx == -3:
        A("s_mov_b32 s42, s45")
    elif idx >= 100:
        A(f"s_sub_u32 s42, s{60+2*(idx//10%10)}, s{60+2*(idx%10)}")
    else:
        A(f"s_sub_u32 s42, s{60+2*idx}, s60")
    A(f"s_mul_i32 s42, s42, {mul}")
    A(f"s_add_u32 s42, s42, {base}")
    A("s_min_u32 s42, s42, 200000")
    A("L_dg3:")
    A("s_memrealtime s[78:79]")
    A("s_waitcnt lgkmcnt(0)")
    A("s_sub_u32 s43, s78, s60")
    A("s_cmp_lt_u32 s43, s42")
    A("s_cbranch_scc1 L_dg3")
    A("s_branch L_end")

if __name__ == "__main__":
    cfg = json.loads(sys.argv[1]) if len(sys.argv) > 1 else {}
    sys.stdout.write(gen(**cfg))
```

```python
import sys, json

HEADER = """; CBAM channel attention, x kept in registers across a grid-wide reduction (single pass over HBM)
"""

def gen(ld="nt", st="sc1", W=4, stamps=0, diag=None, wpos=20, warm_out=1, STRIDE=1, ROT=0, MIX=0xAAAA, MIX2=0xEEEE,
        nstatic=4, maplead=0, grp=2, cpf=0, cpos=18, stop1=0, THR=100, tagpos=24, ppol="nt", usemap=1, oracle=None,
        rawd=0, s1first=0, W2=0, gW2=0, word=1, bst=0, pubpol="", NWT=48, slp=6, slpthr=16, ry0=16, nearB=1, gate=0, wopos=22):
    if diag: stamps = 1
    NW, NL, VD = 12, 32, 40
    XB = 100663296
    L_W1, L_W2 = 0, 18432
    L_RED = 36864
    L_G = L_RED + 6144
    L_H = L_G + 768
    L_SC = L_H + 1536
    L_FL = L_SC + 768
    L_SP = L_FL + 64
    L_END = L_SP + 3 * 6144
    W_A = 256 << 10
    W_ST = 1 << 20
    SPIN = 1 << 17
    SW = 6 << 20
    TAB = 80
    NS = 25
    assert 2 * nstatic >= W and (grp == 1 or W % 2 == 0)
    L = []
    A = L.append
    def stamp(i):
        if stamps:
            A(f"s_memrealtime s[{60+2*i}:{61+2*i}]")
    A(HEADER.rstrip())
    A(f"; @launch grid=(256,1,1) block=({NW*64},1,1) lds={L_END}")
    A('.amdgcn_target "amdgcn-amd-amdhsa--gfx950"')
    A(".text")
    A(".globl standalone__channel_attn_cbam__vision_kernel")
    A(".p2align 8")
    A(".type standalone__channel_attn_cbam__vision_kernel,@function")
    A("standalone__channel_attn_cbam__vision_kernel:")
    stamp(0)
    A("s_load_dwordx4 s[4:7], s[0:1], 0")
    A("s_load_dwordx4 s[24:27], s[0:1], 16")
    A("s_load_dwordx4 s[28:31], s[0:1], 32")
    A("s_memtime s[58:59]")
    A("s_cmp_ge_u32 s2, 256")
    A("s_cbranch_scc1 L_end")
    A("v_lshrrev_b32 v2, 6, v0")
    A("v_and_b32 v35, 63, v0")
    A("v_readfirstlane_b32 s36, v2")
    A("s_mov_b32 s35, 0x20000")
    A("s_lshr_b32 s40, s2, 2")
    A("s_and_b32 s42, s2, 1")
    A("s_or_b32 s40, s40, s42")
    A("s_and_b32 s42, s2, 6")
    A(f"s_cselect_b32 s40, {NS}, s40")
    A("s_lshl_b32 s42, s36, 5")
    A("s_or_b32 s42, s42, s40")
    A(f"s_cmp_lt_u32 s42, {NS}")
    A("s_cbranch_scc1 L_scout")
    A("L_main:")
    A("s_mul_i32 s37, s36, 43691")
    A("s_lshr_b32 s37, s37, 17")
    A("s_mul_i32 s38, s37, 3")
    A("s_sub_u32 s38, s36, s38")
    A("s_mul_i32 s39, s37, 3072")
    A("s_lshl_b32 s42, s38, 7")
    A("s_add_u32 s39, s39, s42")
    def lane_offsets(b0, b1):
        A(f"v_lshrrev_b32 v{b0}, 3, v35")
        A(f"v_mul_u32_u24 v{b0}, 384, v{b0}")
        A(f"v_and_b32 v{b1}, 7, v35")
        A(f"v_lshl_add_u32 v{b0}, v{b1}, 4, v{b0}")
        A(f"v_add_u32 v{b0}, s39, v{b0}")
        A(f"v_add_u32 v{b1}, 12288, v{b0}")
    lane_offsets(0, 1)
    A("s_lshr_b32 s42, s2, 3")
    A("s_and_b32 s43, s2, 3")
    A("s_lshl_b32 s51, s42, 2")
    A("s_add_u32 s51, s51, s43")
    if ROT:
        A("s_mul_i32 s41, s51, 49152")
        A("s_lshr_b32 s43, s41, 21")
        A(f"s_mul_i32 s43, s43, {ROT}")
        A("s_and_b32 s53, s43, 15")
        A(f"s_mul_i32 s43, s53, {SW}")
        A(f"s_add_u32 s{TAB}, s43, s41")
    else:
        A(f"s_mul_i32 s{TAB}, s51, 49152")
    A("s_lshl_b32 s50, s2, 11")
    A("s_lshl_b32 s42, s42, 13")
    A("s_xor_b32 s50, s50, s42")
    A("s_and_b32 s50, s50, 0x2000")
    A("s_movk_i32 s49, 24576")
    def addr(dst, src):
        A(f"v_add_u32 v{dst}, s50, v{src}")
        A(f"v_bfe_u32 v{dst}, v{dst}, 13, 1")
        A(f"v_mad_u32_u24 v{dst}, v{dst}, s49, v{src}")
    addr(38, 0)
    addr(39, 1)
    A("s_mov_b32 s10, %d" % XB); A("s_mov_b32 s11, 0x20000")
    A(f"s_cmp_lt_u32 s40, {NS}")
    A("s_waitcnt lgkmcnt(0)")
    A("s_mov_b32 s8, s4"); A("s_mov_b32 s9, s5")
    A("s_cbranch_scc0 L_go")
    A("s_barrier")
    A("L_go:")
    if s1first: stamp(1)
    def ws_srd():
        A("s_add_u32 s20, s30, 0x400000")
        A("s_addc_u32 s21, s31, 0")
        A("s_and_b32 s20, s20, 0xffe00000")
        A("s_mov_b32 s22, 0x400000"); A("s_mov_b32 s23, 0x20000")
    def dbg_srd():
        A("s_mov_b32 s16, s28"); A("s_mov_b32 s17, s29")
        A("s_mov_b32 s18, 256"); A("s_mov_b32 s19, 0x20000")
    def late_setup():
        ws_srd()
        dbg_srd()
        A("s_mov_b32 s12, s26"); A("s_mov_b32 s13, s27")
        A("s_mov_b32 s14, %d" % XB); A("s_mov_b32 s15, 0x20000")
        A("s_mov_b32 s45, 0")
        A("v_mov_b32 v34, s50")
        A("v_lshlrev_b32 v36, 4, v35")
        if not ROT:
            A(f"s_mov_b32 s41, s{TAB}")
            A("s_mov_b32 s53, 0")
    def scout():
        A(".p2align 6")
        A("L_scout:")
        A("s_getreg_b32 s48, hwreg(HW_REG_XCC_ID, 0, 3)")
        A("s_mov_b64 exec, 1")
        A("v_mov_b32 v2, 0")
        A(f"s_mov_b32 s34, {XB}")
        A("s_mul_i32 s55, s40, 43")
        A("s_lshr_b32 s55, s55, 9")
        A("s_mul_i32 s42, s55, 12")
        A("s_sub_u32 s42, s40, s42")
        A("s_lshl_b32 s42, s42, 23")
        A("s_bitset1_b32 s42, 22")
        A("s_lshl_b32 s3, 1, s40")
        A("s_lshl_b32 s52, s48, 29")
        A("s_cmp_eq_u32 s40, 0")
        A("s_cselect_b32 s52, s52, 0")
        A("s_or_b32 s52, s52, s3")
        A("v_mov_b32 v14, s52")
        A("s_cmp_ge_u32 s48, 4")
        A("s_cselect_b32 s48, s3, 0")
        A("s_xor_b32 s3, s3, s48")
        A("s_cmp_eq_u32 s55, 1")
        A("s_waitcnt lgkmcnt(0)")
        A("s_cselect_b32 s32, s26, s4")
        A("s_cselect_b32 s33, s27, s5")
        A("s_cmp_eq_u32 s55, 2")
        A("s_cselect_b32 s32, s30, s32")
        A("s_cselect_b32 s33, s31, s33")
        A("s_lshl_b32 s43, s58, 5")
        A(f"s_and_b32 s43, s43, {0x1fff80 & ~8192}")
        A("s_add_u32 s42, s42, s43")
        A("s_and_b32 s43, s32, 0x1ffffc")
        A("s_sub_u32 s42, s42, s43")
        A("s_add_u32 s43, s42, 8192")
        dbg_srd()
        A(".p2align 6")
        A(f"buffer_load_dword v3, v2, s[32:35], s42 offen {ppol}".rstrip())
        A(f"buffer_load_dword v4, v2, s[32:35], s43 offen {ppol}".rstrip())
        A("s_waitcnt vmcnt(1)")
        A("s_memtime s[56:57]")
        A("s_waitcnt vmcnt(0)")
        A("s_memtime s[58:59]")
        A("s_waitcnt lgkmcnt(0)")
        A("s_sub_u32 s42, s58, s56")
        A(f"s_cmpk_le_u32 s42, {THR}")
        A("s_cselect_b32 s48, s3, s48")
        A("v_mov_b32 v15, s48")
        A("buffer_atomic_or_x2 v[14:15], v2, s[16:19], 0 offen sc1")
        A("s_cmp_lg_u32 s40, 0")
        A("s_cbranch_scc1 L_notag")
        ws_srd()
        A(f"s_mov_b32 s43, {W_A}")
        A("buffer_load_dword v13, v2, s[20:23], s43 offen offset:4 sc1")
        A("s_barrier")
        A("s_waitcnt vmcnt(0)")
        A("v_add_u32 v13, 1, v13")
        A("v_or_b32 v13, 0x10000, v13")
        A("buffer_store_dword v13, v2, s[16:19], 0 offen offset:128 sc1")
        A("s_branch L_scoutdone")
        A("L_notag:")
        A("s_barrier")
        A("L_scoutdone:")
        if rawd:
            ws_srd()
            A("v_mov_b32 v8, s42")
            A("s_lshl_b32 s55, s40, 2")
            A(f"s_add_u32 s55, s55, {2 << 20}")
            A("buffer_store_dword v8, v2, s[20:23], s55 offen")
        A("s_mov_b64 exec, -1")
        A(f"s_mov_b32 s40, {NS}")
        A("s_branch L_main")
    ops = []
    def weights():
        A("s_cmp_ge_u32 s36, 6")
        A("s_cselect_b32 s32, s24, s6")
        A("s_cselect_b32 s33, s25, s7")
        A("s_cselect_b32 s42, 18432, 0")
        A("s_mov_b32 s34, 18432")
        A("s_mul_i32 s43, s36, 3072")
        A("s_mov_b32 m0, s43")
        A("s_sub_u32 s42, s43, s42")
        for k in range(3):
            A(f"buffer_load_dwordx4 v36, s[32:35], s42 offen offset:{k*1024} lds")
            ops.append(("w", k))
    def issue(j):
        r = VD + 4 * j
        i, h = j >> 1, j & 1
        def nexttab(pad):
            if i < 15 and STRIDE == 1 and not ROT:
                A(f"s_add_u32 s{TAB+i+1}, s{TAB+i}, {SW}")
                if pad: A("s_nop 0")
            elif i < 15:
                A(f"s_add_u32 s42, s{TAB+i}, {STRIDE*SW}")
                A(f"s_sub_u32 s43, s42, {XB}")
                A(f"s_cselect_b32 s{TAB+i+1}, s42, s43")
            elif pad:
                A("s_nop 1")
        if i < nstatic:
            A(f"buffer_load_dwordx4 v[{r}:{r+3}], v{38+h}, s[8:11], s{TAB+i} offen {ld}".rstrip())
            if h == 0: nexttab(0)
        else:
            if h == 0:
                A(f"v_readlane_b32 s50, v34, {i}")
                nexttab(1)
            addr(39, h)
            A(f"buffer_load_dwordx4 v[{r}:{r+3}], v39, s[8:11], s{TAB+i} offen {ld}".rstrip())
        ops.append(("d", j))
        if j == wpos:
            weights()
        if j == wopos and warm_out == 2:
            A("s_cmp_lg_u32 s36, 2")
            A("s_cbranch_scc1 L_nowarm")
            A(f"v_mul_u32_u24 v38, {SW}, v35")
            A("s_mov_b64 exec, 0xffff")
            A("buffer_load_dword v38, v38, s[12:15], s41 offen nt")
            A("s_mov_b64 exec, -1")
            A("L_nowarm:")
        if j == cpos and cpf:
            A(f"s_cmp_ge_u32 s2, {cpf}")
            A("s_cbranch_scc1 L_nocpf")
            A("s_cmp_ge_u32 s36, 1")
            A("s_cbranch_scc1 L_nocpf")
            A("s_getpc_b64 s[54:55]")
            A("L_pc:")
            A("v_lshlrev_b32 v38, 7, v35")
            A("v_add_u32 v38, L_tail-L_pc, v38")
            A("v_min_u32 v38, L_end-L_pc, v38")
            A("global_load_dword v38, v38, s[54:55]")
            A("L_nocpf:")
    def after(j):
        return len(ops) - 1 - ops.index(("d", j))
    def word_wait(reg, off, name, mask):
        A("s_waitcnt lgkmcnt(0)")
        A(f"s_andn2_b32 s42, {hex(mask)}, s{reg}")
        A(f"s_cbranch_scc0 L_{name}ok")
        A("v_mov_b32 v24, 0")
        A(f"L_{name}:")
        A(f"buffer_load_dwordx2 v[22:23], v24, s[16:19], 0 offen offset:{off} sc1")
        A("s_add_u32 s45, s45, 1")
        A("s_waitcnt vmcnt(0)")
        A(f"v_readfirstlane_b32 s{reg}, v22")
        A(f"v_readfirstlane_b32 s{reg+1}, v23")
        A(f"s_andn2_b32 s42, {hex(mask)}, s{reg}")
        A(f"s_cbranch_scc0 L_{name}ok")
        A(f"s_cmp_lt_u32 s45, {SPIN}")
        A(f"s_cbranch_scc1 L_{name}")
        A(f"L_{name}ok:")
    def map_use():
        A("s_sub_u32 s42, s12, s8")
        A("s_add_u32 s42, s42, 0x800")
        A("s_bitcmp1_b32 s42, 12")
        A(f"s_mov_b32 s42, {MIX}")
        A(f"s_cmov_b32 s42, {MIX2}")
        A("v_add_u32 v19, s51, v35")
        A("v_and_b32 v19, 15, v19")
        A("v_bfe_u32 v19, s42, v19, 1")
        A("v_cmp_ne_u32 vcc, 0, v19")
        A("s_and_b32 s42, s8, 0x1fffff")
        A("s_and_b32 s43, s12, 0x1fffff")
        A("v_mov_b32 v20, s42")
        A("v_mov_b32 v21, s43")
        A("v_cndmask_b32 v20, v20, v21, vcc")
        A(f"v_mul_u32_u24 v18, {STRIDE}, v35")
        A("v_add_u32 v18, s53, v18")
        A("v_and_b32 v18, 15, v18")
        A("v_add_u32 v21, s41, v20")
        A("v_lshrrev_b32 v21, 21, v21")
        A("v_mad_u32_u24 v18, v18, 3, v21")
        A("v_lshrrev_b32 v21, 2, v18")
        A("v_min_u32 v21, 11, v21")
        A("v_mad_u32_u24 v19, v19, 12, v21")
        word_wait(56, 0, "map", (1 << NS) - 1)
        if not s1first: stamp(1)
        A("s_lshr_b32 s56, s56, 29")
        if not usemap:
            return
        if oracle:
            om = sum(((oracle[0] >> (4 * k + 2)) & 1) << k for k in range(12)) | sum(((oracle[1] >> (4 * k + 2)) & 1) << (12 + k) for k in range(12))
            A("s_and_b32 s57, s57, 0x1000000")
            A(f"s_or_b32 s57, s57, {om}")
        A("s_add_u32 s42, s56, s2")
        A("s_lshr_b32 s42, s42, 2")
        A("v_lshrrev_b32 v19, v19, s57")
        A("v_xor_b32 v18, s42, v18")
        A("v_xor_b32 v19, v18, v19")
        A(f"s_mov_b32 exec_lo, {hex(0xffffffff & ~((1 << nstatic) - 1))}")
        A("v_lshl_add_u32 v34, v19, 13, v20")
        A("s_mov_b32 exec_lo, -1")
    for j in range(W):
        issue(j)
    nxt = W
    late_setup()
    S, M, T = 2, 10, 18
    for i in range(8):
        A(f"v_mov_b32 v{S+i}, 0")
        A(f"v_mov_b32 v{M+i}, 0xff800000")
    A("s_mov_b32 s44, 0xffff0000")
    if gate: A(f"ds_write_b32 v{S}, v{S} offset:{L_FL}")
    if grp == 2:
        groups = [(j, j + 1) for j in range(0, NL - 2, 2)] + [(NL - 2,), (NL - 1,)]
        guse = nstatic - W // 2
    else:
        groups = [(j,) for j in range(NL)]
        guse = 2 * nstatic - W
    gld = max(guse - maplead, 0)
    for gi0, g in enumerate(groups):
        A(f"s_waitcnt vmcnt({after(g[-1])})")
        if gi0 == gld:
            A("s_load_dwordx2 s[56:57], s[28:29], 0")
        if gi0 == guse:
            map_use()
        if g[0] == tagpos:
            A("s_load_dwordx2 s[58:59], s[28:29], 128")
        if g[0] == tagpos + 2:
            word_wait(58, 128, "tag", 0x10000)
            A("s_and_b32 s46, s58, 0xffff")
        for _ in g:
            if nxt < NL:
                issue(nxt); nxt += 1
        if W2 and gi0 >= max(gW2, guse):
            extra = 0
            while nxt < NL and nxt - g[-1] - 1 < W2 and extra < 2:
                issue(nxt); nxt += 1; extra += 1
        for gi, j in enumerate(g):
            for i in range(4):
                d = VD + 4 * j + i
                t = T + 8 * gi + 2 * i
                A(f"v_lshlrev_b32 v{t}, 16, v{d}")
                A(f"v_and_b32 v{t+1}, s44, v{d}")
        for gi, j in enumerate(g):
            for i in range(4):
                t = T + 8 * gi + 2 * i
                A(f"v_pk_add_f32 v[{S+2*i}:{S+2*i+1}], v[{S+2*i}:{S+2*i+1}], v[{t}:{t+1}]")
        for i in range(8):
            if len(g) == 2:
                A(f"v_max3_f32 v{M+i}, v{M+i}, v{T+i}, v{T+8+i}")
            else:
                A(f"v_max_f32 v{M+i}, v{M+i}, v{T+i}")
        if gi0 == len(groups) - 2:
            A("v_and_b32 v37, 6, v35")
            A("v_lshrrev_b32 v38, 3, v35")
            A("v_lshl_add_u32 v37, v37, 2, v38")
            A("v_and_b32 v38, 1, v35")
            A("v_lshl_add_u32 v37, v37, 1, v38")
            A("s_mul_i32 s42, s37, 1536")
            A("s_lshl_b32 s43, s38, 9")
            A("s_add_u32 s42, s42, s43")
            A("v_lshl_add_u32 v37, v37, 3, s42")
            A("s_mul_i32 s43, s36, 768")
            A("v_add_u32 v38, s43, v36")
            A("s_mul_i32 s48, s2, 1536")
            A("s_add_u32 s48, s48, s43")
            A(f"s_add_u32 s48, s48, {W_A}")
    A("L_tail:")
    stamp(2)
    for i in range(4):
        A(f"v_permlane32_swap_b32 v{S+i}, v{S+i+4}")
    for i in range(4):
        A(f"v_permlane32_swap_b32 v{M+i}, v{M+i+4}")
    for i in range(2):
        A(f"v_pk_add_f32 v[{S+2*i}:{S+2*i+1}], v[{S+2*i}:{S+2*i+1}], v[{S+4+2*i}:{S+5+2*i}]")
    for i in range(4):
        A(f"v_max_f32 v{M+i}, v{M+i}, v{M+i+4}")
    for i in range(2):
        A(f"v_permlane16_swap_b32 v{S+i}, v{S+i+2}")
    for i in range(2):
        A(f"v_permlane16_swap_b32 v{M+i}, v{M+i+2}")
    A(f"v_pk_add_f32 v[{S}:{S+1}], v[{S}:{S+1}], v[{S+2}:{S+3}]")
    for i in range(2):
        A(f"v_max_f32 v{M+i}, v{M+i}, v{M+i+2}")
    A(f"v_add_f32_dpp v{T}, v{S}, v{S} row_ror:8 row_mask:0xf bank_mask:0x3")
    A(f"v_max_f32_dpp v{T+1}, v{M}, v{M} row_ror:8 row_mask:0xf bank_mask:0x3")
    A("s_nop 0")
    A(f"v_add_f32_dpp v{T}, v{S+1}, v{S+1} row_ror:8 row_mask:0xf bank_mask:0xc")
    A(f"v_max_f32_dpp v{T+1}, v{M+1}, v{M+1} row_ror:8 row_mask:0xf bank_mask:0xc")
    A(f"ds_write_b64 v37, v[{T}:{T+1}] offset:{L_RED}")
    A("s_cmp_ge_u32 s36, 2")
    A("s_waitcnt lgkmcnt(0)")
    A("s_barrier")
    stamp(3)
    if bst:
        A("s_mov_b32 s62, s60"); A("s_mov_b32 s64, s60"); A("s_mov_b32 s72, s60")
    if stop1:
        for i in (4, 5): stamp(i)
        A("s_branch L_out")
    A("s_cbranch_scc1 L_role2")
    A("s_mov_b32 exec_hi, 0xffff")
    for q in range(4):
        A(f"ds_read_b128 v[{T+4*q}:{T+4*q+3}], v38 offset:{L_RED+q*1536}")
    A("s_waitcnt lgkmcnt(2)")
    A(f"v_add_f32 v{T}, v{T}, v{T+4}")
    A(f"v_add_f32 v{T+2}, v{T+2}, v{T+6}")
    A(f"v_max_f32 v{T+1}, v{T+1}, v{T+5}")
    A(f"v_max_f32 v{T+3}, v{T+3}, v{T+7}")
    A("s_waitcnt lgkmcnt(0)")
    A(f"v_add_f32 v{T+8}, v{T+8}, v{T+12}")
    A(f"v_add_f32 v{T+10}, v{T+10}, v{T+14}")
    A(f"v_max3_f32 v{T+1}, v{T+1}, v{T+9}, v{T+13}")
    A(f"v_max3_f32 v{T+3}, v{T+3}, v{T+11}, v{T+15}")
    A(f"v_add_f32 v{T}, v{T}, v{T+8}")
    A(f"v_add_f32 v{T+2}, v{T+2}, v{T+10}")
    A(f"v_or_b32 v{T+1}, s46, v{T+1}")
    A(f"v_or_b32 v{T+3}, s46, v{T+3}")
    A(f"buffer_store_dwordx4 v[{T}:{T+3}], v36, s[20:23], s48 offen {pubpol}".rstrip())
    if bst: stamp(1)
    A("s_mov_b64 exec, -1")
    A("s_branch L_common")
    A("L_role2:")
    A("s_cmp_ge_u32 s36, 4")
    A("s_cbranch_scc1 L_role4")
    A("s_cmp_eq_u32 s36, 3")
    A("s_cbranch_scc1 L_role3")
    if warm_out == 1:
        A(f"v_mul_u32_u24 v2, {SW}, v35")
        A("s_mov_b64 exec, 0xffff")
        A("buffer_load_dword v3, v2, s[12:15], s41 offen")
        A("s_mov_b64 exec, -1")
        A("s_waitcnt vmcnt(0)")
    A("s_branch L_common")
    A("L_role3:")
    A("s_lshr_b32 s47, s2, 3")
    A(f"s_sub_u32 s47, s47, {ry0}")
    A("s_cmp_ge_u32 s47, 12")
    A("s_cbranch_scc1 L_common")
    A("v_lshrrev_b32 v2, 3, v35")
    A("v_mul_u32_u24 v20, 12288, v2")
    A("v_and_b32 v3, 0x70, v36")
    A("v_add_u32 v20, v20, v3")
    A("s_and_b32 s43, s2, 7")
    A("s_mul_i32 s42, s43, 1536")
    A("s_lshl_b32 s47, s47, 7")
    A("s_add_u32 s42, s42, s47")
    A(f"s_add_u32 s4, s42, {W_A}")
    for k in range(1, 4):
        A(f"s_add_u32 s{4+k}, s{3+k}, 98304")
    A("v_and_b32 v2, 3, v2")
    A("v_add_u32 v21, s56, v2")
    A("s_lshr_b32 s48, s57, 22")
    A("v_xor_b32 v21, s48, v21")
    if nearB == 2: A("v_not_b32 v21, v21")
    A("v_and_b32 v21, 4, v21")
    if nearB == 0: A("v_mov_b32 v21, 0")
    A("v_lshlrev_b32 v21, 11, v21")
    A("v_lshl_add_u32 v21, v2, 15, v21")
    A("v_lshrrev_b32 v3, 1, v3")
    A("v_add_u32 v21, v21, v3")
    A("v_lshrrev_b32 v3, 5, v35")
    A("v_lshl_add_u32 v21, v3, 6, v21")
    A(f"v_xor_b32 v22, {0x22000 if nearB else 0x20000}, v21")
    A("s_bfe_u32 s43, s2, 0x10002")
    A("s_mul_i32 s43, s43, %d" % (16384 - 4 * 1536))
    A("s_add_u32 s48, s42, s43")
    A("L_pollA:")
    for k in range(4):
        A(f"buffer_load_dwordx4 v[{4+4*k}:{7+4*k}], v20, s[20:23], s{4+k} offen sc1")
    A("s_add_u32 s45, s45, 1")
    for k in range(4):
        A(f"s_waitcnt vmcnt({3-k})")
        if k == 0:
            A("v_xor_b32 v2, s46, v5")
        else:
            A(f"v_bitop3_b32 v2, v2, v{5+4*k}, s46 bitop3:0xf6")
        A(f"v_bitop3_b32 v2, v2, v{7+4*k}, s46 bitop3:0xf6")
    A("v_cmp_ne_u16 vcc, 0, v2")
    A("s_cbranch_vccz L_gotA")
    A(f"s_cmp_lt_u32 s45, {SPIN}")
    A("s_cbranch_scc1 L_pollA")
    A("L_gotA:")
    if bst: stamp(2)
    A("v_add_f32 v4, v4, v8")
    A("v_add_f32 v6, v6, v10")
    A("v_add_f32 v12, v12, v16")
    A("v_add_f32 v14, v14, v18")
    for k in range(8):
        A(f"v_and_b32 v{5+2*k}, s44, v{5+2*k}")
    A("v_add_f32 v4, v4, v12")
    A("v_add_f32 v6, v6, v14")
    A("v_max3_f32 v5, v5, v9, v13")
    A("v_max3_f32 v7, v7, v11, v15")
    A("v_max_f32 v5, v5, v17")
    A("v_max_f32 v7, v7, v19")
    def fold345():
        A("v_permlane32_swap_b32 v4, v6")
        A("v_add_f32 v4, v4, v6")
        A("v_permlane32_swap_b32 v5, v7")
        A("v_mov_b32 v6, v4")
        A("v_max_f32 v5, v5, v7")
        A("v_mov_b32 v7, v5")
        A("v_permlane16_swap_b32 v4, v6")
        A("v_add_f32 v4, v4, v6")
        A("v_permlane16_swap_b32 v5, v7")
        A("v_max_f32 v5, v5, v7")
        A("v_add_f32_dpp v4, v4, v4 row_ror:8 row_mask:0xf bank_mask:0xf")
        A("s_nop 0")
        A("v_max_f32_dpp v5, v5, v5 row_ror:8 row_mask:0xf bank_mask:0xf")
    fold345()
    A("v_or_b32 v5, s46, v5")
    A("buffer_store_dwordx2 v[4:5], v21, s[20:23], s48 offen sc1")
    A("buffer_store_dwordx2 v[4:5], v22, s[20:23], s48 offen sc1")
    if bst: stamp(6)
    if gate:
        A("v_mov_b32 v2, 0")
        A("v_mov_b32 v3, 1")
        A(f"ds_write_b32 v2, v3 offset:{L_FL}")
    A("s_branch L_common")
    A("L_role4:")
    VS = VD + 4 * (NL - 6)
    A("s_cmp_ge_u32 s36, 7")
    A("s_cbranch_scc1 L_common")
    A("s_sub_u32 s43, s36, 4")
    A("s_mul_i32 s42, s43, 6144")
    A(f"s_add_u32 s42, s42, {L_SP}")
    A("v_add_u32 v38, s42, v36")
    for k in range(6):
        A(f"ds_write_b128 v38, v[{VS+4*k}:{VS+4*k+3}] offset:{k*1024}")
    A("v_lshrrev_b32 v2, 4, v35")
    A("v_lshlrev_b32 v2, 3, v2")
    A("v_bfe_u32 v3, v35, 2, 2")
    A("v_add_u32 v2, v2, v3")
    A("v_mul_u32_u24 v2, 96, v2")
    A("v_and_b32 v3, 3, v35")
    A("v_lshl_add_u32 v2, v3, 3, v2")
    A("s_lshl_b32 s42, s43, 5")
    A("v_add_u32 v2, s42, v2")
    A("s_waitcnt lgkmcnt(0)")
    for k in range(6):
        A(f"ds_read_b64_tr_b16 v[{VS+4*k}:{VS+4*k+1}], v2 offset:{L_W1 + k*3072}")
        A(f"ds_read_b64_tr_b16 v[{VS+4*k+2}:{VS+4*k+3}], v2 offset:{L_W1 + k*3072 + 384}")
    A("v_and_b32 v2, 1, v35")
    A("v_mul_u32_u24 v2, 384, v2")
    A("v_lshrrev_b32 v3, 4, v35")
    A("v_lshl_add_u32 v39, v3, 4, v2")
    A("L_common:")
    A("v_lshrrev_b32 v2, 5, v35")
    A("v_bfe_u32 v3, v35, 3, 2")
    A("v_mul_u32_u24 v3, 1536, v3")
    A("v_lshl_add_u32 v8, v2, 14, v3")
    A("v_and_b32 v3, 0x70, v36")
    A("v_add_u32 v8, v8, v3")
    A("s_add_u32 s42, s56, s2")
    A("s_lshr_b32 s43, s57, 22")
    A("s_xor_b32 s42, s42, s43")
    if nearB == 2: A("s_not_b32 s42, s42")
    A("s_and_b32 s42, s42, 4")
    if nearB == 0: A("s_mov_b32 s42, 0")
    A("s_lshl_b32 s42, s42, 11")
    A("s_and_b32 s43, s2, 7")
    A("s_lshl_b32 s43, s43, 15")
    A("s_add_u32 s42, s42, s43")
    A("s_lshl_b32 s43, s36, 7")
    A("s_add_u32 s47, s42, s43")
    if not gate: A("buffer_load_dwordx4 v[4:7], v8, s[20:23], s47 offen sc1")
    A("v_lshrrev_b32 v3, 2, v3")
    A("v_lshl_add_u32 v9, v2, 1, v3")
    A("s_lshl_b32 s42, s36, 5")
    A("v_add_u32 v9, s42, v9")
    A("v_lshrrev_b32 v2, 2, v35")
    A("v_mul_u32_u24 v2, 384, v2")
    A("v_and_b32 v3, 3, v35")
    A("v_lshl_add_u32 v2, v3, 3, v2")
    A("v_add_u32 v2, s42, v2")
    W2F = 28
    for k in range(3):
        A(f"ds_read_b64_tr_b16 v[{W2F+2*k}:{W2F+2*k+1}], v2 offset:{L_W2 + k*6144}")
    A("v_lshlrev_b32 v37, 3, v35")
    A("s_cmp_lt_u32 s36, 2")
    A(f"s_cselect_b32 s3, {NWT}, 0")
    def wthrough(name):
        A("s_sub_u32 s3, s3, 1")
        A("s_cmp_eq_u32 s3, 0")
        A(f"s_cbranch_scc0 {name}")
        A("s_mov_b64 s[4:5], exec")
        A("s_mov_b32 exec_lo, -1")
        A("s_mov_b32 exec_hi, 0xffff")
        A(f"buffer_store_dwordx4 v[{T}:{T+3}], v36, s[20:23], s48 offen sc1")
        A("s_mov_b64 exec, s[4:5]")
        A(f"{name}:")
    if gate:
        A("s_lshr_b32 s42, s2, 3")
        A(f"s_sub_u32 s42, s42, {ry0}")
        A("s_cmp_ge_u32 s42, 12")
        A("s_cbranch_scc1 L_open")
        A("v_mov_b32 v2, 0")
        A("L_gate:")
        A(f"ds_read_b32 v3, v2 offset:{L_FL}")
        A("s_waitcnt lgkmcnt(0)")
        A("v_cmp_ne_u32 vcc, 0, v3")
        A("s_cbranch_vccnz L_open")
        A(f"s_sleep {gate}")
        wthrough("L_nowt0")
        A("s_add_u32 s45, s45, 1")
        A(f"s_cmp_lt_u32 s45, {SPIN}")
        A("s_cbranch_scc1 L_gate")
        A("L_open:")
        A("buffer_load_dwordx4 v[4:7], v8, s[20:23], s47 offen sc1")
    A("L_pollB:")
    A("s_waitcnt vmcnt(0)")
    A("v_cmp_ne_u16 vcc, s46, v5")
    A("v_cmp_ne_u16 s[4:5], s46, v7")
    A("s_or_b64 exec, vcc, s[4:5]")
    A("s_cbranch_scc0 L_gotB")
    if slp:
        A("s_bcnt1_i32_b64 s42, exec")
        A(f"s_cmp_le_u32 s42, {slpthr}")
        A("s_cbranch_scc1 L_nosleep")
        A(f"s_sleep {slp}")
        A("L_nosleep:")
    A("buffer_load_dwordx4 v[4:7], v8, s[20:23], s47 offen sc1")
    wthrough("L_nowt")
    A("s_add_u32 s45, s45, 1")
    A(f"s_cmp_lt_u32 s45, {SPIN}")
    A("s_cbranch_scc1 L_pollB")
    A("s_waitcnt vmcnt(0)")
    A("L_gotB:")
    A("s_mov_b64 exec, -1")
    A("v_and_b32 v5, s44, v5")
    A("v_and_b32 v7, s44, v7")
    fold345()
    A("v_mul_f32 v4, 0x36800000, v4")
    A("v_cvt_pk_bf16_f32 v4, v4, v5")
    A(f"ds_write_b16 v9, v4 offset:{L_G}")
    A(f"ds_write_b16_d16_hi v9, v4 offset:{L_G+384}")
    A("s_sub_u32 s42, s36, 4")
    A("s_cmp_ge_u32 s42, 3")
    A("s_waitcnt lgkmcnt(0)")
    A("s_barrier")
    stamp(4)
    A("s_cbranch_scc1 L_l2")
    BF = 4
    for k in range(6):
        A(f"ds_read_b128 v[{BF+4*k}:{BF+4*k+3}], v39 offset:{L_G + k*64}")
    A("s_lshl_b32 s42, s42, 9")
    A("v_add_u32 v36, s42, v37")
    A("s_mov_b32 s43, 0x7f800000")
    for k in range(6):
        A(f"s_waitcnt lgkmcnt({5-k})")
        c = "0" if k == 0 else "v[0:3]"
        A(f"v_mfma_f32_16x16x32_bf16 v[0:3], v[{VS+4*k}:{VS+4*k+3}], v[{BF+4*k}:{BF+4*k+3}], {c}")
    A("s_nop 7")
    for i in range(4):
        A(f"v_mul_f32_e64 v{4+i}, v{i}, s43 clamp")
    A("v_pk_mul_f32 v[0:1], v[0:1], v[4:5]")
    A("v_pk_mul_f32 v[2:3], v[2:3], v[6:7]")
    A("v_cvt_pk_bf16_f32 v4, v0, v1")
    A("v_cvt_pk_bf16_f32 v5, v2, v3")
    A(f"ds_write_b64 v36, v[4:5] offset:{L_H}")
    A("L_l2:")
    lane_offsets(0, 1)
    A("s_waitcnt lgkmcnt(0)")
    A("s_barrier")
    for k in range(3):
        A(f"ds_read_b64 v[{4+2*k}:{5+2*k}], v37 offset:{L_H + k*512}")
    A("v_and_b32 v2, 15, v35")
    A("s_lshl_b32 s42, s36, 6")
    A("v_lshl_add_u32 v36, v2, 2, s42")
    A("v_and_b32 v2, 7, v35")
    A("s_lshl_b32 s42, s38, 8")
    A("v_lshl_add_u32 v39, v2, 5, s42")
    A("s_mov_b32 s43, 0xbfb8aa3b")
    for k in range(3):
        A(f"s_waitcnt lgkmcnt({2-k})")
        c = "0" if k == 0 else "v[12:15]"
        A(f"v_mfma_f32_16x16x16_bf16 v[12:15], v[{4+2*k}:{5+2*k}], v[{W2F+2*k}:{W2F+2*k+1}], {c}")
    A("s_nop 7")
    A("v_cvt_pk_bf16_f32 v12, v12, v13")
    A("v_lshlrev_b32 v13, 16, v12")
    A("v_and_b32 v12, s44, v12")
    A("v_add_f32 v12, v12, v13")
    A("v_cvt_pk_bf16_f32 v12, 0, v12")
    A("v_mul_f32 v12, s43, v12")
    A("v_exp_f32 v12, v12")
    A("s_nop 0")
    A("v_add_f32 v12, 1.0, v12")
    A("v_rcp_f32 v12, v12")
    A("s_nop 0")
    A("v_cvt_pk_bf16_f32 v12, 0, v12")
    A(f"ds_write_b32 v36, v12 offset:{L_SC}")
    A("s_waitcnt lgkmcnt(0)")
    A("s_barrier")
    SCR = 2
    A(f"ds_read_b128 v[{SCR}:{SCR+3}], v39 offset:{L_SC}")
    A(f"ds_read_b128 v[{SCR+4}:{SCR+7}], v39 offset:{L_SC+16}")
    stamp(5)
    T2 = 10
    steps = list(range(16))
    if word:
        dyn = list(range(nstatic, 16))
        steps = []
        for k in range(nstatic):
            lo, hi = k * len(dyn) // nstatic, (k + 1) * len(dyn) // nstatic
            part = dyn[lo:hi]
            steps += part[:1] + [k] + part[1:]
    order = [2 * i + h for i in steps for h in (0, 1)]
    for n, j in enumerate(order):
        tb = T2 + 8 * (j % 2)
        i2, h = j >> 1, j & 1
        if j == NL - 6:
            A("s_waitcnt lgkmcnt(0)")
        if h == 0:
            A(f"v_readlane_b32 s50, v34, {i2}")
        for i in range(4):
            d = VD + 4 * j + i
            A(f"v_lshlrev_b32 v{tb+2*i}, 16, v{d}")
            A(f"v_and_b32 v{tb+2*i+1}, s44, v{d}")
        addr(28 + h, h)
        if n == 0:
            A("s_waitcnt lgkmcnt(0)")
        for i in range(4):
            A(f"v_pk_mul_f32 v[{tb+2*i}:{tb+2*i+1}], v[{tb+2*i}:{tb+2*i+1}], v[{SCR+2*i}:{SCR+2*i+1}]")
        for i in range(4):
            d = VD + 4 * j + i
            A(f"v_cvt_pk_bf16_f32 v{d}, v{tb+2*i}, v{tb+2*i+1}")
        r = VD + 4 * j
        A(f"buffer_store_dwordx4 v[{r}:{r+3}], v{28+h}, s[12:15], s{TAB+i2} offen {st}".rstrip())
        if n == 0:
            A("s_sub_u32 s42, s36, 4")
            A("s_cmp_ge_u32 s42, 3")
            A("s_cbranch_scc1 L_noreload")
            for k in range(6):
                A(f"ds_read_b128 v[{VS+4*k}:{VS+4*k+3}], v38 offset:{k*1024}")
            A("L_noreload:")
    if stamps:
        A("L_out:")
        if not bst: stamp(6)
        A("s_waitcnt vmcnt(0)")
        stamp(7)
        A("s_waitcnt lgkmcnt(0)")
        A("s_mov_b64 exec, 1")
        if diag:
            diag_tail(A, diag)
        A("s_mul_i32 s3, s2, 12")
        A("s_add_u32 s3, s3, s36")
        A("s_lshl_b32 s3, s3, 5")
        A(f"s_add_u32 s3, s3, {W_ST}")
        A("v_mov_b32 v1, 0")
        for i in range(8):
            A(f"v_mov_b32 v{4+i}, s{60+2*i}")
        A("buffer_store_dwordx4 v[4:7], v1, s[20:23], s3 offen")
        A("buffer_store_dwordx4 v[8:11], v1, s[20:23], s3 offen offset:16")
    A("L_end:")
    A("s_endpgm")
    scout()
    A('.section .rodata,"a"')
    A(".p2align 6")
    A(".amdhsa_kernel standalone__channel_attn_cbam__vision_kernel")
    A("  .amdhsa_next_free_vgpr 168")
    A("  .amdhsa_next_free_sgpr 96")
    A("  .amdhsa_accum_offset 168")
    A("  .amdhsa_group_segment_fixed_size 0")
    A("  .amdhsa_kernarg_size 48")
    A("  .amdhsa_user_sgpr_count 2")
    A("  .amdhsa_user_sgpr_kernarg_segment_ptr 1")
    A("  .amdhsa_system_sgpr_workgroup_id_x 1")
    A("  .amdhsa_float_denorm_mode_32 3")
    A(".end_amdhsa_kernel")
    out = []
    for line in L:
        if line.startswith(("s_", "v_", "ds_", "buffer_", "global_")):
            out.append("    " + line)
        else:
            out.append(line)
    return "\n".join(out) + "\n"

def diag_tail(A, diag):
    idx, mul, base = diag[:3]
    dwg = diag[3] if len(diag) > 3 else 0
    dwv = diag[4] if len(diag) > 4 else 0
    A(f"s_cmp_lg_u32 s36, {dwv}")
    A("s_cbranch_scc1 L_end")
    A(f"s_cmp_lg_u32 s2, {dwg}")
    A("s_cbranch_scc1 L_end")
    if idx == -1:
        A("s_lshr_b32 s42, s57, 1")
        A("s_xor_b32 s42, s42, s57")
        A("s_and_b32 s42, s42, 0x7ff7ff")
        A("s_bcnt1_i32_b32 s42, s42")
    elif idx >= 100:
        A(f"s_sub_u32 s42, s{60+2*(idx//10%10)}, s{60+2*(idx%10)}")
    else:
        A(f"s_sub_u32 s42, s{60+2*idx}, s60")
    A(f"s_mul_i32 s42, s42, {mul}")
    A(f"s_add_u32 s42, s42, {base}")
    A("s_min_u32 s42, s42, 200000")
    A("L_dg3:")
    A("s_memrealtime s[78:79]")
    A("s_waitcnt lgkmcnt(0)")
    A("s_sub_u32 s43, s78, s60")
    A("s_cmp_lt_u32 s43, s42")
    A("s_cbranch_scc1 L_dg3")
    A("s_branch L_end")

if __name__ == "__main__":
    cfg = json.loads(sys.argv[1]) if len(sys.argv) > 1 else {}
    sys.stdout.write(gen(**cfg))
```

```python
import sys, json

HEADER = """; CBAM channel attention, x kept in registers across a grid-wide reduction (single pass over HBM)
"""

def gen(ld="nt", st="sc1", W=4, stamps=0, diag=None, wpos=20, warm_out=2, STRIDE=1, ROT=0, MIX=0xAAAA, MIX2=0xEEEE,
        nstatic=4, maplead=0, grp=2, cpf=16, cpos=18, stop1=0, THR=100, tagpos=24, ppol="nt", usemap=1, oracle=None,
        rawd=0, s1first=0, W2=0, gW2=0, word=1, bst=0, pubpol="", NWT=128, slp=6, slpthr=16, ry0=16, nearB=1, gate=2, wopos=22, exitwt=1, ldsx=0):
    if diag: stamps = 1
    NW, NL, VD = 12, 32, 40
    XB = 100663296
    L_W1, L_W2 = 0, 18432
    L_RED = 36864
    L_G = L_RED + 6144
    L_H = L_G + 768
    L_SC = L_H + 1536
    L_FL = L_SC + 768
    L_SP = L_FL + 64
    L_END = L_SP + 3 * 6144
    W_A = 256 << 10
    W_ST = 1 << 20
    SPIN = 1 << 20
    SW = 6 << 20
    TAB = 80
    NS = 25
    assert 2 * nstatic >= W and (grp == 1 or W % 2 == 0)
    L = []
    A = L.append
    def stamp(i):
        if stamps:
            A(f"s_memrealtime s[{60+2*i}:{61+2*i}]")
    A(HEADER.rstrip())
    A(f"; @launch grid=(256,1,1) block=({NW*64},1,1) lds={ldsx or L_END}")
    A('.amdgcn_target "amdgcn-amd-amdhsa--gfx950"')
    A(".text")
    A(".globl standalone__channel_attn_cbam__vision_kernel")
    A(".p2align 8")
    A(".type standalone__channel_attn_cbam__vision_kernel,@function")
    A("standalone__channel_attn_cbam__vision_kernel:")
    stamp(0)
    A("s_load_dwordx4 s[4:7], s[0:1], 0")
    A("s_load_dwordx4 s[24:27], s[0:1], 16")
    A("s_load_dwordx4 s[28:31], s[0:1], 32")
    A("s_memtime s[58:59]")
    A("s_cmp_ge_u32 s2, 256")
    A("s_cbranch_scc1 L_end")
    A("v_lshrrev_b32 v2, 6, v0")
    A("v_and_b32 v35, 63, v0")
    A("v_readfirstlane_b32 s36, v2")
    A("s_mov_b32 s35, 0x20000")
    A("s_lshr_b32 s40, s2, 2")
    A("s_and_b32 s42, s2, 1")
    A("s_or_b32 s40, s40, s42")
    A("s_and_b32 s42, s2, 6")
    A(f"s_cselect_b32 s40, {NS}, s40")
    A("s_lshl_b32 s42, s36, 5")
    A("s_or_b32 s42, s42, s40")
    A(f"s_cmp_lt_u32 s42, {NS}")
    A("s_cbranch_scc1 L_scout")
    A("L_main:")
    A("s_mul_i32 s37, s36, 43691")
    A("s_lshr_b32 s37, s37, 17")
    A("s_mul_i32 s38, s37, 3")
    A("s_sub_u32 s38, s36, s38")
    A("s_mul_i32 s39, s37, 3072")
    A("s_lshl_b32 s42, s38, 7")
    A("s_add_u32 s39, s39, s42")
    def lane_offsets(b0, b1):
        A(f"v_lshrrev_b32 v{b0}, 3, v35")
        A(f"v_mul_u32_u24 v{b0}, 384, v{b0}")
        A(f"v_and_b32 v{b1}, 7, v35")
        A(f"v_lshl_add_u32 v{b0}, v{b1}, 4, v{b0}")
        A(f"v_add_u32 v{b0}, s39, v{b0}")
        A(f"v_add_u32 v{b1}, 12288, v{b0}")
    lane_offsets(0, 1)
    A("s_lshr_b32 s42, s2, 3")
    A("s_and_b32 s43, s2, 3")
    A("s_lshl_b32 s51, s42, 2")
    A("s_add_u32 s51, s51, s43")
    if ROT:
        A("s_mul_i32 s41, s51, 49152")
        A("s_lshr_b32 s43, s41, 21")
        A(f"s_mul_i32 s43, s43, {ROT}")
        A("s_and_b32 s53, s43, 15")
        A(f"s_mul_i32 s43, s53, {SW}")
        A(f"s_add_u32 s{TAB}, s43, s41")
    else:
        A(f"s_mul_i32 s{TAB}, s51, 49152")
    A("s_lshl_b32 s50, s2, 11")
    A("s_lshl_b32 s42, s42, 13")
    A("s_xor_b32 s50, s50, s42")
    A("s_and_b32 s50, s50, 0x2000")
    A("s_movk_i32 s49, 24576")
    def addr(dst, src):
        A(f"v_add_u32 v{dst}, s50, v{src}")
        A(f"v_bfe_u32 v{dst}, v{dst}, 13, 1")
        A(f"v_mad_u32_u24 v{dst}, v{dst}, s49, v{src}")
    addr(38, 0)
    addr(39, 1)
    A("s_mov_b32 s10, %d" % XB); A("s_mov_b32 s11, 0x20000")
    A(f"s_cmp_lt_u32 s40, {NS}")
    A("s_waitcnt lgkmcnt(0)")
    A("s_mov_b32 s8, s4"); A("s_mov_b32 s9, s5")
    A("s_cbranch_scc0 L_go")
    A("s_barrier")
    A("L_go:")
    if s1first: stamp(1)
    def ws_srd():
        A("s_add_u32 s20, s30, 0x400000")
        A("s_addc_u32 s21, s31, 0")
        A("s_and_b32 s20, s20, 0xffe00000")
        A("s_mov_b32 s22, 0x400000"); A("s_mov_b32 s23, 0x20000")
    def dbg_srd():
        A("s_mov_b32 s16, s28"); A("s_mov_b32 s17, s29")
        A("s_mov_b32 s18, 256"); A("s_mov_b32 s19, 0x20000")
    def late_setup():
        ws_srd()
        dbg_srd()
        A("s_mov_b32 s12, s26"); A("s_mov_b32 s13, s27")
        A("s_mov_b32 s14, %d" % XB); A("s_mov_b32 s15, 0x20000")
        A("s_mov_b32 s45, 0")
        A("v_mov_b32 v34, s50")
        A("v_lshlrev_b32 v36, 4, v35")
        if not ROT:
            A(f"s_mov_b32 s41, s{TAB}")
            A("s_mov_b32 s53, 0")
    def scout():
        A(".p2align 6")
        A("L_scout:")
        A("s_getreg_b32 s48, hwreg(HW_REG_XCC_ID, 0, 3)")
        A("s_mov_b64 exec, 1")
        A("v_mov_b32 v2, 0")
        A(f"s_mov_b32 s34, {XB}")
        A("s_mul_i32 s55, s40, 43")
        A("s_lshr_b32 s55, s55, 9")
        A("s_mul_i32 s42, s55, 12")
        A("s_sub_u32 s42, s40, s42")
        A("s_lshl_b32 s42, s42, 23")
        A("s_bitset1_b32 s42, 22")
        A("s_lshl_b32 s3, 1, s40")
        A("s_lshl_b32 s52, s48, 29")
        A("s_cmp_eq_u32 s40, 0")
        A("s_cselect_b32 s52, s52, 0")
        A("s_or_b32 s52, s52, s3")
        A("v_mov_b32 v14, s52")
        A("s_cmp_ge_u32 s48, 4")
        A("s_cselect_b32 s48, s3, 0")
        A("s_xor_b32 s3, s3, s48")
        A("s_cmp_eq_u32 s55, 1")
        A("s_waitcnt lgkmcnt(0)")
        A("s_cselect_b32 s32, s26, s4")
        A("s_cselect_b32 s33, s27, s5")
        A("s_cmp_eq_u32 s55, 2")
        A("s_cselect_b32 s32, s30, s32")
        A("s_cselect_b32 s33, s31, s33")
        A("s_lshl_b32 s43, s58, 5")
        A(f"s_and_b32 s43, s43, {0x1fff80 & ~8192}")
        A("s_add_u32 s42, s42, s43")
        A("s_and_b32 s43, s32, 0x1ffffc")
        A("s_sub_u32 s42, s42, s43")
        A("s_add_u32 s43, s42, 8192")
        dbg_srd()
        A(".p2align 6")
        A(f"buffer_load_dword v3, v2, s[32:35], s42 offen {ppol}".rstrip())
        A(f"buffer_load_dword v4, v2, s[32:35], s43 offen {ppol}".rstrip())
        A("s_waitcnt vmcnt(1)")
        A("s_memtime s[56:57]")
        A("s_waitcnt vmcnt(0)")
        A("s_memtime s[58:59]")
        A("s_waitcnt lgkmcnt(0)")
        A("s_sub_u32 s42, s58, s56")
        A(f"s_cmpk_le_u32 s42, {THR}")
        A("s_cselect_b32 s48, s3, s48")
        A("v_mov_b32 v15, s48")
        A("buffer_atomic_or_x2 v[14:15], v2, s[16:19], 0 offen sc1")
        A("s_barrier")
        A("s_cmp_lg_u32 s40, 0")
        A("s_cbranch_scc1 L_notag")
        A("s_memrealtime s[56:57]")
        A("v_mov_b32 v12, 1")
        A("s_waitcnt lgkmcnt(0)")
        A("s_mul_i32 s43, s56, 0x9e3779b1")
        A("v_mov_b32 v13, s43")
        A("buffer_store_dwordx2 v[12:13], v2, s[16:19], 0 offen offset:128 sc1")
        A("L_notag:")
        if rawd:
            ws_srd()
            A("v_mov_b32 v8, s42")
            A("s_lshl_b32 s55, s40, 2")
            A(f"s_add_u32 s55, s55, {2 << 20}")
            A("buffer_store_dword v8, v2, s[20:23], s55 offen")
        A("s_mov_b64 exec, -1")
        A(f"s_mov_b32 s40, {NS}")
        A("s_branch L_main")
    ops = []
    def weights():
        A("s_cmp_ge_u32 s36, 6")
        A("s_cselect_b32 s32, s24, s6")
        A("s_cselect_b32 s33, s25, s7")
        A("s_cselect_b32 s42, 18432, 0")
        A("s_mov_b32 s34, 18432")
        A("s_mul_i32 s43, s36, 3072")
        A("s_mov_b32 m0, s43")
        A("s_sub_u32 s42, s43, s42")
        for k in range(3):
            A(f"buffer_load_dwordx4 v36, s[32:35], s42 offen offset:{k*1024} lds")
            ops.append(("w", k))
    def issue(j):
        r = VD + 4 * j
        i, h = j >> 1, j & 1
        def nexttab(pad):
            if i < 15 and STRIDE == 1 and not ROT:
                A(f"s_add_u32 s{TAB+i+1}, s{TAB+i}, {SW}")
                if pad: A("s_nop 0")
            elif i < 15:
                A(f"s_add_u32 s42, s{TAB+i}, {STRIDE*SW}")
                A(f"s_sub_u32 s43, s42, {XB}")
                A(f"s_cselect_b32 s{TAB+i+1}, s42, s43")
            elif pad:
                A("s_nop 1")
        if i < nstatic:
            A(f"buffer_load_dwordx4 v[{r}:{r+3}], v{38+h}, s[8:11], s{TAB+i} offen {ld}".rstrip())
            if h == 0: nexttab(0)
        else:
            if h == 0:
                A(f"v_readlane_b32 s50, v34, {i}")
                nexttab(1)
            addr(39, h)
            A(f"buffer_load_dwordx4 v[{r}:{r+3}], v39, s[8:11], s{TAB+i} offen {ld}".rstrip())
        ops.append(("d", j))
        if j == wpos:
            weights()
        if j == wopos and warm_out == 2:
            A("s_cmp_lg_u32 s36, 2")
            A("s_cbranch_scc1 L_nowarm")
            A(f"v_mul_u32_u24 v38, {SW}, v35")
            A("s_mov_b64 exec, 0xffff")
            A("buffer_load_dword v38, v38, s[12:15], s41 offen nt")
            A("s_mov_b64 exec, -1")
            A("L_nowarm:")
        if j == cpos and cpf:
            A(f"s_cmp_ge_u32 s2, {cpf}")
            A("s_cbranch_scc1 L_nocpf")
            A("s_cmp_ge_u32 s36, 1")
            A("s_cbranch_scc1 L_nocpf")
            A("s_getpc_b64 s[54:55]")
            A("L_pc:")
            A("v_lshlrev_b32 v38, 7, v35")
            A("v_add_u32 v38, L_tail-L_pc, v38")
            A("v_min_u32 v38, L_end-L_pc, v38")
            A("global_load_dword v38, v38, s[54:55]")
            A("L_nocpf:")
    def after(j):
        return len(ops) - 1 - ops.index(("d", j))
    def word_wait(reg, off, name, mask):
        A("s_waitcnt lgkmcnt(0)")
        A(f"s_andn2_b32 s42, {hex(mask)}, s{reg}")
        A(f"s_cbranch_scc0 L_{name}ok")
        A("v_mov_b32 v24, 0")
        A(f"L_{name}:")
        A(f"buffer_load_dwordx2 v[22:23], v24, s[16:19], 0 offen offset:{off} sc1")
        A("s_add_u32 s45, s45, 1")
        A("s_waitcnt vmcnt(0)")
        A(f"v_readfirstlane_b32 s{reg}, v22")
        A(f"v_readfirstlane_b32 s{reg+1}, v23")
        A(f"s_andn2_b32 s42, {hex(mask)}, s{reg}")
        A(f"s_cbranch_scc0 L_{name}ok")
        A(f"s_cmp_lt_u32 s45, {SPIN}")
        A(f"s_cbranch_scc1 L_{name}")
        A(f"L_{name}ok:")
    def map_use():
        A("s_sub_u32 s42, s12, s8")
        A("s_add_u32 s42, s42, 0x800")
        A("s_bitcmp1_b32 s42, 12")
        A(f"s_mov_b32 s42, {MIX}")
        A(f"s_cmov_b32 s42, {MIX2}")
        A("v_add_u32 v19, s51, v35")
        A("v_and_b32 v19, 15, v19")
        A("v_bfe_u32 v19, s42, v19, 1")
        A("v_cmp_ne_u32 vcc, 0, v19")
        A("s_and_b32 s42, s8, 0x1fffff")
        A("s_and_b32 s43, s12, 0x1fffff")
        A("v_mov_b32 v20, s42")
        A("v_mov_b32 v21, s43")
        A("v_cndmask_b32 v20, v20, v21, vcc")
        A(f"v_mul_u32_u24 v18, {STRIDE}, v35")
        A("v_add_u32 v18, s53, v18")
        A("v_and_b32 v18, 15, v18")
        A("v_add_u32 v21, s41, v20")
        A("v_lshrrev_b32 v21, 21, v21")
        A("v_mad_u32_u24 v18, v18, 3, v21")
        A("v_lshrrev_b32 v21, 2, v18")
        A("v_min_u32 v21, 11, v21")
        A("v_mad_u32_u24 v19, v19, 12, v21")
        word_wait(56, 0, "map", (1 << NS) - 1)
        if not s1first: stamp(1)
        A("s_lshr_b32 s56, s56, 29")
        if not usemap:
            return
        if oracle:
            om = sum(((oracle[0] >> (4 * k + 2)) & 1) << k for k in range(12)) | sum(((oracle[1] >> (4 * k + 2)) & 1) << (12 + k) for k in range(12))
            A("s_and_b32 s57, s57, 0x1000000")
            A(f"s_or_b32 s57, s57, {om}")
        A("s_add_u32 s42, s56, s2")
        A("s_lshr_b32 s42, s42, 2")
        A("v_lshrrev_b32 v19, v19, s57")
        A("v_xor_b32 v18, s42, v18")
        A("v_xor_b32 v19, v18, v19")
        A(f"s_mov_b32 exec_lo, {hex(0xffffffff & ~((1 << nstatic) - 1))}")
        A("v_lshl_add_u32 v34, v19, 13, v20")
        A("s_mov_b32 exec_lo, -1")
    for j in range(W):
        issue(j)
    nxt = W
    late_setup()
    S, M, T = 2, 10, 18
    for i in range(8):
        A(f"v_mov_b32 v{S+i}, 0")
        A(f"v_mov_b32 v{M+i}, 0xff800000")
    A("s_mov_b32 s44, 0xffff0000")
    if gate: A(f"ds_write_b32 v{S}, v{S} offset:{L_FL}")
    if grp == 2:
        groups = [(j, j + 1) for j in range(0, NL - 2, 2)] + [(NL - 2,), (NL - 1,)]
        guse = nstatic - W // 2
    else:
        groups = [(j,) for j in range(NL)]
        guse = 2 * nstatic - W
    gld = max(guse - maplead, 0)
    for gi0, g in enumerate(groups):
        A(f"s_waitcnt vmcnt({after(g[-1])})")
        if gi0 == gld:
            A("s_load_dwordx2 s[56:57], s[28:29], 0")
        if gi0 == guse:
            map_use()
        if g[0] == tagpos:
            A("s_load_dwordx2 s[58:59], s[28:29], 128")
        if g[0] == tagpos + 2:
            word_wait(58, 128, "tag", 1)
            A("s_and_b32 s46, s59, 0xffff")
            A("s_lshr_b32 s52, s59, 16")
        for _ in g:
            if nxt < NL:
                issue(nxt); nxt += 1
        if W2 and gi0 >= max(gW2, guse):
            extra = 0
            while nxt < NL and nxt - g[-1] - 1 < W2 and extra < 2:
                issue(nxt); nxt += 1; extra += 1
        for gi, j in enumerate(g):
            for i in range(4):
                d = VD + 4 * j + i
                t = T + 8 * gi + 2 * i
                A(f"v_lshlrev_b32 v{t}, 16, v{d}")
                A(f"v_and_b32 v{t+1}, s44, v{d}")
        for gi, j in enumerate(g):
            for i in range(4):
                t = T + 8 * gi + 2 * i
                A(f"v_pk_add_f32 v[{S+2*i}:{S+2*i+1}], v[{S+2*i}:{S+2*i+1}], v[{t}:{t+1}]")
        for i in range(8):
            if len(g) == 2:
                A(f"v_max3_f32 v{M+i}, v{M+i}, v{T+i}, v{T+8+i}")
            else:
                A(f"v_max_f32 v{M+i}, v{M+i}, v{T+i}")
        if gi0 == len(groups) - 2:
            A("v_and_b32 v37, 6, v35")
            A("v_lshrrev_b32 v38, 3, v35")
            A("v_lshl_add_u32 v37, v37, 2, v38")
            A("v_and_b32 v38, 1, v35")
            A("v_lshl_add_u32 v37, v37, 1, v38")
            A("s_mul_i32 s42, s37, 1536")
            A("s_lshl_b32 s43, s38, 9")
            A("s_add_u32 s42, s42, s43")
            A("v_lshl_add_u32 v37, v37, 3, s42")
            A("s_mul_i32 s43, s36, 768")
            A("v_add_u32 v38, s43, v36")
            A("s_mul_i32 s48, s2, 1536")
            A("s_add_u32 s48, s48, s43")
            A(f"s_add_u32 s48, s48, {W_A}")
    A("L_tail:")
    stamp(2)
    for i in range(4):
        A(f"v_permlane32_swap_b32 v{S+i}, v{S+i+4}")
    for i in range(4):
        A(f"v_permlane32_swap_b32 v{M+i}, v{M+i+4}")
    for i in range(2):
        A(f"v_pk_add_f32 v[{S+2*i}:{S+2*i+1}], v[{S+2*i}:{S+2*i+1}], v[{S+4+2*i}:{S+5+2*i}]")
    for i in range(4):
        A(f"v_max_f32 v{M+i}, v{M+i}, v{M+i+4}")
    for i in range(2):
        A(f"v_permlane16_swap_b32 v{S+i}, v{S+i+2}")
    for i in range(2):
        A(f"v_permlane16_swap_b32 v{M+i}, v{M+i+2}")
    A(f"v_pk_add_f32 v[{S}:{S+1}], v[{S}:{S+1}], v[{S+2}:{S+3}]")
    for i in range(2):
        A(f"v_max_f32 v{M+i}, v{M+i}, v{M+i+2}")
    A(f"v_add_f32_dpp v{T}, v{S}, v{S} row_ror:8 row_mask:0xf bank_mask:0x3")
    A(f"v_max_f32_dpp v{T+1}, v{M}, v{M} row_ror:8 row_mask:0xf bank_mask:0x3")
    A("s_nop 0")
    A(f"v_add_f32_dpp v{T}, v{S+1}, v{S+1} row_ror:8 row_mask:0xf bank_mask:0xc")
    A(f"v_max_f32_dpp v{T+1}, v{M+1}, v{M+1} row_ror:8 row_mask:0xf bank_mask:0xc")
    A(f"ds_write_b64 v37, v[{T}:{T+1}] offset:{L_RED}")
    A("s_cmp_ge_u32 s36, 2")
    A("s_waitcnt lgkmcnt(0)")
    A("s_barrier")
    stamp(3)
    if bst:
        A("s_mov_b32 s62, s60"); A("s_mov_b32 s64, s60"); A("s_mov_b32 s72, s60")
    if stop1:
        for i in (4, 5): stamp(i)
        A("s_branch L_out")
    A("s_cbranch_scc1 L_role2")
    A("s_mov_b32 exec_hi, 0xffff")
    for q in range(4):
        A(f"ds_read_b128 v[{T+4*q}:{T+4*q+3}], v38 offset:{L_RED+q*1536}")
    A("s_waitcnt lgkmcnt(2)")
    A(f"v_add_f32 v{T}, v{T}, v{T+4}")
    A(f"v_add_f32 v{T+2}, v{T+2}, v{T+6}")
    A(f"v_max_f32 v{T+1}, v{T+1}, v{T+5}")
    A(f"v_max_f32 v{T+3}, v{T+3}, v{T+7}")
    A("s_waitcnt lgkmcnt(0)")
    A(f"v_add_f32 v{T+8}, v{T+8}, v{T+12}")
    A(f"v_add_f32 v{T+10}, v{T+10}, v{T+14}")
    A(f"v_max3_f32 v{T+1}, v{T+1}, v{T+9}, v{T+13}")
    A(f"v_max3_f32 v{T+3}, v{T+3}, v{T+11}, v{T+15}")
    A(f"v_add_f32 v{T}, v{T}, v{T+8}")
    A(f"v_add_f32 v{T+2}, v{T+2}, v{T+10}")
    A(f"v_or_b32 v{T+1}, s46, v{T+1}")
    A(f"v_or_b32 v{T+3}, s52, v{T+3}")
    A(f"buffer_store_dwordx4 v[{T}:{T+3}], v36, s[20:23], s48 offen {pubpol}".rstrip())
    if bst: stamp(1)
    A("s_mov_b64 exec, -1")
    A("s_branch L_common")
    A("L_role2:")
    A("s_cmp_ge_u32 s36, 4")
    A("s_cbranch_scc1 L_role4")
    A("s_cmp_eq_u32 s36, 3")
    A("s_cbranch_scc1 L_role3")
    if warm_out == 1:
        A(f"v_mul_u32_u24 v2, {SW}, v35")
        A("s_mov_b64 exec, 0xffff")
        A("buffer_load_dword v3, v2, s[12:15], s41 offen")
        A("s_mov_b64 exec, -1")
        A("s_waitcnt vmcnt(0)")
    A("s_branch L_common")
    A("L_role3:")
    A("s_lshr_b32 s47, s2, 3")
    A(f"s_sub_u32 s47, s47, {ry0}")
    A("s_cmp_ge_u32 s47, 12")
    A("s_cbranch_scc1 L_common")
    A("v_lshrrev_b32 v2, 3, v35")
    A("v_mul_u32_u24 v20, 12288, v2")
    A("v_and_b32 v3, 0x70, v36")
    A("v_add_u32 v20, v20, v3")
    A("s_and_b32 s43, s2, 7")
    A("s_mul_i32 s42, s43, 1536")
    A("s_lshl_b32 s47, s47, 7")
    A("s_add_u32 s42, s42, s47")
    A(f"s_add_u32 s4, s42, {W_A}")
    for k in range(1, 4):
        A(f"s_add_u32 s{4+k}, s{3+k}, 98304")
    A("v_and_b32 v2, 3, v2")
    A("v_add_u32 v21, s56, v2")
    A("s_lshr_b32 s48, s57, 22")
    A("v_xor_b32 v21, s48, v21")
    if nearB == 2: A("v_not_b32 v21, v21")
    A("v_and_b32 v21, 4, v21")
    if nearB == 0: A("v_mov_b32 v21, 0")
    A("v_lshlrev_b32 v21, 11, v21")
    A("v_lshl_add_u32 v21, v2, 15, v21")
    A("v_lshrrev_b32 v3, 1, v3")
    A("v_add_u32 v21, v21, v3")
    A("v_lshrrev_b32 v3, 5, v35")
    A("v_lshl_add_u32 v21, v3, 6, v21")
    A(f"v_xor_b32 v22, {0x22000 if nearB else 0x20000}, v21")
    A("s_bfe_u32 s43, s2, 0x10002")
    A("s_mul_i32 s43, s43, %d" % (16384 - 4 * 1536))
    A("s_add_u32 s48, s42, s43")
    A("v_and_b32 v23, 16, v36")
    A("v_bfe_u32 v23, s59, v23, 16")
    A("L_pollA:")
    for k in range(4):
        A(f"buffer_load_dwordx4 v[{4+4*k}:{7+4*k}], v20, s[20:23], s{4+k} offen sc1")
    A("s_add_u32 s45, s45, 1")
    for k in range(4):
        A(f"s_waitcnt vmcnt({3-k})")
        if k == 0:
            A("v_xor_b32 v2, s46, v5")
        else:
            A(f"v_bitop3_b32 v2, v2, v{5+4*k}, s46 bitop3:0xf6")
        A(f"v_bitop3_b32 v2, v2, v{7+4*k}, s52 bitop3:0xf6")
    A("v_cmp_ne_u16 vcc, 0, v2")
    A("s_cbranch_vccz L_gotA")
    A(f"s_cmp_lt_u32 s45, {SPIN}")
    A("s_cbranch_scc1 L_pollA")
    A("L_gotA:")
    if bst: stamp(2)
    A("v_add_f32 v4, v4, v8")
    A("v_add_f32 v6, v6, v10")
    A("v_add_f32 v12, v12, v16")
    A("v_add_f32 v14, v14, v18")
    for k in range(8):
        A(f"v_and_b32 v{5+2*k}, s44, v{5+2*k}")
    A("v_add_f32 v4, v4, v12")
    A("v_add_f32 v6, v6, v14")
    A("v_max3_f32 v5, v5, v9, v13")
    A("v_max3_f32 v7, v7, v11, v15")
    A("v_max_f32 v5, v5, v17")
    A("v_max_f32 v7, v7, v19")
    def fold345():
        A("v_permlane32_swap_b32 v4, v6")
        A("v_add_f32 v4, v4, v6")
        A("v_permlane32_swap_b32 v5, v7")
        A("v_mov_b32 v6, v4")
        A("v_max_f32 v5, v5, v7")
        A("v_mov_b32 v7, v5")
        A("v_permlane16_swap_b32 v4, v6")
        A("v_add_f32 v4, v4, v6")
        A("v_permlane16_swap_b32 v5, v7")
        A("v_max_f32 v5, v5, v7")
        A("v_add_f32_dpp v4, v4, v4 row_ror:8 row_mask:0xf bank_mask:0xf")
        A("s_nop 0")
        A("v_max_f32_dpp v5, v5, v5 row_ror:8 row_mask:0xf bank_mask:0xf")
    fold345()
    A("v_or_b32 v5, v23, v5")
    A("buffer_store_dwordx2 v[4:5], v21, s[20:23], s48 offen sc1")
    A("buffer_store_dwordx2 v[4:5], v22, s[20:23], s48 offen sc1")
    if bst: stamp(6)
    if gate:
        A("v_mov_b32 v2, 0")
        A("v_mov_b32 v3, 1")
        A(f"ds_write_b32 v2, v3 offset:{L_FL}")
    A("s_branch L_common")
    A("L_role4:")
    VS = VD + 4 * (NL - 6)
    A("s_cmp_ge_u32 s36, 7")
    A("s_cbranch_scc1 L_common")
    A("s_sub_u32 s43, s36, 4")
    A("s_mul_i32 s42, s43, 6144")
    A(f"s_add_u32 s42, s42, {L_SP}")
    A("v_add_u32 v38, s42, v36")
    for k in range(6):
        A(f"ds_write_b128 v38, v[{VS+4*k}:{VS+4*k+3}] offset:{k*1024}")
    A("v_lshrrev_b32 v2, 4, v35")
    A("v_lshlrev_b32 v2, 3, v2")
    A("v_bfe_u32 v3, v35, 2, 2")
    A("v_add_u32 v2, v2, v3")
    A("v_mul_u32_u24 v2, 96, v2")
    A("v_and_b32 v3, 3, v35")
    A("v_lshl_add_u32 v2, v3, 3, v2")
    A("s_lshl_b32 s42, s43, 5")
    A("v_add_u32 v2, s42, v2")
    A("s_waitcnt lgkmcnt(0)")
    for k in range(6):
        A(f"ds_read_b64_tr_b16 v[{VS+4*k}:{VS+4*k+1}], v2 offset:{L_W1 + k*3072}")
        A(f"ds_read_b64_tr_b16 v[{VS+4*k+2}:{VS+4*k+3}], v2 offset:{L_W1 + k*3072 + 384}")
    A("v_and_b32 v2, 1, v35")
    A("v_mul_u32_u24 v2, 384, v2")
    A("v_lshrrev_b32 v3, 4, v35")
    A("v_lshl_add_u32 v39, v3, 4, v2")
    A("L_common:")
    A("v_lshrrev_b32 v2, 5, v35")
    A("v_bfe_u32 v3, v35, 3, 2")
    A("v_mul_u32_u24 v3, 1536, v3")
    A("v_lshl_add_u32 v8, v2, 14, v3")
    A("v_and_b32 v3, 0x70, v36")
    A("v_add_u32 v8, v8, v3")
    A("s_add_u32 s42, s56, s2")
    A("s_lshr_b32 s43, s57, 22")
    A("s_xor_b32 s42, s42, s43")
    if nearB == 2: A("s_not_b32 s42, s42")
    A("s_and_b32 s42, s42, 4")
    if nearB == 0: A("s_mov_b32 s42, 0")
    A("s_lshl_b32 s42, s42, 11")
    A("s_and_b32 s43, s2, 7")
    A("s_lshl_b32 s43, s43, 15")
    A("s_add_u32 s42, s42, s43")
    A("s_lshl_b32 s43, s36, 7")
    A("s_add_u32 s47, s42, s43")
    if not gate: A("buffer_load_dwordx4 v[4:7], v8, s[20:23], s47 offen sc1")
    A("v_lshrrev_b32 v3, 2, v3")
    A("v_lshl_add_u32 v9, v2, 1, v3")
    A("s_lshl_b32 s42, s36, 5")
    A("v_add_u32 v9, s42, v9")
    A("v_lshrrev_b32 v2, 2, v35")
    A("v_mul_u32_u24 v2, 384, v2")
    A("v_and_b32 v3, 3, v35")
    A("v_lshl_add_u32 v2, v3, 3, v2")
    A("v_add_u32 v2, s42, v2")
    W2F = 28
    for k in range(3):
        A(f"ds_read_b64_tr_b16 v[{W2F+2*k}:{W2F+2*k+1}], v2 offset:{L_W2 + k*6144}")
    A("v_lshlrev_b32 v37, 3, v35")
    A("s_cmp_lt_u32 s36, 2")
    A(f"s_cselect_b32 s3, {NWT}, 0")
    def wthrough(name):
        A("s_sub_u32 s3, s3, 1")
        A("s_cmp_eq_u32 s3, 0")
        A(f"s_cbranch_scc0 {name}")
        A("s_mov_b64 s[4:5], exec")
        A("s_mov_b32 exec_lo, -1")
        A("s_mov_b32 exec_hi, 0xffff")
        A(f"buffer_store_dwordx4 v[{T}:{T+3}], v36, s[20:23], s48 offen sc1")
        A("s_mov_b64 exec, s[4:5]")
        A(f"{name}:")
    if gate:
        A("s_lshr_b32 s42, s2, 3")
        A(f"s_sub_u32 s42, s42, {ry0}")
        A("s_cmp_ge_u32 s42, 12")
        A("s_cbranch_scc1 L_open")
        A("v_mov_b32 v2, 0")
        A("L_gate:")
        A(f"ds_read_b32 v3, v2 offset:{L_FL}")
        A("s_waitcnt lgkmcnt(0)")
        A("v_cmp_ne_u32 vcc, 0, v3")
        A("s_cbranch_vccnz L_open")
        A(f"s_sleep {gate}")
        wthrough("L_nowt0")
        A("s_add_u32 s45, s45, 1")
        A(f"s_cmp_lt_u32 s45, {SPIN}")
        A("s_cbranch_scc1 L_gate")
        A("L_open:")
        A("buffer_load_dwordx4 v[4:7], v8, s[20:23], s47 offen sc1")
    A("L_pollB:")
    A("s_waitcnt vmcnt(0)")
    A("v_cmp_ne_u16 vcc, s46, v5")
    A("v_cmp_ne_u16 s[4:5], s52, v7")
    A("s_or_b64 exec, vcc, s[4:5]")
    A("s_cbranch_scc0 L_gotB")
    if slp:
        A("s_bcnt1_i32_b64 s42, exec")
        A(f"s_cmp_le_u32 s42, {slpthr}")
        A("s_cbranch_scc1 L_nosleep")
        A(f"s_sleep {slp}")
        A("L_nosleep:")
    A("buffer_load_dwordx4 v[4:7], v8, s[20:23], s47 offen sc1")
    wthrough("L_nowt")
    A("s_add_u32 s45, s45, 1")
    A(f"s_cmp_lt_u32 s45, {SPIN}")
    A("s_cbranch_scc1 L_pollB")
    A("s_waitcnt vmcnt(0)")
    A("L_gotB:")
    A("s_mov_b64 exec, -1")
    A("v_and_b32 v5, s44, v5")
    A("v_and_b32 v7, s44, v7")
    fold345()
    A("v_mul_f32 v4, 0x36800000, v4")
    A("v_cvt_pk_bf16_f32 v4, v4, v5")
    A(f"ds_write_b16 v9, v4 offset:{L_G}")
    A(f"ds_write_b16_d16_hi v9, v4 offset:{L_G+384}")
    A("s_cmp_gt_i32 s3, 0" if exitwt else "s_cmp_gt_i32 0, 0")
    A("s_cbranch_scc0 L_nowt2")
    A("s_mov_b32 exec_hi, 0xffff")
    A(f"buffer_store_dwordx4 v[{T}:{T+3}], v36, s[20:23], s48 offen sc1")
    A("s_mov_b32 exec_hi, -1")
    A("L_nowt2:")
    A("s_sub_u32 s42, s36, 4")
    A("s_cmp_ge_u32 s42, 3")
    A("s_waitcnt lgkmcnt(0)")
    A("s_barrier")
    stamp(4)
    A("s_cbranch_scc1 L_l2")
    BF = 4
    for k in range(6):
        A(f"ds_read_b128 v[{BF+4*k}:{BF+4*k+3}], v39 offset:{L_G + k*64}")
    A("s_lshl_b32 s42, s42, 9")
    A("v_add_u32 v36, s42, v37")
    A("s_mov_b32 s43, 0x7f800000")
    for k in range(6):
        A(f"s_waitcnt lgkmcnt({5-k})")
        c = "0" if k == 0 else "v[0:3]"
        A(f"v_mfma_f32_16x16x32_bf16 v[0:3], v[{VS+4*k}:{VS+4*k+3}], v[{BF+4*k}:{BF+4*k+3}], {c}")
    A("s_nop 7")
    for i in range(4):
        A(f"v_mul_f32_e64 v{4+i}, v{i}, s43 clamp")
    A("v_pk_mul_f32 v[0:1], v[0:1], v[4:5]")
    A("v_pk_mul_f32 v[2:3], v[2:3], v[6:7]")
    A("v_cvt_pk_bf16_f32 v4, v0, v1")
    A("v_cvt_pk_bf16_f32 v5, v2, v3")
    A(f"ds_write_b64 v36, v[4:5] offset:{L_H}")
    A("L_l2:")
    lane_offsets(0, 1)
    A("s_waitcnt lgkmcnt(0)")
    A("s_barrier")
    for k in range(3):
        A(f"ds_read_b64 v[{4+2*k}:{5+2*k}], v37 offset:{L_H + k*512}")
    A("v_and_b32 v2, 15, v35")
    A("s_lshl_b32 s42, s36, 6")
    A("v_lshl_add_u32 v36, v2, 2, s42")
    A("v_and_b32 v2, 7, v35")
    A("s_lshl_b32 s42, s38, 8")
    A("v_lshl_add_u32 v39, v2, 5, s42")
    A("s_mov_b32 s43, 0xbfb8aa3b")
    for k in range(3):
        A(f"s_waitcnt lgkmcnt({2-k})")
        c = "0" if k == 0 else "v[12:15]"
        A(f"v_mfma_f32_16x16x16_bf16 v[12:15], v[{4+2*k}:{5+2*k}], v[{W2F+2*k}:{W2F+2*k+1}], {c}")
    A("s_nop 7")
    A("v_cvt_pk_bf16_f32 v12, v12, v13")
    A("v_lshlrev_b32 v13, 16, v12")
    A("v_and_b32 v12, s44, v12")
    A("v_add_f32 v12, v12, v13")
    A("v_cvt_pk_bf16_f32 v12, 0, v12")
    A("v_mul_f32 v12, s43, v12")
    A("v_exp_f32 v12, v12")
    A("s_nop 0")
    A("v_add_f32 v12, 1.0, v12")
    A("v_rcp_f32 v12, v12")
    A("s_nop 0")
    A("v_cvt_pk_bf16_f32 v12, 0, v12")
    A(f"ds_write_b32 v36, v12 offset:{L_SC}")
    A("s_waitcnt lgkmcnt(0)")
    A("s_barrier")
    SCR = 2
    A(f"ds_read_b128 v[{SCR}:{SCR+3}], v39 offset:{L_SC}")
    A(f"ds_read_b128 v[{SCR+4}:{SCR+7}], v39 offset:{L_SC+16}")
    stamp(5)
    T2 = 10
    steps = list(range(16))
    if word:
        dyn = list(range(nstatic, 16))
        steps = []
        for k in range(nstatic):
            lo, hi = k * len(dyn) // nstatic, (k + 1) * len(dyn) // nstatic
            part = dyn[lo:hi]
            steps += part[:1] + [k] + part[1:]
    order = [2 * i + h for i in steps for h in (0, 1)]
    for n, j in enumerate(order):
        tb = T2 + 8 * (j % 2)
        i2, h = j >> 1, j & 1
        if j == NL - 6:
            A("s_waitcnt lgkmcnt(0)")
        if h == 0:
            A(f"v_readlane_b32 s50, v34, {i2}")
        for i in range(4):
            d = VD + 4 * j + i
            A(f"v_lshlrev_b32 v{tb+2*i}, 16, v{d}")
            A(f"v_and_b32 v{tb+2*i+1}, s44, v{d}")
        addr(28 + h, h)
        if n == 0:
            A("s_waitcnt lgkmcnt(0)")
        for i in range(4):
            A(f"v_pk_mul_f32 v[{tb+2*i}:{tb+2*i+1}], v[{tb+2*i}:{tb+2*i+1}], v[{SCR+2*i}:{SCR+2*i+1}]")
        for i in range(4):
            d = VD + 4 * j + i
            A(f"v_cvt_pk_bf16_f32 v{d}, v{tb+2*i}, v{tb+2*i+1}")
        r = VD + 4 * j
        A(f"buffer_store_dwordx4 v[{r}:{r+3}], v{28+h}, s[12:15], s{TAB+i2} offen {st}".rstrip())
        if n == 0:
            A("s_sub_u32 s42, s36, 4")
            A("s_cmp_ge_u32 s42, 3")
            A("s_cbranch_scc1 L_noreload")
            for k in range(6):
                A(f"ds_read_b128 v[{VS+4*k}:{VS+4*k+3}], v38 offset:{k*1024}")
            A("L_noreload:")
    if stamps:
        A("L_out:")
        if not bst: stamp(6)
        A("s_waitcnt vmcnt(0)")
        stamp(7)
        A("s_waitcnt lgkmcnt(0)")
        A("s_mov_b64 exec, 1")
        if diag:
            diag_tail(A, diag)
        A("s_mul_i32 s3, s2, 12")
        A("s_add_u32 s3, s3, s36")
        A("s_lshl_b32 s3, s3, 5")
        A(f"s_add_u32 s3, s3, {W_ST}")
        A("v_mov_b32 v1, 0")
        for i in range(8):
            A(f"v_mov_b32 v{4+i}, s{60+2*i}")
        A("buffer_store_dwordx4 v[4:7], v1, s[20:23], s3 offen")
        A("buffer_store_dwordx4 v[8:11], v1, s[20:23], s3 offen offset:16")
    A("L_end:")
    A("s_endpgm")
    scout()
    A('.section .rodata,"a"')
    A(".p2align 6")
    A(".amdhsa_kernel standalone__channel_attn_cbam__vision_kernel")
    A("  .amdhsa_next_free_vgpr 168")
    A("  .amdhsa_next_free_sgpr 96")
    A("  .amdhsa_accum_offset 168")
    A("  .amdhsa_group_segment_fixed_size 0")
    A("  .amdhsa_kernarg_size 48")
    A("  .amdhsa_user_sgpr_count 2")
    A("  .amdhsa_user_sgpr_kernarg_segment_ptr 1")
    A("  .amdhsa_system_sgpr_workgroup_id_x 1")
    A("  .amdhsa_float_denorm_mode_32 3")
    A(".end_amdhsa_kernel")
    out = []
    for line in L:
        if line.startswith(("s_", "v_", "ds_", "buffer_", "global_")):
            out.append("    " + line)
        else:
            out.append(line)
    return "\n".join(out) + "\n"

def diag_tail(A, diag):
    idx, mul, base = diag[:3]
    dwg = diag[3] if len(diag) > 3 else 0
    dwv = diag[4] if len(diag) > 4 else 0
    A(f"s_cmp_lg_u32 s36, {dwv}")
    A("s_cbranch_scc1 L_end")
    A(f"s_cmp_lg_u32 s2, {dwg}")
    A("s_cbranch_scc1 L_end")
    if idx == -1:
        A("s_lshr_b32 s42, s57, 1")
        A("s_xor_b32 s42, s42, s57")
        A("s_and_b32 s42, s42, 0x7ff7ff")
        A("s_bcnt1_i32_b32 s42, s42")
    elif idx >= 100:
        A(f"s_sub_u32 s42, s{60+2*(idx//10%10)}, s{60+2*(idx%10)}")
    else:
        A(f"s_sub_u32 s42, s{60+2*idx}, s60")
    A(f"s_mul_i32 s42, s42, {mul}")
    A(f"s_add_u32 s42, s42, {base}")
    A("s_min_u32 s42, s42, 200000")
    A("L_dg3:")
    A("s_memrealtime s[78:79]")
    A("s_waitcnt lgkmcnt(0)")
    A("s_sub_u32 s43, s78, s60")
    A("s_cmp_lt_u32 s43, s42")
    A("s_cbranch_scc1 L_dg3")
    A("s_branch L_end")

if __name__ == "__main__":
    cfg = json.loads(sys.argv[1]) if len(sys.argv) > 1 else {}
    sys.stdout.write(gen(**cfg))
```

```python
import sys, json

HEADER = """; CBAM channel attention, x kept in registers across a grid-wide reduction (single pass over HBM)
"""

def gen(ld="nt", st="sc1", W=4, stamps=0, diag=None, wpos=20, warm_out=2, STRIDE=1, ROT=0, MIX=0xAAAA, MIX2=0xEEEE,
        nstatic=4, maplead=0, grp=2, cpf=16, cpos=18, stop1=0, THR=100, tagpos=24, ppol="nt", usemap=1, oracle=None,
        rawd=0, s1first=0, W2=0, gW2=0, word=1, bst=0, pubpol="", NWT=128, slp=6, slpthr=16, ry0=16, nearB=1, gate=2, wopos=22, exitwt=1, ldsx=0, smooth=1, wown=8, W3=0, gW3=0, sst=0, gst=None, early=0, wold=0, boostS=0, boostO=0, boostA=0, noscout=0, nowv=0, clk=0, wwin=0, wprio=0, wdot=0, wburst=0, prio=None, redmask=8, wsw=0, wswave=0, al12=1, inl=1, cpf0=0):
    if diag: stamps = 1
    NW, NL, VD = 12, 32, 40
    XB = 100663296
    L_W1, L_W2 = 0, 18432
    L_RED = 36864
    L_G = L_RED + 6144
    L_H = L_G + 768
    L_SC = L_H + 1536
    L_FL = L_SC + 768
    L_SP = L_FL + 64
    L_END = L_SP + 3 * 6144
    W_A = 256 << 10
    W_ST = 1 << 20
    SPIN = 1 << 20
    SW = 6 << 20
    TAB = 80
    NS = 1 if noscout else 25
    assert 2 * nstatic >= W and (grp == 1 or W % 2 == 0)
    L = []
    A = L.append
    def stamp(i, force=False):
        if stamps and (gst is None or force or i == 0):
            A(f"s_memrealtime s[{60+2*i}:{61+2*i}]")
    A(HEADER.rstrip())
    A(f"; @launch grid=(256,1,1) block=({NW*64},1,1) lds={ldsx or L_END}")
    A('.amdgcn_target "amdgcn-amd-amdhsa--gfx950"')
    A(".text")
    A(".globl standalone__channel_attn_cbam__vision_kernel")
    if al12: A(".p2align 12")
    A(".p2align 8")
    A(".type standalone__channel_attn_cbam__vision_kernel,@function")
    A("standalone__channel_attn_cbam__vision_kernel:")
    stamp(0)
    A("s_load_dwordx4 s[4:7], s[0:1], 0")
    A("s_load_dwordx4 s[24:27], s[0:1], 16")
    A("s_load_dwordx4 s[28:31], s[0:1], 32")
    A("s_memtime s[58:59]")
    A("s_cmp_ge_u32 s2, 256")
    A("s_cbranch_scc1 L_end")
    A("v_lshrrev_b32 v2, 6, v0")
    A("v_and_b32 v35, 63, v0")
    A("v_readfirstlane_b32 s36, v2")
    A("s_mov_b32 s35, 0x20000")
    A("s_lshr_b32 s40, s2, 2")
    A("s_and_b32 s42, s2, 1")
    A("s_or_b32 s40, s40, s42")
    A("s_and_b32 s42, s2, 6")
    A(f"s_cselect_b32 s40, {NS}, s40")
    A("s_lshl_b32 s42, s36, 5")
    A("s_or_b32 s42, s42, s40")
    A(f"s_cmp_lt_u32 s42, {NS}")
    if sst:
        A("s_waitcnt lgkmcnt(0)")
        A("s_mov_b32 s64, s60"); A("s_mov_b32 s72, s60")
    if inl:
        A("s_cbranch_scc0 L_main")
        A("@@SCOUT@@")
    else:
        A("s_cbranch_scc1 L_scout")
    A("L_main:")
    if cpf0:
        A("s_lshr_b32 s42, s2, 4")
        A("s_and_b32 s43, s36, 14")
        A("s_lshl_b32 s43, s43, 4")
        A("s_or_b32 s42, s42, s43")
        A(f"s_cmp_lg_u32 s42, {cpf0}")
        A("s_cbranch_scc1 L_nocpf0")
        A("s_getpc_b64 s[54:55]")
        A("L_pc0:")
        A("v_lshlrev_b32 v33, 7, v0")
        A("v_min_u32 v33, L_end-L_pc0, v33")
        A("global_load_dword v33, v33, s[54:55]")
        A("L_nocpf0:")
    A("s_mul_i32 s37, s36, 43691")
    A("s_lshr_b32 s37, s37, 17")
    A("s_mul_i32 s38, s37, 3")
    A("s_sub_u32 s38, s36, s38")
    A("s_mul_i32 s39, s37, 3072")
    A("s_lshl_b32 s42, s38, 7")
    A("s_add_u32 s39, s39, s42")
    def lane_offsets(b0, b1):
        A(f"v_lshrrev_b32 v{b0}, 3, v35")
        A(f"v_mul_u32_u24 v{b0}, 384, v{b0}")
        A(f"v_and_b32 v{b1}, 7, v35")
        A(f"v_lshl_add_u32 v{b0}, v{b1}, 4, v{b0}")
        A(f"v_add_u32 v{b0}, s39, v{b0}")
        A(f"v_add_u32 v{b1}, 12288, v{b0}")
    lane_offsets(0, 1)
    A("s_lshr_b32 s42, s2, 3")
    A("s_and_b32 s43, s2, 3")
    A("s_lshl_b32 s51, s42, 2")
    A("s_add_u32 s51, s51, s43")
    if ROT:
        A("s_mul_i32 s41, s51, 49152")
        A("s_lshr_b32 s43, s41, 21")
        A(f"s_mul_i32 s43, s43, {ROT}")
        A("s_and_b32 s53, s43, 15")
        A(f"s_mul_i32 s43, s53, {SW}")
        A(f"s_add_u32 s{TAB}, s43, s41")
    else:
        A(f"s_mul_i32 s{TAB}, s51, 49152")
    A("s_lshl_b32 s50, s2, 11")
    A("s_lshl_b32 s42, s42, 13")
    A("s_xor_b32 s50, s50, s42")
    A("s_and_b32 s50, s50, 0x2000")
    A("s_movk_i32 s49, 24576")
    def addr(dst, src):
        A(f"v_add_u32 v{dst}, s50, v{src}")
        A(f"v_bfe_u32 v{dst}, v{dst}, 13, 1")
        A(f"v_mad_u32_u24 v{dst}, v{dst}, s49, v{src}")
    addr(38, 0)
    addr(39, 1)
    A("s_mov_b32 s10, %d" % XB); A("s_mov_b32 s11, 0x20000")
    A(f"s_cmp_lt_u32 s40, {NS}")
    A("s_waitcnt lgkmcnt(0)")
    A("s_mov_b32 s8, s4"); A("s_mov_b32 s9, s5")
    A("s_cbranch_scc0 L_go")
    A("s_barrier")
    if early:
        addr(38, 0)
        addr(39, 1)
    A("L_go:")
    if s1first: stamp(1)
    def ws_srd():
        A("s_add_u32 s20, s30, 0x400000")
        A("s_addc_u32 s21, s31, 0")
        A("s_and_b32 s20, s20, 0xffe00000")
        A("s_mov_b32 s22, 0x400000"); A("s_mov_b32 s23, 0x20000")
    def dbg_srd():
        A("s_mov_b32 s16, s28"); A("s_mov_b32 s17, s29")
        A("s_mov_b32 s18, 256"); A("s_mov_b32 s19, 0x20000")
    def late_setup():
        ws_srd()
        dbg_srd()
        A("s_mov_b32 s12, s26"); A("s_mov_b32 s13, s27")
        A("s_mov_b32 s14, %d" % XB); A("s_mov_b32 s15, 0x20000")
        A("s_mov_b32 s45, 0")
        A("v_mov_b32 v34, s50")
        A("v_lshlrev_b32 v36, 4, v35")
        if not ROT:
            A(f"s_mov_b32 s41, s{TAB}")
            A("s_mov_b32 s53, 0")
    def scout():
        if not inl: A(".p2align 6")
        A("L_scout:")
        A("s_getreg_b32 s48, hwreg(HW_REG_XCC_ID, 0, 3)")
        A("s_mov_b64 exec, 1")
        A("v_mov_b32 v2, 0")
        A(f"s_mov_b32 s34, {XB}")
        A("s_mul_i32 s55, s40, 43")
        A("s_lshr_b32 s55, s55, 9")
        A("s_mul_i32 s42, s55, 12")
        A("s_sub_u32 s42, s40, s42")
        A("s_lshl_b32 s42, s42, 23")
        A("s_bitset1_b32 s42, 22")
        A("s_lshl_b32 s3, 1, s40")
        A("s_lshl_b32 s52, s48, 29")
        A("s_cmp_eq_u32 s40, 0")
        A("s_cselect_b32 s52, s52, 0")
        A("s_or_b32 s52, s52, s3")
        A("v_mov_b32 v14, s52")
        A("s_cmp_ge_u32 s48, 4")
        A("s_cselect_b32 s48, s3, 0")
        A("s_xor_b32 s3, s3, s48")
        A("s_cmp_eq_u32 s55, 1")
        A("s_waitcnt lgkmcnt(0)")
        A("s_cselect_b32 s32, s26, s4")
        A("s_cselect_b32 s33, s27, s5")
        A("s_cmp_eq_u32 s55, 2")
        A("s_cselect_b32 s32, s30, s32")
        A("s_cselect_b32 s33, s31, s33")
        A("s_lshl_b32 s43, s58, 5")
        A(f"s_and_b32 s43, s43, {0x1fff80 & ~8192}")
        A("s_add_u32 s42, s42, s43")
        A("s_and_b32 s43, s32, 0x1ffffc")
        A("s_sub_u32 s42, s42, s43")
        A("s_add_u32 s43, s42, 8192")
        dbg_srd()
        if not inl: A(".p2align 6")
        if early: A("s_barrier")
        A(f"buffer_load_dword v3, v2, s[32:35], s42 offen {ppol}".rstrip())
        A(f"buffer_load_dword v4, v2, s[32:35], s43 offen {ppol}".rstrip())
        A("s_waitcnt vmcnt(1)")
        A("s_memtime s[56:57]")
        A("s_waitcnt vmcnt(0)")
        A("s_memtime s[58:59]")
        A("s_waitcnt lgkmcnt(0)")
        A("s_sub_u32 s42, s58, s56")
        A(f"s_cmpk_le_u32 s42, {THR}")
        A("s_cselect_b32 s48, s3, s48")
        A("v_mov_b32 v15, s48")
        if sst: stamp(2)
        A("buffer_atomic_or_x2 v[14:15], v2, s[16:19], 0 offen sc1")
        if sst:
            A("s_waitcnt vmcnt(0)")
            stamp(6)
            A("s_waitcnt lgkmcnt(0)")
        if not early: A("s_barrier")
        A("s_cmp_lg_u32 s40, 0")
        A("s_cbranch_scc1 L_notag")
        A("s_memrealtime s[56:57]")
        A("v_mov_b32 v12, 1")
        A("s_waitcnt lgkmcnt(0)")
        A("s_mul_i32 s43, s56, 0x9e3779b1")
        A("v_mov_b32 v13, s43")
        A("buffer_store_dwordx2 v[12:13], v2, s[16:19], 0 offen offset:128 sc1")
        A("L_notag:")
        if rawd:
            ws_srd()
            A("v_mov_b32 v8, s42")
            A("s_lshl_b32 s55, s40, 2")
            A(f"s_add_u32 s55, s55, {2 << 20}")
            A("buffer_store_dword v8, v2, s[20:23], s55 offen")
        A("s_mov_b64 exec, -1")
        A(f"s_mov_b32 s40, {NS}")
        if not inl: A("s_branch L_main")
    ops = []
    def weights():
        if wold:
            A("s_cmp_ge_u32 s36, 4")
            A("s_cbranch_scc1 L_nowgt")
            A("s_cmp_ge_u32 s36, 2")
            A("s_cselect_b32 s32, s24, s6")
            A("s_cselect_b32 s33, s25, s7")
            A("s_cselect_b32 s42, 18432, 0")
            A("s_mov_b32 s34, 18432")
            A("s_mul_i32 s43, s36, 9216")
            A("s_sub_u32 s42, s43, s42")
            for k in range(9):
                if k % 4 == 0:
                    if k:
                        A("s_add_u32 s43, s43, 4096")
                    A("s_mov_b32 m0, s43")
                    if k:
                        A("s_add_u32 s42, s42, 4096")
                    else:
                        A("s_nop 0")
                A(f"buffer_load_dwordx4 v36, s[32:35], s42 offen offset:{(k%4)*1024} lds")
            A("L_nowgt:")
            return
        A("s_cmp_ge_u32 s36, 6")
        A("s_cselect_b32 s32, s24, s6")
        A("s_cselect_b32 s33, s25, s7")
        A("s_cselect_b32 s42, 18432, 0")
        A("s_mov_b32 s34, 18432")
        A("s_mul_i32 s43, s36, 3072")
        A("s_mov_b32 m0, s43")
        A("s_sub_u32 s42, s43, s42")
        for k in range(3):
            A(f"buffer_load_dwordx4 v36, s[32:35], s42 offen offset:{k*1024} lds")
            ops.append(("w", k))
    def issue(j):
        r = VD + 4 * j
        i, h = j >> 1, j & 1
        def nexttab(pad):
            if i < 15 and STRIDE == 1 and not ROT:
                A(f"s_add_u32 s{TAB+i+1}, s{TAB+i}, {SW}")
                if pad: A("s_nop 0")
            elif i < 15:
                A(f"s_add_u32 s42, s{TAB+i}, {STRIDE*SW}")
                A(f"s_sub_u32 s43, s42, {XB}")
                A(f"s_cselect_b32 s{TAB+i+1}, s42, s43")
            elif pad:
                A("s_nop 1")
        if i < nstatic:
            A(f"buffer_load_dwordx4 v[{r}:{r+3}], v{38+h}, s[8:11], s{TAB+i} offen {ld}".rstrip())
            if h == 0: nexttab(0)
        else:
            if h == 0:
                A(f"v_readlane_b32 s50, v34, {i}")
                nexttab(1)
            addr(39, h)
            A(f"buffer_load_dwordx4 v[{r}:{r+3}], v39, s[8:11], s{TAB+i} offen {ld}".rstrip())
        ops.append(("d", j))
        if j == wpos:
            weights()
        if j == wopos and warm_out == 2:
            A("s_cmp_lg_u32 s36, 2")
            A("s_cbranch_scc1 L_nowarm")
            A(f"v_mul_u32_u24 v38, {SW}, v35")
            A("s_mov_b64 exec, 0xffff")
            A("buffer_load_dword v38, v38, s[12:15], s41 offen nt")
            A("s_mov_b64 exec, -1")
            A("L_nowarm:")
        if j == wopos and warm_out == 3:
            A("s_lshl_b32 s42, s36, 8")
            A("s_add_u32 s42, s42, s2")
            A(f"s_sub_u32 s42, s42, {2*256 + 256 - wown}")
            A(f"s_cmp_ge_u32 s42, {wown}")
            A("s_cbranch_scc1 L_nowarm")
            A("v_lshlrev_b32 v38, 21, v35")
            A(f"v_min_u32 v38, {XB-4}, v38")
            A("buffer_load_dword v38, v38, s[12:15], 0 offen nt")
            A("L_nowarm:")
        if j == 31 and wsw:
            A(f"s_cmp_lg_u32 s36, {wswave}")
            A("s_cbranch_scc1 L_nowsw")
            A("s_mul_i32 s42, s2, 1536")
            A(f"s_add_u32 s42, s42, {W_A}")
            A("v_lshlrev_b32 v39, 7, v35")
            A(f"s_mov_b64 exec, {(1 << wsw) - 1}")
            A("buffer_load_dword v39, v39, s[20:23], s42 offen sc1")
            A("s_mov_b64 exec, -1")
            A("L_nowsw:")
        if j == cpos and cpf:
            A(f"s_cmp_lt_u32 s2, {256 - cpf}")
            A("s_cbranch_scc1 L_nocpf")
            A(f"s_cmp_ge_u32 s36, {2 if wburst else 1}")
            A("s_cbranch_scc1 L_nocpf")
            A("s_getpc_b64 s[54:55]")
            A("L_pc:")
            pr = 38 if cpos < 28 else 39
            assert cpos < 28 or cpos == 31
            A(f"v_lshlrev_b32 v{pr}, 7, v35")
            if wburst:
                A("s_lshl_b32 s42, s36, 13")
                A(f"v_add_u32 v{pr}, s42, v{pr}")
            A(f"v_add_u32 v{pr}, L_tail-L_pc, v{pr}")
            A(f"v_min_u32 v{pr}, L_end-L_pc, v{pr}")
            A(f"global_load_dword v{pr}, v{pr}, s[54:55]")
            A("L_nocpf:")
    def after(j):
        return len(ops) - 1 - ops.index(("d", j))
    def word_wait(reg, off, name, mask):
        A("s_waitcnt lgkmcnt(0)")
        A(f"s_andn2_b32 s42, {hex(mask)}, s{reg}")
        A(f"s_cbranch_scc0 L_{name}ok")
        A("v_mov_b32 v24, 0")
        A(f"L_{name}:")
        A(f"buffer_load_dwordx2 v[22:23], v24, s[16:19], 0 offen offset:{off} sc1")
        A("s_add_u32 s45, s45, 1")
        A("s_waitcnt vmcnt(0)")
        A(f"v_readfirstlane_b32 s{reg}, v22")
        A(f"v_readfirstlane_b32 s{reg+1}, v23")
        A(f"s_andn2_b32 s42, {hex(mask)}, s{reg}")
        A(f"s_cbranch_scc0 L_{name}ok")
        A(f"s_cmp_lt_u32 s45, {SPIN}")
        A(f"s_cbranch_scc1 L_{name}")
        A(f"L_{name}ok:")
    def map_use():
        A("s_sub_u32 s42, s12, s8")
        A("s_add_u32 s42, s42, 0x800")
        A("s_bitcmp1_b32 s42, 12")
        A(f"s_mov_b32 s42, {MIX}")
        A(f"s_cmov_b32 s42, {MIX2}")
        A("v_add_u32 v19, s51, v35")
        A("v_and_b32 v19, 15, v19")
        A("v_bfe_u32 v19, s42, v19, 1")
        A("v_cmp_ne_u32 vcc, 0, v19")
        A("s_and_b32 s42, s8, 0x1fffff")
        A("s_and_b32 s43, s12, 0x1fffff")
        A("v_mov_b32 v20, s42")
        A("v_mov_b32 v21, s43")
        A("v_cndmask_b32 v20, v20, v21, vcc")
        A(f"v_mul_u32_u24 v18, {STRIDE}, v35")
        A("v_add_u32 v18, s53, v18")
        A("v_and_b32 v18, 15, v18")
        A("v_add_u32 v21, s41, v20")
        A("v_lshrrev_b32 v21, 21, v21")
        A("v_mad_u32_u24 v18, v18, 3, v21")
        A("v_lshrrev_b32 v21, 2, v18")
        A("v_min_u32 v21, 11, v21")
        A("v_mad_u32_u24 v19, v19, 12, v21")
        if noscout:
            A("s_waitcnt lgkmcnt(0)"); A("s_mov_b32 s56, 0"); A("s_mov_b32 s57, 0")
        else:
            word_wait(56, 0, "map", (1 << NS) - 1)
        if not s1first: stamp(1)
        if sst: A("s_min_u32 s55, s45, 1")
        A("s_lshr_b32 s56, s56, 29")
        if not usemap:
            return
        if oracle:
            om = sum(((oracle[0] >> (4 * k + 2)) & 1) << k for k in range(12)) | sum(((oracle[1] >> (4 * k + 2)) & 1) << (12 + k) for k in range(12))
            A("s_and_b32 s57, s57, 0x1000000")
            A(f"s_or_b32 s57, s57, {om}")
        if smooth:
            A("s_lshl_b32 s42, s57, 1")
            A("s_lshr_b32 s43, s57, 2")
            A("s_and_b32 s42, s42, 0xffeffe")
            A("s_and_b32 s43, s43, 0x1001")
            A("s_or_b32 s42, s42, s43")
            A("s_lshr_b32 s43, s57, 1")
            A("s_lshl_b32 s48, s57, 2")
            A("s_and_b32 s43, s43, 0x7ff7ff")
            A("s_and_b32 s48, s48, 0x800800")
            A("s_or_b32 s43, s43, s48")
            A("s_and_b32 s48, s42, s43")
            A("s_or_b32 s42, s42, s43")
            A("s_bitset1_b32 s42, 24")
            A("s_and_b32 s57, s57, s42")
            A("s_or_b32 s57, s57, s48")
        A("s_add_u32 s42, s56, s2")
        A("s_lshr_b32 s42, s42, 2")
        A("v_lshrrev_b32 v19, v19, s57")
        A("v_xor_b32 v18, s42, v18")
        A("v_xor_b32 v19, v18, v19")
        A(f"s_mov_b32 exec_lo, {hex(0xffffffff & ~((1 << nstatic) - 1))}")
        A("v_lshl_add_u32 v34, v19, 13, v20")
        A("s_mov_b32 exec_lo, -1")
    boost = boostS or boostO or boostA
    if prio: A("s_setprio 3")
    for j in range(W):
        issue(j)
    nxt = W
    late_setup()
    if boost:
        assert grp == 2
        A("s_getreg_b32 s42, hwreg(HW_REG_XCC_ID, 0, 1)")
        A("s_cmp_eq_u32 s42, 1")
        A(f"s_cselect_b32 s47, {boostO}, 0")
        A("s_and_b32 s42, s2, 6")
        A(f"s_cselect_b32 s42, 255, s2")
        A(f"s_cmp_le_u32 s42, {8 * ((NS - 1) // 2) + ((NS - 1) & 1)}")
        A(f"s_cselect_b32 s42, {boostS}, 0")
        A("s_or_b32 s47, s47, s42")
        if boostA: A(f"s_or_b32 s47, s47, {boostA}")
    S, M, T = 2, 10, 18
    for i in range(8):
        A(f"v_mov_b32 v{S+i}, 0")
        A(f"v_mov_b32 v{M+i}, 0xff800000")
    A("s_mov_b32 s44, 0xffff0000")
    if gate: A(f"ds_write_b64 v{S}, v[{S}:{S+1}] offset:{L_FL}")
    if grp == 2:
        groups = [(j, j + 1) for j in range(0, NL - 2, 2)] + [(NL - 2,), (NL - 1,)]
        guse = nstatic - W // 2
    else:
        groups = [(j,) for j in range(NL)]
        guse = 2 * nstatic - W
    gld = max(guse - maplead, 0)
    def slot(k):
        nonlocal nxt
        g = groups[k]
        if prio and k in prio: A(f"s_setprio {2 - prio.index(k)}")
        if k == gld:
            A("s_load_dwordx2 s[56:57], s[28:29], 0")
        if k == guse:
            map_use()
        if g[0] == tagpos:
            A("s_load_dwordx2 s[58:59], s[28:29], 128")
        if g[0] == tagpos + 2:
            word_wait(58, 128, "tag", 1)
            A("s_and_b32 s46, s59, 0xffff")
            A("s_lshr_b32 s52, s59, 16")
        for _ in g:
            if nxt < NL:
                issue(nxt); nxt += 1
        if W2 and k >= max(gW2, guse):
            extra = 0
            while nxt < NL and nxt - g[-1] - 1 < (W3 if W3 and k >= gW3 else W2) and extra < len(g):
                issue(nxt); nxt += 1; extra += 1
    def strict(k):
        if nxt < NL:
            A(f"s_bitcmp1_b32 s47, {k}")
            A(f"s_cbranch_scc1 L_bo{k}")
            A(f"s_waitcnt vmcnt({after(groups[k][-1])})")
            A(f"L_bo{k}:")
    if boost:
        strict(0)
        slot(0)
    for gi0, g in enumerate(groups):
        A(f"s_waitcnt vmcnt({after(g[-1])})")
        if gst and g[-1] in gst: stamp(1 + gst.index(g[-1]), True)
        if boost:
            if gi0 + 1 < len(groups):
                strict(gi0 + 1)
                slot(gi0 + 1)
        else:
            slot(gi0)
        for gi, j in enumerate(g):
            for i in range(4):
                d = VD + 4 * j + i
                t = T + 8 * gi + 2 * i
                A(f"v_lshlrev_b32 v{t}, 16, v{d}")
                A(f"v_and_b32 v{t+1}, s44, v{d}")
        for gi, j in enumerate(g):
            for i in range(4):
                t = T + 8 * gi + 2 * i
                A(f"v_pk_add_f32 v[{S+2*i}:{S+2*i+1}], v[{S+2*i}:{S+2*i+1}], v[{t}:{t+1}]")
        for i in range(8):
            if len(g) == 2:
                A(f"v_max3_f32 v{M+i}, v{M+i}, v{T+i}, v{T+8+i}")
            else:
                A(f"v_max_f32 v{M+i}, v{M+i}, v{T+i}")
        if gi0 == len(groups) - 2:
            A("v_and_b32 v37, 6, v35")
            A("v_lshrrev_b32 v38, 3, v35")
            A("v_lshl_add_u32 v37, v37, 2, v38")
            A("v_and_b32 v38, 1, v35")
            A("v_lshl_add_u32 v37, v37, 1, v38")
            A("s_mul_i32 s42, s37, 1536")
            A("s_lshl_b32 s43, s38, 9")
            A("s_add_u32 s42, s42, s43")
            A("v_lshl_add_u32 v37, v37, 3, s42")
            A("s_mul_i32 s43, s36, 768")
            A("v_add_u32 v38, s43, v36")
            A("s_mul_i32 s48, s2, 1536")
            A("s_add_u32 s48, s48, s43")
            A(f"s_add_u32 s48, s48, {W_A}")
    A("L_tail:")
    if not sst: stamp(2)
    for i in range(4):
        A(f"v_permlane32_swap_b32 v{S+i}, v{S+i+4}")
    for i in range(4):
        A(f"v_permlane32_swap_b32 v{M+i}, v{M+i+4}")
    for i in range(2):
        A(f"v_pk_add_f32 v[{S+2*i}:{S+2*i+1}], v[{S+2*i}:{S+2*i+1}], v[{S+4+2*i}:{S+5+2*i}]")
    for i in range(4):
        A(f"v_max_f32 v{M+i}, v{M+i}, v{M+i+4}")
    for i in range(2):
        A(f"v_permlane16_swap_b32 v{S+i}, v{S+i+2}")
    for i in range(2):
        A(f"v_permlane16_swap_b32 v{M+i}, v{M+i+2}")
    A(f"v_pk_add_f32 v[{S}:{S+1}], v[{S}:{S+1}], v[{S+2}:{S+3}]")
    for i in range(2):
        A(f"v_max_f32 v{M+i}, v{M+i}, v{M+i+2}")
    A(f"v_add_f32_dpp v{T}, v{S}, v{S} row_ror:8 row_mask:0xf bank_mask:0x3")
    A(f"v_max_f32_dpp v{T+1}, v{M}, v{M} row_ror:8 row_mask:0xf bank_mask:0x3")
    A("s_nop 0")
    A(f"v_add_f32_dpp v{T}, v{S+1}, v{S+1} row_ror:8 row_mask:0xf bank_mask:0xc")
    A(f"v_max_f32_dpp v{T+1}, v{M+1}, v{M+1} row_ror:8 row_mask:0xf bank_mask:0xc")
    A(f"ds_write_b64 v37, v[{T}:{T+1}] offset:{L_RED}")
    A("s_cmp_ge_u32 s36, 2")
    A("s_waitcnt lgkmcnt(0)")
    A("s_barrier")
    stamp(3)
    if bst:
        A("s_mov_b32 s62, s60"); A("s_mov_b32 s64, s60"); A("s_mov_b32 s72, s60")
    if stop1:
        for i in (4, 5): stamp(i)
        A("s_branch L_out")
    A("s_cbranch_scc1 L_role2")
    A("s_mov_b32 exec_hi, 0xffff")
    for q in range(4):
        A(f"ds_read_b128 v[{T+4*q}:{T+4*q+3}], v38 offset:{L_RED+q*1536}")
    A("s_waitcnt lgkmcnt(2)")
    A(f"v_add_f32 v{T}, v{T}, v{T+4}")
    A(f"v_add_f32 v{T+2}, v{T+2}, v{T+6}")
    A(f"v_max_f32 v{T+1}, v{T+1}, v{T+5}")
    A(f"v_max_f32 v{T+3}, v{T+3}, v{T+7}")
    A("s_waitcnt lgkmcnt(0)")
    A(f"v_add_f32 v{T+8}, v{T+8}, v{T+12}")
    A(f"v_add_f32 v{T+10}, v{T+10}, v{T+14}")
    A(f"v_max3_f32 v{T+1}, v{T+1}, v{T+9}, v{T+13}")
    A(f"v_max3_f32 v{T+3}, v{T+3}, v{T+11}, v{T+15}")
    A(f"v_add_f32 v{T}, v{T}, v{T+8}")
    A(f"v_add_f32 v{T+2}, v{T+2}, v{T+10}")
    A(f"v_or_b32 v{T+1}, s46, v{T+1}")
    A(f"v_or_b32 v{T+3}, s52, v{T+3}")
    A(f"buffer_store_dwordx4 v[{T}:{T+3}], v36, s[20:23], s48 offen {pubpol}".rstrip())
    if bst: stamp(1)
    A("s_mov_b64 exec, -1")
    A("s_branch L_common")
    A("L_role2:")
    A("s_lshr_b32 s47, s2, 3")
    A(f"s_sub_u32 s47, s47, {ry0}")
    A("s_cmp_lt_u32 s47, 12")
    A(f"s_cselect_b32 s42, {redmask}, 0")
    A("s_bitcmp1_b32 s42, s36")
    A("s_cbranch_scc1 L_role3")
    A("s_cmp_lg_u32 s36, 2")
    A("s_cbranch_scc1 L_role4")
    if warm_out == 4:
        A(f"s_cmp_lt_u32 s2, {256 - wown}")
        A("s_cbranch_scc1 L_common")
        A("v_lshlrev_b32 v2, 21, v35")
        A(f"v_min_u32 v2, {XB-4}, v2")
        A("buffer_load_dword v2, v2, s[12:15], 0 offen nt")
        A("s_waitcnt vmcnt(0)")
    if warm_out == 1:
        A(f"v_mul_u32_u24 v2, {SW}, v35")
        A("s_mov_b64 exec, 0xffff")
        A("buffer_load_dword v3, v2, s[12:15], s41 offen")
        A("s_mov_b64 exec, -1")
        A("s_waitcnt vmcnt(0)")
    A("s_branch L_common")
    A("L_role3:")
    A("v_mov_b32 v24, 0")
    A("v_mov_b32 v25, 1")
    A("v_lshrrev_b32 v2, 3, v35")
    A("v_mul_u32_u24 v20, 12288, v2")
    A("v_and_b32 v3, 0x70, v36")
    A("v_add_u32 v20, v20, v3")
    A("s_and_b32 s43, s2, 7")
    A("s_mul_i32 s42, s43, 1536")
    A("s_lshl_b32 s47, s47, 7")
    A("s_add_u32 s42, s42, s47")
    A(f"s_add_u32 s4, s42, {W_A}")
    for k in range(1, 4):
        A(f"s_add_u32 s{4+k}, s{3+k}, 98304")
    A("v_and_b32 v2, 3, v2")
    A("v_add_u32 v21, s56, v2")
    A("s_lshr_b32 s48, s57, 22")
    A("v_xor_b32 v21, s48, v21")
    if nearB == 2: A("v_not_b32 v21, v21")
    A("v_and_b32 v21, 4, v21")
    if nearB == 0: A("v_mov_b32 v21, 0")
    A("v_lshlrev_b32 v21, 11, v21")
    A("v_lshl_add_u32 v21, v2, 15, v21")
    A("v_lshrrev_b32 v3, 1, v3")
    A("v_add_u32 v21, v21, v3")
    A("v_lshrrev_b32 v3, 5, v35")
    A("v_lshl_add_u32 v21, v3, 6, v21")
    A(f"v_xor_b32 v22, {0x22000 if nearB else 0x20000}, v21")
    A("s_bfe_u32 s43, s2, 0x10002")
    A("s_mul_i32 s43, s43, %d" % (16384 - 4 * 1536))
    A("s_add_u32 s48, s42, s43")
    A("v_and_b32 v23, 16, v36")
    A("v_bfe_u32 v23, s59, v23, 16")
    A("L_pollA:")
    for k in range(4):
        A(f"buffer_load_dwordx4 v[{4+4*k}:{7+4*k}], v20, s[20:23], s{4+k} offen sc1")
    A("s_add_u32 s45, s45, 1")
    for k in range(4):
        A(f"s_waitcnt vmcnt({3-k})")
        if k == 0:
            A("v_xor_b32 v2, s46, v5")
        else:
            A(f"v_bitop3_b32 v2, v2, v{5+4*k}, s46 bitop3:0xf6")
        A(f"v_bitop3_b32 v2, v2, v{7+4*k}, s52 bitop3:0xf6")
    A("v_cmp_ne_u16 vcc, 0, v2")
    A("s_cbranch_vccz L_gotA")
    A(f"s_cmp_lt_u32 s45, {SPIN}")
    A("s_cbranch_scc1 L_pollA")
    A("L_gotA:")
    if bst: stamp(2)
    if redmask & (redmask - 1):
        A("s_mov_b64 exec, 1")
        A(f"ds_wrxchg_rtn_b32 v26, v24, v25 offset:{L_FL+4}")
        A("s_mov_b64 exec, -1")
    A("v_add_f32 v4, v4, v8")
    A("v_add_f32 v6, v6, v10")
    A("v_add_f32 v12, v12, v16")
    A("v_add_f32 v14, v14, v18")
    for k in range(8):
        A(f"v_and_b32 v{5+2*k}, s44, v{5+2*k}")
    A("v_add_f32 v4, v4, v12")
    A("v_add_f32 v6, v6, v14")
    A("v_max3_f32 v5, v5, v9, v13")
    A("v_max3_f32 v7, v7, v11, v15")
    A("v_max_f32 v5, v5, v17")
    A("v_max_f32 v7, v7, v19")
    def fold345():
        A("v_permlane32_swap_b32 v4, v6")
        A("v_add_f32 v4, v4, v6")
        A("v_permlane32_swap_b32 v5, v7")
        A("v_mov_b32 v6, v4")
        A("v_max_f32 v5, v5, v7")
        A("v_mov_b32 v7, v5")
        A("v_permlane16_swap_b32 v4, v6")
        A("v_add_f32 v4, v4, v6")
        A("v_permlane16_swap_b32 v5, v7")
        A("v_max_f32 v5, v5, v7")
        A("v_add_f32_dpp v4, v4, v4 row_ror:8 row_mask:0xf bank_mask:0xf")
        A("s_nop 0")
        A("v_max_f32_dpp v5, v5, v5 row_ror:8 row_mask:0xf bank_mask:0xf")
    fold345()
    A("v_or_b32 v5, v23, v5")
    if redmask & (redmask - 1):
        A("s_waitcnt lgkmcnt(0)")
        A("v_readfirstlane_b32 s42, v26")
        A("s_cmp_lg_u32 s42, 0")
        A("s_cbranch_scc1 L_common")
    A("buffer_store_dwordx2 v[4:5], v21, s[20:23], s48 offen sc1")
    A("buffer_store_dwordx2 v[4:5], v22, s[20:23], s48 offen sc1")
    if bst: stamp(6)
    if gate:
        A(f"ds_write_b32 v24, v25 offset:{L_FL}")
    A("s_branch L_common")
    A("L_role4:")
    VS = VD + 4 * (NL - 6)
    A("s_sub_u32 s43, s36, 4")
    A("s_cmp_ge_u32 s43, 3")
    A("s_cbranch_scc1 L_common")
    A("s_mul_i32 s42, s43, 6144")
    A(f"s_add_u32 s42, s42, {L_SP}")
    A("v_add_u32 v38, s42, v36")
    for k in range(6):
        A(f"ds_write_b128 v38, v[{VS+4*k}:{VS+4*k+3}] offset:{k*1024}")
    A("v_lshrrev_b32 v2, 4, v35")
    A("v_lshlrev_b32 v2, 3, v2")
    A("v_bfe_u32 v3, v35, 2, 2")
    A("v_add_u32 v2, v2, v3")
    A("v_mul_u32_u24 v2, 96, v2")
    A("v_and_b32 v3, 3, v35")
    A("v_lshl_add_u32 v2, v3, 3, v2")
    A("s_lshl_b32 s42, s43, 5")
    A("v_add_u32 v2, s42, v2")
    A("s_waitcnt lgkmcnt(0)")
    for k in range(6):
        A(f"ds_read_b64_tr_b16 v[{VS+4*k}:{VS+4*k+1}], v2 offset:{L_W1 + k*3072}")
        A(f"ds_read_b64_tr_b16 v[{VS+4*k+2}:{VS+4*k+3}], v2 offset:{L_W1 + k*3072 + 384}")
    A("v_and_b32 v2, 1, v35")
    A("v_mul_u32_u24 v2, 384, v2")
    A("v_lshrrev_b32 v3, 4, v35")
    A("v_lshl_add_u32 v39, v3, 4, v2")
    A("L_common:")
    A("v_lshrrev_b32 v2, 5, v35")
    A("v_bfe_u32 v3, v35, 3, 2")
    A("v_mul_u32_u24 v3, 1536, v3")
    A("v_lshl_add_u32 v8, v2, 14, v3")
    A("v_and_b32 v3, 0x70, v36")
    A("v_add_u32 v8, v8, v3")
    A("s_add_u32 s42, s56, s2")
    A("s_lshr_b32 s43, s57, 22")
    A("s_xor_b32 s42, s42, s43")
    if nearB == 2: A("s_not_b32 s42, s42")
    A("s_and_b32 s42, s42, 4")
    if nearB == 0: A("s_mov_b32 s42, 0")
    A("s_lshl_b32 s42, s42, 11")
    A("s_and_b32 s43, s2, 7")
    A("s_lshl_b32 s43, s43, 15")
    A("s_add_u32 s42, s42, s43")
    A("s_lshl_b32 s43, s36, 7")
    A("s_add_u32 s47, s42, s43")
    if not gate: A("buffer_load_dwordx4 v[4:7], v8, s[20:23], s47 offen sc1")
    A("v_lshrrev_b32 v3, 2, v3")
    A("v_lshl_add_u32 v9, v2, 1, v3")
    A("s_lshl_b32 s42, s36, 5")
    A("v_add_u32 v9, s42, v9")
    A("v_lshrrev_b32 v2, 2, v35")
    A("v_mul_u32_u24 v2, 384, v2")
    A("v_and_b32 v3, 3, v35")
    A("v_lshl_add_u32 v2, v3, 3, v2")
    A("v_add_u32 v2, s42, v2")
    W2F = 28
    for k in range(3):
        A(f"ds_read_b64_tr_b16 v[{W2F+2*k}:{W2F+2*k+1}], v2 offset:{L_W2 + k*6144}")
    A("v_lshlrev_b32 v37, 3, v35")
    A("s_cmp_lt_u32 s36, 2")
    A(f"s_cselect_b32 s3, {NWT}, 0")
    def wthrough(name):
        A("s_sub_u32 s3, s3, 1")
        A("s_cmp_eq_u32 s3, 0")
        A(f"s_cbranch_scc0 {name}")
        A("s_mov_b64 s[4:5], exec")
        A("s_mov_b32 exec_lo, -1")
        A("s_mov_b32 exec_hi, 0xffff")
        A(f"buffer_store_dwordx4 v[{T}:{T+3}], v36, s[20:23], s48 offen sc1")
        A("s_mov_b64 exec, s[4:5]")
        A(f"{name}:")
    if gate:
        A("s_lshr_b32 s42, s2, 3")
        A(f"s_sub_u32 s42, s42, {ry0}")
        A("s_cmp_ge_u32 s42, 12")
        A("s_cbranch_scc1 L_open")
        A("v_mov_b32 v2, 0")
        A("L_gate:")
        A(f"ds_read_b32 v3, v2 offset:{L_FL}")
        A("s_waitcnt lgkmcnt(0)")
        A("v_cmp_ne_u32 vcc, 0, v3")
        A("s_cbranch_vccnz L_open")
        A(f"s_sleep {gate}")
        wthrough("L_nowt0")
        A("s_add_u32 s45, s45, 1")
        A(f"s_cmp_lt_u32 s45, {SPIN}")
        A("s_cbranch_scc1 L_gate")
        A("L_open:")
        A("buffer_load_dwordx4 v[4:7], v8, s[20:23], s47 offen sc1")
    A("L_pollB:")
    A("s_waitcnt vmcnt(0)")
    A("v_cmp_ne_u16 vcc, s46, v5")
    A("v_cmp_ne_u16 s[4:5], s52, v7")
    A("s_or_b64 exec, vcc, s[4:5]")
    A("s_cbranch_scc0 L_gotB")
    if slp:
        A("s_bcnt1_i32_b64 s42, exec")
        A(f"s_cmp_le_u32 s42, {slpthr}")
        A("s_cbranch_scc1 L_nosleep")
        A(f"s_sleep {slp}")
        A("L_nosleep:")
    A("buffer_load_dwordx4 v[4:7], v8, s[20:23], s47 offen sc1")
    wthrough("L_nowt")
    A("s_add_u32 s45, s45, 1")
    A(f"s_cmp_lt_u32 s45, {SPIN}")
    A("s_cbranch_scc1 L_pollB")
    A("s_waitcnt vmcnt(0)")
    A("L_gotB:")
    A("s_mov_b64 exec, -1")
    A("v_and_b32 v5, s44, v5")
    A("v_and_b32 v7, s44, v7")
    fold345()
    A("v_mul_f32 v4, 0x36800000, v4")
    A("v_cvt_pk_bf16_f32 v4, v4, v5")
    A(f"ds_write_b16 v9, v4 offset:{L_G}")
    A(f"ds_write_b16_d16_hi v9, v4 offset:{L_G+384}")
    A("s_cmp_gt_i32 s3, 0" if exitwt else "s_cmp_gt_i32 0, 0")
    A("s_cbranch_scc0 L_nowt2")
    A("s_mov_b32 exec_hi, 0xffff")
    A(f"buffer_store_dwordx4 v[{T}:{T+3}], v36, s[20:23], s48 offen sc1")
    A("s_mov_b32 exec_hi, -1")
    A("L_nowt2:")
    A("s_sub_u32 s42, s36, 4")
    A("s_cmp_ge_u32 s42, 3")
    A("s_waitcnt lgkmcnt(0)")
    A("s_barrier")
    stamp(4)
    A("s_cbranch_scc1 L_l2")
    BF = 4
    for k in range(6):
        A(f"ds_read_b128 v[{BF+4*k}:{BF+4*k+3}], v39 offset:{L_G + k*64}")
    A("s_lshl_b32 s42, s42, 9")
    A("v_add_u32 v36, s42, v37")
    A("s_mov_b32 s43, 0x7f800000")
    for k in range(6):
        A(f"s_waitcnt lgkmcnt({5-k})")
        c = "0" if k == 0 else "v[0:3]"
        A(f"v_mfma_f32_16x16x32_bf16 v[0:3], v[{VS+4*k}:{VS+4*k+3}], v[{BF+4*k}:{BF+4*k+3}], {c}")
    A("s_nop 7")
    for i in range(4):
        A(f"v_mul_f32_e64 v{4+i}, v{i}, s43 clamp")
    A("v_pk_mul_f32 v[0:1], v[0:1], v[4:5]")
    A("v_pk_mul_f32 v[2:3], v[2:3], v[6:7]")
    A("v_cvt_pk_bf16_f32 v4, v0, v1")
    A("v_cvt_pk_bf16_f32 v5, v2, v3")
    A(f"ds_write_b64 v36, v[4:5] offset:{L_H}")
    A("L_l2:")
    lane_offsets(0, 1)
    A("s_waitcnt lgkmcnt(0)")
    A("s_barrier")
    for k in range(3):
        A(f"ds_read_b64 v[{4+2*k}:{5+2*k}], v37 offset:{L_H + k*512}")
    A("v_and_b32 v2, 15, v35")
    A("s_lshl_b32 s42, s36, 6")
    A("v_lshl_add_u32 v36, v2, 2, s42")
    A("v_and_b32 v2, 7, v35")
    A("s_lshl_b32 s42, s38, 8")
    A("v_lshl_add_u32 v39, v2, 5, s42")
    A("s_mov_b32 s43, 0xbfb8aa3b")
    if wdot:
        A("v_bfe_i32 v3, v35, 0, 1")
        A("v_xor_b32 v3, 0xffff, v3")
    for k in range(3):
        A(f"s_waitcnt lgkmcnt({2-k})")
        c = "0" if k == 0 else "v[12:15]"
        A(f"v_mfma_f32_16x16x16_bf16 v[12:15], v[{4+2*k}:{5+2*k}], v[{W2F+2*k}:{W2F+2*k+1}], {c}")
    A("s_nop 7")
    A("v_cvt_pk_bf16_f32 v12, v12, v13")
    A("v_lshlrev_b32 v13, 16, v12")
    A("v_and_b32 v12, s44, v12")
    A("v_add_f32 v12, v12, v13")
    A("v_cvt_pk_bf16_f32 v12, 0, v12")
    A("v_mul_f32 v12, s43, v12")
    A("v_exp_f32 v12, v12")
    A("s_nop 0")
    A("v_add_f32 v12, 1.0, v12")
    A("v_rcp_f32 v12, v12")
    A("s_nop 0")
    if wdot:
        A("v_cvt_pk_bf16_f32 v12, v12, v12")
        A("v_and_b32 v12, v3, v12")
    else:
        A("v_cvt_pk_bf16_f32 v12, 0, v12")
    A(f"ds_write_b32 v36, v12 offset:{L_SC}")
    A("s_waitcnt lgkmcnt(0)")
    A("s_barrier")
    SCR = 2
    A(f"ds_read_b128 v[{SCR}:{SCR+3}], v39 offset:{L_SC}")
    A(f"ds_read_b128 v[{SCR+4}:{SCR+7}], v39 offset:{L_SC+16}")
    stamp(5)
    if clk: A("s_memtime s[76:77]")
    T2 = 10
    steps = list(range(16))
    if word:
        dyn = list(range(nstatic, 16))
        steps = []
        for k in range(nstatic):
            lo, hi = k * len(dyn) // nstatic, (k + 1) * len(dyn) // nstatic
            part = dyn[lo:hi]
            steps += part[:1] + [k] + part[1:]
    order = [2 * i + h for i in steps for h in (0, 1)]
    if wburst:
        A(f"s_cmp_lt_u32 s36, {wburst}")
        A("s_cbranch_scc1 L_wold")
        A("s_sub_u32 s42, s36, 4")
        A("s_cmp_ge_u32 s42, 3")
        A("s_cbranch_scc1 L_noreload2")
        for k in range(6):
            A(f"ds_read_b128 v[{VS+4*k}:{VS+4*k+3}], v38 offset:{k*1024}")
        A("L_noreload2:")
        A("s_waitcnt lgkmcnt(0)")
        for j in range(NL):
            tb = T2 + 8 * (j % 2)
            for i in range(4):
                d = VD + 4 * j + i
                A(f"v_lshlrev_b32 v{tb+2*i}, 16, v{d}")
                A(f"v_and_b32 v{tb+2*i+1}, s44, v{d}")
            for i in range(4):
                A(f"v_pk_mul_f32 v[{tb+2*i}:{tb+2*i+1}], v[{tb+2*i}:{tb+2*i+1}], v[{SCR+2*i}:{SCR+2*i+1}]")
            for i in range(4):
                d = VD + 4 * j + i
                A(f"v_cvt_pk_bf16_f32 v{d}, v{tb+2*i}, v{tb+2*i+1}")
        for n, j in enumerate(order):
            i2, h = j >> 1, j & 1
            if h == 0:
                A(f"v_readlane_b32 s50, v34, {i2}")
                A("s_nop 1")
            addr(28 + h, h)
            r = VD + 4 * j
            A(f"buffer_store_dwordx4 v[{r}:{r+3}], v{28+h}, s[12:15], s{TAB+i2} offen {st}".rstrip())
        A("s_branch L_wdone")
        A("L_wold:")
    for n, j in enumerate(order):
        tb = T2 + 8 * (j % 2)
        i2, h = j >> 1, j & 1
        if j == NL - 6:
            A("s_waitcnt lgkmcnt(0)")
        if h == 0:
            A(f"v_readlane_b32 s50, v34, {i2}")
        if wdot:
            if n == 0:
                A("s_nop 1")
                addr(28 + h, h)
                A("s_waitcnt lgkmcnt(0)")
            for i in range(8):
                A(f"v_dot2_f32_bf16 v{tb+i}, v{VD + 4*j + i//2}, v{SCR+i}, 0")
            if n: addr(28 + h, h)
        for i in range(4):
            d = VD + 4 * j + i
            if wdot or (nowv and i): continue
            A(f"v_lshlrev_b32 v{tb+2*i}, 16, v{d}")
            A(f"v_and_b32 v{tb+2*i+1}, s44, v{d}")
        if not wdot: addr(28 + h, h)
        if n == 0 and not wdot:
            A("s_waitcnt lgkmcnt(0)")
        for i in range(0 if nowv or wdot else 4):
            A(f"v_pk_mul_f32 v[{tb+2*i}:{tb+2*i+1}], v[{tb+2*i}:{tb+2*i+1}], v[{SCR+2*i}:{SCR+2*i+1}]")
        for i in range(0 if nowv else 4):
            d = VD + 4 * j + i
            A(f"v_cvt_pk_bf16_f32 v{d}, v{tb+2*i}, v{tb+2*i+1}")
        r = VD + 4 * j
        if wwin and n >= wwin: A(f"s_waitcnt vmcnt({wwin-1})")
        A(f"buffer_store_dwordx4 v[{r}:{r+3}], v{28+h}, s[12:15], s{TAB+i2} offen {st}".rstrip())
        if n == 0:
            A("s_sub_u32 s42, s36, 4")
            A("s_cmp_ge_u32 s42, 3")
            A("s_cbranch_scc1 L_noreload")
            for k in range(6):
                A(f"ds_read_b128 v[{VS+4*k}:{VS+4*k+3}], v38 offset:{k*1024}")
            A("L_noreload:")
    A("L_wdone:")
    if stamps:
        A("L_out:")
        if not bst and not sst: stamp(6)
        if sst:
            A('s_waitcnt lgkmcnt(0)'); A('s_mul_i32 s68, s55, 100'); A('s_add_u32 s68, s68, s60')
        A("s_waitcnt vmcnt(0)")
        stamp(7)
        if clk: A("s_memtime s[78:79]")
        A("s_waitcnt lgkmcnt(0)")
        if clk:
            A("s_sub_u32 s62, s78, s76")
            A("s_add_u32 s62, s62, s60")
        A("s_mov_b64 exec, 1")
        if diag:
            diag_tail(A, diag)
        A("s_mul_i32 s3, s2, 12")
        A("s_add_u32 s3, s3, s36")
        A("s_lshl_b32 s3, s3, 5")
        A(f"s_add_u32 s3, s3, {W_ST}")
        A("v_mov_b32 v1, 0")
        for i in range(8):
            A(f"v_mov_b32 v{4+i}, s{60+2*i}")
        A("buffer_store_dwordx4 v[4:7], v1, s[20:23], s3 offen")
        A("buffer_store_dwordx4 v[8:11], v1, s[20:23], s3 offen offset:16")
    A("L_end:")
    A("s_endpgm")
    n0 = len(L)
    scout()
    if inl:
        body = L[n0:]
        del L[n0:]
        k = L.index("@@SCOUT@@")
        L[k:k+1] = body
    A('.section .rodata,"a"')
    A(".p2align 6")
    A(".amdhsa_kernel standalone__channel_attn_cbam__vision_kernel")
    A("  .amdhsa_next_free_vgpr 168")
    A("  .amdhsa_next_free_sgpr 96")
    A("  .amdhsa_accum_offset 168")
    A("  .amdhsa_group_segment_fixed_size 0")
    A("  .amdhsa_kernarg_size 48")
    A("  .amdhsa_user_sgpr_count 2")
    A("  .amdhsa_user_sgpr_kernarg_segment_ptr 1")
    A("  .amdhsa_system_sgpr_workgroup_id_x 1")
    A("  .amdhsa_float_denorm_mode_32 3")
    A(".end_amdhsa_kernel")
    out = []
    for line in L:
        if line.startswith(("s_", "v_", "ds_", "buffer_", "global_")):
            out.append("    " + line)
        else:
            out.append(line)
    return "\n".join(out) + "\n"

def diag_tail(A, diag):
    idx, mul, base = diag[:3]
    dwg = diag[3] if len(diag) > 3 else 0
    dwv = diag[4] if len(diag) > 4 else 0
    A(f"s_cmp_lg_u32 s36, {dwv}")
    A("s_cbranch_scc1 L_end")
    A(f"s_cmp_lg_u32 s2, {dwg}")
    A("s_cbranch_scc1 L_end")
    if idx == -1:
        A("s_lshr_b32 s42, s57, 1")
        A("s_xor_b32 s42, s42, s57")
        A("s_and_b32 s42, s42, 0x7ff7ff")
        A("s_bcnt1_i32_b32 s42, s42")
    elif idx >= 100:
        A(f"s_sub_u32 s42, s{60+2*(idx//10%10)}, s{60+2*(idx%10)}")
    else:
        A(f"s_sub_u32 s42, s{60+2*idx}, s60")
    A(f"s_mul_i32 s42, s42, {mul}")
    A(f"s_add_u32 s42, s42, {base}")
    A("s_min_u32 s42, s42, 200000")
    A("L_dg3:")
    A("s_memrealtime s[78:79]")
    A("s_waitcnt lgkmcnt(0)")
    A("s_sub_u32 s43, s78, s60")
    A("s_cmp_lt_u32 s43, s42")
    A("s_cbranch_scc1 L_dg3")
    A("s_branch L_end")

if __name__ == "__main__":
    cfg = json.loads(sys.argv[1]) if len(sys.argv) > 1 else {}
    sys.stdout.write(gen(**cfg))
```

```python
import sys, json

HEADER = """; CBAM channel attention, x kept in registers across a grid-wide reduction (single pass over HBM)
"""

def gen(ld="nt", st="sc1", W=4, stamps=0, diag=None, wpos=20, warm_out=2, STRIDE=1, ROT=0, MIX=0xAAAA, MIX2=0xEEEE,
        nstatic=4, maplead=0, grp=2, cpf=16, cpos=18, stop1=0, THR=100, tagpos=24, ppol="nt", usemap=1, oracle=None,
        rawd=0, s1first=0, W2=0, gW2=0, word=1, bst=0, pubpol="", NWT=128, slp=6, slpthr=16, ry0=16, nearB=1, gate=2, wopos=22, exitwt=1, ldsx=0, smooth=1, wown=8, W3=0, gW3=0, sst=0, gst=None, early=0, wold=0, boostS=0, boostO=0, boostA=0, noscout=0, nowv=0, clk=0, wwin=0, wprio=0, wdot=0, wburst=0, prio=None, redmask=8, wsw=0, wswave=0, al12=1, inl=1, cpf0=0, pmap=0, xwarm=0, xwave=0, alT=0, alP=0, wbar=0, rbar=None, rpost=0):
    if diag: stamps = 1
    NW, NL, VD = 12, 32, 40
    XB = 100663296
    L_W1, L_W2 = 0, 18432
    L_RED = 36864
    L_G = L_RED + 6144
    L_H = L_G + 768
    L_SC = L_H + 1536
    L_FL = L_SC + 768
    L_SP = L_FL + 64
    L_END = L_SP + 3 * 6144
    W_A = 256 << 10
    W_ST = 1 << 20
    SPIN = 1 << 20
    SW = 6 << 20
    TAB = 80
    NS = 1 if noscout else 25
    assert 2 * nstatic >= W and (grp == 1 or W % 2 == 0)
    L = []
    A = L.append
    def stamp(i, force=False):
        if stamps and (gst is None or force or i == 0):
            A(f"s_memrealtime s[{60+2*i}:{61+2*i}]")
    A(HEADER.rstrip())
    A(f"; @launch grid=(256,1,1) block=({NW*64},1,1) lds={ldsx or L_END}")
    A('.amdgcn_target "amdgcn-amd-amdhsa--gfx950"')
    A(".text")
    A(".globl standalone__channel_attn_cbam__vision_kernel")
    if al12: A(".p2align 12")
    A(".p2align 8")
    A(".type standalone__channel_attn_cbam__vision_kernel,@function")
    A("standalone__channel_attn_cbam__vision_kernel:")
    stamp(0)
    A("s_load_dwordx4 s[4:7], s[0:1], 0")
    A("s_load_dwordx4 s[24:27], s[0:1], 16")
    A("s_load_dwordx4 s[28:31], s[0:1], 32")
    A("s_memtime s[58:59]")
    A("s_cmp_ge_u32 s2, 256")
    A("s_cbranch_scc1 L_end")
    A("v_lshrrev_b32 v2, 6, v0")
    A("v_and_b32 v35, 63, v0")
    A("v_readfirstlane_b32 s36, v2")
    A("s_mov_b32 s35, 0x20000")
    A("s_lshr_b32 s40, s2, 2")
    A("s_and_b32 s42, s2, 1")
    A("s_or_b32 s40, s40, s42")
    A("s_and_b32 s42, s2, 6")
    A(f"s_cselect_b32 s40, {NS}, s40")
    A("s_lshl_b32 s42, s36, 5")
    A("s_or_b32 s42, s42, s40")
    A(f"s_cmp_lt_u32 s42, {NS}")
    if sst:
        A("s_waitcnt lgkmcnt(0)")
        A("s_mov_b32 s64, s60"); A("s_mov_b32 s72, s60")
    if inl:
        A("s_cbranch_scc0 L_main")
        A("@@SCOUT@@")
    else:
        A("s_cbranch_scc1 L_scout")
    A("L_main:")
    if cpf0:
        A("s_lshr_b32 s42, s2, 4")
        A("s_and_b32 s43, s36, %d" % (12 if (alT or alP) else 14))
        A("s_lshl_b32 s43, s43, 4")
        A("s_or_b32 s42, s42, s43")
        A(f"s_cmp_lg_u32 s42, {cpf0}")
        A("s_cbranch_scc1 L_nocpf0")
        A("s_getpc_b64 s[54:55]")
        A("L_pc0:")
        A("v_lshlrev_b32 v33, 7, v0")
        A("v_min_u32 v33, L_end-L_pc0, v33")
        A("global_load_dword v33, v33, s[54:55]")
        A("L_nocpf0:")
    A("s_mul_i32 s37, s36, 43691")
    A("s_lshr_b32 s37, s37, 17")
    A("s_mul_i32 s38, s37, 3")
    A("s_sub_u32 s38, s36, s38")
    A("s_mul_i32 s39, s37, 3072")
    A("s_lshl_b32 s42, s38, 7")
    A("s_add_u32 s39, s39, s42")
    def lane_offsets(b0, b1):
        A(f"v_lshrrev_b32 v{b0}, 3, v35")
        A(f"v_mul_u32_u24 v{b0}, 384, v{b0}")
        A(f"v_and_b32 v{b1}, 7, v35")
        A(f"v_lshl_add_u32 v{b0}, v{b1}, 4, v{b0}")
        A(f"v_add_u32 v{b0}, s39, v{b0}")
        A(f"v_add_u32 v{b1}, 12288, v{b0}")
    lane_offsets(0, 1)
    A("s_lshr_b32 s42, s2, 3")
    A("s_and_b32 s43, s2, 3")
    if pmap == 0:
        A("s_lshl_b32 s51, s42, 2")
        A("s_add_u32 s51, s51, s43")
    elif pmap == 5:
        A("s_lshl_b32 s51, s43, 5")
        A("s_add_u32 s51, s51, s42")
    else:
        A(f"s_lshr_b32 s51, s42, {pmap}")
        A("s_lshl2_add_u32 s51, s51, s43")
        A(f"s_lshl_b32 s51, s51, {pmap}")
        A(f"s_and_b32 s43, s42, {(1 << pmap) - 1}")
        A("s_add_u32 s51, s51, s43")
    if ROT:
        A("s_mul_i32 s41, s51, 49152")
        A("s_lshr_b32 s43, s41, 21")
        A(f"s_mul_i32 s43, s43, {ROT}")
        A("s_and_b32 s53, s43, 15")
        A(f"s_mul_i32 s43, s53, {SW}")
        A(f"s_add_u32 s{TAB}, s43, s41")
    else:
        A(f"s_mul_i32 s{TAB}, s51, 49152")
    A("s_lshl_b32 s50, s2, 11")
    A("s_lshl_b32 s42, s42, 13")
    A("s_xor_b32 s50, s50, s42")
    A("s_and_b32 s50, s50, 0x2000")
    A("s_movk_i32 s49, 24576")
    def addr(dst, src):
        A(f"v_add_u32 v{dst}, s50, v{src}")
        A(f"v_bfe_u32 v{dst}, v{dst}, 13, 1")
        A(f"v_mad_u32_u24 v{dst}, v{dst}, s49, v{src}")
    addr(38, 0)
    addr(39, 1)
    A("s_mov_b32 s10, %d" % XB); A("s_mov_b32 s11, 0x20000")
    A(f"s_cmp_lt_u32 s40, {NS}")
    A("s_waitcnt lgkmcnt(0)")
    A("s_mov_b32 s8, s4"); A("s_mov_b32 s9, s5")
    A("s_cbranch_scc0 L_go")
    A("s_barrier")
    if early:
        addr(38, 0)
        addr(39, 1)
    A("L_go:")
    if s1first: stamp(1)
    def ws_srd():
        A("s_add_u32 s20, s30, 0x400000")
        A("s_addc_u32 s21, s31, 0")
        A("s_and_b32 s20, s20, 0xffe00000")
        A("s_mov_b32 s22, 0x400000"); A("s_mov_b32 s23, 0x20000")
    def dbg_srd():
        A("s_mov_b32 s16, s28"); A("s_mov_b32 s17, s29")
        A("s_mov_b32 s18, 256"); A("s_mov_b32 s19, 0x20000")
    def late_setup():
        ws_srd()
        dbg_srd()
        A("s_mov_b32 s12, s26"); A("s_mov_b32 s13, s27")
        A("s_mov_b32 s14, %d" % XB); A("s_mov_b32 s15, 0x20000")
        A("s_mov_b32 s45, 0")
        A("v_mov_b32 v34, s50")
        A("v_lshlrev_b32 v36, 4, v35")
        if not ROT:
            A(f"s_mov_b32 s41, s{TAB}")
            A("s_mov_b32 s53, 0")
    def scout():
        if not inl: A(".p2align 6")
        A("L_scout:")
        A("s_getreg_b32 s48, hwreg(HW_REG_XCC_ID, 0, 3)")
        A("s_mov_b64 exec, 1")
        A("v_mov_b32 v2, 0")
        A(f"s_mov_b32 s34, {XB}")
        A("s_mul_i32 s55, s40, 43")
        A("s_lshr_b32 s55, s55, 9")
        A("s_mul_i32 s42, s55, 12")
        A("s_sub_u32 s42, s40, s42")
        A("s_lshl_b32 s42, s42, 23")
        A("s_bitset1_b32 s42, 22")
        A("s_lshl_b32 s3, 1, s40")
        A("s_lshl_b32 s52, s48, 29")
        A("s_cmp_eq_u32 s40, 0")
        A("s_cselect_b32 s52, s52, 0")
        A("s_or_b32 s52, s52, s3")
        A("v_mov_b32 v14, s52")
        A("s_cmp_ge_u32 s48, 4")
        A("s_cselect_b32 s48, s3, 0")
        A("s_xor_b32 s3, s3, s48")
        A("s_cmp_eq_u32 s55, 1")
        A("s_waitcnt lgkmcnt(0)")
        A("s_cselect_b32 s32, s26, s4")
        A("s_cselect_b32 s33, s27, s5")
        A("s_cmp_eq_u32 s55, 2")
        A("s_cselect_b32 s32, s30, s32")
        A("s_cselect_b32 s33, s31, s33")
        A("s_lshl_b32 s43, s58, 5")
        A(f"s_and_b32 s43, s43, {0x1fff80 & ~8192}")
        A("s_add_u32 s42, s42, s43")
        A("s_and_b32 s43, s32, 0x1ffffc")
        A("s_sub_u32 s42, s42, s43")
        A("s_add_u32 s43, s42, 8192")
        dbg_srd()
        if not inl: A(".p2align 6")
        if early: A("s_barrier")
        A(f"buffer_load_dword v3, v2, s[32:35], s42 offen {ppol}".rstrip())
        A(f"buffer_load_dword v4, v2, s[32:35], s43 offen {ppol}".rstrip())
        A("s_waitcnt vmcnt(1)")
        A("s_memtime s[56:57]")
        A("s_waitcnt vmcnt(0)")
        A("s_memtime s[58:59]")
        A("s_waitcnt lgkmcnt(0)")
        A("s_sub_u32 s42, s58, s56")
        A(f"s_cmpk_le_u32 s42, {THR}")
        A("s_cselect_b32 s48, s3, s48")
        A("v_mov_b32 v15, s48")
        if sst: stamp(2)
        A("buffer_atomic_or_x2 v[14:15], v2, s[16:19], 0 offen sc1")
        if sst:
            A("s_waitcnt vmcnt(0)")
            stamp(6)
            A("s_waitcnt lgkmcnt(0)")
        if not early: A("s_barrier")
        A("s_cmp_lg_u32 s40, 0")
        A("s_cbranch_scc1 L_notag")
        A("s_memrealtime s[56:57]")
        A("v_mov_b32 v12, 1")
        A("s_waitcnt lgkmcnt(0)")
        A("s_mul_i32 s43, s56, 0x9e3779b1")
        A("v_mov_b32 v13, s43")
        A("buffer_store_dwordx2 v[12:13], v2, s[16:19], 0 offen offset:128 sc1")
        A("L_notag:")
        if rawd:
            ws_srd()
            A("v_mov_b32 v8, s42")
            A("s_lshl_b32 s55, s40, 2")
            A(f"s_add_u32 s55, s55, {2 << 20}")
            A("buffer_store_dword v8, v2, s[20:23], s55 offen")
        A("s_mov_b64 exec, -1")
        A(f"s_mov_b32 s40, {NS}")
        if not inl: A("s_branch L_main")
    ops = []
    def weights():
        if wold:
            A("s_cmp_ge_u32 s36, 4")
            A("s_cbranch_scc1 L_nowgt")
            A("s_cmp_ge_u32 s36, 2")
            A("s_cselect_b32 s32, s24, s6")
            A("s_cselect_b32 s33, s25, s7")
            A("s_cselect_b32 s42, 18432, 0")
            A("s_mov_b32 s34, 18432")
            A("s_mul_i32 s43, s36, 9216")
            A("s_sub_u32 s42, s43, s42")
            for k in range(9):
                if k % 4 == 0:
                    if k:
                        A("s_add_u32 s43, s43, 4096")
                    A("s_mov_b32 m0, s43")
                    if k:
                        A("s_add_u32 s42, s42, 4096")
                    else:
                        A("s_nop 0")
                A(f"buffer_load_dwordx4 v36, s[32:35], s42 offen offset:{(k%4)*1024} lds")
            A("L_nowgt:")
            return
        A("s_cmp_ge_u32 s36, 6")
        A("s_cselect_b32 s32, s24, s6")
        A("s_cselect_b32 s33, s25, s7")
        A("s_cselect_b32 s42, 18432, 0")
        A("s_mov_b32 s34, 18432")
        A("s_mul_i32 s43, s36, 3072")
        A("s_mov_b32 m0, s43")
        A("s_sub_u32 s42, s43, s42")
        for k in range(3):
            A(f"buffer_load_dwordx4 v36, s[32:35], s42 offen offset:{k*1024} lds")
            ops.append(("w", k))
    def issue(j):
        r = VD + 4 * j
        i, h = j >> 1, j & 1
        def nexttab(pad):
            if i < 15 and STRIDE == 1 and not ROT:
                A(f"s_add_u32 s{TAB+i+1}, s{TAB+i}, {SW}")
                if pad: A("s_nop 0")
            elif i < 15:
                A(f"s_add_u32 s42, s{TAB+i}, {STRIDE*SW}")
                A(f"s_sub_u32 s43, s42, {XB}")
                A(f"s_cselect_b32 s{TAB+i+1}, s42, s43")
            elif pad:
                A("s_nop 1")
        if i < nstatic:
            A(f"buffer_load_dwordx4 v[{r}:{r+3}], v{38+h}, s[8:11], s{TAB+i} offen {ld}".rstrip())
            if h == 0: nexttab(0)
        else:
            if h == 0:
                A(f"v_readlane_b32 s50, v34, {i}")
                nexttab(1)
            addr(39, h)
            A(f"buffer_load_dwordx4 v[{r}:{r+3}], v39, s[8:11], s{TAB+i} offen {ld}".rstrip())
        ops.append(("d", j))
        if j == wpos:
            weights()
        if j == wopos and warm_out == 2:
            A("s_cmp_lg_u32 s36, 2")
            A("s_cbranch_scc1 L_nowarm")
            A(f"v_mul_u32_u24 v38, {SW}, v35")
            A("s_mov_b64 exec, 0xffff")
            A("buffer_load_dword v38, v38, s[12:15], s41 offen nt")
            A("s_mov_b64 exec, -1")
            A("L_nowarm:")
        if j == wopos and warm_out == 3:
            A("s_lshl_b32 s42, s36, 8")
            A("s_add_u32 s42, s42, s2")
            A(f"s_sub_u32 s42, s42, {2*256 + 256 - wown}")
            A(f"s_cmp_ge_u32 s42, {wown}")
            A("s_cbranch_scc1 L_nowarm")
            A("v_lshlrev_b32 v38, 21, v35")
            A(f"v_min_u32 v38, {XB-4}, v38")
            A("buffer_load_dword v38, v38, s[12:15], 0 offen nt")
            A("L_nowarm:")
        if j == 31 and wsw:
            A(f"s_cmp_lg_u32 s36, {wswave}")
            A("s_cbranch_scc1 L_nowsw")
            A("s_mul_i32 s42, s2, 1536")
            A(f"s_add_u32 s42, s42, {W_A}")
            A("v_lshlrev_b32 v39, 7, v35")
            A(f"s_mov_b64 exec, {(1 << wsw) - 1}")
            A("buffer_load_dword v39, v39, s[20:23], s42 offen sc1")
            A("s_mov_b64 exec, -1")
            A("L_nowsw:")
        if j == cpos and cpf:
            A(f"s_cmp_lt_u32 s2, {256 - cpf}")
            A("s_cbranch_scc1 L_nocpf")
            A(f"s_cmp_ge_u32 s36, {2 if (wburst or alP) else 1}")
            A("s_cbranch_scc1 L_nocpf")
            A("s_getpc_b64 s[54:55]")
            A("L_pc:")
            pr = 38 if cpos < 28 else 39
            assert cpos < 28 or cpos == 31
            A(f"v_lshlrev_b32 v{pr}, 7, v35")
            if wburst or alP:
                A("s_lshl_b32 s42, s36, 13")
                A(f"v_add_u32 v{pr}, s42, v{pr}")
            A(f"v_add_u32 v{pr}, L_tail-L_pc, v{pr}")
            A(f"v_min_u32 v{pr}, L_end-L_pc, v{pr}")
            A(f"global_load_dword v{pr}, v{pr}, s[54:55]")
            A("L_nocpf:")
    def after(j):
        return len(ops) - 1 - ops.index(("d", j))
    def word_wait(reg, off, name, mask):
        A("s_waitcnt lgkmcnt(0)")
        A(f"s_andn2_b32 s42, {hex(mask)}, s{reg}")
        A(f"s_cbranch_scc0 L_{name}ok")
        A("v_mov_b32 v24, 0")
        A(f"L_{name}:")
        A(f"buffer_load_dwordx2 v[22:23], v24, s[16:19], 0 offen offset:{off} sc1")
        A("s_add_u32 s45, s45, 1")
        A("s_waitcnt vmcnt(0)")
        A(f"v_readfirstlane_b32 s{reg}, v22")
        A(f"v_readfirstlane_b32 s{reg+1}, v23")
        A(f"s_andn2_b32 s42, {hex(mask)}, s{reg}")
        A(f"s_cbranch_scc0 L_{name}ok")
        A(f"s_cmp_lt_u32 s45, {SPIN}")
        A(f"s_cbranch_scc1 L_{name}")
        A(f"L_{name}ok:")
    def map_use():
        A("s_sub_u32 s42, s12, s8")
        A("s_add_u32 s42, s42, 0x800")
        A("s_bitcmp1_b32 s42, 12")
        A(f"s_mov_b32 s42, {MIX}")
        A(f"s_cmov_b32 s42, {MIX2}")
        A("v_add_u32 v19, s51, v35")
        A("v_and_b32 v19, 15, v19")
        A("v_bfe_u32 v19, s42, v19, 1")
        A("v_cmp_ne_u32 vcc, 0, v19")
        A("s_and_b32 s42, s8, 0x1fffff")
        A("s_and_b32 s43, s12, 0x1fffff")
        A("v_mov_b32 v20, s42")
        A("v_mov_b32 v21, s43")
        A("v_cndmask_b32 v20, v20, v21, vcc")
        A(f"v_mul_u32_u24 v18, {STRIDE}, v35")
        A("v_add_u32 v18, s53, v18")
        A("v_and_b32 v18, 15, v18")
        A("v_add_u32 v21, s41, v20")
        A("v_lshrrev_b32 v21, 21, v21")
        A("v_mad_u32_u24 v18, v18, 3, v21")
        A("v_lshrrev_b32 v21, 2, v18")
        A("v_min_u32 v21, 11, v21")
        A("v_mad_u32_u24 v19, v19, 12, v21")
        if noscout:
            A("s_waitcnt lgkmcnt(0)"); A("s_mov_b32 s56, 0"); A("s_mov_b32 s57, 0")
        else:
            word_wait(56, 0, "map", (1 << NS) - 1)
        if not s1first: stamp(1)
        if sst: A("s_min_u32 s55, s45, 1")
        A("s_lshr_b32 s56, s56, 29")
        if not usemap:
            return
        if oracle:
            om = sum(((oracle[0] >> (4 * k + 2)) & 1) << k for k in range(12)) | sum(((oracle[1] >> (4 * k + 2)) & 1) << (12 + k) for k in range(12))
            A("s_and_b32 s57, s57, 0x1000000")
            A(f"s_or_b32 s57, s57, {om}")
        if smooth:
            A("s_lshl_b32 s42, s57, 1")
            A("s_lshr_b32 s43, s57, 2")
            A("s_and_b32 s42, s42, 0xffeffe")
            A("s_and_b32 s43, s43, 0x1001")
            A("s_or_b32 s42, s42, s43")
            A("s_lshr_b32 s43, s57, 1")
            A("s_lshl_b32 s48, s57, 2")
            A("s_and_b32 s43, s43, 0x7ff7ff")
            A("s_and_b32 s48, s48, 0x800800")
            A("s_or_b32 s43, s43, s48")
            A("s_and_b32 s48, s42, s43")
            A("s_or_b32 s42, s42, s43")
            A("s_bitset1_b32 s42, 24")
            A("s_and_b32 s57, s57, s42")
            A("s_or_b32 s57, s57, s48")
        A("s_add_u32 s42, s56, s2")
        A("s_lshr_b32 s42, s42, 2")
        A("v_lshrrev_b32 v19, v19, s57")
        A("v_xor_b32 v18, s42, v18")
        A("v_xor_b32 v19, v18, v19")
        A(f"s_mov_b32 exec_lo, {hex(0xffffffff & ~((1 << nstatic) - 1))}")
        A("v_lshl_add_u32 v34, v19, 13, v20")
        A("s_mov_b32 exec_lo, -1")
    boost = boostS or boostO or boostA
    if prio: A("s_setprio 3")
    for j in range(W):
        issue(j)
    nxt = W
    if xwarm:
        A(f"s_cmp_lg_u32 s36, {xwave}")
        A("s_cbranch_scc1 L_noxw")
        A("v_lshlrev_b32 v32, 26, v35")
        A("s_lshr_b32 s42, s2, 3")
        A("s_lshl_b32 s42, s42, 21")
        A("s_mov_b64 exec, 3")
        A("buffer_load_dword v37, v32, s[8:11], s42 offen nt")
        if xwarm == 2:
            A("s_mov_b32 s12, s26"); A("s_mov_b32 s13, s27")
            A("s_mov_b32 s14, %d" % XB); A("s_mov_b32 s15, 0x20000")
            A("buffer_load_dword v37, v32, s[12:15], s42 offen nt")
        A("s_mov_b64 exec, -1")
        A("L_noxw:")
    late_setup()
    if boost:
        assert grp == 2
        A("s_getreg_b32 s42, hwreg(HW_REG_XCC_ID, 0, 1)")
        A("s_cmp_eq_u32 s42, 1")
        A(f"s_cselect_b32 s47, {boostO}, 0")
        A("s_and_b32 s42, s2, 6")
        A(f"s_cselect_b32 s42, 255, s2")
        A(f"s_cmp_le_u32 s42, {8 * ((NS - 1) // 2) + ((NS - 1) & 1)}")
        A(f"s_cselect_b32 s42, {boostS}, 0")
        A("s_or_b32 s47, s47, s42")
        if boostA: A(f"s_or_b32 s47, s47, {boostA}")
    S, M, T = 2, 10, 18
    for i in range(8):
        A(f"v_mov_b32 v{S+i}, 0")
        A(f"v_mov_b32 v{M+i}, 0xff800000")
    A("s_mov_b32 s44, 0xffff0000")
    if gate: A(f"ds_write_b64 v{S}, v[{S}:{S+1}] offset:{L_FL}")
    if grp == 2:
        groups = [(j, j + 1) for j in range(0, NL - 2, 2)] + [(NL - 2,), (NL - 1,)]
        guse = nstatic - W // 2
    else:
        groups = [(j,) for j in range(NL)]
        guse = 2 * nstatic - W
    gld = max(guse - maplead, 0)
    def slot(k):
        nonlocal nxt
        g = groups[k]
        if prio and k in prio: A(f"s_setprio {2 - prio.index(k)}")
        if rbar and k in rbar and not rpost: A("s_barrier")
        if k == gld:
            A("s_load_dwordx2 s[56:57], s[28:29], 0")
        if k == guse:
            map_use()
        if g[0] == tagpos:
            A("s_load_dwordx2 s[58:59], s[28:29], 128")
        if g[0] == tagpos + 2:
            word_wait(58, 128, "tag", 1)
            A("s_and_b32 s46, s59, 0xffff")
            A("s_lshr_b32 s52, s59, 16")
        for _ in g:
            if nxt < NL:
                issue(nxt); nxt += 1
        if W2 and k >= max(gW2, guse):
            extra = 0
            while nxt < NL and nxt - g[-1] - 1 < (W3 if W3 and k >= gW3 else W2) and extra < len(g):
                issue(nxt); nxt += 1; extra += 1
        if rbar and k in rbar and rpost: A("s_barrier")
    def strict(k):
        if nxt < NL:
            A(f"s_bitcmp1_b32 s47, {k}")
            A(f"s_cbranch_scc1 L_bo{k}")
            A(f"s_waitcnt vmcnt({after(groups[k][-1])})")
            A(f"L_bo{k}:")
    if boost:
        strict(0)
        slot(0)
    for gi0, g in enumerate(groups):
        if alT and gi0 == len(groups) - 1:
            A("s_branch L_pageT")
            A(".p2align 12")
            A("L_pageT:")
        A(f"s_waitcnt vmcnt({after(g[-1])})")
        if gst and g[-1] in gst: stamp(1 + gst.index(g[-1]), True)
        if boost:
            if gi0 + 1 < len(groups):
                strict(gi0 + 1)
                slot(gi0 + 1)
        else:
            slot(gi0)
        for gi, j in enumerate(g):
            for i in range(4):
                d = VD + 4 * j + i
                t = T + 8 * gi + 2 * i
                A(f"v_lshlrev_b32 v{t}, 16, v{d}")
                A(f"v_and_b32 v{t+1}, s44, v{d}")
        for gi, j in enumerate(g):
            for i in range(4):
                t = T + 8 * gi + 2 * i
                A(f"v_pk_add_f32 v[{S+2*i}:{S+2*i+1}], v[{S+2*i}:{S+2*i+1}], v[{t}:{t+1}]")
        for i in range(8):
            if len(g) == 2:
                A(f"v_max3_f32 v{M+i}, v{M+i}, v{T+i}, v{T+8+i}")
            else:
                A(f"v_max_f32 v{M+i}, v{M+i}, v{T+i}")
        if gi0 == len(groups) - 2:
            A("v_and_b32 v37, 6, v35")
            A("v_lshrrev_b32 v38, 3, v35")
            A("v_lshl_add_u32 v37, v37, 2, v38")
            A("v_and_b32 v38, 1, v35")
            A("v_lshl_add_u32 v37, v37, 1, v38")
            A("s_mul_i32 s42, s37, 1536")
            A("s_lshl_b32 s43, s38, 9")
            A("s_add_u32 s42, s42, s43")
            A("v_lshl_add_u32 v37, v37, 3, s42")
            A("s_mul_i32 s43, s36, 768")
            A("v_add_u32 v38, s43, v36")
            A("s_mul_i32 s48, s2, 1536")
            A("s_add_u32 s48, s48, s43")
            A(f"s_add_u32 s48, s48, {W_A}")
    A("L_tail:")
    if not sst: stamp(2)
    for i in range(4):
        A(f"v_permlane32_swap_b32 v{S+i}, v{S+i+4}")
    for i in range(4):
        A(f"v_permlane32_swap_b32 v{M+i}, v{M+i+4}")
    for i in range(2):
        A(f"v_pk_add_f32 v[{S+2*i}:{S+2*i+1}], v[{S+2*i}:{S+2*i+1}], v[{S+4+2*i}:{S+5+2*i}]")
    for i in range(4):
        A(f"v_max_f32 v{M+i}, v{M+i}, v{M+i+4}")
    for i in range(2):
        A(f"v_permlane16_swap_b32 v{S+i}, v{S+i+2}")
    for i in range(2):
        A(f"v_permlane16_swap_b32 v{M+i}, v{M+i+2}")
    A(f"v_pk_add_f32 v[{S}:{S+1}], v[{S}:{S+1}], v[{S+2}:{S+3}]")
    for i in range(2):
        A(f"v_max_f32 v{M+i}, v{M+i}, v{M+i+2}")
    A(f"v_add_f32_dpp v{T}, v{S}, v{S} row_ror:8 row_mask:0xf bank_mask:0x3")
    A(f"v_max_f32_dpp v{T+1}, v{M}, v{M} row_ror:8 row_mask:0xf bank_mask:0x3")
    A("s_nop 0")
    A(f"v_add_f32_dpp v{T}, v{S+1}, v{S+1} row_ror:8 row_mask:0xf bank_mask:0xc")
    A(f"v_max_f32_dpp v{T+1}, v{M+1}, v{M+1} row_ror:8 row_mask:0xf bank_mask:0xc")
    A(f"ds_write_b64 v37, v[{T}:{T+1}] offset:{L_RED}")
    A("s_cmp_ge_u32 s36, 2")
    A("s_waitcnt lgkmcnt(0)")
    A("s_barrier")
    stamp(3)
    if bst:
        A("s_mov_b32 s62, s60"); A("s_mov_b32 s64, s60"); A("s_mov_b32 s72, s60")
    if stop1:
        for i in (4, 5): stamp(i)
        A("s_branch L_out")
    A("s_cbranch_scc1 L_role2")
    A("s_mov_b32 exec_hi, 0xffff")
    for q in range(4):
        A(f"ds_read_b128 v[{T+4*q}:{T+4*q+3}], v38 offset:{L_RED+q*1536}")
    A("s_waitcnt lgkmcnt(2)")
    A(f"v_add_f32 v{T}, v{T}, v{T+4}")
    A(f"v_add_f32 v{T+2}, v{T+2}, v{T+6}")
    A(f"v_max_f32 v{T+1}, v{T+1}, v{T+5}")
    A(f"v_max_f32 v{T+3}, v{T+3}, v{T+7}")
    A("s_waitcnt lgkmcnt(0)")
    A(f"v_add_f32 v{T+8}, v{T+8}, v{T+12}")
    A(f"v_add_f32 v{T+10}, v{T+10}, v{T+14}")
    A(f"v_max3_f32 v{T+1}, v{T+1}, v{T+9}, v{T+13}")
    A(f"v_max3_f32 v{T+3}, v{T+3}, v{T+11}, v{T+15}")
    A(f"v_add_f32 v{T}, v{T}, v{T+8}")
    A(f"v_add_f32 v{T+2}, v{T+2}, v{T+10}")
    A(f"v_or_b32 v{T+1}, s46, v{T+1}")
    A(f"v_or_b32 v{T+3}, s52, v{T+3}")
    A(f"buffer_store_dwordx4 v[{T}:{T+3}], v36, s[20:23], s48 offen {pubpol}".rstrip())
    if bst: stamp(1)
    A("s_mov_b64 exec, -1")
    A("s_branch L_common")
    A("L_role2:")
    A("s_lshr_b32 s47, s2, 3")
    A(f"s_sub_u32 s47, s47, {ry0}")
    A("s_cmp_lt_u32 s47, 12")
    A(f"s_cselect_b32 s42, {redmask}, 0")
    A("s_bitcmp1_b32 s42, s36")
    A("s_cbranch_scc1 L_role3")
    A("s_cmp_lg_u32 s36, 2")
    A("s_cbranch_scc1 L_role4")
    if warm_out == 4:
        A(f"s_cmp_lt_u32 s2, {256 - wown}")
        A("s_cbranch_scc1 L_common")
        A("v_lshlrev_b32 v2, 21, v35")
        A(f"v_min_u32 v2, {XB-4}, v2")
        A("buffer_load_dword v2, v2, s[12:15], 0 offen nt")
        A("s_waitcnt vmcnt(0)")
    if warm_out == 1:
        A(f"v_mul_u32_u24 v2, {SW}, v35")
        A("s_mov_b64 exec, 0xffff")
        A("buffer_load_dword v3, v2, s[12:15], s41 offen")
        A("s_mov_b64 exec, -1")
        A("s_waitcnt vmcnt(0)")
    A("s_branch L_common")
    A("L_role3:")
    A("v_mov_b32 v24, 0")
    A("v_mov_b32 v25, 1")
    A("v_lshrrev_b32 v2, 3, v35")
    A("v_mul_u32_u24 v20, 12288, v2")
    A("v_and_b32 v3, 0x70, v36")
    A("v_add_u32 v20, v20, v3")
    A("s_and_b32 s43, s2, 7")
    A("s_mul_i32 s42, s43, 1536")
    A("s_lshl_b32 s47, s47, 7")
    A("s_add_u32 s42, s42, s47")
    A(f"s_add_u32 s4, s42, {W_A}")
    for k in range(1, 4):
        A(f"s_add_u32 s{4+k}, s{3+k}, 98304")
    A("v_and_b32 v2, 3, v2")
    A("v_add_u32 v21, s56, v2")
    A("s_lshr_b32 s48, s57, 22")
    A("v_xor_b32 v21, s48, v21")
    if nearB == 2: A("v_not_b32 v21, v21")
    A("v_and_b32 v21, 4, v21")
    if nearB == 0: A("v_mov_b32 v21, 0")
    A("v_lshlrev_b32 v21, 11, v21")
    A("v_lshl_add_u32 v21, v2, 15, v21")
    A("v_lshrrev_b32 v3, 1, v3")
    A("v_add_u32 v21, v21, v3")
    A("v_lshrrev_b32 v3, 5, v35")
    A("v_lshl_add_u32 v21, v3, 6, v21")
    A(f"v_xor_b32 v22, {0x22000 if nearB else 0x20000}, v21")
    A("s_bfe_u32 s43, s2, 0x10002")
    A("s_mul_i32 s43, s43, %d" % (16384 - 4 * 1536))
    A("s_add_u32 s48, s42, s43")
    A("v_and_b32 v23, 16, v36")
    A("v_bfe_u32 v23, s59, v23, 16")
    A("L_pollA:")
    for k in range(4):
        A(f"buffer_load_dwordx4 v[{4+4*k}:{7+4*k}], v20, s[20:23], s{4+k} offen sc1")
    A("s_add_u32 s45, s45, 1")
    for k in range(4):
        A(f"s_waitcnt vmcnt({3-k})")
        if k == 0:
            A("v_xor_b32 v2, s46, v5")
        else:
            A(f"v_bitop3_b32 v2, v2, v{5+4*k}, s46 bitop3:0xf6")
        A(f"v_bitop3_b32 v2, v2, v{7+4*k}, s52 bitop3:0xf6")
    A("v_cmp_ne_u16 vcc, 0, v2")
    A("s_cbranch_vccz L_gotA")
    A(f"s_cmp_lt_u32 s45, {SPIN}")
    A("s_cbranch_scc1 L_pollA")
    A("L_gotA:")
    if bst: stamp(2)
    if redmask & (redmask - 1):
        A("s_mov_b64 exec, 1")
        A(f"ds_wrxchg_rtn_b32 v26, v24, v25 offset:{L_FL+4}")
        A("s_mov_b64 exec, -1")
    A("v_add_f32 v4, v4, v8")
    A("v_add_f32 v6, v6, v10")
    A("v_add_f32 v12, v12, v16")
    A("v_add_f32 v14, v14, v18")
    for k in range(8):
        A(f"v_and_b32 v{5+2*k}, s44, v{5+2*k}")
    A("v_add_f32 v4, v4, v12")
    A("v_add_f32 v6, v6, v14")
    A("v_max3_f32 v5, v5, v9, v13")
    A("v_max3_f32 v7, v7, v11, v15")
    A("v_max_f32 v5, v5, v17")
    A("v_max_f32 v7, v7, v19")
    def fold345():
        A("v_permlane32_swap_b32 v4, v6")
        A("v_add_f32 v4, v4, v6")
        A("v_permlane32_swap_b32 v5, v7")
        A("v_mov_b32 v6, v4")
        A("v_max_f32 v5, v5, v7")
        A("v_mov_b32 v7, v5")
        A("v_permlane16_swap_b32 v4, v6")
        A("v_add_f32 v4, v4, v6")
        A("v_permlane16_swap_b32 v5, v7")
        A("v_max_f32 v5, v5, v7")
        A("v_add_f32_dpp v4, v4, v4 row_ror:8 row_mask:0xf bank_mask:0xf")
        A("s_nop 0")
        A("v_max_f32_dpp v5, v5, v5 row_ror:8 row_mask:0xf bank_mask:0xf")
    fold345()
    A("v_or_b32 v5, v23, v5")
    if redmask & (redmask - 1):
        A("s_waitcnt lgkmcnt(0)")
        A("v_readfirstlane_b32 s42, v26")
        A("s_cmp_lg_u32 s42, 0")
        A("s_cbranch_scc1 L_common")
    A("buffer_store_dwordx2 v[4:5], v21, s[20:23], s48 offen sc1")
    A("buffer_store_dwordx2 v[4:5], v22, s[20:23], s48 offen sc1")
    if bst: stamp(6)
    if gate:
        A(f"ds_write_b32 v24, v25 offset:{L_FL}")
    A("s_branch L_common")
    A("L_role4:")
    VS = VD + 4 * (NL - 6)
    A("s_sub_u32 s43, s36, 4")
    A("s_cmp_ge_u32 s43, 3")
    A("s_cbranch_scc1 L_common")
    A("s_mul_i32 s42, s43, 6144")
    A(f"s_add_u32 s42, s42, {L_SP}")
    A("v_add_u32 v38, s42, v36")
    for k in range(6):
        A(f"ds_write_b128 v38, v[{VS+4*k}:{VS+4*k+3}] offset:{k*1024}")
    A("v_lshrrev_b32 v2, 4, v35")
    A("v_lshlrev_b32 v2, 3, v2")
    A("v_bfe_u32 v3, v35, 2, 2")
    A("v_add_u32 v2, v2, v3")
    A("v_mul_u32_u24 v2, 96, v2")
    A("v_and_b32 v3, 3, v35")
    A("v_lshl_add_u32 v2, v3, 3, v2")
    A("s_lshl_b32 s42, s43, 5")
    A("v_add_u32 v2, s42, v2")
    A("s_waitcnt lgkmcnt(0)")
    for k in range(6):
        A(f"ds_read_b64_tr_b16 v[{VS+4*k}:{VS+4*k+1}], v2 offset:{L_W1 + k*3072}")
        A(f"ds_read_b64_tr_b16 v[{VS+4*k+2}:{VS+4*k+3}], v2 offset:{L_W1 + k*3072 + 384}")
    A("v_and_b32 v2, 1, v35")
    A("v_mul_u32_u24 v2, 384, v2")
    A("v_lshrrev_b32 v3, 4, v35")
    A("v_lshl_add_u32 v39, v3, 4, v2")
    A("L_common:")
    A("v_lshrrev_b32 v2, 5, v35")
    A("v_bfe_u32 v3, v35, 3, 2")
    A("v_mul_u32_u24 v3, 1536, v3")
    A("v_lshl_add_u32 v8, v2, 14, v3")
    A("v_and_b32 v3, 0x70, v36")
    A("v_add_u32 v8, v8, v3")
    A("s_add_u32 s42, s56, s2")
    A("s_lshr_b32 s43, s57, 22")
    A("s_xor_b32 s42, s42, s43")
    if nearB == 2: A("s_not_b32 s42, s42")
    A("s_and_b32 s42, s42, 4")
    if nearB == 0: A("s_mov_b32 s42, 0")
    A("s_lshl_b32 s42, s42, 11")
    A("s_and_b32 s43, s2, 7")
    A("s_lshl_b32 s43, s43, 15")
    A("s_add_u32 s42, s42, s43")
    A("s_lshl_b32 s43, s36, 7")
    A("s_add_u32 s47, s42, s43")
    if not gate: A("buffer_load_dwordx4 v[4:7], v8, s[20:23], s47 offen sc1")
    A("v_lshrrev_b32 v3, 2, v3")
    A("v_lshl_add_u32 v9, v2, 1, v3")
    A("s_lshl_b32 s42, s36, 5")
    A("v_add_u32 v9, s42, v9")
    A("v_lshrrev_b32 v2, 2, v35")
    A("v_mul_u32_u24 v2, 384, v2")
    A("v_and_b32 v3, 3, v35")
    A("v_lshl_add_u32 v2, v3, 3, v2")
    A("v_add_u32 v2, s42, v2")
    W2F = 28
    for k in range(3):
        A(f"ds_read_b64_tr_b16 v[{W2F+2*k}:{W2F+2*k+1}], v2 offset:{L_W2 + k*6144}")
    A("v_lshlrev_b32 v37, 3, v35")
    A("s_cmp_lt_u32 s36, 2")
    A(f"s_cselect_b32 s3, {NWT}, 0")
    def wthrough(name):
        A("s_sub_u32 s3, s3, 1")
        A("s_cmp_eq_u32 s3, 0")
        A(f"s_cbranch_scc0 {name}")
        A("s_mov_b64 s[4:5], exec")
        A("s_mov_b32 exec_lo, -1")
        A("s_mov_b32 exec_hi, 0xffff")
        A(f"buffer_store_dwordx4 v[{T}:{T+3}], v36, s[20:23], s48 offen sc1")
        A("s_mov_b64 exec, s[4:5]")
        A(f"{name}:")
    if gate:
        A("s_lshr_b32 s42, s2, 3")
        A(f"s_sub_u32 s42, s42, {ry0}")
        A("s_cmp_ge_u32 s42, 12")
        A("s_cbranch_scc1 L_open")
        A("v_mov_b32 v2, 0")
        A("L_gate:")
        A(f"ds_read_b32 v3, v2 offset:{L_FL}")
        A("s_waitcnt lgkmcnt(0)")
        A("v_cmp_ne_u32 vcc, 0, v3")
        A("s_cbranch_vccnz L_open")
        A(f"s_sleep {gate}")
        wthrough("L_nowt0")
        A("s_add_u32 s45, s45, 1")
        A(f"s_cmp_lt_u32 s45, {SPIN}")
        A("s_cbranch_scc1 L_gate")
        if alP:
            A("s_branch L_open")
            A(".p2align 12")
        A("L_open:")
        A("buffer_load_dwordx4 v[4:7], v8, s[20:23], s47 offen sc1")
    A("L_pollB:")
    A("s_waitcnt vmcnt(0)")
    A("v_cmp_ne_u16 vcc, s46, v5")
    A("v_cmp_ne_u16 s[4:5], s52, v7")
    A("s_or_b64 exec, vcc, s[4:5]")
    A("s_cbranch_scc0 L_gotB")
    if slp:
        A("s_bcnt1_i32_b64 s42, exec")
        A(f"s_cmp_le_u32 s42, {slpthr}")
        A("s_cbranch_scc1 L_nosleep")
        A(f"s_sleep {slp}")
        A("L_nosleep:")
    A("buffer_load_dwordx4 v[4:7], v8, s[20:23], s47 offen sc1")
    wthrough("L_nowt")
    A("s_add_u32 s45, s45, 1")
    A(f"s_cmp_lt_u32 s45, {SPIN}")
    A("s_cbranch_scc1 L_pollB")
    A("s_waitcnt vmcnt(0)")
    A("L_gotB:")
    A("s_mov_b64 exec, -1")
    A("v_and_b32 v5, s44, v5")
    A("v_and_b32 v7, s44, v7")
    fold345()
    A("v_mul_f32 v4, 0x36800000, v4")
    A("v_cvt_pk_bf16_f32 v4, v4, v5")
    A(f"ds_write_b16 v9, v4 offset:{L_G}")
    A(f"ds_write_b16_d16_hi v9, v4 offset:{L_G+384}")
    A("s_cmp_gt_i32 s3, 0" if exitwt else "s_cmp_gt_i32 0, 0")
    A("s_cbranch_scc0 L_nowt2")
    A("s_mov_b32 exec_hi, 0xffff")
    A(f"buffer_store_dwordx4 v[{T}:{T+3}], v36, s[20:23], s48 offen sc1")
    A("s_mov_b32 exec_hi, -1")
    A("L_nowt2:")
    A("s_sub_u32 s42, s36, 4")
    A("s_cmp_ge_u32 s42, 3")
    A("s_waitcnt lgkmcnt(0)")
    A("s_barrier")
    stamp(4)
    A("s_cbranch_scc1 L_l2")
    BF = 4
    for k in range(6):
        A(f"ds_read_b128 v[{BF+4*k}:{BF+4*k+3}], v39 offset:{L_G + k*64}")
    A("s_lshl_b32 s42, s42, 9")
    A("v_add_u32 v36, s42, v37")
    A("s_mov_b32 s43, 0x7f800000")
    for k in range(6):
        A(f"s_waitcnt lgkmcnt({5-k})")
        c = "0" if k == 0 else "v[0:3]"
        A(f"v_mfma_f32_16x16x32_bf16 v[0:3], v[{VS+4*k}:{VS+4*k+3}], v[{BF+4*k}:{BF+4*k+3}], {c}")
    A("s_nop 7")
    for i in range(4):
        A(f"v_mul_f32_e64 v{4+i}, v{i}, s43 clamp")
    A("v_pk_mul_f32 v[0:1], v[0:1], v[4:5]")
    A("v_pk_mul_f32 v[2:3], v[2:3], v[6:7]")
    A("v_cvt_pk_bf16_f32 v4, v0, v1")
    A("v_cvt_pk_bf16_f32 v5, v2, v3")
    A(f"ds_write_b64 v36, v[4:5] offset:{L_H}")
    A("L_l2:")
    lane_offsets(0, 1)
    A("s_waitcnt lgkmcnt(0)")
    A("s_barrier")
    for k in range(3):
        A(f"ds_read_b64 v[{4+2*k}:{5+2*k}], v37 offset:{L_H + k*512}")
    A("v_and_b32 v2, 15, v35")
    A("s_lshl_b32 s42, s36, 6")
    A("v_lshl_add_u32 v36, v2, 2, s42")
    A("v_and_b32 v2, 7, v35")
    A("s_lshl_b32 s42, s38, 8")
    A("v_lshl_add_u32 v39, v2, 5, s42")
    A("s_mov_b32 s43, 0xbfb8aa3b")
    if wdot:
        A("v_bfe_i32 v3, v35, 0, 1")
        A("v_xor_b32 v3, 0xffff, v3")
    for k in range(3):
        A(f"s_waitcnt lgkmcnt({2-k})")
        c = "0" if k == 0 else "v[12:15]"
        A(f"v_mfma_f32_16x16x16_bf16 v[12:15], v[{4+2*k}:{5+2*k}], v[{W2F+2*k}:{W2F+2*k+1}], {c}")
    A("s_nop 7")
    A("v_cvt_pk_bf16_f32 v12, v12, v13")
    A("v_lshlrev_b32 v13, 16, v12")
    A("v_and_b32 v12, s44, v12")
    A("v_add_f32 v12, v12, v13")
    A("v_cvt_pk_bf16_f32 v12, 0, v12")
    A("v_mul_f32 v12, s43, v12")
    A("v_exp_f32 v12, v12")
    A("s_nop 0")
    A("v_add_f32 v12, 1.0, v12")
    A("v_rcp_f32 v12, v12")
    A("s_nop 0")
    if wdot:
        A("v_cvt_pk_bf16_f32 v12, v12, v12")
        A("v_and_b32 v12, v3, v12")
    else:
        A("v_cvt_pk_bf16_f32 v12, 0, v12")
    A(f"ds_write_b32 v36, v12 offset:{L_SC}")
    A("s_waitcnt lgkmcnt(0)")
    A("s_barrier")
    SCR = 2
    A(f"ds_read_b128 v[{SCR}:{SCR+3}], v39 offset:{L_SC}")
    A(f"ds_read_b128 v[{SCR+4}:{SCR+7}], v39 offset:{L_SC+16}")
    stamp(5)
    if clk: A("s_memtime s[76:77]")
    T2 = 10
    steps = list(range(16))
    if word:
        dyn = list(range(nstatic, 16))
        steps = []
        for k in range(nstatic):
            lo, hi = k * len(dyn) // nstatic, (k + 1) * len(dyn) // nstatic
            part = dyn[lo:hi]
            steps += part[:1] + [k] + part[1:]
    order = [2 * i + h for i in steps for h in (0, 1)]
    if wburst:
        A(f"s_cmp_lt_u32 s36, {wburst}")
        A("s_cbranch_scc1 L_wold")
        A("s_sub_u32 s42, s36, 4")
        A("s_cmp_ge_u32 s42, 3")
        A("s_cbranch_scc1 L_noreload2")
        for k in range(6):
            A(f"ds_read_b128 v[{VS+4*k}:{VS+4*k+3}], v38 offset:{k*1024}")
        A("L_noreload2:")
        A("s_waitcnt lgkmcnt(0)")
        for j in range(NL):
            tb = T2 + 8 * (j % 2)
            for i in range(4):
                d = VD + 4 * j + i
                A(f"v_lshlrev_b32 v{tb+2*i}, 16, v{d}")
                A(f"v_and_b32 v{tb+2*i+1}, s44, v{d}")
            for i in range(4):
                A(f"v_pk_mul_f32 v[{tb+2*i}:{tb+2*i+1}], v[{tb+2*i}:{tb+2*i+1}], v[{SCR+2*i}:{SCR+2*i+1}]")
            for i in range(4):
                d = VD + 4 * j + i
                A(f"v_cvt_pk_bf16_f32 v{d}, v{tb+2*i}, v{tb+2*i+1}")
        for n, j in enumerate(order):
            i2, h = j >> 1, j & 1
            if h == 0:
                A(f"v_readlane_b32 s50, v34, {i2}")
                A("s_nop 1")
            addr(28 + h, h)
            r = VD + 4 * j
            A(f"buffer_store_dwordx4 v[{r}:{r+3}], v{28+h}, s[12:15], s{TAB+i2} offen {st}".rstrip())
        A("s_branch L_wdone")
        A("L_wold:")
    for n, j in enumerate(order):
        tb = T2 + 8 * (j % 2)
        i2, h = j >> 1, j & 1
        if j == NL - 6:
            A("s_waitcnt lgkmcnt(0)")
        if wprio and n in wprio: A(f"s_setprio {3 - wprio.index(n)}")
        if wbar and n and n % wbar == 0: A("s_barrier")
        if h == 0:
            A(f"v_readlane_b32 s50, v34, {i2}")
        if wdot:
            if n == 0:
                A("s_nop 1")
                addr(28 + h, h)
                A("s_waitcnt lgkmcnt(0)")
            for i in range(8):
                A(f"v_dot2_f32_bf16 v{tb+i}, v{VD + 4*j + i//2}, v{SCR+i}, 0")
            if n: addr(28 + h, h)
        for i in range(4):
            d = VD + 4 * j + i
            if wdot or (nowv and i): continue
            A(f"v_lshlrev_b32 v{tb+2*i}, 16, v{d}")
            A(f"v_and_b32 v{tb+2*i+1}, s44, v{d}")
        if not wdot: addr(28 + h, h)
        if n == 0 and not wdot:
            A("s_waitcnt lgkmcnt(0)")
        for i in range(0 if nowv or wdot else 4):
            A(f"v_pk_mul_f32 v[{tb+2*i}:{tb+2*i+1}], v[{tb+2*i}:{tb+2*i+1}], v[{SCR+2*i}:{SCR+2*i+1}]")
        for i in range(0 if nowv else 4):
            d = VD + 4 * j + i
            A(f"v_cvt_pk_bf16_f32 v{d}, v{tb+2*i}, v{tb+2*i+1}")
        r = VD + 4 * j
        if wwin and n >= wwin: A(f"s_waitcnt vmcnt({wwin-1})")
        A(f"buffer_store_dwordx4 v[{r}:{r+3}], v{28+h}, s[12:15], s{TAB+i2} offen {st}".rstrip())
        if n == 0:
            A("s_sub_u32 s42, s36, 4")
            A("s_cmp_ge_u32 s42, 3")
            A("s_cbranch_scc1 L_noreload")
            for k in range(6):
                A(f"ds_read_b128 v[{VS+4*k}:{VS+4*k+3}], v38 offset:{k*1024}")
            A("L_noreload:")
    A("L_wdone:")
    if stamps:
        A("L_out:")
        if not bst and not sst: stamp(6)
        if sst:
            A('s_waitcnt lgkmcnt(0)'); A('s_mul_i32 s68, s55, 100'); A('s_add_u32 s68, s68, s60')
        A("s_waitcnt vmcnt(0)")
        stamp(7)
        if clk: A("s_memtime s[78:79]")
        A("s_waitcnt lgkmcnt(0)")
        if clk:
            A("s_sub_u32 s62, s78, s76")
            A("s_add_u32 s62, s62, s60")
        A("s_mov_b64 exec, 1")
        if diag:
            diag_tail(A, diag)
        A("s_mul_i32 s3, s2, 12")
        A("s_add_u32 s3, s3, s36")
        A("s_lshl_b32 s3, s3, 5")
        A(f"s_add_u32 s3, s3, {W_ST}")
        A("v_mov_b32 v1, 0")
        for i in range(8):
            A(f"v_mov_b32 v{4+i}, s{60+2*i}")
        A("buffer_store_dwordx4 v[4:7], v1, s[20:23], s3 offen")
        A("buffer_store_dwordx4 v[8:11], v1, s[20:23], s3 offen offset:16")
    A("L_end:")
    A("s_endpgm")
    n0 = len(L)
    scout()
    if inl:
        body = L[n0:]
        del L[n0:]
        k = L.index("@@SCOUT@@")
        L[k:k+1] = body
    A('.section .rodata,"a"')
    A(".p2align 6")
    A(".amdhsa_kernel standalone__channel_attn_cbam__vision_kernel")
    A("  .amdhsa_next_free_vgpr 168")
    A("  .amdhsa_next_free_sgpr 96")
    A("  .amdhsa_accum_offset 168")
    A("  .amdhsa_group_segment_fixed_size 0")
    A("  .amdhsa_kernarg_size 48")
    A("  .amdhsa_user_sgpr_count 2")
    A("  .amdhsa_user_sgpr_kernarg_segment_ptr 1")
    A("  .amdhsa_system_sgpr_workgroup_id_x 1")
    A("  .amdhsa_float_denorm_mode_32 3")
    A(".end_amdhsa_kernel")
    out = []
    for line in L:
        if line.startswith(("s_", "v_", "ds_", "buffer_", "global_")):
            out.append("    " + line)
        else:
            out.append(line)
    return "\n".join(out) + "\n"

def diag_tail(A, diag):
    idx, mul, base = diag[:3]
    dwg = diag[3] if len(diag) > 3 else 0
    dwv = diag[4] if len(diag) > 4 else 0
    A(f"s_cmp_lg_u32 s36, {dwv}")
    A("s_cbranch_scc1 L_end")
    A(f"s_cmp_lg_u32 s2, {dwg}")
    A("s_cbranch_scc1 L_end")
    if idx == -1:
        A("s_lshr_b32 s42, s57, 1")
        A("s_xor_b32 s42, s42, s57")
        A("s_and_b32 s42, s42, 0x7ff7ff")
        A("s_bcnt1_i32_b32 s42, s42")
    elif idx >= 100:
        A(f"s_sub_u32 s42, s{60+2*(idx//10%10)}, s{60+2*(idx%10)}")
    else:
        A(f"s_sub_u32 s42, s{60+2*idx}, s60")
    A(f"s_mul_i32 s42, s42, {mul}")
    A(f"s_add_u32 s42, s42, {base}")
    A("s_min_u32 s42, s42, 200000")
    A("L_dg3:")
    A("s_memrealtime s[78:79]")
    A("s_waitcnt lgkmcnt(0)")
    A("s_sub_u32 s43, s78, s60")
    A("s_cmp_lt_u32 s43, s42")
    A("s_cbranch_scc1 L_dg3")
    A("s_branch L_end")

if __name__ == "__main__":
    cfg = json.loads(sys.argv[1]) if len(sys.argv) > 1 else {}
    sys.stdout.write(gen(**cfg))
```

```python
import sys, json

HEADER = """; CBAM channel attention, x kept in registers across a grid-wide reduction (single pass over HBM)
"""

def gen(ld="nt", st="sc1", W=4, stamps=0, diag=None, wpos=20, warm_out=2, STRIDE=1, ROT=0, MIX=0xAAAA, MIX2=0xEEEE,
        nstatic=4, maplead=0, grp=2, cpf=16, cpos=18, stop1=0, THR=100, tagpos=24, ppol="nt", usemap=1, oracle=None,
        rawd=0, s1first=0, W2=0, gW2=0, word=1, bst=0, pubpol="", NWT=128, slp=6, slpthr=16, ry0=16, nearB=1, gate=2, wopos=22, exitwt=1, ldsx=0, smooth=1, wown=8, W3=0, gW3=0, sst=0, gst=None, early=0, wold=0, boostS=0, boostO=0, boostA=0, noscout=0, nowv=0, clk=0, wwin=0, wprio=0, wdot=0, wburst=0, prio=None, redmask=8, wsw=0, wswave=0, al12=1, inl=1, cpf0=0, pmap=0, xwarm=0, xwave=0, alT=0, alP=0, wbar=0, rbar=None, rpost=0, b1b=0, wt2=0):
    if diag: stamps = 1
    if wt2:
        b1b = 1; exitwt = 0
        assert redmask & (redmask - 1) == 0
    NW, NL, VD = 12, 32, 40
    XB = 100663296
    L_W1, L_W2 = 0, 18432
    L_RED = 36864
    L_G = L_RED + 6144
    L_H = L_G + 768
    L_SC = L_H + 1536
    L_FL = L_SC + 768
    L_SP = L_FL + 64
    L_END = L_SP + 3 * 6144
    W_A = 256 << 10
    W_ST = 1 << 20
    SPIN = 1 << 20
    SW = 6 << 20
    TAB = 80
    NS = 1 if noscout else 25
    assert 2 * nstatic >= W and (grp == 1 or W % 2 == 0)
    L = []
    A = L.append
    def stamp(i, force=False):
        if stamps and (gst is None or force or i == 0):
            A(f"s_memrealtime s[{60+2*i}:{61+2*i}]")
    A(HEADER.rstrip())
    A(f"; @launch grid=(256,1,1) block=({NW*64},1,1) lds={ldsx or L_END}")
    A('.amdgcn_target "amdgcn-amd-amdhsa--gfx950"')
    A(".text")
    A(".globl standalone__channel_attn_cbam__vision_kernel")
    if al12: A(".p2align 12")
    A(".p2align 8")
    A(".type standalone__channel_attn_cbam__vision_kernel,@function")
    A("standalone__channel_attn_cbam__vision_kernel:")
    stamp(0)
    A("s_load_dwordx4 s[4:7], s[0:1], 0")
    A("s_load_dwordx4 s[24:27], s[0:1], 16")
    A("s_load_dwordx4 s[28:31], s[0:1], 32")
    A("s_memtime s[58:59]")
    A("s_cmp_ge_u32 s2, 256")
    A("s_cbranch_scc1 L_end")
    A("v_lshrrev_b32 v2, 6, v0")
    A("v_and_b32 v35, 63, v0")
    A("v_readfirstlane_b32 s36, v2")
    A("s_mov_b32 s35, 0x20000")
    A("s_lshr_b32 s40, s2, 2")
    A("s_and_b32 s42, s2, 1")
    A("s_or_b32 s40, s40, s42")
    A("s_and_b32 s42, s2, 6")
    A(f"s_cselect_b32 s40, {NS}, s40")
    A("s_lshl_b32 s42, s36, 5")
    A("s_or_b32 s42, s42, s40")
    A(f"s_cmp_lt_u32 s42, {NS}")
    if sst:
        A("s_waitcnt lgkmcnt(0)")
        A("s_mov_b32 s64, s60"); A("s_mov_b32 s72, s60")
    if inl:
        A("s_cbranch_scc0 L_main")
        A("@@SCOUT@@")
    else:
        A("s_cbranch_scc1 L_scout")
    A("L_main:")
    if cpf0:
        A("s_lshr_b32 s42, s2, 4")
        A("s_and_b32 s43, s36, %d" % (12 if (alT or alP) else 14))
        A("s_lshl_b32 s43, s43, 4")
        A("s_or_b32 s42, s42, s43")
        A(f"s_cmp_lg_u32 s42, {cpf0}")
        A("s_cbranch_scc1 L_nocpf0")
        A("s_getpc_b64 s[54:55]")
        A("L_pc0:")
        A("v_lshlrev_b32 v33, 7, v0")
        A("v_min_u32 v33, L_end-L_pc0, v33")
        A("global_load_dword v33, v33, s[54:55]")
        A("L_nocpf0:")
    A("s_mul_i32 s37, s36, 43691")
    A("s_lshr_b32 s37, s37, 17")
    A("s_mul_i32 s38, s37, 3")
    A("s_sub_u32 s38, s36, s38")
    A("s_mul_i32 s39, s37, 3072")
    A("s_lshl_b32 s42, s38, 7")
    A("s_add_u32 s39, s39, s42")
    def lane_offsets(b0, b1):
        A(f"v_lshrrev_b32 v{b0}, 3, v35")
        A(f"v_mul_u32_u24 v{b0}, 384, v{b0}")
        A(f"v_and_b32 v{b1}, 7, v35")
        A(f"v_lshl_add_u32 v{b0}, v{b1}, 4, v{b0}")
        A(f"v_add_u32 v{b0}, s39, v{b0}")
        A(f"v_add_u32 v{b1}, 12288, v{b0}")
    lane_offsets(0, 1)
    A("s_lshr_b32 s42, s2, 3")
    A("s_and_b32 s43, s2, 3")
    if pmap == 0:
        A("s_lshl_b32 s51, s42, 2")
        A("s_add_u32 s51, s51, s43")
    elif pmap == 5:
        A("s_lshl_b32 s51, s43, 5")
        A("s_add_u32 s51, s51, s42")
    else:
        A(f"s_lshr_b32 s51, s42, {pmap}")
        A("s_lshl2_add_u32 s51, s51, s43")
        A(f"s_lshl_b32 s51, s51, {pmap}")
        A(f"s_and_b32 s43, s42, {(1 << pmap) - 1}")
        A("s_add_u32 s51, s51, s43")
    if ROT:
        A("s_mul_i32 s41, s51, 49152")
        A("s_lshr_b32 s43, s41, 21")
        A(f"s_mul_i32 s43, s43, {ROT}")
        A("s_and_b32 s53, s43, 15")
        A(f"s_mul_i32 s43, s53, {SW}")
        A(f"s_add_u32 s{TAB}, s43, s41")
    else:
        A(f"s_mul_i32 s{TAB}, s51, 49152")
    A("s_lshl_b32 s50, s2, 11")
    A("s_lshl_b32 s42, s42, 13")
    A("s_xor_b32 s50, s50, s42")
    A("s_and_b32 s50, s50, 0x2000")
    A("s_movk_i32 s49, 24576")
    def addr(dst, src):
        A(f"v_add_u32 v{dst}, s50, v{src}")
        A(f"v_bfe_u32 v{dst}, v{dst}, 13, 1")
        A(f"v_mad_u32_u24 v{dst}, v{dst}, s49, v{src}")
    addr(38, 0)
    addr(39, 1)
    A("s_mov_b32 s10, %d" % XB); A("s_mov_b32 s11, 0x20000")
    A(f"s_cmp_lt_u32 s40, {NS}")
    A("s_waitcnt lgkmcnt(0)")
    A("s_mov_b32 s8, s4"); A("s_mov_b32 s9, s5")
    A("s_cbranch_scc0 L_go")
    A("s_barrier")
    if early:
        addr(38, 0)
        addr(39, 1)
    A("L_go:")
    if s1first: stamp(1)
    def ws_srd():
        A("s_add_u32 s20, s30, 0x400000")
        A("s_addc_u32 s21, s31, 0")
        A("s_and_b32 s20, s20, 0xffe00000")
        A("s_mov_b32 s22, 0x400000"); A("s_mov_b32 s23, 0x20000")
    def dbg_srd():
        A("s_mov_b32 s16, s28"); A("s_mov_b32 s17, s29")
        A("s_mov_b32 s18, 256"); A("s_mov_b32 s19, 0x20000")
    def late_setup():
        ws_srd()
        dbg_srd()
        A("s_mov_b32 s12, s26"); A("s_mov_b32 s13, s27")
        A("s_mov_b32 s14, %d" % XB); A("s_mov_b32 s15, 0x20000")
        A("s_mov_b32 s45, 0")
        A("v_mov_b32 v34, s50")
        A("v_lshlrev_b32 v36, 4, v35")
        if not ROT:
            A(f"s_mov_b32 s41, s{TAB}")
            A("s_mov_b32 s53, 0")
    def scout():
        if not inl: A(".p2align 6")
        A("L_scout:")
        A("s_getreg_b32 s48, hwreg(HW_REG_XCC_ID, 0, 3)")
        A("s_mov_b64 exec, 1")
        A("v_mov_b32 v2, 0")
        A(f"s_mov_b32 s34, {XB}")
        A("s_mul_i32 s55, s40, 43")
        A("s_lshr_b32 s55, s55, 9")
        A("s_mul_i32 s42, s55, 12")
        A("s_sub_u32 s42, s40, s42")
        A("s_lshl_b32 s42, s42, 23")
        A("s_bitset1_b32 s42, 22")
        A("s_lshl_b32 s3, 1, s40")
        A("s_lshl_b32 s52, s48, 29")
        A("s_cmp_eq_u32 s40, 0")
        A("s_cselect_b32 s52, s52, 0")
        A("s_or_b32 s52, s52, s3")
        A("v_mov_b32 v14, s52")
        A("s_cmp_ge_u32 s48, 4")
        A("s_cselect_b32 s48, s3, 0")
        A("s_xor_b32 s3, s3, s48")
        A("s_cmp_eq_u32 s55, 1")
        A("s_waitcnt lgkmcnt(0)")
        A("s_cselect_b32 s32, s26, s4")
        A("s_cselect_b32 s33, s27, s5")
        A("s_cmp_eq_u32 s55, 2")
        A("s_cselect_b32 s32, s30, s32")
        A("s_cselect_b32 s33, s31, s33")
        A("s_lshl_b32 s43, s58, 5")
        A(f"s_and_b32 s43, s43, {0x1fff80 & ~8192}")
        A("s_add_u32 s42, s42, s43")
        A("s_and_b32 s43, s32, 0x1ffffc")
        A("s_sub_u32 s42, s42, s43")
        A("s_add_u32 s43, s42, 8192")
        dbg_srd()
        if not inl: A(".p2align 6")
        if early: A("s_barrier")
        A(f"buffer_load_dword v3, v2, s[32:35], s42 offen {ppol}".rstrip())
        A(f"buffer_load_dword v4, v2, s[32:35], s43 offen {ppol}".rstrip())
        A("s_waitcnt vmcnt(1)")
        A("s_memtime s[56:57]")
        A("s_waitcnt vmcnt(0)")
        A("s_memtime s[58:59]")
        A("s_waitcnt lgkmcnt(0)")
        A("s_sub_u32 s42, s58, s56")
        A(f"s_cmpk_le_u32 s42, {THR}")
        A("s_cselect_b32 s48, s3, s48")
        A("v_mov_b32 v15, s48")
        if sst: stamp(2)
        A("buffer_atomic_or_x2 v[14:15], v2, s[16:19], 0 offen sc1")
        if sst:
            A("s_waitcnt vmcnt(0)")
            stamp(6)
            A("s_waitcnt lgkmcnt(0)")
        if not early: A("s_barrier")
        A("s_cmp_lg_u32 s40, 0")
        A("s_cbranch_scc1 L_notag")
        A("s_memrealtime s[56:57]")
        A("v_mov_b32 v12, 1")
        A("s_waitcnt lgkmcnt(0)")
        A("s_mul_i32 s43, s56, 0x9e3779b1")
        A("v_mov_b32 v13, s43")
        A("buffer_store_dwordx2 v[12:13], v2, s[16:19], 0 offen offset:128 sc1")
        A("L_notag:")
        if rawd:
            ws_srd()
            A("v_mov_b32 v8, s42")
            A("s_lshl_b32 s55, s40, 2")
            A(f"s_add_u32 s55, s55, {2 << 20}")
            A("buffer_store_dword v8, v2, s[20:23], s55 offen")
        A("s_mov_b64 exec, -1")
        A(f"s_mov_b32 s40, {NS}")
        if not inl: A("s_branch L_main")
    ops = []
    def weights():
        if wold:
            A("s_cmp_ge_u32 s36, 4")
            A("s_cbranch_scc1 L_nowgt")
            A("s_cmp_ge_u32 s36, 2")
            A("s_cselect_b32 s32, s24, s6")
            A("s_cselect_b32 s33, s25, s7")
            A("s_cselect_b32 s42, 18432, 0")
            A("s_mov_b32 s34, 18432")
            A("s_mul_i32 s43, s36, 9216")
            A("s_sub_u32 s42, s43, s42")
            for k in range(9):
                if k % 4 == 0:
                    if k:
                        A("s_add_u32 s43, s43, 4096")
                    A("s_mov_b32 m0, s43")
                    if k:
                        A("s_add_u32 s42, s42, 4096")
                    else:
                        A("s_nop 0")
                A(f"buffer_load_dwordx4 v36, s[32:35], s42 offen offset:{(k%4)*1024} lds")
            A("L_nowgt:")
            return
        A("s_cmp_ge_u32 s36, 6")
        A("s_cselect_b32 s32, s24, s6")
        A("s_cselect_b32 s33, s25, s7")
        A("s_cselect_b32 s42, 18432, 0")
        A("s_mov_b32 s34, 18432")
        A("s_mul_i32 s43, s36, 3072")
        A("s_mov_b32 m0, s43")
        A("s_sub_u32 s42, s43, s42")
        for k in range(3):
            A(f"buffer_load_dwordx4 v36, s[32:35], s42 offen offset:{k*1024} lds")
            ops.append(("w", k))
    def issue(j):
        r = VD + 4 * j
        i, h = j >> 1, j & 1
        def nexttab(pad):
            if i < 15 and STRIDE == 1 and not ROT:
                A(f"s_add_u32 s{TAB+i+1}, s{TAB+i}, {SW}")
                if pad: A("s_nop 0")
            elif i < 15:
                A(f"s_add_u32 s42, s{TAB+i}, {STRIDE*SW}")
                A(f"s_sub_u32 s43, s42, {XB}")
                A(f"s_cselect_b32 s{TAB+i+1}, s42, s43")
            elif pad:
                A("s_nop 1")
        if i < nstatic:
            A(f"buffer_load_dwordx4 v[{r}:{r+3}], v{38+h}, s[8:11], s{TAB+i} offen {ld}".rstrip())
            if h == 0: nexttab(0)
        else:
            if h == 0:
                A(f"v_readlane_b32 s50, v34, {i}")
                nexttab(1)
            addr(39, h)
            A(f"buffer_load_dwordx4 v[{r}:{r+3}], v39, s[8:11], s{TAB+i} offen {ld}".rstrip())
        ops.append(("d", j))
        if j == wpos:
            weights()
        if j == wopos and warm_out == 2:
            A("s_cmp_lg_u32 s36, 2")
            A("s_cbranch_scc1 L_nowarm")
            A(f"v_mul_u32_u24 v38, {SW}, v35")
            A("s_mov_b64 exec, 0xffff")
            A("buffer_load_dword v38, v38, s[12:15], s41 offen nt")
            A("s_mov_b64 exec, -1")
            A("L_nowarm:")
        if j == wopos and warm_out == 3:
            A("s_lshl_b32 s42, s36, 8")
            A("s_add_u32 s42, s42, s2")
            A(f"s_sub_u32 s42, s42, {2*256 + 256 - wown}")
            A(f"s_cmp_ge_u32 s42, {wown}")
            A("s_cbranch_scc1 L_nowarm")
            A("v_lshlrev_b32 v38, 21, v35")
            A(f"v_min_u32 v38, {XB-4}, v38")
            A("buffer_load_dword v38, v38, s[12:15], 0 offen nt")
            A("L_nowarm:")
        if j == 31 and wsw:
            A(f"s_cmp_lg_u32 s36, {wswave}")
            A("s_cbranch_scc1 L_nowsw")
            A("s_mul_i32 s42, s2, 1536")
            A(f"s_add_u32 s42, s42, {W_A}")
            A("v_lshlrev_b32 v39, 7, v35")
            A(f"s_mov_b64 exec, {(1 << wsw) - 1}")
            A("buffer_load_dword v39, v39, s[20:23], s42 offen sc1")
            A("s_mov_b64 exec, -1")
            A("L_nowsw:")
        if j == cpos and cpf:
            A(f"s_cmp_lt_u32 s2, {256 - cpf}")
            A("s_cbranch_scc1 L_nocpf")
            A(f"s_cmp_ge_u32 s36, {2 if (wburst or alP) else 1}")
            A("s_cbranch_scc1 L_nocpf")
            A("s_getpc_b64 s[54:55]")
            A("L_pc:")
            pr = 38 if cpos < 28 else 39
            assert cpos < 28 or cpos == 31
            A(f"v_lshlrev_b32 v{pr}, 7, v35")
            if wburst or alP:
                A("s_lshl_b32 s42, s36, 13")
                A(f"v_add_u32 v{pr}, s42, v{pr}")
            A(f"v_add_u32 v{pr}, L_tail-L_pc, v{pr}")
            A(f"v_min_u32 v{pr}, L_end-L_pc, v{pr}")
            A(f"global_load_dword v{pr}, v{pr}, s[54:55]")
            A("L_nocpf:")
    def after(j):
        return len(ops) - 1 - ops.index(("d", j))
    def word_wait(reg, off, name, mask):
        A("s_waitcnt lgkmcnt(0)")
        A(f"s_andn2_b32 s42, {hex(mask)}, s{reg}")
        A(f"s_cbranch_scc0 L_{name}ok")
        A("v_mov_b32 v24, 0")
        A(f"L_{name}:")
        A(f"buffer_load_dwordx2 v[22:23], v24, s[16:19], 0 offen offset:{off} sc1")
        A("s_add_u32 s45, s45, 1")
        A("s_waitcnt vmcnt(0)")
        A(f"v_readfirstlane_b32 s{reg}, v22")
        A(f"v_readfirstlane_b32 s{reg+1}, v23")
        A(f"s_andn2_b32 s42, {hex(mask)}, s{reg}")
        A(f"s_cbranch_scc0 L_{name}ok")
        A(f"s_cmp_lt_u32 s45, {SPIN}")
        A(f"s_cbranch_scc1 L_{name}")
        A(f"L_{name}ok:")
    def map_use():
        A("s_sub_u32 s42, s12, s8")
        A("s_add_u32 s42, s42, 0x800")
        A("s_bitcmp1_b32 s42, 12")
        A(f"s_mov_b32 s42, {MIX}")
        A(f"s_cmov_b32 s42, {MIX2}")
        A("v_add_u32 v19, s51, v35")
        A("v_and_b32 v19, 15, v19")
        A("v_bfe_u32 v19, s42, v19, 1")
        A("v_cmp_ne_u32 vcc, 0, v19")
        A("s_and_b32 s42, s8, 0x1fffff")
        A("s_and_b32 s43, s12, 0x1fffff")
        A("v_mov_b32 v20, s42")
        A("v_mov_b32 v21, s43")
        A("v_cndmask_b32 v20, v20, v21, vcc")
        A(f"v_mul_u32_u24 v18, {STRIDE}, v35")
        A("v_add_u32 v18, s53, v18")
        A("v_and_b32 v18, 15, v18")
        A("v_add_u32 v21, s41, v20")
        A("v_lshrrev_b32 v21, 21, v21")
        A("v_mad_u32_u24 v18, v18, 3, v21")
        A("v_lshrrev_b32 v21, 2, v18")
        A("v_min_u32 v21, 11, v21")
        A("v_mad_u32_u24 v19, v19, 12, v21")
        if noscout:
            A("s_waitcnt lgkmcnt(0)"); A("s_mov_b32 s56, 0"); A("s_mov_b32 s57, 0")
        else:
            word_wait(56, 0, "map", (1 << NS) - 1)
        if not s1first: stamp(1)
        if sst: A("s_min_u32 s55, s45, 1")
        A("s_lshr_b32 s56, s56, 29")
        if not usemap:
            return
        if oracle:
            om = sum(((oracle[0] >> (4 * k + 2)) & 1) << k for k in range(12)) | sum(((oracle[1] >> (4 * k + 2)) & 1) << (12 + k) for k in range(12))
            A("s_and_b32 s57, s57, 0x1000000")
            A(f"s_or_b32 s57, s57, {om}")
        if smooth:
            A("s_lshl_b32 s42, s57, 1")
            A("s_lshr_b32 s43, s57, 2")
            A("s_and_b32 s42, s42, 0xffeffe")
            A("s_and_b32 s43, s43, 0x1001")
            A("s_or_b32 s42, s42, s43")
            A("s_lshr_b32 s43, s57, 1")
            A("s_lshl_b32 s48, s57, 2")
            A("s_and_b32 s43, s43, 0x7ff7ff")
            A("s_and_b32 s48, s48, 0x800800")
            A("s_or_b32 s43, s43, s48")
            A("s_and_b32 s48, s42, s43")
            A("s_or_b32 s42, s42, s43")
            A("s_bitset1_b32 s42, 24")
            A("s_and_b32 s57, s57, s42")
            A("s_or_b32 s57, s57, s48")
        A("s_add_u32 s42, s56, s2")
        A("s_lshr_b32 s42, s42, 2")
        A("v_lshrrev_b32 v19, v19, s57")
        A("v_xor_b32 v18, s42, v18")
        A("v_xor_b32 v19, v18, v19")
        A(f"s_mov_b32 exec_lo, {hex(0xffffffff & ~((1 << nstatic) - 1))}")
        A("v_lshl_add_u32 v34, v19, 13, v20")
        A("s_mov_b32 exec_lo, -1")
    boost = boostS or boostO or boostA
    if prio: A("s_setprio 3")
    for j in range(W):
        issue(j)
    nxt = W
    if xwarm:
        A(f"s_cmp_lg_u32 s36, {xwave}")
        A("s_cbranch_scc1 L_noxw")
        A("v_lshlrev_b32 v32, 26, v35")
        A("s_lshr_b32 s42, s2, 3")
        A("s_lshl_b32 s42, s42, 21")
        A("s_mov_b64 exec, 3")
        A("buffer_load_dword v37, v32, s[8:11], s42 offen nt")
        if xwarm == 2:
            A("s_mov_b32 s12, s26"); A("s_mov_b32 s13, s27")
            A("s_mov_b32 s14, %d" % XB); A("s_mov_b32 s15, 0x20000")
            A("buffer_load_dword v37, v32, s[12:15], s42 offen nt")
        A("s_mov_b64 exec, -1")
        A("L_noxw:")
    late_setup()
    if boost:
        assert grp == 2
        A("s_getreg_b32 s42, hwreg(HW_REG_XCC_ID, 0, 1)")
        A("s_cmp_eq_u32 s42, 1")
        A(f"s_cselect_b32 s47, {boostO}, 0")
        A("s_and_b32 s42, s2, 6")
        A(f"s_cselect_b32 s42, 255, s2")
        A(f"s_cmp_le_u32 s42, {8 * ((NS - 1) // 2) + ((NS - 1) & 1)}")
        A(f"s_cselect_b32 s42, {boostS}, 0")
        A("s_or_b32 s47, s47, s42")
        if boostA: A(f"s_or_b32 s47, s47, {boostA}")
    S, M, T = 2, 10, 18
    for i in range(8):
        A(f"v_mov_b32 v{S+i}, 0")
        A(f"v_mov_b32 v{M+i}, 0xff800000")
    A("s_mov_b32 s44, 0xffff0000")
    if gate: A(f"ds_write_b64 v{S}, v[{S}:{S+1}] offset:{L_FL}")
    if grp == 2:
        groups = [(j, j + 1) for j in range(0, NL - 2, 2)] + [(NL - 2,), (NL - 1,)]
        guse = nstatic - W // 2
    else:
        groups = [(j,) for j in range(NL)]
        guse = 2 * nstatic - W
    gld = max(guse - maplead, 0)
    def slot(k):
        nonlocal nxt
        g = groups[k]
        if prio and k in prio: A(f"s_setprio {2 - prio.index(k)}")
        if rbar and k in rbar and not rpost: A("s_barrier")
        if k == gld:
            A("s_load_dwordx2 s[56:57], s[28:29], 0")
        if k == guse:
            map_use()
        if g[0] == tagpos:
            A("s_load_dwordx2 s[58:59], s[28:29], 128")
        if g[0] == tagpos + 2:
            word_wait(58, 128, "tag", 1)
            A("s_and_b32 s46, s59, 0xffff")
            A("s_lshr_b32 s52, s59, 16")
        for _ in g:
            if nxt < NL:
                issue(nxt); nxt += 1
        if W2 and k >= max(gW2, guse):
            extra = 0
            while nxt < NL and nxt - g[-1] - 1 < (W3 if W3 and k >= gW3 else W2) and extra < len(g):
                issue(nxt); nxt += 1; extra += 1
        if rbar and k in rbar and rpost: A("s_barrier")
    def strict(k):
        if nxt < NL:
            A(f"s_bitcmp1_b32 s47, {k}")
            A(f"s_cbranch_scc1 L_bo{k}")
            A(f"s_waitcnt vmcnt({after(groups[k][-1])})")
            A(f"L_bo{k}:")
    if boost:
        strict(0)
        slot(0)
    for gi0, g in enumerate(groups):
        if alT and gi0 == len(groups) - 1:
            A("s_branch L_pageT")
            A(".p2align 12")
            A("L_pageT:")
        A(f"s_waitcnt vmcnt({after(g[-1])})")
        if gst and g[-1] in gst: stamp(1 + gst.index(g[-1]), True)
        if boost:
            if gi0 + 1 < len(groups):
                strict(gi0 + 1)
                slot(gi0 + 1)
        else:
            slot(gi0)
        for gi, j in enumerate(g):
            for i in range(4):
                d = VD + 4 * j + i
                t = T + 8 * gi + 2 * i
                A(f"v_lshlrev_b32 v{t}, 16, v{d}")
                A(f"v_and_b32 v{t+1}, s44, v{d}")
        for gi, j in enumerate(g):
            for i in range(4):
                t = T + 8 * gi + 2 * i
                A(f"v_pk_add_f32 v[{S+2*i}:{S+2*i+1}], v[{S+2*i}:{S+2*i+1}], v[{t}:{t+1}]")
        for i in range(8):
            if len(g) == 2:
                A(f"v_max3_f32 v{M+i}, v{M+i}, v{T+i}, v{T+8+i}")
            else:
                A(f"v_max_f32 v{M+i}, v{M+i}, v{T+i}")
        if gi0 == len(groups) - 2:
            A("v_and_b32 v37, 6, v35")
            A("v_lshrrev_b32 v38, 3, v35")
            A("v_lshl_add_u32 v37, v37, 2, v38")
            A("v_and_b32 v38, 1, v35")
            A("v_lshl_add_u32 v37, v37, 1, v38")
            A("s_mul_i32 s42, s37, 1536")
            A("s_lshl_b32 s43, s38, 9")
            A("s_add_u32 s42, s42, s43")
            A("v_lshl_add_u32 v37, v37, 3, s42")
            A("s_mul_i32 s43, s36, 768")
            A("v_add_u32 v38, s43, v36")
            A("s_mul_i32 s48, s2, 1536")
            A("s_add_u32 s48, s48, s43")
            A(f"s_add_u32 s48, s48, {W_A}")
            if wt2:
                A("s_mul_i32 s43, s36, 640")
                A("s_sub_u32 s55, s48, s43")
                A(f"s_movk_i32 s3, {NWT}")
    A("L_tail:")
    if not sst: stamp(2)
    for i in range(4):
        A(f"v_permlane32_swap_b32 v{S+i}, v{S+i+4}")
    for i in range(4):
        A(f"v_permlane32_swap_b32 v{M+i}, v{M+i+4}")
    for i in range(2):
        A(f"v_pk_add_f32 v[{S+2*i}:{S+2*i+1}], v[{S+2*i}:{S+2*i+1}], v[{S+4+2*i}:{S+5+2*i}]")
    for i in range(4):
        A(f"v_max_f32 v{M+i}, v{M+i}, v{M+i+4}")
    for i in range(2):
        A(f"v_permlane16_swap_b32 v{S+i}, v{S+i+2}")
    for i in range(2):
        A(f"v_permlane16_swap_b32 v{M+i}, v{M+i+2}")
    A(f"v_pk_add_f32 v[{S}:{S+1}], v[{S}:{S+1}], v[{S+2}:{S+3}]")
    for i in range(2):
        A(f"v_max_f32 v{M+i}, v{M+i}, v{M+i+2}")
    A(f"v_add_f32_dpp v{T}, v{S}, v{S} row_ror:8 row_mask:0xf bank_mask:0x3")
    A(f"v_max_f32_dpp v{T+1}, v{M}, v{M} row_ror:8 row_mask:0xf bank_mask:0x3")
    A("s_nop 0")
    A(f"v_add_f32_dpp v{T}, v{S+1}, v{S+1} row_ror:8 row_mask:0xf bank_mask:0xc")
    A(f"v_max_f32_dpp v{T+1}, v{M+1}, v{M+1} row_ror:8 row_mask:0xf bank_mask:0xc")
    A(f"ds_write_b64 v37, v[{T}:{T+1}] offset:{L_RED}")
    A("s_cmp_ge_u32 s36, 2")
    A("s_waitcnt lgkmcnt(0)")
    A("s_barrier")
    stamp(3)
    if bst:
        A("s_mov_b32 s62, s60"); A("s_mov_b32 s64, s60"); A("s_mov_b32 s72, s60")
    if stop1:
        for i in (4, 5): stamp(i)
        A("s_branch L_out")
    A("s_cbranch_scc1 L_role2")
    A("s_mov_b32 exec_hi, 0xffff")
    for q in range(4):
        A(f"ds_read_b128 v[{T+4*q}:{T+4*q+3}], v38 offset:{L_RED+q*1536}")
    A("s_waitcnt lgkmcnt(2)")
    A(f"v_add_f32 v{T}, v{T}, v{T+4}")
    A(f"v_add_f32 v{T+2}, v{T+2}, v{T+6}")
    A(f"v_max_f32 v{T+1}, v{T+1}, v{T+5}")
    A(f"v_max_f32 v{T+3}, v{T+3}, v{T+7}")
    A("s_waitcnt lgkmcnt(0)")
    A(f"v_add_f32 v{T+8}, v{T+8}, v{T+12}")
    A(f"v_add_f32 v{T+10}, v{T+10}, v{T+14}")
    A(f"v_max3_f32 v{T+1}, v{T+1}, v{T+9}, v{T+13}")
    A(f"v_max3_f32 v{T+3}, v{T+3}, v{T+11}, v{T+15}")
    A(f"v_add_f32 v{T}, v{T}, v{T+8}")
    A(f"v_add_f32 v{T+2}, v{T+2}, v{T+10}")
    A(f"v_or_b32 v{T+1}, s46, v{T+1}")
    A(f"v_or_b32 v{T+3}, s52, v{T+3}")
    A(f"buffer_store_dwordx4 v[{T}:{T+3}], v36, s[20:23], s48 offen {pubpol}".rstrip())
    if bst: stamp(1)
    if wt2:
        A(f"ds_write_b128 v38, v[{T}:{T+3}] offset:{L_RED}")
        A("s_waitcnt lgkmcnt(0)")
    if b1b: A("s_barrier")
    A("s_mov_b64 exec, -1")
    A("s_branch L_common")
    A("L_role2:")
    if b1b: A("s_barrier")
    A("s_lshr_b32 s47, s2, 3")
    A(f"s_sub_u32 s47, s47, {ry0}")
    A("s_cmp_lt_u32 s47, 12")
    A(f"s_cselect_b32 s42, {redmask}, 0")
    A("s_bitcmp1_b32 s42, s36")
    A("s_cbranch_scc1 L_role3")
    A("s_cmp_lg_u32 s36, 2")
    A("s_cbranch_scc1 L_role4")
    if warm_out == 4:
        A(f"s_cmp_lt_u32 s2, {256 - wown}")
        A("s_cbranch_scc1 L_common")
        A("v_lshlrev_b32 v2, 21, v35")
        A(f"v_min_u32 v2, {XB-4}, v2")
        A("buffer_load_dword v2, v2, s[12:15], 0 offen nt")
        A("s_waitcnt vmcnt(0)")
    if warm_out == 1:
        A(f"v_mul_u32_u24 v2, {SW}, v35")
        A("s_mov_b64 exec, 0xffff")
        A("buffer_load_dword v3, v2, s[12:15], s41 offen")
        A("s_mov_b64 exec, -1")
        A("s_waitcnt vmcnt(0)")
    A("s_branch L_common")
    def wthrough(name):
        A("s_sub_u32 s3, s3, 1")
        A("s_cmp_eq_u32 s3, 0")
        A(f"s_cbranch_scc0 {name}")
        if wt2:
            A("s_mov_b64 s[24:25], exec")
            A("s_mov_b64 exec, 0xff")
            A("s_lshl_b32 s42, s36, 7")
            A("v_add_u32 v1, s42, v36")
            A(f"ds_read_b128 v[24:27], v1 offset:{L_RED}")
            A("s_waitcnt lgkmcnt(0)")
            A("buffer_store_dwordx4 v[24:27], v36, s[20:23], s55 offen sc1")
            A("s_mov_b64 exec, s[24:25]")
            A(f"{name}:")
            return
        A("s_mov_b64 s[4:5], exec")
        A("s_mov_b32 exec_lo, -1")
        A("s_mov_b32 exec_hi, 0xffff")
        A(f"buffer_store_dwordx4 v[{T}:{T+3}], v36, s[20:23], s48 offen sc1")
        A("s_mov_b64 exec, s[4:5]")
        A(f"{name}:")
    A("L_role3:")
    if not wt2:
        A("v_mov_b32 v24, 0")
        A("v_mov_b32 v25, 1")
    A("v_lshrrev_b32 v2, 3, v35")
    A("v_mul_u32_u24 v20, 12288, v2")
    A("v_and_b32 v3, 0x70, v36")
    A("v_add_u32 v20, v20, v3")
    A("s_and_b32 s43, s2, 7")
    A("s_mul_i32 s42, s43, 1536")
    A("s_lshl_b32 s47, s47, 7")
    A("s_add_u32 s42, s42, s47")
    A(f"s_add_u32 s4, s42, {W_A}")
    for k in range(1, 4):
        A(f"s_add_u32 s{4+k}, s{3+k}, 98304")
    A("v_and_b32 v2, 3, v2")
    A("v_add_u32 v21, s56, v2")
    A("s_lshr_b32 s48, s57, 22")
    A("v_xor_b32 v21, s48, v21")
    if nearB == 2: A("v_not_b32 v21, v21")
    A("v_and_b32 v21, 4, v21")
    if nearB == 0: A("v_mov_b32 v21, 0")
    A("v_lshlrev_b32 v21, 11, v21")
    A("v_lshl_add_u32 v21, v2, 15, v21")
    A("v_lshrrev_b32 v3, 1, v3")
    A("v_add_u32 v21, v21, v3")
    A("v_lshrrev_b32 v3, 5, v35")
    A("v_lshl_add_u32 v21, v3, 6, v21")
    A(f"v_xor_b32 v22, {0x22000 if nearB else 0x20000}, v21")
    A("s_bfe_u32 s43, s2, 0x10002")
    A("s_mul_i32 s43, s43, %d" % (16384 - 4 * 1536))
    A("s_add_u32 s48, s42, s43")
    A("v_and_b32 v23, 16, v36")
    A("v_bfe_u32 v23, s59, v23, 16")
    A("L_pollA:")
    for k in range(4):
        A(f"buffer_load_dwordx4 v[{4+4*k}:{7+4*k}], v20, s[20:23], s{4+k} offen sc1")
    A("s_add_u32 s45, s45, 1")
    for k in range(4):
        A(f"s_waitcnt vmcnt({3-k})")
        if k == 0:
            A("v_xor_b32 v2, s46, v5")
        else:
            A(f"v_bitop3_b32 v2, v2, v{5+4*k}, s46 bitop3:0xf6")
        A(f"v_bitop3_b32 v2, v2, v{7+4*k}, s52 bitop3:0xf6")
    A("v_cmp_ne_u16 vcc, 0, v2")
    A("s_cbranch_vccz L_gotA")
    if wt2: wthrough("L_nowtA")
    A(f"s_cmp_lt_u32 s45, {SPIN}")
    A("s_cbranch_scc1 L_pollA")
    A("L_gotA:")
    if bst: stamp(2)
    if redmask & (redmask - 1):
        A("s_mov_b64 exec, 1")
        A(f"ds_wrxchg_rtn_b32 v26, v24, v25 offset:{L_FL+4}")
        A("s_mov_b64 exec, -1")
    A("v_add_f32 v4, v4, v8")
    A("v_add_f32 v6, v6, v10")
    A("v_add_f32 v12, v12, v16")
    A("v_add_f32 v14, v14, v18")
    for k in range(8):
        A(f"v_and_b32 v{5+2*k}, s44, v{5+2*k}")
    A("v_add_f32 v4, v4, v12")
    A("v_add_f32 v6, v6, v14")
    A("v_max3_f32 v5, v5, v9, v13")
    A("v_max3_f32 v7, v7, v11, v15")
    A("v_max_f32 v5, v5, v17")
    A("v_max_f32 v7, v7, v19")
    def fold345():
        A("v_permlane32_swap_b32 v4, v6")
        A("v_add_f32 v4, v4, v6")
        A("v_permlane32_swap_b32 v5, v7")
        A("v_mov_b32 v6, v4")
        A("v_max_f32 v5, v5, v7")
        A("v_mov_b32 v7, v5")
        A("v_permlane16_swap_b32 v4, v6")
        A("v_add_f32 v4, v4, v6")
        A("v_permlane16_swap_b32 v5, v7")
        A("v_max_f32 v5, v5, v7")
        A("v_add_f32_dpp v4, v4, v4 row_ror:8 row_mask:0xf bank_mask:0xf")
        A("s_nop 0")
        A("v_max_f32_dpp v5, v5, v5 row_ror:8 row_mask:0xf bank_mask:0xf")
    fold345()
    A("v_or_b32 v5, v23, v5")
    if redmask & (redmask - 1):
        A("s_waitcnt lgkmcnt(0)")
        A("v_readfirstlane_b32 s42, v26")
        A("s_cmp_lg_u32 s42, 0")
        A("s_cbranch_scc1 L_common")
    A("buffer_store_dwordx2 v[4:5], v21, s[20:23], s48 offen sc1")
    A("buffer_store_dwordx2 v[4:5], v22, s[20:23], s48 offen sc1")
    if bst: stamp(6)
    if gate:
        if wt2:
            A("v_mov_b32 v2, 0")
            A("v_mov_b32 v3, 1")
            A(f"ds_write_b32 v2, v3 offset:{L_FL}")
        else:
            A(f"ds_write_b32 v24, v25 offset:{L_FL}")
    A("s_branch L_common")
    A("L_role4:")
    VS = VD + 4 * (NL - 6)
    A("s_sub_u32 s43, s36, 4")
    A("s_cmp_ge_u32 s43, 3")
    A("s_cbranch_scc1 L_common")
    A("s_mul_i32 s42, s43, 6144")
    A(f"s_add_u32 s42, s42, {L_SP}")
    A("v_add_u32 v38, s42, v36")
    for k in range(6):
        A(f"ds_write_b128 v38, v[{VS+4*k}:{VS+4*k+3}] offset:{k*1024}")
    A("v_lshrrev_b32 v2, 4, v35")
    A("v_lshlrev_b32 v2, 3, v2")
    A("v_bfe_u32 v3, v35, 2, 2")
    A("v_add_u32 v2, v2, v3")
    A("v_mul_u32_u24 v2, 96, v2")
    A("v_and_b32 v3, 3, v35")
    A("v_lshl_add_u32 v2, v3, 3, v2")
    A("s_lshl_b32 s42, s43, 5")
    A("v_add_u32 v2, s42, v2")
    A("s_waitcnt lgkmcnt(0)")
    for k in range(6):
        A(f"ds_read_b64_tr_b16 v[{VS+4*k}:{VS+4*k+1}], v2 offset:{L_W1 + k*3072}")
        A(f"ds_read_b64_tr_b16 v[{VS+4*k+2}:{VS+4*k+3}], v2 offset:{L_W1 + k*3072 + 384}")
    A("v_and_b32 v2, 1, v35")
    A("v_mul_u32_u24 v2, 384, v2")
    A("v_lshrrev_b32 v3, 4, v35")
    A("v_lshl_add_u32 v39, v3, 4, v2")
    A("L_common:")
    A("v_lshrrev_b32 v2, 5, v35")
    A("v_bfe_u32 v3, v35, 3, 2")
    A("v_mul_u32_u24 v3, 1536, v3")
    A("v_lshl_add_u32 v8, v2, 14, v3")
    A("v_and_b32 v3, 0x70, v36")
    A("v_add_u32 v8, v8, v3")
    A("s_add_u32 s42, s56, s2")
    A("s_lshr_b32 s43, s57, 22")
    A("s_xor_b32 s42, s42, s43")
    if nearB == 2: A("s_not_b32 s42, s42")
    A("s_and_b32 s42, s42, 4")
    if nearB == 0: A("s_mov_b32 s42, 0")
    A("s_lshl_b32 s42, s42, 11")
    A("s_and_b32 s43, s2, 7")
    A("s_lshl_b32 s43, s43, 15")
    A("s_add_u32 s42, s42, s43")
    A("s_lshl_b32 s43, s36, 7")
    A("s_add_u32 s47, s42, s43")
    if not gate: A("buffer_load_dwordx4 v[4:7], v8, s[20:23], s47 offen sc1")
    A("v_lshrrev_b32 v3, 2, v3")
    A("v_lshl_add_u32 v9, v2, 1, v3")
    A("s_lshl_b32 s42, s36, 5")
    A("v_add_u32 v9, s42, v9")
    A("v_lshrrev_b32 v2, 2, v35")
    A("v_mul_u32_u24 v2, 384, v2")
    A("v_and_b32 v3, 3, v35")
    A("v_lshl_add_u32 v2, v3, 3, v2")
    A("v_add_u32 v2, s42, v2")
    W2F = 28
    for k in range(3):
        A(f"ds_read_b64_tr_b16 v[{W2F+2*k}:{W2F+2*k+1}], v2 offset:{L_W2 + k*6144}")
    A("v_lshlrev_b32 v37, 3, v35")
    if not wt2:
        A("s_cmp_lt_u32 s36, 2")
        A(f"s_cselect_b32 s3, {NWT}, 0")
    if gate:
        A("s_lshr_b32 s42, s2, 3")
        A(f"s_sub_u32 s42, s42, {ry0}")
        A("s_cmp_ge_u32 s42, 12")
        A("s_cbranch_scc1 L_open")
        A("v_mov_b32 v2, 0")
        A("L_gate:")
        A(f"ds_read_b32 v3, v2 offset:{L_FL}")
        A("s_waitcnt lgkmcnt(0)")
        A("v_cmp_ne_u32 vcc, 0, v3")
        A("s_cbranch_vccnz L_open")
        A(f"s_sleep {gate}")
        wthrough("L_nowt0")
        A("s_add_u32 s45, s45, 1")
        A(f"s_cmp_lt_u32 s45, {SPIN}")
        A("s_cbranch_scc1 L_gate")
        if alP:
            A("s_branch L_open")
            A(".p2align 12")
        A("L_open:")
        A("buffer_load_dwordx4 v[4:7], v8, s[20:23], s47 offen sc1")
    A("L_pollB:")
    A("s_waitcnt vmcnt(0)")
    A("v_cmp_ne_u16 vcc, s46, v5")
    A("v_cmp_ne_u16 s[4:5], s52, v7")
    A("s_or_b64 exec, vcc, s[4:5]")
    A("s_cbranch_scc0 L_gotB")
    if slp:
        A("s_bcnt1_i32_b64 s42, exec")
        A(f"s_cmp_le_u32 s42, {slpthr}")
        A("s_cbranch_scc1 L_nosleep")
        A(f"s_sleep {slp}")
        A("L_nosleep:")
    A("buffer_load_dwordx4 v[4:7], v8, s[20:23], s47 offen sc1")
    wthrough("L_nowt")
    A("s_add_u32 s45, s45, 1")
    A(f"s_cmp_lt_u32 s45, {SPIN}")
    A("s_cbranch_scc1 L_pollB")
    A("s_waitcnt vmcnt(0)")
    A("L_gotB:")
    A("s_mov_b64 exec, -1")
    A("v_and_b32 v5, s44, v5")
    A("v_and_b32 v7, s44, v7")
    fold345()
    A("v_mul_f32 v4, 0x36800000, v4")
    A("v_cvt_pk_bf16_f32 v4, v4, v5")
    A(f"ds_write_b16 v9, v4 offset:{L_G}")
    A(f"ds_write_b16_d16_hi v9, v4 offset:{L_G+384}")
    if not wt2:
        A("s_cmp_gt_i32 s3, 0" if exitwt else "s_cmp_gt_i32 0, 0")
        A("s_cbranch_scc0 L_nowt2")
        A("s_mov_b32 exec_hi, 0xffff")
        A(f"buffer_store_dwordx4 v[{T}:{T+3}], v36, s[20:23], s48 offen sc1")
        A("s_mov_b32 exec_hi, -1")
        A("L_nowt2:")
    A("s_sub_u32 s42, s36, 4")
    A("s_cmp_ge_u32 s42, 3")
    A("s_waitcnt lgkmcnt(0)")
    A("s_barrier")
    stamp(4)
    A("s_cbranch_scc1 L_l2")
    BF = 4
    for k in range(6):
        A(f"ds_read_b128 v[{BF+4*k}:{BF+4*k+3}], v39 offset:{L_G + k*64}")
    A("s_lshl_b32 s42, s42, 9")
    A("v_add_u32 v36, s42, v37")
    A("s_mov_b32 s43, 0x7f800000")
    for k in range(6):
        A(f"s_waitcnt lgkmcnt({5-k})")
        c = "0" if k == 0 else "v[0:3]"
        A(f"v_mfma_f32_16x16x32_bf16 v[0:3], v[{VS+4*k}:{VS+4*k+3}], v[{BF+4*k}:{BF+4*k+3}], {c}")
    A("s_nop 7")
    for i in range(4):
        A(f"v_mul_f32_e64 v{4+i}, v{i}, s43 clamp")
    A("v_pk_mul_f32 v[0:1], v[0:1], v[4:5]")
    A("v_pk_mul_f32 v[2:3], v[2:3], v[6:7]")
    A("v_cvt_pk_bf16_f32 v4, v0, v1")
    A("v_cvt_pk_bf16_f32 v5, v2, v3")
    A(f"ds_write_b64 v36, v[4:5] offset:{L_H}")
    A("L_l2:")
    lane_offsets(0, 1)
    A("s_waitcnt lgkmcnt(0)")
    A("s_barrier")
    for k in range(3):
        A(f"ds_read_b64 v[{4+2*k}:{5+2*k}], v37 offset:{L_H + k*512}")
    A("v_and_b32 v2, 15, v35")
    A("s_lshl_b32 s42, s36, 6")
    A("v_lshl_add_u32 v36, v2, 2, s42")
    A("v_and_b32 v2, 7, v35")
    A("s_lshl_b32 s42, s38, 8")
    A("v_lshl_add_u32 v39, v2, 5, s42")
    A("s_mov_b32 s43, 0xbfb8aa3b")
    if wdot:
        A("v_bfe_i32 v3, v35, 0, 1")
        A("v_xor_b32 v3, 0xffff, v3")
    for k in range(3):
        A(f"s_waitcnt lgkmcnt({2-k})")
        c = "0" if k == 0 else "v[12:15]"
        A(f"v_mfma_f32_16x16x16_bf16 v[12:15], v[{4+2*k}:{5+2*k}], v[{W2F+2*k}:{W2F+2*k+1}], {c}")
    A("s_nop 7")
    A("v_cvt_pk_bf16_f32 v12, v12, v13")
    A("v_lshlrev_b32 v13, 16, v12")
    A("v_and_b32 v12, s44, v12")
    A("v_add_f32 v12, v12, v13")
    A("v_cvt_pk_bf16_f32 v12, 0, v12")
    A("v_mul_f32 v12, s43, v12")
    A("v_exp_f32 v12, v12")
    A("s_nop 0")
    A("v_add_f32 v12, 1.0, v12")
    A("v_rcp_f32 v12, v12")
    A("s_nop 0")
    if wdot:
        A("v_cvt_pk_bf16_f32 v12, v12, v12")
        A("v_and_b32 v12, v3, v12")
    else:
        A("v_cvt_pk_bf16_f32 v12, 0, v12")
    A(f"ds_write_b32 v36, v12 offset:{L_SC}")
    A("s_waitcnt lgkmcnt(0)")
    A("s_barrier")
    SCR = 2
    A(f"ds_read_b128 v[{SCR}:{SCR+3}], v39 offset:{L_SC}")
    A(f"ds_read_b128 v[{SCR+4}:{SCR+7}], v39 offset:{L_SC+16}")
    stamp(5)
    if clk: A("s_memtime s[76:77]")
    T2 = 10
    steps = list(range(16))
    if word:
        dyn = list(range(nstatic, 16))
        steps = []
        for k in range(nstatic):
            lo, hi = k * len(dyn) // nstatic, (k + 1) * len(dyn) // nstatic
            part = dyn[lo:hi]
            steps += part[:1] + [k] + part[1:]
    order = [2 * i + h for i in steps for h in (0, 1)]
    if wburst:
        A(f"s_cmp_lt_u32 s36, {wburst}")
        A("s_cbranch_scc1 L_wold")
        A("s_sub_u32 s42, s36, 4")
        A("s_cmp_ge_u32 s42, 3")
        A("s_cbranch_scc1 L_noreload2")
        for k in range(6):
            A(f"ds_read_b128 v[{VS+4*k}:{VS+4*k+3}], v38 offset:{k*1024}")
        A("L_noreload2:")
        A("s_waitcnt lgkmcnt(0)")
        for j in range(NL):
            tb = T2 + 8 * (j % 2)
            for i in range(4):
                d = VD + 4 * j + i
                A(f"v_lshlrev_b32 v{tb+2*i}, 16, v{d}")
                A(f"v_and_b32 v{tb+2*i+1}, s44, v{d}")
            for i in range(4):
                A(f"v_pk_mul_f32 v[{tb+2*i}:{tb+2*i+1}], v[{tb+2*i}:{tb+2*i+1}], v[{SCR+2*i}:{SCR+2*i+1}]")
            for i in range(4):
                d = VD + 4 * j + i
                A(f"v_cvt_pk_bf16_f32 v{d}, v{tb+2*i}, v{tb+2*i+1}")
        for n, j in enumerate(order):
            i2, h = j >> 1, j & 1
            if h == 0:
                A(f"v_readlane_b32 s50, v34, {i2}")
                A("s_nop 1")
            addr(28 + h, h)
            r = VD + 4 * j
            A(f"buffer_store_dwordx4 v[{r}:{r+3}], v{28+h}, s[12:15], s{TAB+i2} offen {st}".rstrip())
        A("s_branch L_wdone")
        A("L_wold:")
    for n, j in enumerate(order):
        tb = T2 + 8 * (j % 2)
        i2, h = j >> 1, j & 1
        if j == NL - 6:
            A("s_waitcnt lgkmcnt(0)")
        if wprio and n in wprio: A(f"s_setprio {3 - wprio.index(n)}")
        if wbar and n and n % wbar == 0: A("s_barrier")
        if h == 0:
            A(f"v_readlane_b32 s50, v34, {i2}")
        if wdot:
            if n == 0:
                A("s_nop 1")
                addr(28 + h, h)
                A("s_waitcnt lgkmcnt(0)")
            for i in range(8):
                A(f"v_dot2_f32_bf16 v{tb+i}, v{VD + 4*j + i//2}, v{SCR+i}, 0")
            if n: addr(28 + h, h)
        for i in range(4):
            d = VD + 4 * j + i
            if wdot or (nowv and i): continue
            A(f"v_lshlrev_b32 v{tb+2*i}, 16, v{d}")
            A(f"v_and_b32 v{tb+2*i+1}, s44, v{d}")
        if not wdot: addr(28 + h, h)
        if n == 0 and not wdot:
            A("s_waitcnt lgkmcnt(0)")
        for i in range(0 if nowv or wdot else 4):
            A(f"v_pk_mul_f32 v[{tb+2*i}:{tb+2*i+1}], v[{tb+2*i}:{tb+2*i+1}], v[{SCR+2*i}:{SCR+2*i+1}]")
        for i in range(0 if nowv else 4):
            d = VD + 4 * j + i
            A(f"v_cvt_pk_bf16_f32 v{d}, v{tb+2*i}, v{tb+2*i+1}")
        r = VD + 4 * j
        if wwin and n >= wwin: A(f"s_waitcnt vmcnt({wwin-1})")
        A(f"buffer_store_dwordx4 v[{r}:{r+3}], v{28+h}, s[12:15], s{TAB+i2} offen {st}".rstrip())
        if n == 0:
            A("s_sub_u32 s42, s36, 4")
            A("s_cmp_ge_u32 s42, 3")
            A("s_cbranch_scc1 L_noreload")
            for k in range(6):
                A(f"ds_read_b128 v[{VS+4*k}:{VS+4*k+3}], v38 offset:{k*1024}")
            A("L_noreload:")
        if wt2 == 2 and n == 3:
            A("v_lshlrev_b32 v26, 4, v35")
            A("s_lshl_b32 s42, s36, 7")
            A("v_add_u32 v27, s42, v26")
            A(f"ds_read_b128 v[30:33], v27 offset:{L_RED}")
        if wt2 == 2 and n == 4:
            A("s_mov_b64 exec, 0xff")
            A("s_waitcnt lgkmcnt(0)")
            A("buffer_store_dwordx4 v[30:33], v26, s[20:23], s55 offen sc1")
            A("s_mov_b64 exec, -1")
    A("L_wdone:")
    if stamps:
        A("L_out:")
        if not bst and not sst: stamp(6)
        if sst:
            A('s_waitcnt lgkmcnt(0)'); A('s_mul_i32 s68, s55, 100'); A('s_add_u32 s68, s68, s60')
        A("s_waitcnt vmcnt(0)")
        stamp(7)
        if clk: A("s_memtime s[78:79]")
        A("s_waitcnt lgkmcnt(0)")
        if clk:
            A("s_sub_u32 s62, s78, s76")
            A("s_add_u32 s62, s62, s60")
        A("s_mov_b64 exec, 1")
        if diag:
            diag_tail(A, diag)
        A("s_mul_i32 s3, s2, 12")
        A("s_add_u32 s3, s3, s36")
        A("s_lshl_b32 s3, s3, 5")
        A(f"s_add_u32 s3, s3, {W_ST}")
        A("v_mov_b32 v1, 0")
        for i in range(8):
            A(f"v_mov_b32 v{4+i}, s{60+2*i}")
        A("buffer_store_dwordx4 v[4:7], v1, s[20:23], s3 offen")
        A("buffer_store_dwordx4 v[8:11], v1, s[20:23], s3 offen offset:16")
    A("L_end:")
    A("s_endpgm")
    n0 = len(L)
    scout()
    if inl:
        body = L[n0:]
        del L[n0:]
        k = L.index("@@SCOUT@@")
        L[k:k+1] = body
    A('.section .rodata,"a"')
    A(".p2align 6")
    A(".amdhsa_kernel standalone__channel_attn_cbam__vision_kernel")
    A("  .amdhsa_next_free_vgpr 168")
    A("  .amdhsa_next_free_sgpr 96")
    A("  .amdhsa_accum_offset 168")
    A("  .amdhsa_group_segment_fixed_size 0")
    A("  .amdhsa_kernarg_size 48")
    A("  .amdhsa_user_sgpr_count 2")
    A("  .amdhsa_user_sgpr_kernarg_segment_ptr 1")
    A("  .amdhsa_system_sgpr_workgroup_id_x 1")
    A("  .amdhsa_float_denorm_mode_32 3")
    A(".end_amdhsa_kernel")
    out = []
    for line in L:
        if line.startswith(("s_", "v_", "ds_", "buffer_", "global_")):
            out.append("    " + line)
        else:
            out.append(line)
    return "\n".join(out) + "\n"

def diag_tail(A, diag):
    idx, mul, base = diag[:3]
    dwg = diag[3] if len(diag) > 3 else 0
    dwv = diag[4] if len(diag) > 4 else 0
    A(f"s_cmp_lg_u32 s36, {dwv}")
    A("s_cbranch_scc1 L_end")
    A(f"s_cmp_lg_u32 s2, {dwg}")
    A("s_cbranch_scc1 L_end")
    if idx == -1:
        A("s_lshr_b32 s42, s57, 1")
        A("s_xor_b32 s42, s42, s57")
        A("s_and_b32 s42, s42, 0x7ff7ff")
        A("s_bcnt1_i32_b32 s42, s42")
    elif idx >= 100:
        A(f"s_sub_u32 s42, s{60+2*(idx//10%10)}, s{60+2*(idx%10)}")
    else:
        A(f"s_sub_u32 s42, s{60+2*idx}, s60")
    A(f"s_mul_i32 s42, s42, {mul}")
    A(f"s_add_u32 s42, s42, {base}")
    A("s_min_u32 s42, s42, 200000")
    A("L_dg3:")
    A("s_memrealtime s[78:79]")
    A("s_waitcnt lgkmcnt(0)")
    A("s_sub_u32 s43, s78, s60")
    A("s_cmp_lt_u32 s43, s42")
    A("s_cbranch_scc1 L_dg3")
    A("s_branch L_end")

if __name__ == "__main__":
    cfg = json.loads(sys.argv[1]) if len(sys.argv) > 1 else {}
    sys.stdout.write(gen(**cfg))
```

```python
import sys, json

HEADER = """; CBAM channel attention: out = x * sigmoid(MLP(mean_hw x) + MLP(max_hw x)), one pass over HBM.
;
;  2. Grid-wide reduction through d_ws in two hops: the 32 workgroups with equal id%8 publish rows of
;     {sum, max|tag} pairs, 12 of them each reduce one 128-byte column; the 8 group rows then go to every
"""

def gen(W=4, W2=6, gW2=11, nstatic=5, wpos=16, rbar=9, wbar=2, THR=80, MIX=0xAAAA, MIX2=0xFEFE, NWT=256,
        ry0=16, redmask=0x30C, gsetup=8, stamps=0):
    NW, NL, VD = 12, 32, 40
    XB = 100663296
    L_W1, L_W2 = 0, 18432
    L_RED = 36864
    L_G = L_RED + 6144
    L_H = L_G + 768
    L_SC = L_H + 1536
    L_FL = L_SC + 768
    L_SP = L_FL + 64
    L_END = L_SP + 3 * 6144
    W_A = 256 << 10
    SPIN = 1 << 22
    SW = 6 << 20
    TAB = 80
    NS = 25
    S, M, T = 2, 10, 18
    VS = VD + 4 * (NL - 6)
    W2F, BF, SCR, T2 = 28, 4, 2, 10
    L = []
    def A(s, c=None):
        L.append((s, c))
    def C(c):
        L.append(("", c))
    def stamp(i):
        if stamps: A(f"s_memrealtime s[{60+2*i}:{61+2*i}]")
    def addr(dst, src):
        A(f"v_add_u32 v{dst}, s50, v{src}")
        A(f"v_bfe_u32 v{dst}, v{dst}, 13, 1")
        A(f"v_mad_u32_u24 v{dst}, v{dst}, s49, v{src}")
    def lane_offsets():
        A("v_lshrrev_b32 v0, 3, v35")
        A("v_mul_u32_u24 v0, 384, v0")
        A("v_and_b32 v1, 7, v35")
        A("v_lshl_add_u32 v0, v1, 4, v0")
        A("v_add_u32 v0, s39, v0", "position in a half window: 8 pixels x 128 bytes per load")
        A("v_add_u32 v1, 12288, v0", "... of the second load of a step")
    def dbg_srd():
        A("s_mov_b32 s16, s28"); A("s_mov_b32 s17, s29")
        A("s_mov_b32 s18, 256"); A("s_mov_b32 s19, 0x20000")

    A(".amdgcn_target \"amdgcn-amd-amdhsa--gfx950\"")
    A(".text")
    A(".globl standalone__channel_attn_cbam__vision_kernel")
    A(".p2align 12")
    A(".p2align 8")
    A(".type standalone__channel_attn_cbam__vision_kernel,@function")
    A("standalone__channel_attn_cbam__vision_kernel:")
    stamp(0)
    A("s_load_dwordx4 s[4:7], s[0:1], 0", "x, w1")
    A("s_load_dwordx4 s[24:27], s[0:1], 16", "w2, out")
    A("s_load_dwordx4 s[28:31], s[0:1], 32", "debug, ws")
    A("s_memtime s[58:59]")
    A("s_cmp_ge_u32 s2, 256")
    A("s_cbranch_scc1 L_end", "extra workgroups leave")
    A("v_lshrrev_b32 v2, 6, v0")
    A("v_and_b32 v35, 63, v0", "lane")
    A("v_readfirstlane_b32 s36, v2", "wave")
    A("s_mov_b32 s35, 0x20000")
    A("s_lshr_b32 s40, s2, 2")
    A("s_and_b32 s42, s2, 1")
    A("s_or_b32 s40, s40, s42")
    A("s_and_b32 s42, s2, 6")
    A(f"s_cselect_b32 s40, {NS}, s40", f"scout number 2a+b of workgroup 8a+b, b<2 (>= {NS}: none)")
    A("s_lshl_b32 s42, s36, 5")
    A("s_or_b32 s42, s42, s40")
    A(f"s_cmp_lt_u32 s42, {NS}")
    A("s_cbranch_scc0 L_main")
    C("---- scout (wave 0): which die holds the lower 8 KiB half of 16 KiB in one page of x, out or ws")
    A("s_getreg_b32 s48, hwreg(HW_REG_XCC_ID, 0, 3)")
    A("s_mov_b64 exec, 1")
    A("v_mov_b32 v2, 0")
    A(f"s_mov_b32 s34, {XB}")
    A("s_lshr_b32 s43, s40, 1", "8 MiB group a")
    A("s_and_b32 s55, s40, 1", "buffer: 0 x, 1 out, 2 ws")
    A("s_lshl_b32 s54, s55, 7", "word of d_debug")
    A("s_cmp_eq_u32 s43, 12")
    A("s_cselect_b32 s55, 2, s55")
    A("s_cselect_b32 s42, 0, s43")
    A("s_lshl_b32 s42, s42, 23")
    A("s_bitset1_b32 s42, 22", "page 2 of the group")
    A("s_lshl_b32 s52, s48, 29")
    A("s_cmp_eq_u32 s40, 0")
    A("s_cselect_b32 s52, s52, 0", "workgroup 0 also tells its XCC")
    A("s_bitset1_b32 s52, s43", "done bit")
    A("s_lshl_b32 s3, 0x10000, s43")
    A("s_cmp_ge_u32 s48, 4")
    A("s_cselect_b32 s48, s3, 0")
    A("s_xor_b32 s3, s3, s48")
    A("s_or_b32 s48, s48, s52", "answer if the lower half is on my die")
    A("s_or_b32 s3, s3, s52", "answer if it is on the other die")
    A("s_cmp_lt_u32 s40, 2")
    A("s_cselect_b32 s52, s54, 0x1000")
    A("v_mov_b32 v5, s52")
    A("s_cmp_eq_u32 s55, 1")
    A("s_waitcnt lgkmcnt(0)")
    A("s_cselect_b32 s32, s26, s4")
    A("s_cselect_b32 s33, s27, s5")
    A("s_cmp_eq_u32 s55, 2")
    A("s_cselect_b32 s32, s30, s32")
    A("s_cselect_b32 s33, s31, s33")
    A("s_lshl_b32 s43, s58, 5")
    A(f"s_and_b32 s43, s43, {hex(0x1fff80 & ~8192)}", "some line of the page, so that the pair is not an L2 hit")
    A("s_add_u32 s42, s42, s43")
    A("s_and_b32 s43, s32, 0x1ffffc")
    A("s_sub_u32 s42, s42, s43")
    A("s_add_u32 s43, s42, 8192")
    dbg_srd()
    A("buffer_load_dword v3, v2, s[32:35], s42 offen nt", "lower half (values unused)")
    A("buffer_load_dword v4, v2, s[32:35], s43 offen nt", "upper half")
    A("buffer_atomic_or v2, v5, s[16:19], 0 offen sc1", "scouts 0,1: OR 0 fetches the word's line; others: out of range")
    A("s_waitcnt vmcnt(2)")
    A("s_memtime s[56:57]")
    A("s_waitcnt vmcnt(1)")
    A("s_memtime s[58:59]")
    A("s_waitcnt lgkmcnt(0)")
    A("s_sub_u32 s42, s58, s56")
    A(f"s_cmpk_le_u32 s42, {THR}", "upper half was already back: the lower half is the far one")
    A("s_cselect_b32 s48, s3, s48")
    A("v_mov_b32 v15, s48")
    A("buffer_atomic_or v15, v2, s[16:19], s54 offen sc1")
    A("s_barrier", "releases the other waves of this workgroup")
    A("s_cmp_lg_u32 s40, 0")
    A("s_cbranch_scc1 L_notag")
    A("s_memrealtime s[56:57]", "workgroup 0 picks the tag of this launch")
    A("v_mov_b32 v12, 1")
    A("s_waitcnt lgkmcnt(0)")
    A("s_mul_i32 s43, s56, 0x9e3779b1")
    A("v_mov_b32 v13, s43")
    A("buffer_store_dwordx2 v[12:13], v2, s[16:19], 0 offen offset:192 sc1")
    A("L_notag:")
    A("s_mov_b64 exec, -1")
    A(f"s_mov_b32 s40, {NS}")
    A("L_main:")
    C("---- workgroups 112..127 pull the kernel's code into L2 before the data stream fills the queues")
    A("s_lshr_b32 s42, s2, 4")
    A("s_and_b32 s43, s36, 12")
    A("s_lshl_b32 s43, s43, 4")
    A("s_or_b32 s42, s42, s43")
    A("s_cmp_lg_u32 s42, 7")
    A("s_cbranch_scc1 L_nocode")
    A("s_getpc_b64 s[54:55]")
    A("L_pc:")
    A("v_lshlrev_b32 v33, 7, v0")
    A("v_min_u32 v33, L_end-L_pc, v33")
    A("global_load_dword v33, v33, s[54:55]")
    A("L_nocode:")
    A("s_mul_i32 s37, s36, 43691")
    A("s_lshr_b32 s37, s37, 17", "q = wave/3: pixel group")
    A("s_mul_i32 s38, s37, 3")
    A("s_sub_u32 s38, s36, s38", "t = wave%3: channels 64t..64t+63")
    A("s_mul_i32 s39, s37, 3072")
    A("s_lshl_b32 s42, s38, 7")
    A("s_add_u32 s39, s39, s42")
    lane_offsets()
    A("s_lshr_b32 s42, s2, 3")
    A("s_and_b32 s43, s2, 3")
    A("s_lshl_b32 s51, s42, 2")
    A("s_add_u32 s51, s51, s43", "pair p")
    A(f"s_mul_i32 s{TAB}, s51, 49152", "window of step 0; step i adds 6 MiB")
    A("s_lshl_b32 s50, s2, 11")
    A("s_lshl_b32 s42, s42, 13")
    A("s_xor_b32 s50, s50, s42")
    A("s_and_b32 s50, s50, 0x2000", f"first {nstatic} steps: halves picked by id bits alone")
    A("s_movk_i32 s49, 24576")
    addr(38, 0)
    addr(39, 1)
    A(f"s_mov_b32 s10, {XB}"); A("s_mov_b32 s11, 0x20000")
    A(f"s_cmp_lt_u32 s40, {NS}")
    A("s_waitcnt lgkmcnt(0)")
    A("s_mov_b32 s8, s4"); A("s_mov_b32 s9, s5")
    A("s_cbranch_scc0 L_go")
    A("s_barrier", "waves 1..11 of a scout workgroup wait for the probe")
    A("L_go:")
    C("---- phase 1: stream x into registers, accumulate sum (v2..v9) and max (v10..v17)")
    ops = []
    def issue(j):
        r, i, h = VD + 4 * j, j >> 1, j & 1
        if i < nstatic:
            A(f"buffer_load_dwordx4 v[{r}:{r+3}], v{38+h}, s[8:11], s{TAB+i} offen nt")
            if h == 0: A(f"s_add_u32 s{TAB+i+1}, s{TAB+i}, {SW}")
        else:
            if h == 0:
                A(f"v_readlane_b32 s50, v34, {i}")
                if i < 15:
                    A(f"s_add_u32 s{TAB+i+1}, s{TAB+i}, {SW}")
                    A("s_nop 0")
                else:
                    A("s_nop 1")
            addr(39, h)
            A(f"buffer_load_dwordx4 v[{r}:{r+3}], v39, s[8:11], s{TAB+i} offen nt")
        ops.append(j)
        if j == wpos:
            C("weights into LDS: waves 0..5 w1, waves 6..11 w2, 3 KiB each")
            A("s_cmp_ge_u32 s36, 6")
            A("s_cselect_b32 s32, s24, s6")
            A("s_cselect_b32 s33, s25, s7")
            A("s_cselect_b32 s42, 18432, 0")
            A("s_mov_b32 s34, 18432")
            A("s_mul_i32 s43, s36, 3072")
            A("s_mov_b32 m0, s43")
            A("s_sub_u32 s42, s43, s42")
            for k in range(3):
                A(f"buffer_load_dwordx4 v36, s[32:35], s42 offen offset:{k*1024} lds")
                ops.append(None)
        if j == NL - 1:
            C("wave 0: first touch of this workgroup's hand-off row, off the critical path (values unused)")
            A("s_cmp_lg_u32 s36, 0")
            A("s_cbranch_scc1 L_notouch")
            A("v_lshlrev_b32 v39, 7, v35")
            A("s_mov_b64 exec, 0xfff")
            A("buffer_load_dword v39, v39, s[20:23], s48 offen sc1")
            A("s_mov_b64 exec, -1")
            A("L_notouch:")
    def after(j):
        return len(ops) - 1 - ops.index(j)
    def map_use():
        C("the scouts' bits -> v34 lane i: offset that picks this workgroup's halves in step i")
        A("s_load_dword s56, s[28:29], 0")
        A("s_load_dword s57, s[28:29], 128")
        A("s_load_dwordx2 s[58:59], s[28:29], 192")
        A("s_sub_u32 s42, s12, s8")
        A("s_add_u32 s42, s42, 0x800")
        A("s_bitcmp1_b32 s42, 12")
        A(f"s_mov_b32 s42, {hex(MIX)}")
        A(f"s_cmov_b32 s42, {hex(MIX2)}")
        A("v_add_u32 v19, s51, v35")
        A("v_and_b32 v19, 15, v19")
        A("v_bfe_u32 v19, s42, v19, 1", "1: near for the store, 0: near for the load")
        A("v_cmp_ne_u32 vcc, 0, v19")
        A("s_and_b32 s42, s8, 0x1fffff")
        A("s_and_b32 s43, s12, 0x1fffff")
        A("v_mov_b32 v20, s42")
        A("v_mov_b32 v21, s43")
        A("v_cndmask_b32 v20, v20, v21, vcc", "buffer start inside its 2 MiB page")
        A("v_and_b32 v18, 15, v35")
        A(f"v_add_u32 v21, s{TAB}, v20")
        A("v_lshrrev_b32 v21, 21, v21")
        A("v_mad_u32_u24 v18, v18, 3, v21", "page of the window")
        A("v_lshrrev_b32 v21, 2, v18")
        A("v_min_u32 v21, 11, v21")
        A("v_mad_u32_u24 v19, v19, 12, v21", "bit of its group")
        def chk():
            A("s_lshl_b32 s42, s58, 12")
            A("s_or_b32 s42, s42, s57")
            A("s_and_b32 s42, s42, s56")
            A("s_andn2_b32 s42, 0x1fff, s42", "13 + 12 done bits and the tag")
            A("s_cbranch_scc0 L_mapok")
        A("s_waitcnt lgkmcnt(0)")
        chk()
        A("v_mov_b32 v26, 0")
        A("L_map:", "not complete yet: poll")
        A("buffer_load_dword v22, v26, s[16:19], 0 offen sc1")
        A("buffer_load_dword v23, v26, s[16:19], 0 offen offset:128 sc1")
        A("buffer_load_dwordx2 v[24:25], v26, s[16:19], 0 offen offset:192 sc1")
        A("s_add_u32 s45, s45, 1")
        A("s_waitcnt vmcnt(0)")
        for k in range(4):
            A(f"v_readfirstlane_b32 s{56+k}, v{22+k}")
        chk()
        A(f"s_cmp_lt_u32 s45, {SPIN}")
        A("s_cbranch_scc1 L_map")
        A("L_mapok:")
        stamp(1)
        A("s_and_b32 s46, s59, 0xffff", "tag of even pairs")
        A("s_lshr_b32 s52, s59, 16", "tag of odd pairs")
        A("s_and_b32 s42, s56, 0x10000000")
        A("s_or_b32 s57, s57, s42")
        A("s_lshr_b32 s57, s57, 16")
        A("s_lshl_b32 s57, s57, 12")
        A("s_bfe_u32 s42, s56, 0xc0010")
        A("s_or_b32 s57, s57, s42", "x groups, out groups, hand-off page")
        A("s_lshr_b32 s56, s56, 29", "XCC of workgroup 0")
        A("s_lshl_b32 s42, s57, 1", "majority of three neighbouring groups")
        A("s_lshr_b32 s43, s57, 2")
        A("s_and_b32 s42, s42, 0xffeffe")
        A("s_and_b32 s43, s43, 0x1001")
        A("s_or_b32 s42, s42, s43")
        A("s_lshr_b32 s43, s57, 1")
        A("s_lshl_b32 s48, s57, 2")
        A("s_and_b32 s43, s43, 0x7ff7ff")
        A("s_and_b32 s48, s48, 0x800800")
        A("s_or_b32 s43, s43, s48")
        A("s_and_b32 s48, s42, s43")
        A("s_or_b32 s42, s42, s43")
        A("s_bitset1_b32 s42, 24")
        A("s_and_b32 s57, s57, s42")
        A("s_or_b32 s57, s57, s48")
        A("s_add_u32 s42, s56, s2")
        A("s_lshr_b32 s42, s42, 2", "bit 0: expected die, always opposite for g and g^4")
        A("v_lshrrev_b32 v19, v19, s57")
        A("v_xor_b32 v18, s42, v18", "odd pages swap the dies")
        A("v_xor_b32 v19, v18, v19")
        A(f"s_mov_b32 exec_lo, {hex(0xffffffff & ~((1 << nstatic) - 1))}")
        A("v_lshl_add_u32 v34, v19, 13, v20")
        A("s_mov_b32 exec_lo, -1")
    for j in range(W):
        issue(j)
    nxt = W
    A("s_add_u32 s20, s30, 0x400000")
    A("s_addc_u32 s21, s31, 0")
    A("s_and_b32 s20, s20, 0xffe00000", "hand-off area: one 2 MiB page inside ws")
    A(f"s_mov_b32 s22, {hex(0x400000 if stamps else 0x100000)}"); A("s_mov_b32 s23, 0x20000")
    dbg_srd()
    A("s_mov_b32 s12, s26"); A("s_mov_b32 s13, s27")
    A(f"s_mov_b32 s14, {XB}"); A("s_mov_b32 s15, 0x20000")
    A("s_mov_b32 s45, 0", "bound on all polling")
    A("v_mov_b32 v34, s50")
    A("v_lshlrev_b32 v36, 4, v35")
    for i in range(8):
        A(f"v_mov_b32 v{S+i}, 0")
        A(f"v_mov_b32 v{M+i}, 0xff800000")
    A("s_mov_b32 s44, 0xffff0000")
    A(f"ds_write_b64 v{S}, v[{S}:{S+1}] offset:{L_FL}")
    groups = [(j, j + 1) for j in range(0, NL - 2, 2)] + [(NL - 2,), (NL - 1,)]
    guse = nstatic - W // 2
    for k, g in enumerate(groups):
        if k == len(groups) - 2:
            A("s_branch L_pageT", "one fetch brings nine lines of a 4 KiB page: the tail starts a page")
            A(".p2align 12")
            A("L_pageT:")
        A(f"s_waitcnt vmcnt({after(g[-1])})")
        if k == guse:
            map_use()
        for _ in g:
            if nxt < NL:
                issue(nxt); nxt += 1
        if k >= gW2:
            extra = 0
            while nxt < NL and nxt - g[-1] - 1 < W2 and extra < 2:
                issue(nxt); nxt += 1; extra += 1
        if k == rbar:
            A("s_barrier", "keeps the waves of the workgroup level")
        for gi, j in enumerate(g):
            for i in range(4):
                d, t = VD + 4 * j + i, T + 8 * gi + 2 * i
                A(f"v_lshlrev_b32 v{t}, 16, v{d}")
                A(f"v_and_b32 v{t+1}, s44, v{d}")
        for gi, j in enumerate(g):
            for i in range(4):
                t = T + 8 * gi + 2 * i
                A(f"v_pk_add_f32 v[{S+2*i}:{S+2*i+1}], v[{S+2*i}:{S+2*i+1}], v[{t}:{t+1}]")
        for i in range(8):
            if len(g) == 2:
                A(f"v_max3_f32 v{M+i}, v{M+i}, v{T+i}, v{T+8+i}")
            else:
                A(f"v_max_f32 v{M+i}, v{M+i}, v{T+i}")
        if k == gsetup:
            assert k > guse
            A("v_and_b32 v37, 6, v35")
            A("v_lshrrev_b32 v38, 3, v35")
            A("v_lshl_add_u32 v37, v37, 2, v38")
            A("v_and_b32 v38, 1, v35")
            A("v_lshl_add_u32 v37, v37, 1, v38")
            A("s_mul_i32 s42, s37, 1536")
            A("s_lshl_b32 s43, s38, 9")
            A("s_add_u32 s42, s42, s43")
            A("v_lshl_add_u32 v37, v37, 3, s42", "LDS slot of this lane's channel; 16 bytes = channels c, c+8")
            A("s_mul_i32 s43, s36, 768")
            A("v_add_u32 v38, s43, v36")
            A("s_mul_i32 s48, s2, 1536")
            A("s_add_u32 s48, s48, s43")
            A(f"s_add_u32 s48, s48, {W_A}", "row half of waves 0,1")
    stamp(2)
    C("---- phase 2: reduce over lane bits 5,4,3 (one channel per lane is left), then over the 4 pixel groups")
    for i in range(4):
        A(f"v_permlane32_swap_b32 v{S+i}, v{S+i+4}")
    for i in range(4):
        A(f"v_permlane32_swap_b32 v{M+i}, v{M+i+4}")
    for i in range(2):
        A(f"v_pk_add_f32 v[{S+2*i}:{S+2*i+1}], v[{S+2*i}:{S+2*i+1}], v[{S+4+2*i}:{S+5+2*i}]")
    for i in range(4):
        A(f"v_max_f32 v{M+i}, v{M+i}, v{M+i+4}")
    for i in range(2):
        A(f"v_permlane16_swap_b32 v{S+i}, v{S+i+2}")
    for i in range(2):
        A(f"v_permlane16_swap_b32 v{M+i}, v{M+i+2}")
    A(f"v_pk_add_f32 v[{S}:{S+1}], v[{S}:{S+1}], v[{S+2}:{S+3}]")
    for i in range(2):
        A(f"v_max_f32 v{M+i}, v{M+i}, v{M+i+2}")
    A(f"v_add_f32_dpp v{T}, v{S}, v{S} row_ror:8 row_mask:0xf bank_mask:0x3")
    A(f"v_max_f32_dpp v{T+1}, v{M}, v{M} row_ror:8 row_mask:0xf bank_mask:0x3")
    A("s_nop 0")
    A(f"v_add_f32_dpp v{T}, v{S+1}, v{S+1} row_ror:8 row_mask:0xf bank_mask:0xc")
    A(f"v_max_f32_dpp v{T+1}, v{M+1}, v{M+1} row_ror:8 row_mask:0xf bank_mask:0xc")
    A(f"ds_write_b64 v37, v[{T}:{T+1}] offset:{L_RED}")
    A("s_cmp_ge_u32 s36, 2")
    A("s_waitcnt lgkmcnt(0)")
    A("s_barrier")
    stamp(3)
    A("s_cbranch_scc1 L_role2")
    C("waves 0,1: publish the workgroup's row")
    A("s_mov_b32 exec_hi, 0xffff")
    for q in range(4):
        A(f"ds_read_b128 v[{T+4*q}:{T+4*q+3}], v38 offset:{L_RED+q*1536}")
    A("s_waitcnt lgkmcnt(2)")
    A(f"v_add_f32 v{T}, v{T}, v{T+4}")
    A(f"v_add_f32 v{T+2}, v{T+2}, v{T+6}")
    A(f"v_max_f32 v{T+1}, v{T+1}, v{T+5}")
    A(f"v_max_f32 v{T+3}, v{T+3}, v{T+7}")
    A("s_waitcnt lgkmcnt(0)")
    A(f"v_add_f32 v{T+8}, v{T+8}, v{T+12}")
    A(f"v_add_f32 v{T+10}, v{T+10}, v{T+14}")
    A(f"v_max3_f32 v{T+1}, v{T+1}, v{T+9}, v{T+13}")
    A(f"v_max3_f32 v{T+3}, v{T+3}, v{T+11}, v{T+15}")
    A(f"v_add_f32 v{T}, v{T}, v{T+8}")
    A(f"v_add_f32 v{T+2}, v{T+2}, v{T+10}")
    A(f"v_or_b32 v{T+1}, s46, v{T+1}", "a max is a bf16 value: its low half carries the tag")
    A(f"v_or_b32 v{T+3}, s52, v{T+3}")
    A(f"buffer_store_dwordx4 v[{T}:{T+3}], v36, s[20:23], s48 offen", "into L2; written through below")
    A("s_barrier")
    A("s_mov_b64 exec, -1")
    A("s_branch L_common")
    A("L_role2:")
    A("s_barrier", "the row leaves before any polling load is queued")
    A("s_lshr_b32 s47, s2, 3")
    A(f"s_sub_u32 s47, s47, {ry0}")
    A("s_cmp_lt_u32 s47, 12")
    A(f"s_cselect_b32 s42, {hex(redmask)}, 0")
    A("s_bitcmp1_b32 s42, s36")
    A("s_cbranch_scc0 L_role4")
    C("reducing workgroup: waves 2,3,8,9 watch column s47 of the group's 32 rows")
    A("v_mov_b32 v24, 0")
    A("v_mov_b32 v25, 1")
    A("v_lshrrev_b32 v2, 3, v35")
    A("v_mul_u32_u24 v20, 12288, v2")
    A("v_and_b32 v3, 0x70, v36")
    A("v_add_u32 v20, v20, v3")
    A("s_and_b32 s43, s2, 7")
    A("s_mul_i32 s42, s43, 1536")
    A("s_lshl_b32 s47, s47, 7")
    A("s_add_u32 s42, s42, s47")
    A(f"s_add_u32 s4, s42, {W_A}")
    for k in range(1, 4):
        A(f"s_add_u32 s{4+k}, s{3+k}, 98304")
    A("v_and_b32 v2, 3, v2", "8 copies of a group row, one per reading group, near its die")
    A("v_add_u32 v21, s56, v2")
    A("s_lshr_b32 s48, s57, 22")
    A("v_xor_b32 v21, s48, v21")
    A("v_and_b32 v21, 4, v21")
    A("v_lshlrev_b32 v21, 11, v21")
    A("v_lshl_add_u32 v21, v2, 15, v21")
    A("v_lshrrev_b32 v3, 1, v3")
    A("v_add_u32 v21, v21, v3")
    A("v_lshrrev_b32 v3, 5, v35")
    A("v_lshl_add_u32 v21, v3, 6, v21")
    A("v_xor_b32 v22, 0x22000, v21")
    A("s_bfe_u32 s43, s2, 0x10002")
    A(f"s_mul_i32 s43, s43, {16384 - 4 * 1536}")
    A("s_add_u32 s48, s42, s43")
    A("v_and_b32 v23, 16, v36")
    A("v_bfe_u32 v23, s59, v23, 16")
    A("L_pollA:")
    for k in range(4):
        A(f"buffer_load_dwordx4 v[{4+4*k}:{7+4*k}], v20, s[20:23], s{4+k} offen sc1")
    A("s_add_u32 s45, s45, 1")
    for k in range(4):
        A(f"s_waitcnt vmcnt({3-k})")
        if k == 0:
            A("v_xor_b32 v2, s46, v5")
        else:
            A(f"v_bitop3_b32 v2, v2, v{5+4*k}, s46 bitop3:0xf6")
        A(f"v_bitop3_b32 v2, v2, v{7+4*k}, s52 bitop3:0xf6", "a | (b ^ c)" if k == 0 else None)
    A("v_cmp_ne_u16 vcc, 0, v2")
    A("s_cbranch_vccz L_gotA")
    A(f"s_cmp_lt_u32 s45, {SPIN}")
    A("s_cbranch_scc1 L_pollA")
    A("L_gotA:")
    A("s_mov_b64 exec, 1")
    A(f"ds_wrxchg_rtn_b32 v26, v24, v25 offset:{L_FL+4}", "the first wave to see all rows publishes")
    A("s_mov_b64 exec, -1")
    A("v_add_f32 v4, v4, v8")
    A("v_add_f32 v6, v6, v10")
    A("v_add_f32 v12, v12, v16")
    A("v_add_f32 v14, v14, v18")
    for k in range(8):
        A(f"v_and_b32 v{5+2*k}, s44, v{5+2*k}")
    A("v_add_f32 v4, v4, v12")
    A("v_add_f32 v6, v6, v14")
    A("v_max3_f32 v5, v5, v9, v13")
    A("v_max3_f32 v7, v7, v11, v15")
    A("v_max_f32 v5, v5, v17")
    A("v_max_f32 v7, v7, v19")
    def fold345():
        A("v_permlane32_swap_b32 v4, v6", "pair picked by lane bit 5, reduced over lane bits 5,4,3")
        A("v_add_f32 v4, v4, v6")
        A("v_permlane32_swap_b32 v5, v7")
        A("v_mov_b32 v6, v4")
        A("v_max_f32 v5, v5, v7")
        A("v_mov_b32 v7, v5")
        A("v_permlane16_swap_b32 v4, v6")
        A("v_add_f32 v4, v4, v6")
        A("v_permlane16_swap_b32 v5, v7")
        A("v_max_f32 v5, v5, v7")
        A("v_add_f32_dpp v4, v4, v4 row_ror:8 row_mask:0xf bank_mask:0xf")
        A("s_nop 0")
        A("v_max_f32_dpp v5, v5, v5 row_ror:8 row_mask:0xf bank_mask:0xf")
    fold345()
    A("v_or_b32 v5, v23, v5")
    A("s_waitcnt lgkmcnt(0)")
    A("v_readfirstlane_b32 s42, v26")
    A("s_cmp_lg_u32 s42, 0")
    A("s_cbranch_scc1 L_common")
    A("buffer_store_dwordx2 v[4:5], v21, s[20:23], s48 offen sc1")
    A("buffer_store_dwordx2 v[4:5], v22, s[20:23], s48 offen sc1")
    A(f"ds_write_b32 v24, v25 offset:{L_FL}")
    A("s_branch L_common")
    A("L_role4:")
    A("s_sub_u32 s43, s36, 4")
    A("s_cmp_ge_u32 s43, 3")
    A("s_cbranch_scc1 L_common")
    C("waves 4..6 compute layer 1: park 24 data registers in LDS, fetch w1^T tiles into them")
    A("s_mul_i32 s42, s43, 6144")
    A(f"s_add_u32 s42, s42, {L_SP}")
    A("v_add_u32 v38, s42, v36")
    for k in range(6):
        A(f"ds_write_b128 v38, v[{VS+4*k}:{VS+4*k+3}] offset:{k*1024}")
    A("v_lshrrev_b32 v2, 4, v35")
    A("v_lshlrev_b32 v2, 3, v2")
    A("v_bfe_u32 v3, v35, 2, 2")
    A("v_add_u32 v2, v2, v3")
    A("v_mul_u32_u24 v2, 96, v2")
    A("v_and_b32 v3, 3, v35")
    A("v_lshl_add_u32 v2, v3, 3, v2")
    A("s_lshl_b32 s42, s43, 5")
    A("v_add_u32 v2, s42, v2")
    A("s_waitcnt lgkmcnt(0)")
    for k in range(6):
        A(f"ds_read_b64_tr_b16 v[{VS+4*k}:{VS+4*k+1}], v2 offset:{L_W1 + k*3072}")
        A(f"ds_read_b64_tr_b16 v[{VS+4*k+2}:{VS+4*k+3}], v2 offset:{L_W1 + k*3072 + 384}")
    A("v_and_b32 v2, 1, v35")
    A("v_mul_u32_u24 v2, 384, v2")
    A("v_lshrrev_b32 v3, 4, v35")
    A("v_lshl_add_u32 v39, v3, 4, v2")
    A("s_waitcnt lgkmcnt(0)")
    A("L_common:")
    C("every wave gathers column `wave` (16 channels) of the 8 group rows")
    A("v_lshrrev_b32 v2, 5, v35")
    A("v_bfe_u32 v3, v35, 3, 2")
    A("v_mul_u32_u24 v3, 1536, v3")
    A("v_lshl_add_u32 v8, v2, 14, v3")
    A("v_and_b32 v3, 0x70, v36")
    A("v_add_u32 v8, v8, v3")
    A("s_add_u32 s42, s56, s2")
    A("s_lshr_b32 s43, s57, 22")
    A("s_xor_b32 s42, s42, s43")
    A("s_and_b32 s42, s42, 4")
    A("s_lshl_b32 s42, s42, 11")
    A("s_and_b32 s43, s2, 7")
    A("s_lshl_b32 s43, s43, 15")
    A("s_add_u32 s42, s42, s43")
    A("s_lshl_b32 s43, s36, 7")
    A("s_add_u32 s47, s42, s43")
    A("v_lshrrev_b32 v3, 2, v3")
    A("v_lshl_add_u32 v9, v2, 1, v3")
    A("s_lshl_b32 s42, s36, 5")
    A("v_add_u32 v9, s42, v9")
    A("v_lshrrev_b32 v2, 2, v35")
    A("v_mul_u32_u24 v2, 384, v2")
    A("v_and_b32 v3, 3, v35")
    A("v_lshl_add_u32 v2, v3, 3, v2")
    A("v_add_u32 v2, s42, v2")
    for k in range(3):
        A(f"ds_read_b64_tr_b16 v[{W2F+2*k}:{W2F+2*k+1}], v2 offset:{L_W2 + k*6144}", "w2 tile of channels 16*wave.." if k == 0 else None)
    A("v_lshlrev_b32 v37, 3, v35")
    A("s_cmp_lt_u32 s36, 2")
    A(f"s_cselect_b32 s3, {NWT}, 0", "waves 0,1: rounds left before the row is written through")
    def wthrough(name):
        A("s_sub_u32 s3, s3, 1")
        A("s_cmp_eq_u32 s3, 0")
        A(f"s_cbranch_scc0 {name}")
        A("s_mov_b64 s[4:5], exec")
        A("s_mov_b32 exec_lo, -1")
        A("s_mov_b32 exec_hi, 0xffff")
        A(f"buffer_store_dwordx4 v[{T}:{T+3}], v36, s[20:23], s48 offen sc1")
        A("s_mov_b64 exec, s[4:5]")
        A(f"{name}:")
    A("s_lshr_b32 s42, s2, 3")
    A(f"s_sub_u32 s42, s42, {ry0}")
    A("s_cmp_ge_u32 s42, 12")
    A("s_cbranch_scc1 L_open")
    A("v_mov_b32 v2, 0")
    A("L_gate:", "reducing workgroup: leave the memory pipeline to the reducers until they have published")
    A(f"ds_read_b32 v3, v2 offset:{L_FL}")
    A("s_waitcnt lgkmcnt(0)")
    A("v_cmp_ne_u32 vcc, 0, v3")
    A("s_cbranch_vccnz L_open")
    wthrough("L_nowt0")
    A("s_add_u32 s45, s45, 1")
    A(f"s_cmp_lt_u32 s45, {SPIN}")
    A("s_cbranch_scc1 L_gate")
    A("s_branch L_open")
    A(".p2align 12")
    A("L_open:")
    A("buffer_load_dwordx4 v[4:7], v8, s[20:23], s47 offen sc1")
    A("L_pollB:")
    A("s_waitcnt vmcnt(0)")
    A("v_cmp_ne_u16 vcc, s46, v5")
    A("v_cmp_ne_u16 s[4:5], s52, v7")
    A("s_or_b64 vcc, vcc, s[4:5]")
    A("s_cbranch_scc0 L_gotB")
    A("s_wqm_b64 exec, vcc", "reload the quads that are not complete")
    A("buffer_load_dwordx4 v[4:7], v8, s[20:23], s47 offen sc1")
    wthrough("L_nowt1")
    A("s_add_u32 s45, s45, 1")
    A(f"s_cmp_lt_u32 s45, {SPIN}")
    A("s_cbranch_scc1 L_pollB")
    A("s_waitcnt vmcnt(0)")
    A("L_gotB:")
    A("s_mov_b64 exec, -1")
    A("v_and_b32 v5, s44, v5")
    A("v_and_b32 v7, s44, v7")
    fold345()
    A("v_mul_f32 v4, 0x36800000, v4", "mean = sum / 262144")
    A("v_cvt_pk_bf16_f32 v4, v4, v5")
    A(f"ds_write_b16 v9, v4 offset:{L_G}")
    A(f"ds_write_b16_d16_hi v9, v4 offset:{L_G+384}")
    A("s_cmp_gt_i32 s3, 0")
    A("s_cbranch_scc0 L_nowt2")
    A("s_mov_b32 exec_hi, 0xffff")
    A(f"buffer_store_dwordx4 v[{T}:{T+3}], v36, s[20:23], s48 offen sc1", "a reducer on another die may still wait for the row")
    A("s_mov_b32 exec_hi, -1")
    A("L_nowt2:")
    A("s_sub_u32 s42, s36, 4")
    A("s_cmp_ge_u32 s42, 3")
    A("s_waitcnt lgkmcnt(0)")
    A("s_barrier")
    stamp(4)
    C("---- phase 3: h = relu([mean; max] @ w1), columns alternate mean / max")
    A("s_cbranch_scc1 L_l2")
    for k in range(6):
        A(f"ds_read_b128 v[{BF+4*k}:{BF+4*k+3}], v39 offset:{L_G + k*64}")
    A("s_lshl_b32 s42, s42, 9")
    A("v_add_u32 v36, s42, v37")
    A("s_mov_b32 s43, 0x7f800000")
    for k in range(6):
        A(f"s_waitcnt lgkmcnt({5-k})")
        c = "0" if k == 0 else "v[0:3]"
        A(f"v_mfma_f32_16x16x32_bf16 v[0:3], v[{VS+4*k}:{VS+4*k+3}], v[{BF+4*k}:{BF+4*k+3}], {c}")
    A("s_nop 7")
    for i in range(4):
        A(f"v_mul_f32_e64 v{4+i}, v{i}, s43 clamp", "clamp(h * inf) = (h > 0)" if i == 0 else None)
    A("v_pk_mul_f32 v[0:1], v[0:1], v[4:5]")
    A("v_pk_mul_f32 v[2:3], v[2:3], v[6:7]")
    A("v_cvt_pk_bf16_f32 v4, v0, v1")
    A("v_cvt_pk_bf16_f32 v5, v2, v3")
    A(f"ds_write_b64 v36, v[4:5] offset:{L_H}")
    A("L_l2:")
    lane_offsets()
    A("s_waitcnt lgkmcnt(0)")
    A("s_barrier")
    C("scale = sigmoid(h_mean @ w2 + h_max @ w2), 16 channels per wave")
    for k in range(3):
        A(f"ds_read_b64 v[{4+2*k}:{5+2*k}], v37 offset:{L_H + k*512}")
    A("v_and_b32 v2, 15, v35")
    A("s_lshl_b32 s42, s36, 6")
    A("v_lshl_add_u32 v36, v2, 2, s42")
    A("v_and_b32 v2, 7, v35")
    A("s_lshl_b32 s42, s38, 8")
    A("v_lshl_add_u32 v39, v2, 5, s42")
    A("s_mov_b32 s43, 0xbfb8aa3b", "-log2(e)")
    for k in range(3):
        A(f"s_waitcnt lgkmcnt({2-k})")
        c = "0" if k == 0 else "v[12:15]"
        A(f"v_mfma_f32_16x16x16_bf16 v[12:15], v[{4+2*k}:{5+2*k}], v[{W2F+2*k}:{W2F+2*k+1}], {c}")
    A("s_nop 7")
    A("v_cvt_pk_bf16_f32 v12, v12, v13")
    A("v_lshlrev_b32 v13, 16, v12")
    A("v_and_b32 v12, s44, v12")
    A("v_add_f32 v12, v12, v13")
    A("v_cvt_pk_bf16_f32 v12, 0, v12")
    A("v_mul_f32 v12, s43, v12")
    A("v_exp_f32 v12, v12")
    A("s_nop 0")
    A("v_add_f32 v12, 1.0, v12")
    A("v_rcp_f32 v12, v12")
    A("s_nop 0")
    A("v_cvt_pk_bf16_f32 v12, 0, v12")
    A(f"ds_write_b32 v36, v12 offset:{L_SC}")
    A("s_waitcnt lgkmcnt(0)")
    A("s_barrier")
    C("---- phase 4: scale the registers and store them")
    A(f"ds_read_b128 v[{SCR}:{SCR+3}], v39 offset:{L_SC}")
    A(f"ds_read_b128 v[{SCR+4}:{SCR+7}], v39 offset:{L_SC+16}")
    stamp(5)
    dyn = list(range(nstatic, 16))
    steps = []
    for k in range(nstatic):
        part = dyn[k * len(dyn) // nstatic:(k + 1) * len(dyn) // nstatic]
        steps += part[:1] + [k] + part[1:]
    order = [2 * i + h for i in steps for h in (0, 1)]
    assert sorted(order) == list(range(NL)) and min(order.index(j) for j in range(NL - 6, NL)) == order.index(NL - 6) > 1
    for n, j in enumerate(order):
        tb, i2, h = T2 + 8 * (j % 2), j >> 1, j & 1
        if j == NL - 6:
            A("s_waitcnt lgkmcnt(0)")
        if n and n % wbar == 0:
            A("s_barrier")
        if h == 0:
            A(f"v_readlane_b32 s50, v34, {i2}")
        for i in range(4):
            d = VD + 4 * j + i
            A(f"v_lshlrev_b32 v{tb+2*i}, 16, v{d}")
            A(f"v_and_b32 v{tb+2*i+1}, s44, v{d}")
        addr(28 + h, h)
        if n == 0:
            A("s_waitcnt lgkmcnt(0)")
        for i in range(4):
            A(f"v_pk_mul_f32 v[{tb+2*i}:{tb+2*i+1}], v[{tb+2*i}:{tb+2*i+1}], v[{SCR+2*i}:{SCR+2*i+1}]")
        for i in range(4):
            A(f"v_cvt_pk_bf16_f32 v{VD+4*j+i}, v{tb+2*i}, v{tb+2*i+1}")
        A(f"buffer_store_dwordx4 v[{VD+4*j}:{VD+4*j+3}], v{28+h}, s[12:15], s{TAB+i2} offen sc1")
        if n == 0:
            A("s_sub_u32 s42, s36, 4")
            A("s_cmp_ge_u32 s42, 3")
            A("s_cbranch_scc1 L_noreload")
            for k in range(6):
                A(f"ds_read_b128 v[{VS+4*k}:{VS+4*k+3}], v38 offset:{k*1024}", "parked registers back" if k == 0 else None)
            A("L_noreload:")
    if stamps:
        stamp(6)
        A("s_waitcnt vmcnt(0)")
        stamp(7)
        A("s_waitcnt lgkmcnt(0)")
        A("s_mov_b64 exec, 1")
        A("s_mul_i32 s3, s2, 12")
        A("s_add_u32 s3, s3, s36")
        A("s_lshl_b32 s3, s3, 5")
        A(f"s_add_u32 s3, s3, {1 << 20}")
        A("v_mov_b32 v1, 0")
        for i in range(8):
            A(f"v_mov_b32 v{4+i}, s{60+2*i}")
        A("buffer_store_dwordx4 v[4:7], v1, s[20:23], s3 offen")
        A("buffer_store_dwordx4 v[8:11], v1, s[20:23], s3 offen offset:16")
    A("L_end:")
    A("s_endpgm")
    A('.section .rodata,"a"')
    A(".p2align 6")
    A(".amdhsa_kernel standalone__channel_attn_cbam__vision_kernel")
    for d in ("next_free_vgpr 168", "next_free_sgpr 96", "accum_offset 168", "group_segment_fixed_size 0", "kernarg_size 48",
              "user_sgpr_count 2", "user_sgpr_kernarg_segment_ptr 1", "system_sgpr_workgroup_id_x 1", "float_denorm_mode_32 3"):
        A("  .amdhsa_" + d)
    A(".end_amdhsa_kernel")
    out = [HEADER.rstrip(), f"; @launch grid=(256,1,1) block=({NW*64},1,1) lds={L_END}"]
    for s, c in L:
        if s.startswith(("s_", "v_", "ds_", "buffer_", "global_")):
            s = "    " + s
        if not s:
            s = "    ; " + c
        elif c:
            s = f"{s:64s} ; {c}"
        out.append(s)
    return "\n".join(out) + "\n"

if __name__ == "__main__":
    cfg = json.loads(sys.argv[1]) if len(sys.argv) > 1 else {}
    sys.stdout.write(gen(**cfg))
```

```python
import sys, json

HEADER = """; CBAM channel attention: out = x * sigmoid(MLP(mean_hw x) + MLP(max_hw x)), one pass over HBM.
;
;  2. Grid-wide reduction through d_ws in two hops: the 32 workgroups with equal id%8 publish rows of
;     {sum, max|tag} pairs, 12 of them each reduce one 128-byte column; the 8 group rows then go to every
"""

def gen(W=4, W2=6, gW2=11, nstatic=5, wpos=16, rbar=9, wbar=2, THR=80, MIX=0xAAAA, MIX2=0xFEFE, NWT=256,
        ry0=16, redmask=0x30C, gsetup=8, stamps=0, diag=None):
    if diag: stamps = 1
    NW, NL, VD = 12, 32, 40
    XB = 100663296
    L_W1, L_W2 = 0, 18432
    L_RED = 36864
    L_G = L_RED + 6144
    L_H = L_G + 768
    L_SC = L_H + 1536
    L_FL = L_SC + 768
    L_SP = L_FL + 64
    L_END = L_SP + 3 * 6144
    W_A = 256 << 10
    SPIN = 1 << 22
    SW = 6 << 20
    TAB = 80
    NS = 25
    S, M, T = 2, 10, 18
    VS = VD + 4 * (NL - 6)
    W2F, BF, SCR, T2 = 28, 4, 2, 10
    L = []
    def A(s, c=None):
        L.append((s, c))
    def C(c):
        L.append(("", c))
    def stamp(i):
        if stamps: A(f"s_memrealtime s[{60+2*i}:{61+2*i}]")
    def addr(dst, src):
        A(f"v_add_u32 v{dst}, s50, v{src}")
        A(f"v_bfe_u32 v{dst}, v{dst}, 13, 1")
        A(f"v_mad_u32_u24 v{dst}, v{dst}, s49, v{src}")
    def lane_offsets():
        A("v_lshrrev_b32 v0, 3, v35")
        A("v_mul_u32_u24 v0, 384, v0")
        A("v_and_b32 v1, 7, v35")
        A("v_lshl_add_u32 v0, v1, 4, v0")
        A("v_add_u32 v0, s39, v0", "position in a half window: 8 pixels x 128 bytes per load")
        A("v_add_u32 v1, 12288, v0", "... of the second load of a step")
    def dbg_srd():
        A("s_mov_b32 s16, s28"); A("s_mov_b32 s17, s29")
        A("s_mov_b32 s18, 256"); A("s_mov_b32 s19, 0x20000")

    A(".amdgcn_target \"amdgcn-amd-amdhsa--gfx950\"")
    A(".text")
    A(".globl standalone__channel_attn_cbam__vision_kernel")
    A(".p2align 12")
    A(".p2align 8")
    A(".type standalone__channel_attn_cbam__vision_kernel,@function")
    A("standalone__channel_attn_cbam__vision_kernel:")
    stamp(0)
    A("s_load_dwordx4 s[4:7], s[0:1], 0", "x, w1")
    A("s_load_dwordx4 s[24:27], s[0:1], 16", "w2, out")
    A("s_load_dwordx4 s[28:31], s[0:1], 32", "debug, ws")
    A("s_memtime s[58:59]")
    A("s_cmp_ge_u32 s2, 256")
    A("s_cbranch_scc1 L_end", "extra workgroups leave")
    A("v_lshrrev_b32 v2, 6, v0")
    A("v_and_b32 v35, 63, v0", "lane")
    A("v_readfirstlane_b32 s36, v2", "wave")
    A("s_mov_b32 s35, 0x20000")
    A("s_lshr_b32 s40, s2, 2")
    A("s_and_b32 s42, s2, 1")
    A("s_or_b32 s40, s40, s42")
    A("s_and_b32 s42, s2, 6")
    A(f"s_cselect_b32 s40, {NS}, s40", f"scout number 2a+b of workgroup 8a+b, b<2 (>= {NS}: none)")
    A("s_lshl_b32 s42, s36, 5")
    A("s_or_b32 s42, s42, s40")
    A(f"s_cmp_lt_u32 s42, {NS}")
    A("s_cbranch_scc0 L_main")
    C("---- scout (wave 0): which die holds the lower 8 KiB half of 16 KiB in one page of x, out or ws")
    A("s_getreg_b32 s48, hwreg(HW_REG_XCC_ID, 0, 3)")
    A("s_mov_b64 exec, 1")
    A("v_mov_b32 v2, 0")
    A(f"s_mov_b32 s34, {XB}")
    A("s_lshr_b32 s43, s40, 1", "8 MiB group a")
    A("s_and_b32 s55, s40, 1", "buffer: 0 x, 1 out, 2 ws")
    A("s_lshl_b32 s54, s55, 7", "word of d_debug")
    A("s_cmp_eq_u32 s43, 12")
    A("s_cselect_b32 s55, 2, s55")
    A("s_cselect_b32 s42, 0, s43")
    A("s_lshl_b32 s42, s42, 23")
    A("s_bitset1_b32 s42, 22", "page 2 of the group")
    A("s_lshl_b32 s52, s48, 29")
    A("s_cmp_eq_u32 s40, 0")
    A("s_cselect_b32 s52, s52, 0", "workgroup 0 also tells its XCC")
    A("s_bitset1_b32 s52, s43", "done bit")
    A("s_lshl_b32 s3, 0x10000, s43")
    A("s_cmp_ge_u32 s48, 4")
    A("s_cselect_b32 s48, s3, 0")
    A("s_xor_b32 s3, s3, s48")
    A("s_or_b32 s48, s48, s52", "answer if the lower half is on my die")
    A("s_or_b32 s3, s3, s52", "answer if it is on the other die")
    A("s_cmp_lt_u32 s40, 2")
    A("s_cselect_b32 s52, s54, 0x1000")
    A("v_mov_b32 v5, s52")
    A("s_cmp_eq_u32 s55, 1")
    A("s_waitcnt lgkmcnt(0)")
    A("s_cselect_b32 s32, s26, s4")
    A("s_cselect_b32 s33, s27, s5")
    A("s_cmp_eq_u32 s55, 2")
    A("s_cselect_b32 s32, s30, s32")
    A("s_cselect_b32 s33, s31, s33")
    A("s_lshl_b32 s43, s58, 5")
    A(f"s_and_b32 s43, s43, {hex(0x1fff80 & ~8192)}", "some line of the page, so that the pair is not an L2 hit")
    A("s_add_u32 s42, s42, s43")
    A("s_and_b32 s43, s32, 0x1ffffc")
    A("s_sub_u32 s42, s42, s43")
    A("s_add_u32 s43, s42, 8192")
    dbg_srd()
    A("buffer_load_dword v3, v2, s[32:35], s42 offen nt", "lower half (values unused)")
    A("buffer_load_dword v4, v2, s[32:35], s43 offen nt", "upper half")
    A("buffer_atomic_or v2, v5, s[16:19], 0 offen sc1", "scouts 0,1: OR 0 fetches the word's line; others: out of range")
    A("s_waitcnt vmcnt(2)")
    A("s_memtime s[56:57]")
    A("s_waitcnt vmcnt(1)")
    A("s_memtime s[58:59]")
    A("s_waitcnt lgkmcnt(0)")
    A("s_sub_u32 s42, s58, s56")
    A(f"s_cmpk_le_u32 s42, {THR}", "upper half was already back: the lower half is the far one")
    A("s_cselect_b32 s48, s3, s48")
    A("v_mov_b32 v15, s48")
    A("buffer_atomic_or v15, v2, s[16:19], s54 offen sc1")
    A("s_barrier", "releases the other waves of this workgroup")
    A("s_cmp_lg_u32 s40, 0")
    A("s_cbranch_scc1 L_notag")
    A("s_memrealtime s[56:57]", "workgroup 0 picks the tag of this launch")
    A("v_mov_b32 v12, 1")
    A("s_waitcnt lgkmcnt(0)")
    A("s_mul_i32 s43, s56, 0x9e3779b1")
    A("v_mov_b32 v13, s43")
    A("buffer_store_dwordx2 v[12:13], v2, s[16:19], 0 offen offset:192 sc1")
    A("L_notag:")
    A("s_mov_b64 exec, -1")
    A(f"s_mov_b32 s40, {NS}")
    A("L_main:")
    C("---- workgroups 112..127 pull the kernel's code into L2 before the data stream fills the queues")
    A("s_lshr_b32 s42, s2, 4")
    A("s_and_b32 s43, s36, 12")
    A("s_lshl_b32 s43, s43, 4")
    A("s_or_b32 s42, s42, s43")
    A("s_cmp_lg_u32 s42, 7")
    A("s_cbranch_scc1 L_nocode")
    A("s_getpc_b64 s[54:55]")
    A("L_pc:")
    A("v_lshlrev_b32 v33, 7, v0")
    A("v_min_u32 v33, L_end-L_pc, v33")
    A("global_load_dword v33, v33, s[54:55]")
    A("L_nocode:")
    A("s_mul_i32 s37, s36, 43691")
    A("s_lshr_b32 s37, s37, 17", "q = wave/3: pixel group")
    A("s_mul_i32 s38, s37, 3")
    A("s_sub_u32 s38, s36, s38", "t = wave%3: channels 64t..64t+63")
    A("s_mul_i32 s39, s37, 3072")
    A("s_lshl_b32 s42, s38, 7")
    A("s_add_u32 s39, s39, s42")
    lane_offsets()
    A("s_lshr_b32 s42, s2, 3")
    A("s_and_b32 s43, s2, 3")
    A("s_lshl_b32 s51, s42, 2")
    A("s_add_u32 s51, s51, s43", "pair p")
    A(f"s_mul_i32 s{TAB}, s51, 49152", "window of step 0; step i adds 6 MiB")
    A("s_lshl_b32 s50, s2, 11")
    A("s_lshl_b32 s42, s42, 13")
    A("s_xor_b32 s50, s50, s42")
    A("s_and_b32 s50, s50, 0x2000", f"first {nstatic} steps: halves picked by id bits alone")
    A("s_movk_i32 s49, 24576")
    addr(38, 0)
    addr(39, 1)
    A(f"s_mov_b32 s10, {XB}"); A("s_mov_b32 s11, 0x20000")
    A(f"s_cmp_lt_u32 s40, {NS}")
    A("s_waitcnt lgkmcnt(0)")
    A("s_mov_b32 s8, s4"); A("s_mov_b32 s9, s5")
    A("s_cbranch_scc0 L_go")
    A("s_barrier", "waves 1..11 of a scout workgroup wait for the probe")
    A("L_go:")
    C("---- phase 1: stream x into registers, accumulate sum (v2..v9) and max (v10..v17)")
    ops = []
    def issue(j):
        r, i, h = VD + 4 * j, j >> 1, j & 1
        if i < nstatic:
            A(f"buffer_load_dwordx4 v[{r}:{r+3}], v{38+h}, s[8:11], s{TAB+i} offen nt")
            if h == 0: A(f"s_add_u32 s{TAB+i+1}, s{TAB+i}, {SW}")
        else:
            if h == 0:
                A(f"v_readlane_b32 s50, v34, {i}")
                if i < 15:
                    A(f"s_add_u32 s{TAB+i+1}, s{TAB+i}, {SW}")
                    A("s_nop 0")
                else:
                    A("s_nop 1")
            addr(39, h)
            A(f"buffer_load_dwordx4 v[{r}:{r+3}], v39, s[8:11], s{TAB+i} offen nt")
        ops.append(j)
        if j == wpos:
            C("weights into LDS: waves 0..5 w1, waves 6..11 w2, 3 KiB each")
            A("s_cmp_ge_u32 s36, 6")
            A("s_cselect_b32 s32, s24, s6")
            A("s_cselect_b32 s33, s25, s7")
            A("s_cselect_b32 s42, 18432, 0")
            A("s_mov_b32 s34, 18432")
            A("s_mul_i32 s43, s36, 3072")
            A("s_mov_b32 m0, s43")
            A("s_sub_u32 s42, s43, s42")
            for k in range(3):
                A(f"buffer_load_dwordx4 v36, s[32:35], s42 offen offset:{k*1024} lds")
                ops.append(None)
        if j == NL - 1:
            C("wave 0: first touch of this workgroup's hand-off row, off the critical path (values unused)")
            A("s_cmp_lg_u32 s36, 0")
            A("s_cbranch_scc1 L_notouch")
            A("v_lshlrev_b32 v39, 7, v35")
            A("s_mov_b64 exec, 0xfff")
            A("buffer_load_dword v39, v39, s[20:23], s48 offen sc1")
            A("s_mov_b64 exec, -1")
            A("L_notouch:")
    def after(j):
        return len(ops) - 1 - ops.index(j)
    def map_use():
        C("the scouts' bits -> v34 lane i: offset that picks this workgroup's halves in step i")
        A("s_load_dword s56, s[28:29], 0")
        A("s_load_dword s57, s[28:29], 128")
        A("s_load_dwordx2 s[58:59], s[28:29], 192")
        A("s_sub_u32 s42, s12, s8")
        A("s_add_u32 s42, s42, 0x800")
        A("s_bitcmp1_b32 s42, 12")
        A(f"s_mov_b32 s42, {hex(MIX)}")
        A(f"s_cmov_b32 s42, {hex(MIX2)}")
        A("v_add_u32 v19, s51, v35")
        A("v_and_b32 v19, 15, v19")
        A("v_bfe_u32 v19, s42, v19, 1", "1: near for the store, 0: near for the load")
        A("v_cmp_ne_u32 vcc, 0, v19")
        A("s_and_b32 s42, s8, 0x1fffff")
        A("s_and_b32 s43, s12, 0x1fffff")
        A("v_mov_b32 v20, s42")
        A("v_mov_b32 v21, s43")
        A("v_cndmask_b32 v20, v20, v21, vcc", "buffer start inside its 2 MiB page")
        A("v_and_b32 v18, 15, v35")
        A(f"v_add_u32 v21, s{TAB}, v20")
        A("v_lshrrev_b32 v21, 21, v21")
        A("v_mad_u32_u24 v18, v18, 3, v21", "page of the window")
        A("v_lshrrev_b32 v21, 2, v18")
        A("v_min_u32 v21, 11, v21")
        A("v_mad_u32_u24 v19, v19, 12, v21", "bit of its group")
        def chk():
            A("s_lshl_b32 s42, s58, 12")
            A("s_or_b32 s42, s42, s57")
            A("s_and_b32 s42, s42, s56")
            A("s_andn2_b32 s42, 0x1fff, s42", "13 + 12 done bits and the tag")
            A("s_cbranch_scc0 L_mapok")
        A("s_waitcnt lgkmcnt(0)")
        chk()
        A("v_mov_b32 v26, 0")
        A("L_map:", "not complete yet: poll")
        A("buffer_load_dword v22, v26, s[16:19], 0 offen sc1")
        A("buffer_load_dword v23, v26, s[16:19], 0 offen offset:128 sc1")
        A("buffer_load_dwordx2 v[24:25], v26, s[16:19], 0 offen offset:192 sc1")
        A("s_add_u32 s45, s45, 1")
        A("s_waitcnt vmcnt(0)")
        for k in range(4):
            A(f"v_readfirstlane_b32 s{56+k}, v{22+k}")
        chk()
        A(f"s_cmp_lt_u32 s45, {SPIN}")
        A("s_cbranch_scc1 L_map")
        A("L_mapok:")
        stamp(1)
        A("s_and_b32 s46, s59, 0xffff", "tag of even pairs")
        A("s_lshr_b32 s52, s59, 16", "tag of odd pairs")
        A("s_and_b32 s42, s56, 0x10000000")
        A("s_or_b32 s57, s57, s42")
        A("s_lshr_b32 s57, s57, 16")
        A("s_lshl_b32 s57, s57, 12")
        A("s_bfe_u32 s42, s56, 0xc0010")
        A("s_or_b32 s57, s57, s42", "x groups, out groups, hand-off page")
        A("s_lshr_b32 s56, s56, 29", "XCC of workgroup 0")
        A("s_lshl_b32 s42, s57, 1", "majority of three neighbouring groups")
        A("s_lshr_b32 s43, s57, 2")
        A("s_and_b32 s42, s42, 0xffeffe")
        A("s_and_b32 s43, s43, 0x1001")
        A("s_or_b32 s42, s42, s43")
        A("s_lshr_b32 s43, s57, 1")
        A("s_lshl_b32 s48, s57, 2")
        A("s_and_b32 s43, s43, 0x7ff7ff")
        A("s_and_b32 s48, s48, 0x800800")
        A("s_or_b32 s43, s43, s48")
        A("s_and_b32 s48, s42, s43")
        A("s_or_b32 s42, s42, s43")
        A("s_bitset1_b32 s42, 24")
        A("s_and_b32 s57, s57, s42")
        A("s_or_b32 s57, s57, s48")
        A("s_add_u32 s42, s56, s2")
        A("s_lshr_b32 s42, s42, 2", "bit 0: expected die, always opposite for g and g^4")
        A("v_lshrrev_b32 v19, v19, s57")
        A("v_xor_b32 v18, s42, v18", "odd pages swap the dies")
        A("v_xor_b32 v19, v18, v19")
        A(f"s_mov_b32 exec_lo, {hex(0xffffffff & ~((1 << nstatic) - 1))}")
        A("v_lshl_add_u32 v34, v19, 13, v20")
        A("s_mov_b32 exec_lo, -1")
    for j in range(W):
        issue(j)
    nxt = W
    A("s_add_u32 s20, s30, 0x400000")
    A("s_addc_u32 s21, s31, 0")
    A("s_and_b32 s20, s20, 0xffe00000", "hand-off area: one 2 MiB page inside ws")
    A(f"s_mov_b32 s22, {hex(0x400000 if stamps else 0x100000)}"); A("s_mov_b32 s23, 0x20000")
    dbg_srd()
    A("s_mov_b32 s12, s26"); A("s_mov_b32 s13, s27")
    A(f"s_mov_b32 s14, {XB}"); A("s_mov_b32 s15, 0x20000")
    A("s_mov_b32 s45, 0", "bound on all polling")
    A("v_mov_b32 v34, s50")
    A("v_lshlrev_b32 v36, 4, v35")
    for i in range(8):
        A(f"v_mov_b32 v{S+i}, 0")
        A(f"v_mov_b32 v{M+i}, 0xff800000")
    A("s_mov_b32 s44, 0xffff0000")
    A(f"ds_write_b64 v{S}, v[{S}:{S+1}] offset:{L_FL}")
    groups = [(j, j + 1) for j in range(0, NL - 2, 2)] + [(NL - 2,), (NL - 1,)]
    guse = nstatic - W // 2
    for k, g in enumerate(groups):
        if k == len(groups) - 2:
            A("s_branch L_pageT", "one fetch brings nine lines of a 4 KiB page: the tail starts a page")
            A(".p2align 12")
            A("L_pageT:")
        A(f"s_waitcnt vmcnt({after(g[-1])})")
        if k == guse:
            map_use()
        for _ in g:
            if nxt < NL:
                issue(nxt); nxt += 1
        if k >= gW2:
            extra = 0
            while nxt < NL and nxt - g[-1] - 1 < W2 and extra < 2:
                issue(nxt); nxt += 1; extra += 1
        if k == rbar:
            A("s_barrier", "keeps the waves of the workgroup level")
        for gi, j in enumerate(g):
            for i in range(4):
                d, t = VD + 4 * j + i, T + 8 * gi + 2 * i
                A(f"v_lshlrev_b32 v{t}, 16, v{d}")
                A(f"v_and_b32 v{t+1}, s44, v{d}")
        for gi, j in enumerate(g):
            for i in range(4):
                t = T + 8 * gi + 2 * i
                A(f"v_pk_add_f32 v[{S+2*i}:{S+2*i+1}], v[{S+2*i}:{S+2*i+1}], v[{t}:{t+1}]")
        for i in range(8):
            if len(g) == 2:
                A(f"v_max3_f32 v{M+i}, v{M+i}, v{T+i}, v{T+8+i}")
            else:
                A(f"v_max_f32 v{M+i}, v{M+i}, v{T+i}")
        if k == gsetup:
            assert k > guse
            A("v_and_b32 v37, 6, v35")
            A("v_lshrrev_b32 v38, 3, v35")
            A("v_lshl_add_u32 v37, v37, 2, v38")
            A("v_and_b32 v38, 1, v35")
            A("v_lshl_add_u32 v37, v37, 1, v38")
            A("s_mul_i32 s42, s37, 1536")
            A("s_lshl_b32 s43, s38, 9")
            A("s_add_u32 s42, s42, s43")
            A("v_lshl_add_u32 v37, v37, 3, s42", "LDS slot of this lane's channel; 16 bytes = channels c, c+8")
            A("s_mul_i32 s43, s36, 768")
            A("v_add_u32 v38, s43, v36")
            A("s_mul_i32 s48, s2, 1536")
            A("s_add_u32 s48, s48, s43")
            A(f"s_add_u32 s48, s48, {W_A}", "row half of waves 0,1")
    stamp(2)
    C("---- phase 2: reduce over lane bits 5,4,3 (one channel per lane is left), then over the 4 pixel groups")
    for i in range(4):
        A(f"v_permlane32_swap_b32 v{S+i}, v{S+i+4}")
    for i in range(4):
        A(f"v_permlane32_swap_b32 v{M+i}, v{M+i+4}")
    for i in range(2):
        A(f"v_pk_add_f32 v[{S+2*i}:{S+2*i+1}], v[{S+2*i}:{S+2*i+1}], v[{S+4+2*i}:{S+5+2*i}]")
    for i in range(4):
        A(f"v_max_f32 v{M+i}, v{M+i}, v{M+i+4}")
    for i in range(2):
        A(f"v_permlane16_swap_b32 v{S+i}, v{S+i+2}")
    for i in range(2):
        A(f"v_permlane16_swap_b32 v{M+i}, v{M+i+2}")
    A(f"v_pk_add_f32 v[{S}:{S+1}], v[{S}:{S+1}], v[{S+2}:{S+3}]")
    for i in range(2):
        A(f"v_max_f32 v{M+i}, v{M+i}, v{M+i+2}")
    A(f"v_add_f32_dpp v{T}, v{S}, v{S} row_ror:8 row_mask:0xf bank_mask:0x3")
    A(f"v_max_f32_dpp v{T+1}, v{M}, v{M} row_ror:8 row_mask:0xf bank_mask:0x3")
    A("s_nop 0")
    A(f"v_add_f32_dpp v{T}, v{S+1}, v{S+1} row_ror:8 row_mask:0xf bank_mask:0xc")
    A(f"v_max_f32_dpp v{T+1}, v{M+1}, v{M+1} row_ror:8 row_mask:0xf bank_mask:0xc")
    A(f"ds_write_b64 v37, v[{T}:{T+1}] offset:{L_RED}")
    A("s_cmp_ge_u32 s36, 2")
    A("s_waitcnt lgkmcnt(0)")
    A("s_barrier")
    stamp(3)
    A("s_cbranch_scc1 L_role2")
    C("waves 0,1: publish the workgroup's row")
    A("s_mov_b32 exec_hi, 0xffff")
    for q in range(4):
        A(f"ds_read_b128 v[{T+4*q}:{T+4*q+3}], v38 offset:{L_RED+q*1536}")
    A("s_waitcnt lgkmcnt(2)")
    A(f"v_add_f32 v{T}, v{T}, v{T+4}")
    A(f"v_add_f32 v{T+2}, v{T+2}, v{T+6}")
    A(f"v_max_f32 v{T+1}, v{T+1}, v{T+5}")
    A(f"v_max_f32 v{T+3}, v{T+3}, v{T+7}")
    A("s_waitcnt lgkmcnt(0)")
    A(f"v_add_f32 v{T+8}, v{T+8}, v{T+12}")
    A(f"v_add_f32 v{T+10}, v{T+10}, v{T+14}")
    A(f"v_max3_f32 v{T+1}, v{T+1}, v{T+9}, v{T+13}")
    A(f"v_max3_f32 v{T+3}, v{T+3}, v{T+11}, v{T+15}")
    A(f"v_add_f32 v{T}, v{T}, v{T+8}")
    A(f"v_add_f32 v{T+2}, v{T+2}, v{T+10}")
    A(f"v_or_b32 v{T+1}, s46, v{T+1}", "a max is a bf16 value: its low half carries the tag")
    A(f"v_or_b32 v{T+3}, s52, v{T+3}")
    A(f"buffer_store_dwordx4 v[{T}:{T+3}], v36, s[20:23], s48 offen", "into L2; written through below")
    A("s_barrier")
    A("s_mov_b64 exec, -1")
    A("s_branch L_common")
    A("L_role2:")
    A("s_barrier", "the row leaves before any polling load is queued")
    A("s_lshr_b32 s47, s2, 3")
    A(f"s_sub_u32 s47, s47, {ry0}")
    A("s_cmp_lt_u32 s47, 12")
    A(f"s_cselect_b32 s42, {hex(redmask)}, 0")
    A("s_bitcmp1_b32 s42, s36")
    A("s_cbranch_scc0 L_role4")
    C("reducing workgroup: waves 2,3,8,9 watch column s47 of the group's 32 rows")
    A("v_mov_b32 v24, 0")
    A("v_mov_b32 v25, 1")
    A("v_lshrrev_b32 v2, 3, v35")
    A("v_mul_u32_u24 v20, 12288, v2")
    A("v_and_b32 v3, 0x70, v36")
    A("v_add_u32 v20, v20, v3")
    A("s_and_b32 s43, s2, 7")
    A("s_mul_i32 s42, s43, 1536")
    A("s_lshl_b32 s47, s47, 7")
    A("s_add_u32 s42, s42, s47")
    A(f"s_add_u32 s4, s42, {W_A}")
    for k in range(1, 4):
        A(f"s_add_u32 s{4+k}, s{3+k}, 98304")
    A("v_and_b32 v2, 3, v2", "8 copies of a group row, one per reading group, near its die")
    A("v_add_u32 v21, s56, v2")
    A("s_lshr_b32 s48, s57, 22")
    A("v_xor_b32 v21, s48, v21")
    A("v_and_b32 v21, 4, v21")
    A("v_lshlrev_b32 v21, 11, v21")
    A("v_lshl_add_u32 v21, v2, 15, v21")
    A("v_lshrrev_b32 v3, 1, v3")
    A("v_add_u32 v21, v21, v3")
    A("v_lshrrev_b32 v3, 5, v35")
    A("v_lshl_add_u32 v21, v3, 6, v21")
    A("v_xor_b32 v22, 0x22000, v21")
    A("s_bfe_u32 s43, s2, 0x10002")
    A(f"s_mul_i32 s43, s43, {16384 - 4 * 1536}")
    A("s_add_u32 s48, s42, s43")
    A("v_and_b32 v23, 16, v36")
    A("v_bfe_u32 v23, s59, v23, 16")
    A("L_pollA:")
    for k in range(4):
        A(f"buffer_load_dwordx4 v[{4+4*k}:{7+4*k}], v20, s[20:23], s{4+k} offen sc1")
    A("s_add_u32 s45, s45, 1")
    for k in range(4):
        A(f"s_waitcnt vmcnt({3-k})")
        if k == 0:
            A("v_xor_b32 v2, s46, v5")
        else:
            A(f"v_bitop3_b32 v2, v2, v{5+4*k}, s46 bitop3:0xf6")
        A(f"v_bitop3_b32 v2, v2, v{7+4*k}, s52 bitop3:0xf6", "a | (b ^ c)" if k == 0 else None)
    A("v_cmp_ne_u16 vcc, 0, v2")
    A("s_cbranch_vccz L_gotA")
    A(f"s_cmp_lt_u32 s45, {SPIN}")
    A("s_cbranch_scc1 L_pollA")
    A("L_gotA:")
    A("s_mov_b64 exec, 1")
    A(f"ds_wrxchg_rtn_b32 v26, v24, v25 offset:{L_FL+4}", "the first wave to see all rows publishes")
    A("s_mov_b64 exec, -1")
    A("v_add_f32 v4, v4, v8")
    A("v_add_f32 v6, v6, v10")
    A("v_add_f32 v12, v12, v16")
    A("v_add_f32 v14, v14, v18")
    for k in range(8):
        A(f"v_and_b32 v{5+2*k}, s44, v{5+2*k}")
    A("v_add_f32 v4, v4, v12")
    A("v_add_f32 v6, v6, v14")
    A("v_max3_f32 v5, v5, v9, v13")
    A("v_max3_f32 v7, v7, v11, v15")
    A("v_max_f32 v5, v5, v17")
    A("v_max_f32 v7, v7, v19")
    def fold345():
        A("v_permlane32_swap_b32 v4, v6", "pair picked by lane bit 5, reduced over lane bits 5,4,3")
        A("v_add_f32 v4, v4, v6")
        A("v_permlane32_swap_b32 v5, v7")
        A("v_mov_b32 v6, v4")
        A("v_max_f32 v5, v5, v7")
        A("v_mov_b32 v7, v5")
        A("v_permlane16_swap_b32 v4, v6")
        A("v_add_f32 v4, v4, v6")
        A("v_permlane16_swap_b32 v5, v7")
        A("v_max_f32 v5, v5, v7")
        A("v_add_f32_dpp v4, v4, v4 row_ror:8 row_mask:0xf bank_mask:0xf")
        A("s_nop 0")
        A("v_max_f32_dpp v5, v5, v5 row_ror:8 row_mask:0xf bank_mask:0xf")
    fold345()
    A("v_or_b32 v5, v23, v5")
    A("s_waitcnt lgkmcnt(0)")
    A("v_readfirstlane_b32 s42, v26")
    A("s_cmp_lg_u32 s42, 0")
    A("s_cbranch_scc1 L_common")
    A("buffer_store_dwordx2 v[4:5], v21, s[20:23], s48 offen sc1")
    A("buffer_store_dwordx2 v[4:5], v22, s[20:23], s48 offen sc1")
    A(f"ds_write_b32 v24, v25 offset:{L_FL}")
    A("s_branch L_common")
    A("L_role4:")
    A("s_sub_u32 s43, s36, 4")
    A("s_cmp_ge_u32 s43, 3")
    A("s_cbranch_scc1 L_common")
    C("waves 4..6 compute layer 1: park 24 data registers in LDS, fetch w1^T tiles into them")
    A("s_mul_i32 s42, s43, 6144")
    A(f"s_add_u32 s42, s42, {L_SP}")
    A("v_add_u32 v38, s42, v36")
    for k in range(6):
        A(f"ds_write_b128 v38, v[{VS+4*k}:{VS+4*k+3}] offset:{k*1024}")
    A("v_lshrrev_b32 v2, 4, v35")
    A("v_lshlrev_b32 v2, 3, v2")
    A("v_bfe_u32 v3, v35, 2, 2")
    A("v_add_u32 v2, v2, v3")
    A("v_mul_u32_u24 v2, 96, v2")
    A("v_and_b32 v3, 3, v35")
    A("v_lshl_add_u32 v2, v3, 3, v2")
    A("s_lshl_b32 s42, s43, 5")
    A("v_add_u32 v2, s42, v2")
    A("s_waitcnt lgkmcnt(0)")
    for k in range(6):
        A(f"ds_read_b64_tr_b16 v[{VS+4*k}:{VS+4*k+1}], v2 offset:{L_W1 + k*3072}")
        A(f"ds_read_b64_tr_b16 v[{VS+4*k+2}:{VS+4*k+3}], v2 offset:{L_W1 + k*3072 + 384}")
    A("v_and_b32 v2, 1, v35")
    A("v_mul_u32_u24 v2, 384, v2")
    A("v_lshrrev_b32 v3, 4, v35")
    A("v_lshl_add_u32 v39, v3, 4, v2")
    A("s_waitcnt lgkmcnt(0)")
    A("L_common:")
    C("every wave gathers column `wave` (16 channels) of the 8 group rows")
    A("v_lshrrev_b32 v2, 5, v35")
    A("v_bfe_u32 v3, v35, 3, 2")
    A("v_mul_u32_u24 v3, 1536, v3")
    A("v_lshl_add_u32 v8, v2, 14, v3")
    A("v_and_b32 v3, 0x70, v36")
    A("v_add_u32 v8, v8, v3")
    A("s_add_u32 s42, s56, s2")
    A("s_lshr_b32 s43, s57, 22")
    A("s_xor_b32 s42, s42, s43")
    A("s_and_b32 s42, s42, 4")
    A("s_lshl_b32 s42, s42, 11")
    A("s_and_b32 s43, s2, 7")
    A("s_lshl_b32 s43, s43, 15")
    A("s_add_u32 s42, s42, s43")
    A("s_lshl_b32 s43, s36, 7")
    A("s_add_u32 s47, s42, s43")
    A("v_lshrrev_b32 v3, 2, v3")
    A("v_lshl_add_u32 v9, v2, 1, v3")
    A("s_lshl_b32 s42, s36, 5")
    A("v_add_u32 v9, s42, v9")
    A("v_lshrrev_b32 v2, 2, v35")
    A("v_mul_u32_u24 v2, 384, v2")
    A("v_and_b32 v3, 3, v35")
    A("v_lshl_add_u32 v2, v3, 3, v2")
    A("v_add_u32 v2, s42, v2")
    for k in range(3):
        A(f"ds_read_b64_tr_b16 v[{W2F+2*k}:{W2F+2*k+1}], v2 offset:{L_W2 + k*6144}", "w2 tile of channels 16*wave.." if k == 0 else None)
    A("v_lshlrev_b32 v37, 3, v35")
    A("s_cmp_lt_u32 s36, 2")
    A(f"s_cselect_b32 s3, {NWT}, 0", "waves 0,1: rounds left before the row is written through")
    def wthrough(name):
        A("s_sub_u32 s3, s3, 1")
        A("s_cmp_eq_u32 s3, 0")
        A(f"s_cbranch_scc0 {name}")
        A("s_mov_b64 s[4:5], exec")
        A("s_mov_b32 exec_lo, -1")
        A("s_mov_b32 exec_hi, 0xffff")
        A(f"buffer_store_dwordx4 v[{T}:{T+3}], v36, s[20:23], s48 offen sc1")
        A("s_mov_b64 exec, s[4:5]")
        A(f"{name}:")
    A("s_lshr_b32 s42, s2, 3")
    A(f"s_sub_u32 s42, s42, {ry0}")
    A("s_cmp_ge_u32 s42, 12")
    A("s_cbranch_scc1 L_open")
    A("v_mov_b32 v2, 0")
    A("L_gate:", "reducing workgroup: leave the memory pipeline to the reducers until they have published")
    A(f"ds_read_b32 v3, v2 offset:{L_FL}")
    A("s_waitcnt lgkmcnt(0)")
    A("v_cmp_ne_u32 vcc, 0, v3")
    A("s_cbranch_vccnz L_open")
    wthrough("L_nowt0")
    A("s_add_u32 s45, s45, 1")
    A(f"s_cmp_lt_u32 s45, {SPIN}")
    A("s_cbranch_scc1 L_gate")
    A("s_branch L_open")
    A(".p2align 12")
    A("L_open:")
    A("buffer_load_dwordx4 v[4:7], v8, s[20:23], s47 offen sc1")
    A("L_pollB:")
    A("s_waitcnt vmcnt(0)")
    A("v_cmp_ne_u16 vcc, s46, v5")
    A("v_cmp_ne_u16 s[4:5], s52, v7")
    A("s_or_b64 vcc, vcc, s[4:5]")
    A("s_cbranch_scc0 L_gotB")
    A("s_wqm_b64 exec, vcc", "reload the quads that are not complete")
    A("buffer_load_dwordx4 v[4:7], v8, s[20:23], s47 offen sc1")
    wthrough("L_nowt1")
    A("s_add_u32 s45, s45, 1")
    A(f"s_cmp_lt_u32 s45, {SPIN}")
    A("s_cbranch_scc1 L_pollB")
    A("s_waitcnt vmcnt(0)")
    A("L_gotB:")
    A("s_mov_b64 exec, -1")
    A("v_and_b32 v5, s44, v5")
    A("v_and_b32 v7, s44, v7")
    fold345()
    A("v_mul_f32 v4, 0x36800000, v4", "mean = sum / 262144")
    A("v_cvt_pk_bf16_f32 v4, v4, v5")
    A(f"ds_write_b16 v9, v4 offset:{L_G}")
    A(f"ds_write_b16_d16_hi v9, v4 offset:{L_G+384}")
    A("s_cmp_gt_i32 s3, 0")
    A("s_cbranch_scc0 L_nowt2")
    A("s_mov_b32 exec_hi, 0xffff")
    A(f"buffer_store_dwordx4 v[{T}:{T+3}], v36, s[20:23], s48 offen sc1", "a reducer on another die may still wait for the row")
    A("s_mov_b32 exec_hi, -1")
    A("L_nowt2:")
    A("s_sub_u32 s42, s36, 4")
    A("s_cmp_ge_u32 s42, 3")
    A("s_waitcnt lgkmcnt(0)")
    A("s_barrier")
    stamp(4)
    C("---- phase 3: h = relu([mean; max] @ w1), columns alternate mean / max")
    A("s_cbranch_scc1 L_l2")
    for k in range(6):
        A(f"ds_read_b128 v[{BF+4*k}:{BF+4*k+3}], v39 offset:{L_G + k*64}")
    A("s_lshl_b32 s42, s42, 9")
    A("v_add_u32 v36, s42, v37")
    A("s_mov_b32 s43, 0x7f800000")
    for k in range(6):
        A(f"s_waitcnt lgkmcnt({5-k})")
        c = "0" if k == 0 else "v[0:3]"
        A(f"v_mfma_f32_16x16x32_bf16 v[0:3], v[{VS+4*k}:{VS+4*k+3}], v[{BF+4*k}:{BF+4*k+3}], {c}")
    A("s_nop 7")
    for i in range(4):
        A(f"v_mul_f32_e64 v{4+i}, v{i}, s43 clamp", "clamp(h * inf) = (h > 0)" if i == 0 else None)
    A("v_pk_mul_f32 v[0:1], v[0:1], v[4:5]")
    A("v_pk_mul_f32 v[2:3], v[2:3], v[6:7]")
    A("v_cvt_pk_bf16_f32 v4, v0, v1")
    A("v_cvt_pk_bf16_f32 v5, v2, v3")
    A(f"ds_write_b64 v36, v[4:5] offset:{L_H}")
    A("L_l2:")
    lane_offsets()
    A("s_waitcnt lgkmcnt(0)")
    A("s_barrier")
    C("scale = sigmoid(h_mean @ w2 + h_max @ w2), 16 channels per wave")
    for k in range(3):
        A(f"ds_read_b64 v[{4+2*k}:{5+2*k}], v37 offset:{L_H + k*512}")
    A("v_and_b32 v2, 15, v35")
    A("s_lshl_b32 s42, s36, 6")
    A("v_lshl_add_u32 v36, v2, 2, s42")
    A("v_and_b32 v2, 7, v35")
    A("s_lshl_b32 s42, s38, 8")
    A("v_lshl_add_u32 v39, v2, 5, s42")
    A("s_mov_b32 s43, 0xbfb8aa3b", "-log2(e)")
    for k in range(3):
        A(f"s_waitcnt lgkmcnt({2-k})")
        c = "0" if k == 0 else "v[12:15]"
        A(f"v_mfma_f32_16x16x16_bf16 v[12:15], v[{4+2*k}:{5+2*k}], v[{W2F+2*k}:{W2F+2*k+1}], {c}")
    A("s_nop 7")
    A("v_cvt_pk_bf16_f32 v12, v12, v13")
    A("v_lshlrev_b32 v13, 16, v12")
    A("v_and_b32 v12, s44, v12")
    A("v_add_f32 v12, v12, v13")
    A("v_cvt_pk_bf16_f32 v12, 0, v12")
    A("v_mul_f32 v12, s43, v12")
    A("v_exp_f32 v12, v12")
    A("s_nop 0")
    A("v_add_f32 v12, 1.0, v12")
    A("v_rcp_f32 v12, v12")
    A("s_nop 0")
    A("v_cvt_pk_bf16_f32 v12, 0, v12")
    A(f"ds_write_b32 v36, v12 offset:{L_SC}")
    A("s_waitcnt lgkmcnt(0)")
    A("s_barrier")
    C("---- phase 4: scale the registers and store them")
    A(f"ds_read_b128 v[{SCR}:{SCR+3}], v39 offset:{L_SC}")
    A(f"ds_read_b128 v[{SCR+4}:{SCR+7}], v39 offset:{L_SC+16}")
    stamp(5)
    dyn = list(range(nstatic, 16))
    steps = []
    for k in range(nstatic):
        part = dyn[k * len(dyn) // nstatic:(k + 1) * len(dyn) // nstatic]
        steps += part[:1] + [k] + part[1:]
    order = [2 * i + h for i in steps for h in (0, 1)]
    assert sorted(order) == list(range(NL)) and min(order.index(j) for j in range(NL - 6, NL)) == order.index(NL - 6) > 1
    for n, j in enumerate(order):
        tb, i2, h = T2 + 8 * (j % 2), j >> 1, j & 1
        if j == NL - 6:
            A("s_waitcnt lgkmcnt(0)")
        if n and n % wbar == 0:
            A("s_barrier")
        if h == 0:
            A(f"v_readlane_b32 s50, v34, {i2}")
        for i in range(4):
            d = VD + 4 * j + i
            A(f"v_lshlrev_b32 v{tb+2*i}, 16, v{d}")
            A(f"v_and_b32 v{tb+2*i+1}, s44, v{d}")
        addr(28 + h, h)
        if n == 0:
            A("s_waitcnt lgkmcnt(0)")
        for i in range(4):
            A(f"v_pk_mul_f32 v[{tb+2*i}:{tb+2*i+1}], v[{tb+2*i}:{tb+2*i+1}], v[{SCR+2*i}:{SCR+2*i+1}]")
        for i in range(4):
            A(f"v_cvt_pk_bf16_f32 v{VD+4*j+i}, v{tb+2*i}, v{tb+2*i+1}")
        A(f"buffer_store_dwordx4 v[{VD+4*j}:{VD+4*j+3}], v{28+h}, s[12:15], s{TAB+i2} offen sc1")
        if n == 0:
            A("s_sub_u32 s42, s36, 4")
            A("s_cmp_ge_u32 s42, 3")
            A("s_cbranch_scc1 L_noreload")
            for k in range(6):
                A(f"ds_read_b128 v[{VS+4*k}:{VS+4*k+3}], v38 offset:{k*1024}", "parked registers back" if k == 0 else None)
            A("L_noreload:")
    if stamps:
        stamp(6)
        A("s_waitcnt vmcnt(0)")
        stamp(7)
        A("s_waitcnt lgkmcnt(0)")
        A("s_mov_b64 exec, 1")
        if diag:
            a, amax, b, bmax = diag
            A("s_barrier")
            A("s_cmp_lg_u32 s36, 11")
            A("s_cbranch_scc1 L_end")
            A("s_memrealtime s[74:75]")
            A("s_waitcnt lgkmcnt(0)")
            A("v_mov_b32 v9, 64")
            A(("v_mov_b32" if amax else "v_not_b32") + f" v10, s{60+2*a}")
            A(("v_mov_b32" if bmax else "v_not_b32") + f" v11, s{60+2*b}")
            A("buffer_atomic_umax v10, v9, s[16:19], 0 offen sc1")
            A("buffer_atomic_umax v11, v9, s[16:19], 0 offen offset:4 sc1")
            A("s_waitcnt vmcnt(0)")
            A("s_cmp_lg_u32 s2, 0")
            A("s_cbranch_scc1 L_end")
            A("L_dg1:")
            A("s_memrealtime s[78:79]")
            A("s_waitcnt lgkmcnt(0)")
            A("s_sub_u32 s43, s78, s60")
            A("s_cmp_lt_u32 s43, 10000")
            A("s_cbranch_scc1 L_dg1")
            A("buffer_load_dwordx2 v[10:11], v9, s[16:19], 0 offen sc1")
            A("s_waitcnt vmcnt(0)")
            A("v_readfirstlane_b32 s42, v10")
            A("v_readfirstlane_b32 s43, v11")
            if not amax: A("s_not_b32 s42, s42")
            if not bmax: A("s_not_b32 s43, s43")
            A("s_sub_u32 s42, s42, s43")
            A("s_mul_i32 s42, s42, 10")
            A("s_add_u32 s42, s42, 30000")
            A("s_min_u32 s42, s42, 200000")
            A("L_dg4:")
            A("s_memrealtime s[78:79]")
            A("s_waitcnt lgkmcnt(0)")
            A("s_sub_u32 s43, s78, s60")
            A("s_cmp_lt_u32 s43, s42")
            A("s_cbranch_scc1 L_dg4")
            A("s_branch L_end")
        A("s_mul_i32 s3, s2, 12")
        A("s_add_u32 s3, s3, s36")
        A("s_lshl_b32 s3, s3, 5")
        A(f"s_add_u32 s3, s3, {1 << 20}")
        A("v_mov_b32 v1, 0")
        for i in range(8):
            A(f"v_mov_b32 v{4+i}, s{60+2*i}")
        A("buffer_store_dwordx4 v[4:7], v1, s[20:23], s3 offen")
        A("buffer_store_dwordx4 v[8:11], v1, s[20:23], s3 offen offset:16")
    A("L_end:")
    A("s_endpgm")
    A('.section .rodata,"a"')
    A(".p2align 6")
    A(".amdhsa_kernel standalone__channel_attn_cbam__vision_kernel")
    for d in ("next_free_vgpr 168", "next_free_sgpr 96", "accum_offset 168", "group_segment_fixed_size 0", "kernarg_size 48",
              "user_sgpr_count 2", "user_sgpr_kernarg_segment_ptr 1", "system_sgpr_workgroup_id_x 1", "float_denorm_mode_32 3"):
        A("  .amdhsa_" + d)
    A(".end_amdhsa_kernel")
    out = [HEADER.rstrip(), f"; @launch grid=(256,1,1) block=({NW*64},1,1) lds={L_END}"]
    for s, c in L:
        if s.startswith(("s_", "v_", "ds_", "buffer_", "global_")):
            s = "    " + s
        if not s:
            s = "    ; " + c
        elif c:
            s = f"{s:64s} ; {c}"
        out.append(s)
    return "\n".join(out) + "\n"

if __name__ == "__main__":
    cfg = json.loads(sys.argv[1]) if len(sys.argv) > 1 else {}
    sys.stdout.write(gen(**cfg))
```

```python
import sys, json

HEADER = """; CBAM channel attention: out = x * sigmoid(MLP(mean_hw x) + MLP(max_hw x)), one pass over HBM.
;
;  2. Grid-wide reduction through d_ws in two hops: the 32 workgroups with equal id%8 publish rows of
;     {sum, max|tag} pairs, 12 of them each reduce one 128-byte column; the 8 group rows then go to every
"""

def gen(W=4, W2=6, gW2=11, nstatic=5, wpos=16, rbar=9, wbar=2, THR=80, MIX=0xAAAA, MIX2=0xFEFE, NWT=256,
        ry0=16, redmask=0x30C, gsetup=8, stamps=0, diag=None, wdot=0, sadr=0, brk=(), rbrk=()):
    if diag: stamps = 1
    NW, NL, VD = 12, 32, 40
    XB = 100663296
    L_W1, L_W2 = 0, 18432
    L_RED = 36864
    L_G = L_RED + 6144
    L_H = L_G + 768
    L_SC = L_H + 1536
    L_FL = L_SC + 768
    L_SP = L_FL + 64
    L_END = L_SP + 3 * 6144
    W_A = 256 << 10
    SPIN = 1 << 22
    SW = 6 << 20
    TAB = 80
    NS = 25
    S, M, T = 2, 10, 18
    VS = VD + 4 * (NL - 6)
    W2F, BF, SCR, T2 = 28, 4, 2, 10
    L = []
    def A(s, c=None):
        L.append((s, c))
    def C(c):
        L.append(("", c))
    def stamp(i):
        if stamps: A(f"s_memrealtime s[{60+2*i}:{61+2*i}]")
    def addr(dst, src):
        A(f"v_add_u32 v{dst}, s50, v{src}")
        A(f"v_bfe_u32 v{dst}, v{dst}, 13, 1")
        A(f"v_mad_u32_u24 v{dst}, v{dst}, s49, v{src}")
    def lane_offsets():
        A("v_lshrrev_b32 v0, 3, v35")
        A("v_mul_u32_u24 v0, 384, v0")
        A("v_and_b32 v1, 7, v35")
        A("v_lshl_add_u32 v0, v1, 4, v0")
        A("v_add_u32 v0, s39, v0", "position in a half window: 8 pixels x 128 bytes per load")
        A("v_add_u32 v1, 12288, v0", "... of the second load of a step")
    def dbg_srd():
        A("s_mov_b32 s16, s28"); A("s_mov_b32 s17, s29")
        A("s_mov_b32 s18, 256"); A("s_mov_b32 s19, 0x20000")

    A(".amdgcn_target \"amdgcn-amd-amdhsa--gfx950\"")
    A(".text")
    A(".globl standalone__channel_attn_cbam__vision_kernel")
    A(".p2align 12")
    A(".p2align 8")
    A(".type standalone__channel_attn_cbam__vision_kernel,@function")
    A("standalone__channel_attn_cbam__vision_kernel:")
    stamp(0)
    A("s_load_dwordx4 s[4:7], s[0:1], 0", "x, w1")
    A("s_load_dwordx4 s[24:27], s[0:1], 16", "w2, out")
    A("s_load_dwordx4 s[28:31], s[0:1], 32", "debug, ws")
    A("s_memtime s[58:59]")
    A("s_cmp_ge_u32 s2, 256")
    A("s_cbranch_scc1 L_end", "extra workgroups leave")
    A("v_lshrrev_b32 v2, 6, v0")
    A("v_and_b32 v35, 63, v0", "lane")
    A("v_readfirstlane_b32 s36, v2", "wave")
    A("s_mov_b32 s35, 0x20000")
    A("s_lshr_b32 s40, s2, 2")
    A("s_and_b32 s42, s2, 1")
    A("s_or_b32 s40, s40, s42")
    A("s_and_b32 s42, s2, 6")
    A(f"s_cselect_b32 s40, {NS}, s40", f"scout number 2a+b of workgroup 8a+b, b<2 (>= {NS}: none)")
    A("s_lshl_b32 s42, s36, 5")
    A("s_or_b32 s42, s42, s40")
    A(f"s_cmp_lt_u32 s42, {NS}")
    A("s_cbranch_scc0 L_main")
    C("---- scout (wave 0): which die holds the lower 8 KiB half of 16 KiB in one page of x, out or ws")
    A("s_getreg_b32 s48, hwreg(HW_REG_XCC_ID, 0, 3)")
    A("s_mov_b64 exec, 1")
    A("v_mov_b32 v2, 0")
    A(f"s_mov_b32 s34, {XB}")
    A("s_lshr_b32 s43, s40, 1", "8 MiB group a")
    A("s_and_b32 s55, s40, 1", "buffer: 0 x, 1 out, 2 ws")
    A("s_lshl_b32 s54, s55, 7", "word of d_debug")
    A("s_cmp_eq_u32 s43, 12")
    A("s_cselect_b32 s55, 2, s55")
    A("s_cselect_b32 s42, 0, s43")
    A("s_lshl_b32 s42, s42, 23")
    A("s_bitset1_b32 s42, 22", "page 2 of the group")
    A("s_lshl_b32 s52, s48, 29")
    A("s_cmp_eq_u32 s40, 0")
    A("s_cselect_b32 s52, s52, 0", "workgroup 0 also tells its XCC")
    A("s_bitset1_b32 s52, s43", "done bit")
    A("s_lshl_b32 s3, 0x10000, s43")
    A("s_cmp_ge_u32 s48, 4")
    A("s_cselect_b32 s48, s3, 0")
    A("s_xor_b32 s3, s3, s48")
    A("s_or_b32 s48, s48, s52", "answer if the lower half is on my die")
    A("s_or_b32 s3, s3, s52", "answer if it is on the other die")
    A("s_cmp_lt_u32 s40, 2")
    A("s_cselect_b32 s52, s54, 0x1000")
    A("v_mov_b32 v5, s52")
    A("s_cmp_eq_u32 s55, 1")
    A("s_waitcnt lgkmcnt(0)")
    A("s_cselect_b32 s32, s26, s4")
    A("s_cselect_b32 s33, s27, s5")
    A("s_cmp_eq_u32 s55, 2")
    A("s_cselect_b32 s32, s30, s32")
    A("s_cselect_b32 s33, s31, s33")
    A("s_lshl_b32 s43, s58, 5")
    A(f"s_and_b32 s43, s43, {hex(0x1fff80 & ~8192)}", "some line of the page, so that the pair is not an L2 hit")
    A("s_add_u32 s42, s42, s43")
    A("s_and_b32 s43, s32, 0x1ffffc")
    A("s_sub_u32 s42, s42, s43")
    A("s_add_u32 s43, s42, 8192")
    dbg_srd()
    A("buffer_load_dword v3, v2, s[32:35], s42 offen nt", "lower half (values unused)")
    A("buffer_load_dword v4, v2, s[32:35], s43 offen nt", "upper half")
    A("buffer_atomic_or v2, v5, s[16:19], 0 offen sc1", "scouts 0,1: OR 0 fetches the word's line; others: out of range")
    A("s_waitcnt vmcnt(2)")
    A("s_memtime s[56:57]")
    A("s_waitcnt vmcnt(1)")
    A("s_memtime s[58:59]")
    A("s_waitcnt lgkmcnt(0)")
    A("s_sub_u32 s42, s58, s56")
    A(f"s_cmpk_le_u32 s42, {THR}", "upper half was already back: the lower half is the far one")
    A("s_cselect_b32 s48, s3, s48")
    A("v_mov_b32 v15, s48")
    A("buffer_atomic_or v15, v2, s[16:19], s54 offen sc1")
    A("s_barrier", "releases the other waves of this workgroup")
    A("s_cmp_lg_u32 s40, 0")
    A("s_cbranch_scc1 L_notag")
    A("s_memrealtime s[56:57]", "workgroup 0 picks the tag of this launch")
    A("v_mov_b32 v12, 1")
    A("s_waitcnt lgkmcnt(0)")
    A("s_mul_i32 s43, s56, 0x9e3779b1")
    A("v_mov_b32 v13, s43")
    A("buffer_store_dwordx2 v[12:13], v2, s[16:19], 0 offen offset:192 sc1")
    A("L_notag:")
    A("s_mov_b64 exec, -1")
    A(f"s_mov_b32 s40, {NS}")
    A("L_main:")
    C("---- workgroups 112..127 pull the kernel's code into L2 before the data stream fills the queues")
    A("s_lshr_b32 s42, s2, 4")
    A("s_and_b32 s43, s36, 12")
    A("s_lshl_b32 s43, s43, 4")
    A("s_or_b32 s42, s42, s43")
    A("s_cmp_lg_u32 s42, 7")
    A("s_cbranch_scc1 L_nocode")
    A("s_getpc_b64 s[54:55]")
    A("L_pc:")
    A("v_lshlrev_b32 v33, 7, v0")
    A("v_min_u32 v33, L_end-L_pc, v33")
    A("global_load_dword v33, v33, s[54:55]")
    A("L_nocode:")
    A("s_mul_i32 s37, s36, 43691")
    A("s_lshr_b32 s37, s37, 17", "q = wave/3: pixel group")
    A("s_mul_i32 s38, s37, 3")
    A("s_sub_u32 s38, s36, s38", "t = wave%3: channels 64t..64t+63")
    A("s_mul_i32 s39, s37, 3072")
    A("s_lshl_b32 s42, s38, 7")
    A("s_add_u32 s39, s39, s42")
    lane_offsets()
    A("s_lshr_b32 s42, s2, 3")
    A("s_and_b32 s43, s2, 3")
    A("s_lshl_b32 s51, s42, 2")
    A("s_add_u32 s51, s51, s43", "pair p")
    A(f"s_mul_i32 s{TAB}, s51, 49152", "window of step 0; step i adds 6 MiB")
    A("s_lshl_b32 s50, s2, 11")
    A("s_lshl_b32 s42, s42, 13")
    A("s_xor_b32 s50, s50, s42")
    A("s_and_b32 s50, s50, 0x2000", f"first {nstatic} steps: halves picked by id bits alone")
    A("s_movk_i32 s49, 24576")
    addr(38, 0)
    addr(39, 1)
    A(f"s_mov_b32 s10, {XB}"); A("s_mov_b32 s11, 0x20000")
    A(f"s_cmp_lt_u32 s40, {NS}")
    A("s_waitcnt lgkmcnt(0)")
    A("s_mov_b32 s8, s4"); A("s_mov_b32 s9, s5")
    A("s_cbranch_scc0 L_go")
    A("s_barrier", "waves 1..11 of a scout workgroup wait for the probe")
    A("L_go:")
    C("---- phase 1: stream x into registers, accumulate sum (v2..v9) and max (v10..v17)")
    ops = []
    def issue(j):
        r, i, h = VD + 4 * j, j >> 1, j & 1
        if i < nstatic:
            A(f"buffer_load_dwordx4 v[{r}:{r+3}], v{38+h}, s[8:11], s{TAB+i} offen nt")
            if h == 0: A(f"s_add_u32 s{TAB+i+1}, s{TAB+i}, {SW}")
        else:
            if h == 0:
                A(f"v_readlane_b32 s50, v34, {i}")
                if i < 15:
                    A(f"s_add_u32 s{TAB+i+1}, s{TAB+i}, {SW}")
                    A("s_nop 0")
                else:
                    A("s_nop 1")
            addr(39, h)
            A(f"buffer_load_dwordx4 v[{r}:{r+3}], v39, s[8:11], s{TAB+i} offen nt")
        ops.append(j)
        if j == wpos:
            C("weights into LDS: waves 0..5 w1, waves 6..11 w2, 3 KiB each")
            A("s_cmp_ge_u32 s36, 6")
            A("s_cselect_b32 s32, s24, s6")
            A("s_cselect_b32 s33, s25, s7")
            A("s_cselect_b32 s42, 18432, 0")
            A("s_mov_b32 s34, 18432")
            A("s_mul_i32 s43, s36, 3072")
            A("s_mov_b32 m0, s43")
            A("s_sub_u32 s42, s43, s42")
            for k in range(3):
                A(f"buffer_load_dwordx4 v36, s[32:35], s42 offen offset:{k*1024} lds")
                ops.append(None)
        if j == NL - 1:
            C("wave 0: first touch of this workgroup's hand-off row, off the critical path (values unused)")
            A("s_cmp_lg_u32 s36, 0")
            A("s_cbranch_scc1 L_notouch")
            A("v_lshlrev_b32 v39, 7, v35")
            A("s_mov_b64 exec, 0xfff")
            A("buffer_load_dword v39, v39, s[20:23], s48 offen sc1")
            A("s_mov_b64 exec, -1")
            A("L_notouch:")
    def after(j):
        return len(ops) - 1 - ops.index(j)
    def map_use():
        C("the scouts' bits -> v34 lane i: offset that picks this workgroup's halves in step i")
        A("s_load_dword s56, s[28:29], 0")
        A("s_load_dword s57, s[28:29], 128")
        A("s_load_dwordx2 s[58:59], s[28:29], 192")
        A("s_sub_u32 s42, s12, s8")
        A("s_add_u32 s42, s42, 0x800")
        A("s_bitcmp1_b32 s42, 12")
        A(f"s_mov_b32 s42, {hex(MIX)}")
        A(f"s_cmov_b32 s42, {hex(MIX2)}")
        A("v_add_u32 v19, s51, v35")
        A("v_and_b32 v19, 15, v19")
        A("v_bfe_u32 v19, s42, v19, 1", "1: near for the store, 0: near for the load")
        A("v_cmp_ne_u32 vcc, 0, v19")
        A("s_and_b32 s42, s8, 0x1fffff")
        A("s_and_b32 s43, s12, 0x1fffff")
        A("v_mov_b32 v20, s42")
        A("v_mov_b32 v21, s43")
        A("v_cndmask_b32 v20, v20, v21, vcc", "buffer start inside its 2 MiB page")
        A("v_and_b32 v18, 15, v35")
        A(f"v_add_u32 v21, s{TAB}, v20")
        A("v_lshrrev_b32 v21, 21, v21")
        A("v_mad_u32_u24 v18, v18, 3, v21", "page of the window")
        A("v_lshrrev_b32 v21, 2, v18")
        A("v_min_u32 v21, 11, v21")
        A("v_mad_u32_u24 v19, v19, 12, v21", "bit of its group")
        def chk():
            A("s_lshl_b32 s42, s58, 12")
            A("s_or_b32 s42, s42, s57")
            A("s_and_b32 s42, s42, s56")
            A("s_andn2_b32 s42, 0x1fff, s42", "13 + 12 done bits and the tag")
            A("s_cbranch_scc0 L_mapok")
        A("s_waitcnt lgkmcnt(0)")
        chk()
        A("v_mov_b32 v26, 0")
        A("L_map:", "not complete yet: poll")
        A("buffer_load_dword v22, v26, s[16:19], 0 offen sc1")
        A("buffer_load_dword v23, v26, s[16:19], 0 offen offset:128 sc1")
        A("buffer_load_dwordx2 v[24:25], v26, s[16:19], 0 offen offset:192 sc1")
        A("s_add_u32 s45, s45, 1")
        A("s_waitcnt vmcnt(0)")
        for k in range(4):
            A(f"v_readfirstlane_b32 s{56+k}, v{22+k}")
        chk()
        A(f"s_cmp_lt_u32 s45, {SPIN}")
        A("s_cbranch_scc1 L_map")
        A("L_mapok:")
        stamp(1)
        A("s_and_b32 s46, s59, 0xffff", "tag of even pairs")
        A("s_lshr_b32 s52, s59, 16", "tag of odd pairs")
        A("s_and_b32 s42, s56, 0x10000000")
        A("s_or_b32 s57, s57, s42")
        A("s_lshr_b32 s57, s57, 16")
        A("s_lshl_b32 s57, s57, 12")
        A("s_bfe_u32 s42, s56, 0xc0010")
        A("s_or_b32 s57, s57, s42", "x groups, out groups, hand-off page")
        A("s_lshr_b32 s56, s56, 29", "XCC of workgroup 0")
        A("s_lshl_b32 s42, s57, 1", "majority of three neighbouring groups")
        A("s_lshr_b32 s43, s57, 2")
        A("s_and_b32 s42, s42, 0xffeffe")
        A("s_and_b32 s43, s43, 0x1001")
        A("s_or_b32 s42, s42, s43")
        A("s_lshr_b32 s43, s57, 1")
        A("s_lshl_b32 s48, s57, 2")
        A("s_and_b32 s43, s43, 0x7ff7ff")
        A("s_and_b32 s48, s48, 0x800800")
        A("s_or_b32 s43, s43, s48")
        A("s_and_b32 s48, s42, s43")
        A("s_or_b32 s42, s42, s43")
        A("s_bitset1_b32 s42, 24")
        A("s_and_b32 s57, s57, s42")
        A("s_or_b32 s57, s57, s48")
        A("s_add_u32 s42, s56, s2")
        A("s_lshr_b32 s42, s42, 2", "bit 0: expected die, always opposite for g and g^4")
        A("v_lshrrev_b32 v19, v19, s57")
        A("v_xor_b32 v18, s42, v18", "odd pages swap the dies")
        A("v_xor_b32 v19, v18, v19")
        A(f"s_mov_b32 exec_lo, {hex(0xffffffff & ~((1 << nstatic) - 1))}")
        A("v_lshl_add_u32 v34, v19, 13, v20")
        A("s_mov_b32 exec_lo, -1")
    for j in range(W):
        issue(j)
    nxt = W
    A("s_add_u32 s20, s30, 0x400000")
    A("s_addc_u32 s21, s31, 0")
    A("s_and_b32 s20, s20, 0xffe00000", "hand-off area: one 2 MiB page inside ws")
    A(f"s_mov_b32 s22, {hex(0x400000 if stamps else 0x100000)}"); A("s_mov_b32 s23, 0x20000")
    dbg_srd()
    A("s_mov_b32 s12, s26"); A("s_mov_b32 s13, s27")
    A(f"s_mov_b32 s14, {XB}"); A("s_mov_b32 s15, 0x20000")
    A("s_mov_b32 s45, 0", "bound on all polling")
    A("v_mov_b32 v34, s50")
    A("v_lshlrev_b32 v36, 4, v35")
    for i in range(8):
        A(f"v_mov_b32 v{S+i}, 0")
        A(f"v_mov_b32 v{M+i}, 0xff800000")
    A("s_mov_b32 s44, 0xffff0000")
    A(f"ds_write_b64 v{S}, v[{S}:{S+1}] offset:{L_FL}")
    groups = [(j, j + 1) for j in range(0, NL - 2, 2)] + [(NL - 2,), (NL - 1,)]
    guse = nstatic - W // 2
    for k, g in enumerate(groups):
        if k == len(groups) - 2:
            A("s_branch L_pageT", "one fetch brings nine lines of a 4 KiB page: the tail starts a page")
            A(".p2align 12")
            A("L_pageT:")
        if k in rbrk:
            A(f"s_branch L_pageR{k}")
            A(".p2align 12")
            A(f"L_pageR{k}:")
        A(f"s_waitcnt vmcnt({after(g[-1])})")
        if k == guse:
            map_use()
        for _ in g:
            if nxt < NL:
                issue(nxt); nxt += 1
        if k >= gW2:
            extra = 0
            while nxt < NL and nxt - g[-1] - 1 < W2 and extra < 2:
                issue(nxt); nxt += 1; extra += 1
        if k == rbar:
            A("s_barrier", "keeps the waves of the workgroup level")
        for gi, j in enumerate(g):
            for i in range(4):
                d, t = VD + 4 * j + i, T + 8 * gi + 2 * i
                A(f"v_lshlrev_b32 v{t}, 16, v{d}")
                A(f"v_and_b32 v{t+1}, s44, v{d}")
        for gi, j in enumerate(g):
            for i in range(4):
                t = T + 8 * gi + 2 * i
                A(f"v_pk_add_f32 v[{S+2*i}:{S+2*i+1}], v[{S+2*i}:{S+2*i+1}], v[{t}:{t+1}]")
        for i in range(8):
            if len(g) == 2:
                A(f"v_max3_f32 v{M+i}, v{M+i}, v{T+i}, v{T+8+i}")
            else:
                A(f"v_max_f32 v{M+i}, v{M+i}, v{T+i}")
        if k == gsetup:
            assert k > guse
            A("v_and_b32 v37, 6, v35")
            A("v_lshrrev_b32 v38, 3, v35")
            A("v_lshl_add_u32 v37, v37, 2, v38")
            A("v_and_b32 v38, 1, v35")
            A("v_lshl_add_u32 v37, v37, 1, v38")
            A("s_mul_i32 s42, s37, 1536")
            A("s_lshl_b32 s43, s38, 9")
            A("s_add_u32 s42, s42, s43")
            A("v_lshl_add_u32 v37, v37, 3, s42", "LDS slot of this lane's channel; 16 bytes = channels c, c+8")
            A("s_mul_i32 s43, s36, 768")
            A("v_add_u32 v38, s43, v36")
            A("s_mul_i32 s48, s2, 1536")
            A("s_add_u32 s48, s48, s43")
            A(f"s_add_u32 s48, s48, {W_A}", "row half of waves 0,1")
    stamp(2)
    C("---- phase 2: reduce over lane bits 5,4,3 (one channel per lane is left), then over the 4 pixel groups")
    for i in range(4):
        A(f"v_permlane32_swap_b32 v{S+i}, v{S+i+4}")
    for i in range(4):
        A(f"v_permlane32_swap_b32 v{M+i}, v{M+i+4}")
    for i in range(2):
        A(f"v_pk_add_f32 v[{S+2*i}:{S+2*i+1}], v[{S+2*i}:{S+2*i+1}], v[{S+4+2*i}:{S+5+2*i}]")
    for i in range(4):
        A(f"v_max_f32 v{M+i}, v{M+i}, v{M+i+4}")
    for i in range(2):
        A(f"v_permlane16_swap_b32 v{S+i}, v{S+i+2}")
    for i in range(2):
        A(f"v_permlane16_swap_b32 v{M+i}, v{M+i+2}")
    A(f"v_pk_add_f32 v[{S}:{S+1}], v[{S}:{S+1}], v[{S+2}:{S+3}]")
    for i in range(2):
        A(f"v_max_f32 v{M+i}, v{M+i}, v{M+i+2}")
    A(f"v_add_f32_dpp v{T}, v{S}, v{S} row_ror:8 row_mask:0xf bank_mask:0x3")
    A(f"v_max_f32_dpp v{T+1}, v{M}, v{M} row_ror:8 row_mask:0xf bank_mask:0x3")
    A("s_nop 0")
    A(f"v_add_f32_dpp v{T}, v{S+1}, v{S+1} row_ror:8 row_mask:0xf bank_mask:0xc")
    A(f"v_max_f32_dpp v{T+1}, v{M+1}, v{M+1} row_ror:8 row_mask:0xf bank_mask:0xc")
    A(f"ds_write_b64 v37, v[{T}:{T+1}] offset:{L_RED}")
    A("s_cmp_ge_u32 s36, 2")
    A("s_waitcnt lgkmcnt(0)")
    A("s_barrier")
    stamp(3)
    A("s_cbranch_scc1 L_role2")
    C("waves 0,1: publish the workgroup's row")
    A("s_mov_b32 exec_hi, 0xffff")
    for q in range(4):
        A(f"ds_read_b128 v[{T+4*q}:{T+4*q+3}], v38 offset:{L_RED+q*1536}")
    A("s_waitcnt lgkmcnt(2)")
    A(f"v_add_f32 v{T}, v{T}, v{T+4}")
    A(f"v_add_f32 v{T+2}, v{T+2}, v{T+6}")
    A(f"v_max_f32 v{T+1}, v{T+1}, v{T+5}")
    A(f"v_max_f32 v{T+3}, v{T+3}, v{T+7}")
    A("s_waitcnt lgkmcnt(0)")
    A(f"v_add_f32 v{T+8}, v{T+8}, v{T+12}")
    A(f"v_add_f32 v{T+10}, v{T+10}, v{T+14}")
    A(f"v_max3_f32 v{T+1}, v{T+1}, v{T+9}, v{T+13}")
    A(f"v_max3_f32 v{T+3}, v{T+3}, v{T+11}, v{T+15}")
    A(f"v_add_f32 v{T}, v{T}, v{T+8}")
    A(f"v_add_f32 v{T+2}, v{T+2}, v{T+10}")
    A(f"v_or_b32 v{T+1}, s46, v{T+1}", "a max is a bf16 value: its low half carries the tag")
    A(f"v_or_b32 v{T+3}, s52, v{T+3}")
    A(f"buffer_store_dwordx4 v[{T}:{T+3}], v36, s[20:23], s48 offen", "into L2; written through below")
    A("s_barrier")
    A("s_mov_b64 exec, -1")
    A("s_branch L_common")
    A("L_role2:")
    A("s_barrier", "the row leaves before any polling load is queued")
    A("s_lshr_b32 s47, s2, 3")
    A(f"s_sub_u32 s47, s47, {ry0}")
    A("s_cmp_lt_u32 s47, 12")
    A(f"s_cselect_b32 s42, {hex(redmask)}, 0")
    A("s_bitcmp1_b32 s42, s36")
    A("s_cbranch_scc0 L_role4")
    C("reducing workgroup: waves 2,3,8,9 watch column s47 of the group's 32 rows")
    A("v_mov_b32 v24, 0")
    A("v_mov_b32 v25, 1")
    A("v_lshrrev_b32 v2, 3, v35")
    A("v_mul_u32_u24 v20, 12288, v2")
    A("v_and_b32 v3, 0x70, v36")
    A("v_add_u32 v20, v20, v3")
    A("s_and_b32 s43, s2, 7")
    A("s_mul_i32 s42, s43, 1536")
    A("s_lshl_b32 s47, s47, 7")
    A("s_add_u32 s42, s42, s47")
    A(f"s_add_u32 s4, s42, {W_A}")
    for k in range(1, 4):
        A(f"s_add_u32 s{4+k}, s{3+k}, 98304")
    A("v_and_b32 v2, 3, v2", "8 copies of a group row, one per reading group, near its die")
    A("v_add_u32 v21, s56, v2")
    A("s_lshr_b32 s48, s57, 22")
    A("v_xor_b32 v21, s48, v21")
    A("v_and_b32 v21, 4, v21")
    A("v_lshlrev_b32 v21, 11, v21")
    A("v_lshl_add_u32 v21, v2, 15, v21")
    A("v_lshrrev_b32 v3, 1, v3")
    A("v_add_u32 v21, v21, v3")
    A("v_lshrrev_b32 v3, 5, v35")
    A("v_lshl_add_u32 v21, v3, 6, v21")
    A("v_xor_b32 v22, 0x22000, v21")
    A("s_bfe_u32 s43, s2, 0x10002")
    A(f"s_mul_i32 s43, s43, {16384 - 4 * 1536}")
    A("s_add_u32 s48, s42, s43")
    A("v_and_b32 v23, 16, v36")
    A("v_bfe_u32 v23, s59, v23, 16")
    A("L_pollA:")
    for k in range(4):
        A(f"buffer_load_dwordx4 v[{4+4*k}:{7+4*k}], v20, s[20:23], s{4+k} offen sc1")
    A("s_add_u32 s45, s45, 1")
    for k in range(4):
        A(f"s_waitcnt vmcnt({3-k})")
        if k == 0:
            A("v_xor_b32 v2, s46, v5")
        else:
            A(f"v_bitop3_b32 v2, v2, v{5+4*k}, s46 bitop3:0xf6")
        A(f"v_bitop3_b32 v2, v2, v{7+4*k}, s52 bitop3:0xf6", "a | (b ^ c)" if k == 0 else None)
    A("v_cmp_ne_u16 vcc, 0, v2")
    A("s_cbranch_vccz L_gotA")
    A(f"s_cmp_lt_u32 s45, {SPIN}")
    A("s_cbranch_scc1 L_pollA")
    A("L_gotA:")
    A("s_mov_b64 exec, 1")
    A(f"ds_wrxchg_rtn_b32 v26, v24, v25 offset:{L_FL+4}", "the first wave to see all rows publishes")
    A("s_mov_b64 exec, -1")
    A("v_add_f32 v4, v4, v8")
    A("v_add_f32 v6, v6, v10")
    A("v_add_f32 v12, v12, v16")
    A("v_add_f32 v14, v14, v18")
    for k in range(8):
        A(f"v_and_b32 v{5+2*k}, s44, v{5+2*k}")
    A("v_add_f32 v4, v4, v12")
    A("v_add_f32 v6, v6, v14")
    A("v_max3_f32 v5, v5, v9, v13")
    A("v_max3_f32 v7, v7, v11, v15")
    A("v_max_f32 v5, v5, v17")
    A("v_max_f32 v7, v7, v19")
    def fold345():
        A("v_permlane32_swap_b32 v4, v6", "pair picked by lane bit 5, reduced over lane bits 5,4,3")
        A("v_add_f32 v4, v4, v6")
        A("v_permlane32_swap_b32 v5, v7")
        A("v_mov_b32 v6, v4")
        A("v_max_f32 v5, v5, v7")
        A("v_mov_b32 v7, v5")
        A("v_permlane16_swap_b32 v4, v6")
        A("v_add_f32 v4, v4, v6")
        A("v_permlane16_swap_b32 v5, v7")
        A("v_max_f32 v5, v5, v7")
        A("v_add_f32_dpp v4, v4, v4 row_ror:8 row_mask:0xf bank_mask:0xf")
        A("s_nop 0")
        A("v_max_f32_dpp v5, v5, v5 row_ror:8 row_mask:0xf bank_mask:0xf")
    fold345()
    A("v_or_b32 v5, v23, v5")
    A("s_waitcnt lgkmcnt(0)")
    A("v_readfirstlane_b32 s42, v26")
    A("s_cmp_lg_u32 s42, 0")
    A("s_cbranch_scc1 L_common")
    A("buffer_store_dwordx2 v[4:5], v21, s[20:23], s48 offen sc1")
    A("buffer_store_dwordx2 v[4:5], v22, s[20:23], s48 offen sc1")
    A(f"ds_write_b32 v24, v25 offset:{L_FL}")
    A("s_branch L_common")
    A("L_role4:")
    A("s_sub_u32 s43, s36, 4")
    A("s_cmp_ge_u32 s43, 3")
    A("s_cbranch_scc1 L_common")
    C("waves 4..6 compute layer 1: park 24 data registers in LDS, fetch w1^T tiles into them")
    A("s_mul_i32 s42, s43, 6144")
    A(f"s_add_u32 s42, s42, {L_SP}")
    A("v_add_u32 v38, s42, v36")
    for k in range(6):
        A(f"ds_write_b128 v38, v[{VS+4*k}:{VS+4*k+3}] offset:{k*1024}")
    A("v_lshrrev_b32 v2, 4, v35")
    A("v_lshlrev_b32 v2, 3, v2")
    A("v_bfe_u32 v3, v35, 2, 2")
    A("v_add_u32 v2, v2, v3")
    A("v_mul_u32_u24 v2, 96, v2")
    A("v_and_b32 v3, 3, v35")
    A("v_lshl_add_u32 v2, v3, 3, v2")
    A("s_lshl_b32 s42, s43, 5")
    A("v_add_u32 v2, s42, v2")
    A("s_waitcnt lgkmcnt(0)")
    for k in range(6):
        A(f"ds_read_b64_tr_b16 v[{VS+4*k}:{VS+4*k+1}], v2 offset:{L_W1 + k*3072}")
        A(f"ds_read_b64_tr_b16 v[{VS+4*k+2}:{VS+4*k+3}], v2 offset:{L_W1 + k*3072 + 384}")
    A("v_and_b32 v2, 1, v35")
    A("v_mul_u32_u24 v2, 384, v2")
    A("v_lshrrev_b32 v3, 4, v35")
    A("v_lshl_add_u32 v39, v3, 4, v2")
    A("s_waitcnt lgkmcnt(0)")
    A("L_common:")
    C("every wave gathers column `wave` (16 channels) of the 8 group rows")
    A("v_lshrrev_b32 v2, 5, v35")
    A("v_bfe_u32 v3, v35, 3, 2")
    A("v_mul_u32_u24 v3, 1536, v3")
    A("v_lshl_add_u32 v8, v2, 14, v3")
    A("v_and_b32 v3, 0x70, v36")
    A("v_add_u32 v8, v8, v3")
    A("s_add_u32 s42, s56, s2")
    A("s_lshr_b32 s43, s57, 22")
    A("s_xor_b32 s42, s42, s43")
    A("s_and_b32 s42, s42, 4")
    A("s_lshl_b32 s42, s42, 11")
    A("s_and_b32 s43, s2, 7")
    A("s_lshl_b32 s43, s43, 15")
    A("s_add_u32 s42, s42, s43")
    A("s_lshl_b32 s43, s36, 7")
    A("s_add_u32 s47, s42, s43")
    A("v_lshrrev_b32 v3, 2, v3")
    A("v_lshl_add_u32 v9, v2, 1, v3")
    A("s_lshl_b32 s42, s36, 5")
    A("v_add_u32 v9, s42, v9")
    A("v_lshrrev_b32 v2, 2, v35")
    A("v_mul_u32_u24 v2, 384, v2")
    A("v_and_b32 v3, 3, v35")
    A("v_lshl_add_u32 v2, v3, 3, v2")
    A("v_add_u32 v2, s42, v2")
    for k in range(3):
        A(f"ds_read_b64_tr_b16 v[{W2F+2*k}:{W2F+2*k+1}], v2 offset:{L_W2 + k*6144}", "w2 tile of channels 16*wave.." if k == 0 else None)
    A("v_lshlrev_b32 v37, 3, v35")
    A("s_cmp_lt_u32 s36, 2")
    A(f"s_cselect_b32 s3, {NWT}, 0", "waves 0,1: rounds left before the row is written through")
    def wthrough(name):
        A("s_sub_u32 s3, s3, 1")
        A("s_cmp_eq_u32 s3, 0")
        A(f"s_cbranch_scc0 {name}")
        A("s_mov_b64 s[4:5], exec")
        A("s_mov_b32 exec_lo, -1")
        A("s_mov_b32 exec_hi, 0xffff")
        A(f"buffer_store_dwordx4 v[{T}:{T+3}], v36, s[20:23], s48 offen sc1")
        A("s_mov_b64 exec, s[4:5]")
        A(f"{name}:")
    A("s_lshr_b32 s42, s2, 3")
    A(f"s_sub_u32 s42, s42, {ry0}")
    A("s_cmp_ge_u32 s42, 12")
    A("s_cbranch_scc1 L_open")
    A("v_mov_b32 v2, 0")
    A("L_gate:", "reducing workgroup: leave the memory pipeline to the reducers until they have published")
    A(f"ds_read_b32 v3, v2 offset:{L_FL}")
    A("s_waitcnt lgkmcnt(0)")
    A("v_cmp_ne_u32 vcc, 0, v3")
    A("s_cbranch_vccnz L_open")
    wthrough("L_nowt0")
    A("s_add_u32 s45, s45, 1")
    A(f"s_cmp_lt_u32 s45, {SPIN}")
    A("s_cbranch_scc1 L_gate")
    A("s_branch L_open")
    A(".p2align 12")
    A("L_open:")
    A("buffer_load_dwordx4 v[4:7], v8, s[20:23], s47 offen sc1")
    A("L_pollB:")
    A("s_waitcnt vmcnt(0)")
    A("v_cmp_ne_u16 vcc, s46, v5")
    A("v_cmp_ne_u16 s[4:5], s52, v7")
    A("s_or_b64 vcc, vcc, s[4:5]")
    A("s_cbranch_scc0 L_gotB")
    A("s_wqm_b64 exec, vcc", "reload the quads that are not complete")
    A("buffer_load_dwordx4 v[4:7], v8, s[20:23], s47 offen sc1")
    wthrough("L_nowt1")
    A("s_add_u32 s45, s45, 1")
    A(f"s_cmp_lt_u32 s45, {SPIN}")
    A("s_cbranch_scc1 L_pollB")
    A("s_waitcnt vmcnt(0)")
    A("L_gotB:")
    A("s_mov_b64 exec, -1")
    A("v_and_b32 v5, s44, v5")
    A("v_and_b32 v7, s44, v7")
    fold345()
    A("v_mul_f32 v4, 0x36800000, v4", "mean = sum / 262144")
    A("v_cvt_pk_bf16_f32 v4, v4, v5")
    A(f"ds_write_b16 v9, v4 offset:{L_G}")
    A(f"ds_write_b16_d16_hi v9, v4 offset:{L_G+384}")
    A("s_cmp_gt_i32 s3, 0")
    A("s_cbranch_scc0 L_nowt2")
    A("s_mov_b32 exec_hi, 0xffff")
    A(f"buffer_store_dwordx4 v[{T}:{T+3}], v36, s[20:23], s48 offen sc1", "a reducer on another die may still wait for the row")
    A("s_mov_b32 exec_hi, -1")
    A("L_nowt2:")
    A("s_sub_u32 s42, s36, 4")
    A("s_cmp_ge_u32 s42, 3")
    A("s_waitcnt lgkmcnt(0)")
    A("s_barrier")
    stamp(4)
    C("---- phase 3: h = relu([mean; max] @ w1), columns alternate mean / max")
    A("s_cbranch_scc1 L_l2")
    for k in range(6):
        A(f"ds_read_b128 v[{BF+4*k}:{BF+4*k+3}], v39 offset:{L_G + k*64}")
    A("s_lshl_b32 s42, s42, 9")
    A("v_add_u32 v36, s42, v37")
    A("s_mov_b32 s43, 0x7f800000")
    for k in range(6):
        A(f"s_waitcnt lgkmcnt({5-k})")
        c = "0" if k == 0 else "v[0:3]"
        A(f"v_mfma_f32_16x16x32_bf16 v[0:3], v[{VS+4*k}:{VS+4*k+3}], v[{BF+4*k}:{BF+4*k+3}], {c}")
    A("s_nop 7")
    for i in range(4):
        A(f"v_mul_f32_e64 v{4+i}, v{i}, s43 clamp", "clamp(h * inf) = (h > 0)" if i == 0 else None)
    A("v_pk_mul_f32 v[0:1], v[0:1], v[4:5]")
    A("v_pk_mul_f32 v[2:3], v[2:3], v[6:7]")
    A("v_cvt_pk_bf16_f32 v4, v0, v1")
    A("v_cvt_pk_bf16_f32 v5, v2, v3")
    A(f"ds_write_b64 v36, v[4:5] offset:{L_H}")
    A("L_l2:")
    lane_offsets()
    A("s_waitcnt lgkmcnt(0)")
    A("s_barrier")
    C("scale = sigmoid(h_mean @ w2 + h_max @ w2), 16 channels per wave")
    for k in range(3):
        A(f"ds_read_b64 v[{4+2*k}:{5+2*k}], v37 offset:{L_H + k*512}")
    A("v_and_b32 v2, 15, v35")
    A("s_lshl_b32 s42, s36, 6")
    A("v_lshl_add_u32 v36, v2, 2, s42")
    A("v_and_b32 v2, 7, v35")
    A("s_lshl_b32 s42, s38, 8")
    A("v_lshl_add_u32 v39, v2, 5, s42")
    A("s_mov_b32 s43, 0xbfb8aa3b", "-log2(e)")
    if wdot:
        A("v_bfe_i32 v3, v35, 0, 1")
        A("v_xor_b32 v3, 0xffff, v3", "even channel: low half, odd channel: high half")
    for k in range(3):
        A(f"s_waitcnt lgkmcnt({2-k})")
        c = "0" if k == 0 else "v[12:15]"
        A(f"v_mfma_f32_16x16x16_bf16 v[12:15], v[{4+2*k}:{5+2*k}], v[{W2F+2*k}:{W2F+2*k+1}], {c}")
    A("s_nop 7")
    A("v_cvt_pk_bf16_f32 v12, v12, v13")
    A("v_lshlrev_b32 v13, 16, v12")
    A("v_and_b32 v12, s44, v12")
    A("v_add_f32 v12, v12, v13")
    A("v_cvt_pk_bf16_f32 v12, 0, v12")
    A("v_mul_f32 v12, s43, v12")
    A("v_exp_f32 v12, v12")
    A("s_nop 0")
    A("v_add_f32 v12, 1.0, v12")
    A("v_rcp_f32 v12, v12")
    A("s_nop 0")
    if wdot:
        A("v_cvt_pk_bf16_f32 v12, v12, v12")
        A("v_and_b32 v12, v3, v12", "(scale, 0) or (0, scale)")
    else:
        A("v_cvt_pk_bf16_f32 v12, 0, v12")
    A(f"ds_write_b32 v36, v12 offset:{L_SC}")
    A("s_waitcnt lgkmcnt(0)")
    A("s_barrier")
    C("---- phase 4: scale the registers and store them")
    A(f"ds_read_b128 v[{SCR}:{SCR+3}], v39 offset:{L_SC}")
    A(f"ds_read_b128 v[{SCR+4}:{SCR+7}], v39 offset:{L_SC+16}")
    stamp(5)
    dyn = list(range(nstatic, 16))
    steps = []
    for k in range(nstatic):
        part = dyn[k * len(dyn) // nstatic:(k + 1) * len(dyn) // nstatic]
        steps += part[:1] + [k] + part[1:]
    order = [2 * i + h for i in steps for h in (0, 1)]
    assert sorted(order) == list(range(NL)) and min(order.index(j) for j in range(NL - 6, NL)) == order.index(NL - 6) > 1
    for n, j in enumerate(order):
        tb, i2, h = T2 + 8 * (j % 2), j >> 1, j & 1
        if n in brk:
            A(f"s_branch L_pageW{n}")
            A(".p2align 12")
            A(f"L_pageW{n}:")
        if j == NL - 6:
            A("s_waitcnt lgkmcnt(0)")
        if n and n % wbar == 0:
            A("s_barrier")
        fixed = sadr and i2 < nstatic
        ar = (26 if fixed else 28) + h
        need = not (fixed and i2 > 0)
        if h == 0 and need:
            A(f"v_readlane_b32 s50, v34, {i2}")
        if wdot:
            if n == 0:
                A("s_nop 1")
                addr(ar, h)
                A("s_waitcnt lgkmcnt(0)")
            for i in range(8):
                A(f"v_dot2_f32_bf16 v{tb+i}, v{VD+4*j+i//2}, v{SCR+i}, 0", "x * scale, exact in f32" if n == 0 and i == 0 else None)
            if n and need: addr(ar, h)
        else:
            for i in range(4):
                d = VD + 4 * j + i
                A(f"v_lshlrev_b32 v{tb+2*i}, 16, v{d}")
                A(f"v_and_b32 v{tb+2*i+1}, s44, v{d}")
            if need: addr(ar, h)
            if n == 0:
                A("s_waitcnt lgkmcnt(0)")
            for i in range(4):
                A(f"v_pk_mul_f32 v[{tb+2*i}:{tb+2*i+1}], v[{tb+2*i}:{tb+2*i+1}], v[{SCR+2*i}:{SCR+2*i+1}]")
        for i in range(4):
            A(f"v_cvt_pk_bf16_f32 v{VD+4*j+i}, v{tb+2*i}, v{tb+2*i+1}")
        A(f"buffer_store_dwordx4 v[{VD+4*j}:{VD+4*j+3}], v{ar}, s[12:15], s{TAB+i2} offen sc1")
        if n == 0:
            A("s_sub_u32 s42, s36, 4")
            A("s_cmp_ge_u32 s42, 3")
            A("s_cbranch_scc1 L_noreload")
            for k in range(6):
                A(f"ds_read_b128 v[{VS+4*k}:{VS+4*k+3}], v38 offset:{k*1024}", "parked registers back" if k == 0 else None)
            A("L_noreload:")
    if stamps:
        stamp(6)
        A("s_waitcnt vmcnt(0)")
        stamp(7)
        A("s_waitcnt lgkmcnt(0)")
        A("s_mov_b64 exec, 1")
        if diag:
            a, amax, b, bmax = diag
            A("s_barrier")
            A("s_cmp_lg_u32 s36, 11")
            A("s_cbranch_scc1 L_end")
            A("s_memrealtime s[74:75]")
            A("s_waitcnt lgkmcnt(0)")
            A("v_mov_b32 v9, 64")
            A(("v_mov_b32" if amax else "v_not_b32") + f" v10, s{60+2*a}")
            A(("v_mov_b32" if bmax else "v_not_b32") + f" v11, s{60+2*b}")
            A("buffer_atomic_umax v10, v9, s[16:19], 0 offen sc1")
            A("buffer_atomic_umax v11, v9, s[16:19], 0 offen offset:4 sc1")
            A("s_waitcnt vmcnt(0)")
            A("s_cmp_lg_u32 s2, 0")
            A("s_cbranch_scc1 L_end")
            A("L_dg1:")
            A("s_memrealtime s[78:79]")
            A("s_waitcnt lgkmcnt(0)")
            A("s_sub_u32 s43, s78, s60")
            A("s_cmp_lt_u32 s43, 10000")
            A("s_cbranch_scc1 L_dg1")
            A("buffer_load_dwordx2 v[10:11], v9, s[16:19], 0 offen sc1")
            A("s_waitcnt vmcnt(0)")
            A("v_readfirstlane_b32 s42, v10")
            A("v_readfirstlane_b32 s43, v11")
            if not amax: A("s_not_b32 s42, s42")
            if not bmax: A("s_not_b32 s43, s43")
            A("s_sub_u32 s42, s42, s43")
            A("s_mul_i32 s42, s42, 10")
            A("s_add_u32 s42, s42, 30000")
            A("s_min_u32 s42, s42, 200000")
            A("L_dg4:")
            A("s_memrealtime s[78:79]")
            A("s_waitcnt lgkmcnt(0)")
            A("s_sub_u32 s43, s78, s60")
            A("s_cmp_lt_u32 s43, s42")
            A("s_cbranch_scc1 L_dg4")
            A("s_branch L_end")
        A("s_mul_i32 s3, s2, 12")
        A("s_add_u32 s3, s3, s36")
        A("s_lshl_b32 s3, s3, 5")
        A(f"s_add_u32 s3, s3, {1 << 20}")
        A("v_mov_b32 v1, 0")
        for i in range(8):
            A(f"v_mov_b32 v{4+i}, s{60+2*i}")
        A("buffer_store_dwordx4 v[4:7], v1, s[20:23], s3 offen")
        A("buffer_store_dwordx4 v[8:11], v1, s[20:23], s3 offen offset:16")
    A("L_end:")
    A("s_endpgm")
    A('.section .rodata,"a"')
    A(".p2align 6")
    A(".amdhsa_kernel standalone__channel_attn_cbam__vision_kernel")
    for d in ("next_free_vgpr 168", "next_free_sgpr 96", "accum_offset 168", "group_segment_fixed_size 0", "kernarg_size 48",
              "user_sgpr_count 2", "user_sgpr_kernarg_segment_ptr 1", "system_sgpr_workgroup_id_x 1", "float_denorm_mode_32 3"):
        A("  .amdhsa_" + d)
    A(".end_amdhsa_kernel")
    out = [HEADER.rstrip(), f"; @launch grid=(256,1,1) block=({NW*64},1,1) lds={L_END}"]
    for s, c in L:
        if s.startswith(("s_", "v_", "ds_", "buffer_", "global_")):
            s = "    " + s
        if not s:
            s = "    ; " + c
        elif c:
            s = f"{s:64s} ; {c}"
        out.append(s)
    return "\n".join(out) + "\n"

if __name__ == "__main__":
    cfg = json.loads(sys.argv[1]) if len(sys.argv) > 1 else {}
    sys.stdout.write(gen(**cfg))
```

```python
import sys, json

HEADER = """; CBAM channel attention: out = x * sigmoid(MLP(mean_hw x) + MLP(max_hw x)), one pass over HBM.
;
;  2. Grid-wide reduction through d_ws in two hops: the 32 workgroups with equal id%8 publish rows of
;     {sum, max|tag} pairs, 12 of them each reduce one 128-byte column; the 8 group rows then go to every
"""

def gen(W=4, W2=6, gW2=11, nstatic=5, wpos=16, rbar=9, wbar=2, THR=80, MIX=0xAAAA, MIX2=0xFEFE, NWT=256,
        ry0=16, redmask=0x30C, gsetup=8, stamps=0, diag=None, wdot=0, sadr=0, brk=(), rbrk=(), diag2=0):
    if diag2: stamps = 1
    if diag: stamps = 1
    NW, NL, VD = 12, 32, 40
    XB = 100663296
    L_W1, L_W2 = 0, 18432
    L_RED = 36864
    L_G = L_RED + 6144
    L_H = L_G + 768
    L_SC = L_H + 1536
    L_FL = L_SC + 768
    L_SP = L_FL + 64
    L_END = L_SP + 3 * 6144
    W_A = 256 << 10
    SPIN = 1 << 22
    SW = 6 << 20
    TAB = 80
    NS = 25
    S, M, T = 2, 10, 18
    VS = VD + 4 * (NL - 6)
    W2F, BF, SCR, T2 = 28, 4, 2, 10
    L = []
    def A(s, c=None):
        L.append((s, c))
    def C(c):
        L.append(("", c))
    def stamp(i):
        if stamps: A(f"s_memrealtime s[{60+2*i}:{61+2*i}]")
    def addr(dst, src):
        A(f"v_add_u32 v{dst}, s50, v{src}")
        A(f"v_bfe_u32 v{dst}, v{dst}, 13, 1")
        A(f"v_mad_u32_u24 v{dst}, v{dst}, s49, v{src}")
    def lane_offsets():
        A("v_lshrrev_b32 v0, 3, v35")
        A("v_mul_u32_u24 v0, 384, v0")
        A("v_and_b32 v1, 7, v35")
        A("v_lshl_add_u32 v0, v1, 4, v0")
        A("v_add_u32 v0, s39, v0", "position in a half window: 8 pixels x 128 bytes per load")
        A("v_add_u32 v1, 12288, v0", "... of the second load of a step")
    def dbg_srd():
        A("s_mov_b32 s16, s28"); A("s_mov_b32 s17, s29")
        A("s_mov_b32 s18, 256"); A("s_mov_b32 s19, 0x20000")

    A(".amdgcn_target \"amdgcn-amd-amdhsa--gfx950\"")
    A(".text")
    A(".globl standalone__channel_attn_cbam__vision_kernel")
    A(".p2align 12")
    A(".p2align 8")
    A(".type standalone__channel_attn_cbam__vision_kernel,@function")
    A("standalone__channel_attn_cbam__vision_kernel:")
    stamp(0)
    A("s_load_dwordx4 s[4:7], s[0:1], 0", "x, w1")
    A("s_load_dwordx4 s[24:27], s[0:1], 16", "w2, out")
    A("s_load_dwordx4 s[28:31], s[0:1], 32", "debug, ws")
    A("s_memtime s[58:59]")
    A("s_cmp_ge_u32 s2, 256")
    A("s_cbranch_scc1 L_end", "extra workgroups leave")
    A("v_lshrrev_b32 v2, 6, v0")
    A("v_and_b32 v35, 63, v0", "lane")
    A("v_readfirstlane_b32 s36, v2", "wave")
    A("s_mov_b32 s35, 0x20000")
    A("s_lshr_b32 s40, s2, 2")
    A("s_and_b32 s42, s2, 1")
    A("s_or_b32 s40, s40, s42")
    A("s_and_b32 s42, s2, 6")
    A(f"s_cselect_b32 s40, {NS}, s40", f"scout number 2a+b of workgroup 8a+b, b<2 (>= {NS}: none)")
    A("s_lshl_b32 s42, s36, 5")
    A("s_or_b32 s42, s42, s40")
    A(f"s_cmp_lt_u32 s42, {NS}")
    A("s_cbranch_scc0 L_main")
    C("---- scout (wave 0): which die holds the lower 8 KiB half of 16 KiB in one page of x, out or ws")
    A("s_getreg_b32 s48, hwreg(HW_REG_XCC_ID, 0, 3)")
    A("s_mov_b64 exec, 1")
    A("v_mov_b32 v2, 0")
    A(f"s_mov_b32 s34, {XB}")
    A("s_lshr_b32 s43, s40, 1", "8 MiB group a")
    A("s_and_b32 s55, s40, 1", "buffer: 0 x, 1 out, 2 ws")
    A("s_lshl_b32 s54, s55, 7", "word of d_debug")
    A("s_cmp_eq_u32 s43, 12")
    A("s_cselect_b32 s55, 2, s55")
    A("s_cselect_b32 s42, 0, s43")
    A("s_lshl_b32 s42, s42, 23")
    A("s_bitset1_b32 s42, 22", "page 2 of the group")
    A("s_lshl_b32 s52, s48, 29")
    A("s_cmp_eq_u32 s40, 0")
    A("s_cselect_b32 s52, s52, 0", "workgroup 0 also tells its XCC")
    A("s_bitset1_b32 s52, s43", "done bit")
    A("s_lshl_b32 s3, 0x10000, s43")
    A("s_cmp_ge_u32 s48, 4")
    A("s_cselect_b32 s48, s3, 0")
    A("s_xor_b32 s3, s3, s48")
    A("s_or_b32 s48, s48, s52", "answer if the lower half is on my die")
    A("s_or_b32 s3, s3, s52", "answer if it is on the other die")
    A("s_cmp_lt_u32 s40, 2")
    A("s_cselect_b32 s52, s54, 0x1000")
    A("v_mov_b32 v5, s52")
    A("s_cmp_eq_u32 s55, 1")
    A("s_waitcnt lgkmcnt(0)")
    A("s_cselect_b32 s32, s26, s4")
    A("s_cselect_b32 s33, s27, s5")
    A("s_cmp_eq_u32 s55, 2")
    A("s_cselect_b32 s32, s30, s32")
    A("s_cselect_b32 s33, s31, s33")
    A("s_lshl_b32 s43, s58, 5")
    A(f"s_and_b32 s43, s43, {hex(0x1fff80 & ~8192)}", "some line of the page, so that the pair is not an L2 hit")
    A("s_add_u32 s42, s42, s43")
    A("s_and_b32 s43, s32, 0x1ffffc")
    A("s_sub_u32 s42, s42, s43")
    A("s_add_u32 s43, s42, 8192")
    dbg_srd()
    A("buffer_load_dword v3, v2, s[32:35], s42 offen nt", "lower half (values unused)")
    A("buffer_load_dword v4, v2, s[32:35], s43 offen nt", "upper half")
    A("buffer_atomic_or v2, v5, s[16:19], 0 offen sc1", "scouts 0,1: OR 0 fetches the word's line; others: out of range")
    A("s_waitcnt vmcnt(2)")
    A("s_memtime s[56:57]")
    A("s_waitcnt vmcnt(1)")
    A("s_memtime s[58:59]")
    A("s_waitcnt lgkmcnt(0)")
    A("s_sub_u32 s42, s58, s56")
    A(f"s_cmpk_le_u32 s42, {THR}", "upper half was already back: the lower half is the far one")
    A("s_cselect_b32 s48, s3, s48")
    A("v_mov_b32 v15, s48")
    A("buffer_atomic_or v15, v2, s[16:19], s54 offen sc1")
    A("s_barrier", "releases the other waves of this workgroup")
    A("s_cmp_lg_u32 s40, 0")
    A("s_cbranch_scc1 L_notag")
    A("s_memrealtime s[56:57]", "workgroup 0 picks the tag of this launch")
    A("v_mov_b32 v12, 1")
    A("s_waitcnt lgkmcnt(0)")
    A("s_mul_i32 s43, s56, 0x9e3779b1")
    A("v_mov_b32 v13, s43")
    A("buffer_store_dwordx2 v[12:13], v2, s[16:19], 0 offen offset:192 sc1")
    A("L_notag:")
    A("s_mov_b64 exec, -1")
    A(f"s_mov_b32 s40, {NS}")
    A("L_main:")
    C("---- workgroups 112..127 pull the kernel's code into L2 before the data stream fills the queues")
    A("s_lshr_b32 s42, s2, 4")
    A("s_and_b32 s43, s36, 12")
    A("s_lshl_b32 s43, s43, 4")
    A("s_or_b32 s42, s42, s43")
    A("s_cmp_lg_u32 s42, 7")
    A("s_cbranch_scc1 L_nocode")
    A("s_getpc_b64 s[54:55]")
    A("L_pc:")
    A("v_lshlrev_b32 v33, 7, v0")
    A("v_min_u32 v33, L_end-L_pc, v33")
    A("global_load_dword v33, v33, s[54:55]")
    A("L_nocode:")
    A("s_mul_i32 s37, s36, 43691")
    A("s_lshr_b32 s37, s37, 17", "q = wave/3: pixel group")
    A("s_mul_i32 s38, s37, 3")
    A("s_sub_u32 s38, s36, s38", "t = wave%3: channels 64t..64t+63")
    A("s_mul_i32 s39, s37, 3072")
    A("s_lshl_b32 s42, s38, 7")
    A("s_add_u32 s39, s39, s42")
    lane_offsets()
    A("s_lshr_b32 s42, s2, 3")
    A("s_and_b32 s43, s2, 3")
    A("s_lshl_b32 s51, s42, 2")
    A("s_add_u32 s51, s51, s43", "pair p")
    A(f"s_mul_i32 s{TAB}, s51, 49152", "window of step 0; step i adds 6 MiB")
    A("s_lshl_b32 s50, s2, 11")
    A("s_lshl_b32 s42, s42, 13")
    A("s_xor_b32 s50, s50, s42")
    A("s_and_b32 s50, s50, 0x2000", f"first {nstatic} steps: halves picked by id bits alone")
    A("s_movk_i32 s49, 24576")
    addr(38, 0)
    addr(39, 1)
    A(f"s_mov_b32 s10, {XB}"); A("s_mov_b32 s11, 0x20000")
    A(f"s_cmp_lt_u32 s40, {NS}")
    A("s_waitcnt lgkmcnt(0)")
    A("s_mov_b32 s8, s4"); A("s_mov_b32 s9, s5")
    A("s_cbranch_scc0 L_go")
    A("s_barrier", "waves 1..11 of a scout workgroup wait for the probe")
    A("L_go:")
    C("---- phase 1: stream x into registers, accumulate sum (v2..v9) and max (v10..v17)")
    ops = []
    def issue(j):
        r, i, h = VD + 4 * j, j >> 1, j & 1
        if i < nstatic:
            A(f"buffer_load_dwordx4 v[{r}:{r+3}], v{38+h}, s[8:11], s{TAB+i} offen nt")
            if h == 0: A(f"s_add_u32 s{TAB+i+1}, s{TAB+i}, {SW}")
        else:
            if h == 0:
                A(f"v_readlane_b32 s50, v34, {i}")
                if i < 15:
                    A(f"s_add_u32 s{TAB+i+1}, s{TAB+i}, {SW}")
                    A("s_nop 0")
                else:
                    A("s_nop 1")
            addr(39, h)
            A(f"buffer_load_dwordx4 v[{r}:{r+3}], v39, s[8:11], s{TAB+i} offen nt")
        ops.append(j)
        if j == wpos:
            C("weights into LDS: waves 0..5 w1, waves 6..11 w2, 3 KiB each")
            A("s_cmp_ge_u32 s36, 6")
            A("s_cselect_b32 s32, s24, s6")
            A("s_cselect_b32 s33, s25, s7")
            A("s_cselect_b32 s42, 18432, 0")
            A("s_mov_b32 s34, 18432")
            A("s_mul_i32 s43, s36, 3072")
            A("s_mov_b32 m0, s43")
            A("s_sub_u32 s42, s43, s42")
            for k in range(3):
                A(f"buffer_load_dwordx4 v36, s[32:35], s42 offen offset:{k*1024} lds")
                ops.append(None)
        if j == NL - 1:
            C("wave 0: first touch of this workgroup's hand-off row, off the critical path (values unused)")
            A("s_cmp_lg_u32 s36, 0")
            A("s_cbranch_scc1 L_notouch")
            A("v_lshlrev_b32 v39, 7, v35")
            A("s_mov_b64 exec, 0xfff")
            A("buffer_load_dword v39, v39, s[20:23], s48 offen sc1")
            A("s_mov_b64 exec, -1")
            A("L_notouch:")
    def after(j):
        return len(ops) - 1 - ops.index(j)
    def map_use():
        C("the scouts' bits -> v34 lane i: offset that picks this workgroup's halves in step i")
        A("s_load_dword s56, s[28:29], 0")
        A("s_load_dword s57, s[28:29], 128")
        A("s_load_dwordx2 s[58:59], s[28:29], 192")
        A("s_sub_u32 s42, s12, s8")
        A("s_add_u32 s42, s42, 0x800")
        A("s_bitcmp1_b32 s42, 12")
        A(f"s_mov_b32 s42, {hex(MIX)}")
        A(f"s_cmov_b32 s42, {hex(MIX2)}")
        A("v_add_u32 v19, s51, v35")
        A("v_and_b32 v19, 15, v19")
        A("v_bfe_u32 v19, s42, v19, 1", "1: near for the store, 0: near for the load")
        A("v_cmp_ne_u32 vcc, 0, v19")
        A("s_and_b32 s42, s8, 0x1fffff")
        A("s_and_b32 s43, s12, 0x1fffff")
        A("v_mov_b32 v20, s42")
        A("v_mov_b32 v21, s43")
        A("v_cndmask_b32 v20, v20, v21, vcc", "buffer start inside its 2 MiB page")
        A("v_and_b32 v18, 15, v35")
        A(f"v_add_u32 v21, s{TAB}, v20")
        A("v_lshrrev_b32 v21, 21, v21")
        A("v_mad_u32_u24 v18, v18, 3, v21", "page of the window")
        A("v_lshrrev_b32 v21, 2, v18")
        A("v_min_u32 v21, 11, v21")
        A("v_mad_u32_u24 v19, v19, 12, v21", "bit of its group")
        def chk():
            A("s_lshl_b32 s42, s58, 12")
            A("s_or_b32 s42, s42, s57")
            A("s_and_b32 s42, s42, s56")
            A("s_andn2_b32 s42, 0x1fff, s42", "13 + 12 done bits and the tag")
            A("s_cbranch_scc0 L_mapok")
        A("s_waitcnt lgkmcnt(0)")
        chk()
        A("v_mov_b32 v26, 0")
        A("L_map:", "not complete yet: poll")
        A("buffer_load_dword v22, v26, s[16:19], 0 offen sc1")
        A("buffer_load_dword v23, v26, s[16:19], 0 offen offset:128 sc1")
        A("buffer_load_dwordx2 v[24:25], v26, s[16:19], 0 offen offset:192 sc1")
        A("s_add_u32 s45, s45, 1")
        A("s_waitcnt vmcnt(0)")
        for k in range(4):
            A(f"v_readfirstlane_b32 s{56+k}, v{22+k}")
        chk()
        A(f"s_cmp_lt_u32 s45, {SPIN}")
        A("s_cbranch_scc1 L_map")
        A("L_mapok:")
        stamp(1)
        A("s_and_b32 s46, s59, 0xffff", "tag of even pairs")
        A("s_lshr_b32 s52, s59, 16", "tag of odd pairs")
        A("s_and_b32 s42, s56, 0x10000000")
        A("s_or_b32 s57, s57, s42")
        A("s_lshr_b32 s57, s57, 16")
        A("s_lshl_b32 s57, s57, 12")
        A("s_bfe_u32 s42, s56, 0xc0010")
        A("s_or_b32 s57, s57, s42", "x groups, out groups, hand-off page")
        A("s_lshr_b32 s56, s56, 29", "XCC of workgroup 0")
        A("s_lshl_b32 s42, s57, 1", "majority of three neighbouring groups")
        A("s_lshr_b32 s43, s57, 2")
        A("s_and_b32 s42, s42, 0xffeffe")
        A("s_and_b32 s43, s43, 0x1001")
        A("s_or_b32 s42, s42, s43")
        A("s_lshr_b32 s43, s57, 1")
        A("s_lshl_b32 s48, s57, 2")
        A("s_and_b32 s43, s43, 0x7ff7ff")
        A("s_and_b32 s48, s48, 0x800800")
        A("s_or_b32 s43, s43, s48")
        A("s_and_b32 s48, s42, s43")
        A("s_or_b32 s42, s42, s43")
        A("s_bitset1_b32 s42, 24")
        A("s_and_b32 s57, s57, s42")
        A("s_or_b32 s57, s57, s48")
        A("s_add_u32 s42, s56, s2")
        A("s_lshr_b32 s42, s42, 2", "bit 0: expected die, always opposite for g and g^4")
        A("v_lshrrev_b32 v19, v19, s57")
        A("v_xor_b32 v18, s42, v18", "odd pages swap the dies")
        A("v_xor_b32 v19, v18, v19")
        A(f"s_mov_b32 exec_lo, {hex(0xffffffff & ~((1 << nstatic) - 1))}")
        A("v_lshl_add_u32 v34, v19, 13, v20")
        A("s_mov_b32 exec_lo, -1")
    for j in range(W):
        issue(j)
    nxt = W
    A("s_add_u32 s20, s30, 0x400000")
    A("s_addc_u32 s21, s31, 0")
    A("s_and_b32 s20, s20, 0xffe00000", "hand-off area: one 2 MiB page inside ws")
    A(f"s_mov_b32 s22, {hex(0x400000 if stamps else 0x100000)}"); A("s_mov_b32 s23, 0x20000")
    dbg_srd()
    A("s_mov_b32 s12, s26"); A("s_mov_b32 s13, s27")
    A(f"s_mov_b32 s14, {XB}"); A("s_mov_b32 s15, 0x20000")
    A("s_mov_b32 s45, 0", "bound on all polling")
    A("v_mov_b32 v34, s50")
    A("v_lshlrev_b32 v36, 4, v35")
    for i in range(8):
        A(f"v_mov_b32 v{S+i}, 0")
        A(f"v_mov_b32 v{M+i}, 0xff800000")
    A("s_mov_b32 s44, 0xffff0000")
    A(f"ds_write_b64 v{S}, v[{S}:{S+1}] offset:{L_FL}")
    groups = [(j, j + 1) for j in range(0, NL - 2, 2)] + [(NL - 2,), (NL - 1,)]
    guse = nstatic - W // 2
    for k, g in enumerate(groups):
        if k == len(groups) - 2:
            A("s_branch L_pageT", "one fetch brings nine lines of a 4 KiB page: the tail starts a page")
            A(".p2align 12")
            A("L_pageT:")
        if k in rbrk:
            A(f"s_branch L_pageR{k}")
            A(".p2align 12")
            A(f"L_pageR{k}:")
        A(f"s_waitcnt vmcnt({after(g[-1])})")
        if k == guse:
            map_use()
        for _ in g:
            if nxt < NL:
                issue(nxt); nxt += 1
        if k >= gW2:
            extra = 0
            while nxt < NL and nxt - g[-1] - 1 < W2 and extra < 2:
                issue(nxt); nxt += 1; extra += 1
        if k == rbar:
            A("s_barrier", "keeps the waves of the workgroup level")
        for gi, j in enumerate(g):
            for i in range(4):
                d, t = VD + 4 * j + i, T + 8 * gi + 2 * i
                A(f"v_lshlrev_b32 v{t}, 16, v{d}")
                A(f"v_and_b32 v{t+1}, s44, v{d}")
        for gi, j in enumerate(g):
            for i in range(4):
                t = T + 8 * gi + 2 * i
                A(f"v_pk_add_f32 v[{S+2*i}:{S+2*i+1}], v[{S+2*i}:{S+2*i+1}], v[{t}:{t+1}]")
        for i in range(8):
            if len(g) == 2:
                A(f"v_max3_f32 v{M+i}, v{M+i}, v{T+i}, v{T+8+i}")
            else:
                A(f"v_max_f32 v{M+i}, v{M+i}, v{T+i}")
        if k == gsetup:
            assert k > guse
            A("v_and_b32 v37, 6, v35")
            A("v_lshrrev_b32 v38, 3, v35")
            A("v_lshl_add_u32 v37, v37, 2, v38")
            A("v_and_b32 v38, 1, v35")
            A("v_lshl_add_u32 v37, v37, 1, v38")
            A("s_mul_i32 s42, s37, 1536")
            A("s_lshl_b32 s43, s38, 9")
            A("s_add_u32 s42, s42, s43")
            A("v_lshl_add_u32 v37, v37, 3, s42", "LDS slot of this lane's channel; 16 bytes = channels c, c+8")
            A("s_mul_i32 s43, s36, 768")
            A("v_add_u32 v38, s43, v36")
            A("s_mul_i32 s48, s2, 1536")
            A("s_add_u32 s48, s48, s43")
            A(f"s_add_u32 s48, s48, {W_A}", "row half of waves 0,1")
    stamp(2)
    C("---- phase 2: reduce over lane bits 5,4,3 (one channel per lane is left), then over the 4 pixel groups")
    for i in range(4):
        A(f"v_permlane32_swap_b32 v{S+i}, v{S+i+4}")
    for i in range(4):
        A(f"v_permlane32_swap_b32 v{M+i}, v{M+i+4}")
    for i in range(2):
        A(f"v_pk_add_f32 v[{S+2*i}:{S+2*i+1}], v[{S+2*i}:{S+2*i+1}], v[{S+4+2*i}:{S+5+2*i}]")
    for i in range(4):
        A(f"v_max_f32 v{M+i}, v{M+i}, v{M+i+4}")
    for i in range(2):
        A(f"v_permlane16_swap_b32 v{S+i}, v{S+i+2}")
    for i in range(2):
        A(f"v_permlane16_swap_b32 v{M+i}, v{M+i+2}")
    A(f"v_pk_add_f32 v[{S}:{S+1}], v[{S}:{S+1}], v[{S+2}:{S+3}]")
    for i in range(2):
        A(f"v_max_f32 v{M+i}, v{M+i}, v{M+i+2}")
    A(f"v_add_f32_dpp v{T}, v{S}, v{S} row_ror:8 row_mask:0xf bank_mask:0x3")
    A(f"v_max_f32_dpp v{T+1}, v{M}, v{M} row_ror:8 row_mask:0xf bank_mask:0x3")
    A("s_nop 0")
    A(f"v_add_f32_dpp v{T}, v{S+1}, v{S+1} row_ror:8 row_mask:0xf bank_mask:0xc")
    A(f"v_max_f32_dpp v{T+1}, v{M+1}, v{M+1} row_ror:8 row_mask:0xf bank_mask:0xc")
    A(f"ds_write_b64 v37, v[{T}:{T+1}] offset:{L_RED}")
    A("s_cmp_ge_u32 s36, 2")
    A("s_waitcnt lgkmcnt(0)")
    A("s_barrier")
    stamp(3)
    A("s_cbranch_scc1 L_role2")
    C("waves 0,1: publish the workgroup's row")
    A("s_mov_b32 exec_hi, 0xffff")
    for q in range(4):
        A(f"ds_read_b128 v[{T+4*q}:{T+4*q+3}], v38 offset:{L_RED+q*1536}")
    A("s_waitcnt lgkmcnt(2)")
    A(f"v_add_f32 v{T}, v{T}, v{T+4}")
    A(f"v_add_f32 v{T+2}, v{T+2}, v{T+6}")
    A(f"v_max_f32 v{T+1}, v{T+1}, v{T+5}")
    A(f"v_max_f32 v{T+3}, v{T+3}, v{T+7}")
    A("s_waitcnt lgkmcnt(0)")
    A(f"v_add_f32 v{T+8}, v{T+8}, v{T+12}")
    A(f"v_add_f32 v{T+10}, v{T+10}, v{T+14}")
    A(f"v_max3_f32 v{T+1}, v{T+1}, v{T+9}, v{T+13}")
    A(f"v_max3_f32 v{T+3}, v{T+3}, v{T+11}, v{T+15}")
    A(f"v_add_f32 v{T}, v{T}, v{T+8}")
    A(f"v_add_f32 v{T+2}, v{T+2}, v{T+10}")
    A(f"v_or_b32 v{T+1}, s46, v{T+1}", "a max is a bf16 value: its low half carries the tag")
    A(f"v_or_b32 v{T+3}, s52, v{T+3}")
    A(f"buffer_store_dwordx4 v[{T}:{T+3}], v36, s[20:23], s48 offen", "into L2; written through below")
    A("s_barrier")
    A("s_mov_b64 exec, -1")
    A("s_branch L_common")
    A("L_role2:")
    A("s_barrier", "the row leaves before any polling load is queued")
    A("s_lshr_b32 s47, s2, 3")
    A(f"s_sub_u32 s47, s47, {ry0}")
    A("s_cmp_lt_u32 s47, 12")
    A(f"s_cselect_b32 s42, {hex(redmask)}, 0")
    A("s_bitcmp1_b32 s42, s36")
    A("s_cbranch_scc0 L_role4")
    C("reducing workgroup: waves 2,3,8,9 watch column s47 of the group's 32 rows")
    A("v_mov_b32 v24, 0")
    A("v_mov_b32 v25, 1")
    A("v_lshrrev_b32 v2, 3, v35")
    A("v_mul_u32_u24 v20, 12288, v2")
    A("v_and_b32 v3, 0x70, v36")
    A("v_add_u32 v20, v20, v3")
    A("s_and_b32 s43, s2, 7")
    A("s_mul_i32 s42, s43, 1536")
    A("s_lshl_b32 s47, s47, 7")
    A("s_add_u32 s42, s42, s47")
    A(f"s_add_u32 s4, s42, {W_A}")
    for k in range(1, 4):
        A(f"s_add_u32 s{4+k}, s{3+k}, 98304")
    A("v_and_b32 v2, 3, v2", "8 copies of a group row, one per reading group, near its die")
    A("v_add_u32 v21, s56, v2")
    A("s_lshr_b32 s48, s57, 22")
    A("v_xor_b32 v21, s48, v21")
    A("v_and_b32 v21, 4, v21")
    A("v_lshlrev_b32 v21, 11, v21")
    A("v_lshl_add_u32 v21, v2, 15, v21")
    A("v_lshrrev_b32 v3, 1, v3")
    A("v_add_u32 v21, v21, v3")
    A("v_lshrrev_b32 v3, 5, v35")
    A("v_lshl_add_u32 v21, v3, 6, v21")
    A("v_xor_b32 v22, 0x22000, v21")
    A("s_bfe_u32 s43, s2, 0x10002")
    A(f"s_mul_i32 s43, s43, {16384 - 4 * 1536}")
    A("s_add_u32 s48, s42, s43")
    A("v_and_b32 v23, 16, v36")
    A("v_bfe_u32 v23, s59, v23, 16")
    A("L_pollA:")
    for k in range(4):
        A(f"buffer_load_dwordx4 v[{4+4*k}:{7+4*k}], v20, s[20:23], s{4+k} offen sc1")
    A("s_add_u32 s45, s45, 1")
    for k in range(4):
        A(f"s_waitcnt vmcnt({3-k})")
        if k == 0:
            A("v_xor_b32 v2, s46, v5")
        else:
            A(f"v_bitop3_b32 v2, v2, v{5+4*k}, s46 bitop3:0xf6")
        A(f"v_bitop3_b32 v2, v2, v{7+4*k}, s52 bitop3:0xf6", "a | (b ^ c)" if k == 0 else None)
    A("v_cmp_ne_u16 vcc, 0, v2")
    A("s_cbranch_vccz L_gotA")
    A(f"s_cmp_lt_u32 s45, {SPIN}")
    A("s_cbranch_scc1 L_pollA")
    A("L_gotA:")
    A("s_mov_b64 exec, 1")
    A(f"ds_wrxchg_rtn_b32 v26, v24, v25 offset:{L_FL+4}", "the first wave to see all rows publishes")
    A("s_mov_b64 exec, -1")
    A("v_add_f32 v4, v4, v8")
    A("v_add_f32 v6, v6, v10")
    A("v_add_f32 v12, v12, v16")
    A("v_add_f32 v14, v14, v18")
    for k in range(8):
        A(f"v_and_b32 v{5+2*k}, s44, v{5+2*k}")
    A("v_add_f32 v4, v4, v12")
    A("v_add_f32 v6, v6, v14")
    A("v_max3_f32 v5, v5, v9, v13")
    A("v_max3_f32 v7, v7, v11, v15")
    A("v_max_f32 v5, v5, v17")
    A("v_max_f32 v7, v7, v19")
    def fold345():
        A("v_permlane32_swap_b32 v4, v6", "pair picked by lane bit 5, reduced over lane bits 5,4,3")
        A("v_add_f32 v4, v4, v6")
        A("v_permlane32_swap_b32 v5, v7")
        A("v_mov_b32 v6, v4")
        A("v_max_f32 v5, v5, v7")
        A("v_mov_b32 v7, v5")
        A("v_permlane16_swap_b32 v4, v6")
        A("v_add_f32 v4, v4, v6")
        A("v_permlane16_swap_b32 v5, v7")
        A("v_max_f32 v5, v5, v7")
        A("v_add_f32_dpp v4, v4, v4 row_ror:8 row_mask:0xf bank_mask:0xf")
        A("s_nop 0")
        A("v_max_f32_dpp v5, v5, v5 row_ror:8 row_mask:0xf bank_mask:0xf")
    fold345()
    A("v_or_b32 v5, v23, v5")
    A("s_waitcnt lgkmcnt(0)")
    A("v_readfirstlane_b32 s42, v26")
    A("s_cmp_lg_u32 s42, 0")
    A("s_cbranch_scc1 L_common")
    A("buffer_store_dwordx2 v[4:5], v21, s[20:23], s48 offen sc1")
    A("buffer_store_dwordx2 v[4:5], v22, s[20:23], s48 offen sc1")
    A(f"ds_write_b32 v24, v25 offset:{L_FL}")
    A("s_branch L_common")
    A("L_role4:")
    A("s_sub_u32 s43, s36, 4")
    A("s_cmp_ge_u32 s43, 3")
    A("s_cbranch_scc1 L_common")
    C("waves 4..6 compute layer 1: park 24 data registers in LDS, fetch w1^T tiles into them")
    A("s_mul_i32 s42, s43, 6144")
    A(f"s_add_u32 s42, s42, {L_SP}")
    A("v_add_u32 v38, s42, v36")
    for k in range(6):
        A(f"ds_write_b128 v38, v[{VS+4*k}:{VS+4*k+3}] offset:{k*1024}")
    A("v_lshrrev_b32 v2, 4, v35")
    A("v_lshlrev_b32 v2, 3, v2")
    A("v_bfe_u32 v3, v35, 2, 2")
    A("v_add_u32 v2, v2, v3")
    A("v_mul_u32_u24 v2, 96, v2")
    A("v_and_b32 v3, 3, v35")
    A("v_lshl_add_u32 v2, v3, 3, v2")
    A("s_lshl_b32 s42, s43, 5")
    A("v_add_u32 v2, s42, v2")
    A("s_waitcnt lgkmcnt(0)")
    for k in range(6):
        A(f"ds_read_b64_tr_b16 v[{VS+4*k}:{VS+4*k+1}], v2 offset:{L_W1 + k*3072}")
        A(f"ds_read_b64_tr_b16 v[{VS+4*k+2}:{VS+4*k+3}], v2 offset:{L_W1 + k*3072 + 384}")
    A("v_and_b32 v2, 1, v35")
    A("v_mul_u32_u24 v2, 384, v2")
    A("v_lshrrev_b32 v3, 4, v35")
    A("v_lshl_add_u32 v39, v3, 4, v2")
    A("s_waitcnt lgkmcnt(0)")
    A("L_common:")
    C("every wave gathers column `wave` (16 channels) of the 8 group rows")
    A("v_lshrrev_b32 v2, 5, v35")
    A("v_bfe_u32 v3, v35, 3, 2")
    A("v_mul_u32_u24 v3, 1536, v3")
    A("v_lshl_add_u32 v8, v2, 14, v3")
    A("v_and_b32 v3, 0x70, v36")
    A("v_add_u32 v8, v8, v3")
    A("s_add_u32 s42, s56, s2")
    A("s_lshr_b32 s43, s57, 22")
    A("s_xor_b32 s42, s42, s43")
    A("s_and_b32 s42, s42, 4")
    A("s_lshl_b32 s42, s42, 11")
    A("s_and_b32 s43, s2, 7")
    A("s_lshl_b32 s43, s43, 15")
    A("s_add_u32 s42, s42, s43")
    A("s_lshl_b32 s43, s36, 7")
    A("s_add_u32 s47, s42, s43")
    A("v_lshrrev_b32 v3, 2, v3")
    A("v_lshl_add_u32 v9, v2, 1, v3")
    A("s_lshl_b32 s42, s36, 5")
    A("v_add_u32 v9, s42, v9")
    A("v_lshrrev_b32 v2, 2, v35")
    A("v_mul_u32_u24 v2, 384, v2")
    A("v_and_b32 v3, 3, v35")
    A("v_lshl_add_u32 v2, v3, 3, v2")
    A("v_add_u32 v2, s42, v2")
    for k in range(3):
        A(f"ds_read_b64_tr_b16 v[{W2F+2*k}:{W2F+2*k+1}], v2 offset:{L_W2 + k*6144}", "w2 tile of channels 16*wave.." if k == 0 else None)
    A("v_lshlrev_b32 v37, 3, v35")
    A("s_cmp_lt_u32 s36, 2")
    A(f"s_cselect_b32 s3, {NWT}, 0", "waves 0,1: rounds left before the row is written through")
    def wthrough(name):
        A("s_sub_u32 s3, s3, 1")
        A("s_cmp_eq_u32 s3, 0")
        A(f"s_cbranch_scc0 {name}")
        A("s_mov_b64 s[4:5], exec")
        A("s_mov_b32 exec_lo, -1")
        A("s_mov_b32 exec_hi, 0xffff")
        A(f"buffer_store_dwordx4 v[{T}:{T+3}], v36, s[20:23], s48 offen sc1")
        A("s_mov_b64 exec, s[4:5]")
        A(f"{name}:")
    A("s_lshr_b32 s42, s2, 3")
    A(f"s_sub_u32 s42, s42, {ry0}")
    A("s_cmp_ge_u32 s42, 12")
    A("s_cbranch_scc1 L_open")
    A("v_mov_b32 v2, 0")
    A("L_gate:", "reducing workgroup: leave the memory pipeline to the reducers until they have published")
    A(f"ds_read_b32 v3, v2 offset:{L_FL}")
    A("s_waitcnt lgkmcnt(0)")
    A("v_cmp_ne_u32 vcc, 0, v3")
    A("s_cbranch_vccnz L_open")
    wthrough("L_nowt0")
    A("s_add_u32 s45, s45, 1")
    A(f"s_cmp_lt_u32 s45, {SPIN}")
    A("s_cbranch_scc1 L_gate")
    A("s_branch L_open")
    A(".p2align 12")
    A("L_open:")
    A("buffer_load_dwordx4 v[4:7], v8, s[20:23], s47 offen sc1")
    A("L_pollB:")
    A("s_waitcnt vmcnt(0)")
    A("v_cmp_ne_u16 vcc, s46, v5")
    A("v_cmp_ne_u16 s[4:5], s52, v7")
    A("s_or_b64 vcc, vcc, s[4:5]")
    A("s_cbranch_scc0 L_gotB")
    A("s_wqm_b64 exec, vcc", "reload the quads that are not complete")
    A("buffer_load_dwordx4 v[4:7], v8, s[20:23], s47 offen sc1")
    wthrough("L_nowt1")
    A("s_add_u32 s45, s45, 1")
    A(f"s_cmp_lt_u32 s45, {SPIN}")
    A("s_cbranch_scc1 L_pollB")
    A("s_waitcnt vmcnt(0)")
    A("L_gotB:")
    A("s_mov_b64 exec, -1")
    A("v_and_b32 v5, s44, v5")
    A("v_and_b32 v7, s44, v7")
    fold345()
    A("v_mul_f32 v4, 0x36800000, v4", "mean = sum / 262144")
    A("v_cvt_pk_bf16_f32 v4, v4, v5")
    A(f"ds_write_b16 v9, v4 offset:{L_G}")
    A(f"ds_write_b16_d16_hi v9, v4 offset:{L_G+384}")
    A("s_cmp_gt_i32 s3, 0")
    A("s_cbranch_scc0 L_nowt2")
    A("s_mov_b32 exec_hi, 0xffff")
    A(f"buffer_store_dwordx4 v[{T}:{T+3}], v36, s[20:23], s48 offen sc1", "a reducer on another die may still wait for the row")
    A("s_mov_b32 exec_hi, -1")
    A("L_nowt2:")
    A("s_sub_u32 s42, s36, 4")
    A("s_cmp_ge_u32 s42, 3")
    A("s_waitcnt lgkmcnt(0)")
    A("s_barrier")
    stamp(4)
    C("---- phase 3: h = relu([mean; max] @ w1), columns alternate mean / max")
    A("s_cbranch_scc1 L_l2")
    for k in range(6):
        A(f"ds_read_b128 v[{BF+4*k}:{BF+4*k+3}], v39 offset:{L_G + k*64}")
    A("s_lshl_b32 s42, s42, 9")
    A("v_add_u32 v36, s42, v37")
    A("s_mov_b32 s43, 0x7f800000")
    for k in range(6):
        A(f"s_waitcnt lgkmcnt({5-k})")
        c = "0" if k == 0 else "v[0:3]"
        A(f"v_mfma_f32_16x16x32_bf16 v[0:3], v[{VS+4*k}:{VS+4*k+3}], v[{BF+4*k}:{BF+4*k+3}], {c}")
    A("s_nop 7")
    for i in range(4):
        A(f"v_mul_f32_e64 v{4+i}, v{i}, s43 clamp", "clamp(h * inf) = (h > 0)" if i == 0 else None)
    A("v_pk_mul_f32 v[0:1], v[0:1], v[4:5]")
    A("v_pk_mul_f32 v[2:3], v[2:3], v[6:7]")
    A("v_cvt_pk_bf16_f32 v4, v0, v1")
    A("v_cvt_pk_bf16_f32 v5, v2, v3")
    A(f"ds_write_b64 v36, v[4:5] offset:{L_H}")
    A("L_l2:")
    lane_offsets()
    A("s_waitcnt lgkmcnt(0)")
    A("s_barrier")
    C("scale = sigmoid(h_mean @ w2 + h_max @ w2), 16 channels per wave")
    for k in range(3):
        A(f"ds_read_b64 v[{4+2*k}:{5+2*k}], v37 offset:{L_H + k*512}")
    A("v_and_b32 v2, 15, v35")
    A("s_lshl_b32 s42, s36, 6")
    A("v_lshl_add_u32 v36, v2, 2, s42")
    A("v_and_b32 v2, 7, v35")
    A("s_lshl_b32 s42, s38, 8")
    A("v_lshl_add_u32 v39, v2, 5, s42")
    A("s_mov_b32 s43, 0xbfb8aa3b", "-log2(e)")
    if wdot:
        A("v_bfe_i32 v3, v35, 0, 1")
        A("v_xor_b32 v3, 0xffff, v3", "even channel: low half, odd channel: high half")
    for k in range(3):
        A(f"s_waitcnt lgkmcnt({2-k})")
        c = "0" if k == 0 else "v[12:15]"
        A(f"v_mfma_f32_16x16x16_bf16 v[12:15], v[{4+2*k}:{5+2*k}], v[{W2F+2*k}:{W2F+2*k+1}], {c}")
    A("s_nop 7")
    A("v_cvt_pk_bf16_f32 v12, v12, v13")
    A("v_lshlrev_b32 v13, 16, v12")
    A("v_and_b32 v12, s44, v12")
    A("v_add_f32 v12, v12, v13")
    A("v_cvt_pk_bf16_f32 v12, 0, v12")
    A("v_mul_f32 v12, s43, v12")
    A("v_exp_f32 v12, v12")
    A("s_nop 0")
    A("v_add_f32 v12, 1.0, v12")
    A("v_rcp_f32 v12, v12")
    A("s_nop 0")
    if wdot:
        A("v_cvt_pk_bf16_f32 v12, v12, v12")
        A("v_and_b32 v12, v3, v12", "(scale, 0) or (0, scale)")
    else:
        A("v_cvt_pk_bf16_f32 v12, 0, v12")
    A(f"ds_write_b32 v36, v12 offset:{L_SC}")
    A("s_waitcnt lgkmcnt(0)")
    A("s_barrier")
    C("---- phase 4: scale the registers and store them")
    A(f"ds_read_b128 v[{SCR}:{SCR+3}], v39 offset:{L_SC}")
    A(f"ds_read_b128 v[{SCR+4}:{SCR+7}], v39 offset:{L_SC+16}")
    stamp(5)
    dyn = list(range(nstatic, 16))
    steps = []
    for k in range(nstatic):
        part = dyn[k * len(dyn) // nstatic:(k + 1) * len(dyn) // nstatic]
        steps += part[:1] + [k] + part[1:]
    order = [2 * i + h for i in steps for h in (0, 1)]
    assert sorted(order) == list(range(NL)) and min(order.index(j) for j in range(NL - 6, NL)) == order.index(NL - 6) > 1
    for n, j in enumerate(order):
        tb, i2, h = T2 + 8 * (j % 2), j >> 1, j & 1
        if n in brk:
            A(f"s_branch L_pageW{n}")
            A(".p2align 12")
            A(f"L_pageW{n}:")
        if j == NL - 6:
            A("s_waitcnt lgkmcnt(0)")
        if n and n % wbar == 0:
            A("s_barrier")
        fixed = sadr and i2 < nstatic
        ar = (26 if fixed else 28) + h
        need = not (fixed and i2 > 0)
        if h == 0 and need:
            A(f"v_readlane_b32 s50, v34, {i2}")
        if wdot:
            if n == 0:
                A("s_nop 1")
                addr(ar, h)
                A("s_waitcnt lgkmcnt(0)")
            for i in range(8):
                A(f"v_dot2_f32_bf16 v{tb+i}, v{VD+4*j+i//2}, v{SCR+i}, 0", "x * scale, exact in f32" if n == 0 and i == 0 else None)
            if n and need: addr(ar, h)
        else:
            for i in range(4):
                d = VD + 4 * j + i
                A(f"v_lshlrev_b32 v{tb+2*i}, 16, v{d}")
                A(f"v_and_b32 v{tb+2*i+1}, s44, v{d}")
            if need: addr(ar, h)
            if n == 0:
                A("s_waitcnt lgkmcnt(0)")
            for i in range(4):
                A(f"v_pk_mul_f32 v[{tb+2*i}:{tb+2*i+1}], v[{tb+2*i}:{tb+2*i+1}], v[{SCR+2*i}:{SCR+2*i+1}]")
        for i in range(4):
            A(f"v_cvt_pk_bf16_f32 v{VD+4*j+i}, v{tb+2*i}, v{tb+2*i+1}")
        A(f"buffer_store_dwordx4 v[{VD+4*j}:{VD+4*j+3}], v{ar}, s[12:15], s{TAB+i2} offen sc1")
        if n == 0:
            A("s_sub_u32 s42, s36, 4")
            A("s_cmp_ge_u32 s42, 3")
            A("s_cbranch_scc1 L_noreload")
            for k in range(6):
                A(f"ds_read_b128 v[{VS+4*k}:{VS+4*k+3}], v38 offset:{k*1024}", "parked registers back" if k == 0 else None)
            A("L_noreload:")
    if stamps:
        stamp(6)
        A("s_waitcnt vmcnt(0)")
        stamp(7)
        A("s_waitcnt lgkmcnt(0)")
        A("s_mov_b64 exec, 1")
        if diag2:
            A("s_or_b32 s42, s2, s36")
            A("s_cmp_lg_u32 s42, 0")
            A("s_cbranch_scc1 L_end")
            A("L_dq1:")
            A("s_memrealtime s[78:79]")
            A("s_waitcnt lgkmcnt(0)")
            A("s_sub_u32 s43, s78, s60")
            A("s_cmp_lt_u32 s43, 6000")
            A("s_cbranch_scc1 L_dq1")
            A("v_mov_b32 v1, 0")
            for nm, srd, dst in (("x", 8, 62), ("o", 12, 64)):
                A(f"s_mov_b64 s[{dst}:{dst+1}], 0")
                A("s_mov_b32 s3, 0")
                A(f"L_dq{nm}:")
                A("s_mov_b32 s47, 0")
                for rep in range(3):
                    A("s_lshl_b32 s42, s3, 21")
                    A(f"s_add_u32 s42, s42, {0x100000 + rep*0x14100}")
                    A(f"s_and_b32 s43, s{srd}, 0x3fff")
                    A("s_sub_u32 s42, s42, s43")
                    A("s_add_u32 s43, s42, 8192")
                    A(f"buffer_load_dword v3, v1, s[{srd}:{srd+3}], s42 offen offset:128 nt")
                    A(f"buffer_load_dword v4, v1, s[{srd}:{srd+3}], s43 offen offset:128 nt")
                    A("s_waitcnt vmcnt(1)")
                    A("s_memtime s[66:67]")
                    A("s_waitcnt vmcnt(0)")
                    A("s_memtime s[68:69]")
                    A("s_waitcnt lgkmcnt(0)")
                    A("s_sub_u32 s42, s68, s66")
                    A("s_cmpk_le_u32 s42, 80")
                    A("s_addc_u32 s47, s47, 0")
                A("s_lshr_b32 s47, s47, 1")
                A("s_xor_b32 s47, s47, s3")
                A("s_and_b32 s70, s47, 1")
                A("s_mov_b32 s71, 0")
                A("s_lshl_b64 s[70:71], s[70:71], s3")
                A(f"s_or_b64 s[{dst}:{dst+1}], s[{dst}:{dst+1}], s[70:71]")
                A("s_add_u32 s3, s3, 1")
                A("s_cmp_lt_u32 s3, 48")
                A(f"s_cbranch_scc1 L_dq{nm}")
            for k in range(4):
                A(f"v_mov_b32 v{4+k}, s{62+k}")
            A("buffer_store_dwordx4 v[4:7], v1, s[16:19], 0 offen offset:16")
            for dst, r in ((62, 42), (64, 43)):
                A(f"s_lshr_b64 s[70:71], s[{dst}:{dst+1}], 1")
                A(f"s_xor_b64 s[70:71], s[70:71], s[{dst}:{dst+1}]")
                A("s_and_b32 s71, s71, 0x7fff")
                A(f"s_bcnt1_i32_b64 s{r}, s[70:71]")
            A("s_min_u32 s42, s42, 19")
            A("s_mul_i32 s43, s43, 20")
            A("s_add_u32 s42, s42, s43")
            A("s_mul_i32 s42, s42, 200")
            A("s_add_u32 s42, s42, 30000")
            A("s_min_u32 s42, s42, 290000")
            A("L_dq4:")
            A("s_memrealtime s[78:79]")
            A("s_waitcnt lgkmcnt(0)")
            A("s_sub_u32 s43, s78, s60")
            A("s_cmp_lt_u32 s43, s42")
            A("s_cbranch_scc1 L_dq4")
            A("s_branch L_end")
        if diag:
            a, amax, b, bmax = diag
            A("s_barrier")
            A("s_cmp_lg_u32 s36, 11")
            A("s_cbranch_scc1 L_end")
            A("s_memrealtime s[74:75]")
            A("s_waitcnt lgkmcnt(0)")
            A("v_mov_b32 v9, 64")
            A(("v_mov_b32" if amax else "v_not_b32") + f" v10, s{60+2*a}")
            A(("v_mov_b32" if bmax else "v_not_b32") + f" v11, s{60+2*b}")
            A("buffer_atomic_umax v10, v9, s[16:19], 0 offen sc1")
            A("buffer_atomic_umax v11, v9, s[16:19], 0 offen offset:4 sc1")
            A("s_waitcnt vmcnt(0)")
            A("s_cmp_lg_u32 s2, 0")
            A("s_cbranch_scc1 L_end")
            A("L_dg1:")
            A("s_memrealtime s[78:79]")
            A("s_waitcnt lgkmcnt(0)")
            A("s_sub_u32 s43, s78, s60")
            A("s_cmp_lt_u32 s43, 10000")
            A("s_cbranch_scc1 L_dg1")
            A("buffer_load_dwordx2 v[10:11], v9, s[16:19], 0 offen sc1")
            A("s_waitcnt vmcnt(0)")
            A("v_readfirstlane_b32 s42, v10")
            A("v_readfirstlane_b32 s43, v11")
            if not amax: A("s_not_b32 s42, s42")
            if not bmax: A("s_not_b32 s43, s43")
            A("s_sub_u32 s42, s42, s43")
            A("s_mul_i32 s42, s42, 10")
            A("s_add_u32 s42, s42, 30000")
            A("s_min_u32 s42, s42, 200000")
            A("L_dg4:")
            A("s_memrealtime s[78:79]")
            A("s_waitcnt lgkmcnt(0)")
            A("s_sub_u32 s43, s78, s60")
            A("s_cmp_lt_u32 s43, s42")
            A("s_cbranch_scc1 L_dg4")
            A("s_branch L_end")
        A("s_mul_i32 s3, s2, 12")
        A("s_add_u32 s3, s3, s36")
        A("s_lshl_b32 s3, s3, 5")
        A(f"s_add_u32 s3, s3, {1 << 20}")
        A("v_mov_b32 v1, 0")
        for i in range(8):
            A(f"v_mov_b32 v{4+i}, s{60+2*i}")
        A("buffer_store_dwordx4 v[4:7], v1, s[20:23], s3 offen")
        A("buffer_store_dwordx4 v[8:11], v1, s[20:23], s3 offen offset:16")
    A("L_end:")
    A("s_endpgm")
    A('.section .rodata,"a"')
    A(".p2align 6")
    A(".amdhsa_kernel standalone__channel_attn_cbam__vision_kernel")
    for d in ("next_free_vgpr 168", "next_free_sgpr 96", "accum_offset 168", "group_segment_fixed_size 0", "kernarg_size 48",
              "user_sgpr_count 2", "user_sgpr_kernarg_segment_ptr 1", "system_sgpr_workgroup_id_x 1", "float_denorm_mode_32 3"):
        A("  .amdhsa_" + d)
    A(".end_amdhsa_kernel")
    out = [HEADER.rstrip(), f"; @launch grid=(256,1,1) block=({NW*64},1,1) lds={L_END}"]
    for s, c in L:
        if s.startswith(("s_", "v_", "ds_", "buffer_", "global_")):
            s = "    " + s
        if not s:
            s = "    ; " + c
        elif c:
            s = f"{s:64s} ; {c}"
        out.append(s)
    return "\n".join(out) + "\n"

if __name__ == "__main__":
    cfg = json.loads(sys.argv[1]) if len(sys.argv) > 1 else {}
    sys.stdout.write(gen(**cfg))
```

```python
import sys, json

HEADER = """; CBAM channel attention: out = x * sigmoid(MLP(mean_hw x) + MLP(max_hw x)), one pass over HBM.
;
;  2. Grid-wide reduction through d_ws in two hops: the 32 workgroups with equal id%8 publish rows of
;     {sum, max|tag} pairs, 12 of them each reduce one 128-byte column; the 8 group rows then go to every
"""

def gen(W=4, W2=6, gW2=11, nstatic=5, wpos=16, rbar=9, wbar=2, THR=70, MIX=0xAAAA, MIX2=0xFEFE, NWT=64,
        ry0=16, redmask=0x30C, gsetup=8, stamps=0, diag=None, wdot=1, sadr=1, brk=(22,), rbrk=(), diag2=0):
    if diag2: stamps = 1
    if diag: stamps = 1
    NW, NL, VD = 12, 32, 40
    XB = 100663296
    L_W1, L_W2 = 0, 18432
    L_RED = 36864
    L_G = L_RED + 6144
    L_H = L_G + 768
    L_SC = L_H + 1536
    L_FL = L_SC + 768
    L_SP = L_FL + 64
    L_END = L_SP + 3 * 6144
    W_A = 256 << 10
    SPIN = 1 << 22
    SW = 6 << 20
    TAB = 80
    NS = 25
    S, M, T = 2, 10, 18
    VS = VD + 4 * (NL - 6)
    W2F, BF, SCR, T2 = 28, 4, 2, 10
    L = []
    def A(s, c=None):
        L.append((s, c))
    def C(c):
        L.append(("", c))
    def stamp(i):
        if stamps: A(f"s_memrealtime s[{60+2*i}:{61+2*i}]")
    def addr(dst, src):
        A(f"v_add_u32 v{dst}, s50, v{src}")
        A(f"v_bfe_u32 v{dst}, v{dst}, 13, 1")
        A(f"v_mad_u32_u24 v{dst}, v{dst}, s49, v{src}")
    def lane_offsets():
        A("v_lshrrev_b32 v0, 3, v35")
        A("v_mul_u32_u24 v0, 384, v0")
        A("v_and_b32 v1, 7, v35")
        A("v_lshl_add_u32 v0, v1, 4, v0")
        A("v_add_u32 v0, s39, v0", "position in a half window: 8 pixels x 128 bytes per load")
        A("v_add_u32 v1, 12288, v0", "... of the second load of a step")
    def dbg_srd():
        A("s_mov_b32 s16, s28"); A("s_mov_b32 s17, s29")
        A("s_mov_b32 s18, 256"); A("s_mov_b32 s19, 0x20000")

    A(".amdgcn_target \"amdgcn-amd-amdhsa--gfx950\"")
    A(".text")
    A(".globl standalone__channel_attn_cbam__vision_kernel")
    A(".p2align 12")
    A(".p2align 8")
    A(".type standalone__channel_attn_cbam__vision_kernel,@function")
    A("standalone__channel_attn_cbam__vision_kernel:")
    stamp(0)
    A("s_load_dwordx4 s[4:7], s[0:1], 0", "x, w1")
    A("s_load_dwordx4 s[24:27], s[0:1], 16", "w2, out")
    A("s_load_dwordx4 s[28:31], s[0:1], 32", "debug, ws")
    A("s_memtime s[58:59]")
    A("s_cmp_ge_u32 s2, 256")
    A("s_cbranch_scc1 L_end", "extra workgroups leave")
    A("v_lshrrev_b32 v2, 6, v0")
    A("v_and_b32 v35, 63, v0", "lane")
    A("v_readfirstlane_b32 s36, v2", "wave")
    A("s_mov_b32 s35, 0x20000")
    A("s_lshr_b32 s40, s2, 2")
    A("s_and_b32 s42, s2, 1")
    A("s_or_b32 s40, s40, s42")
    A("s_and_b32 s42, s2, 6")
    A(f"s_cselect_b32 s40, {NS}, s40", f"scout number 2a+b of workgroup 8a+b, b<2 (>= {NS}: none)")
    A("s_lshl_b32 s42, s36, 5")
    A("s_or_b32 s42, s42, s40")
    A(f"s_cmp_lt_u32 s42, {NS}")
    A("s_cbranch_scc0 L_main")
    C("---- scout (wave 0): which die holds the lower 8 KiB half of 16 KiB in one page of x, out or ws")
    A("s_getreg_b32 s48, hwreg(HW_REG_XCC_ID, 0, 3)")
    A("s_mov_b64 exec, 1")
    A("v_mov_b32 v2, 0")
    A(f"s_mov_b32 s34, {XB}")
    A("s_lshr_b32 s43, s40, 1", "8 MiB group a")
    A("s_and_b32 s55, s40, 1", "buffer: 0 x, 1 out, 2 ws")
    A("s_lshl_b32 s54, s55, 7", "word of d_debug")
    A("s_cmp_eq_u32 s43, 12")
    A("s_cselect_b32 s55, 2, s55")
    A("s_cselect_b32 s42, 0, s43")
    A("s_lshl_b32 s42, s42, 23")
    A("s_bitset1_b32 s42, 22", "page 2 of the group")
    A("s_lshl_b32 s52, s48, 29")
    A("s_cmp_eq_u32 s40, 0")
    A("s_cselect_b32 s52, s52, 0", "workgroup 0 also tells its XCC")
    A("s_bitset1_b32 s52, s43", "done bit")
    A("s_lshl_b32 s3, 0x10000, s43")
    A("s_cmp_ge_u32 s48, 4")
    A("s_cselect_b32 s48, s3, 0")
    A("s_xor_b32 s3, s3, s48")
    A("s_or_b32 s48, s48, s52", "answer if the lower half is on my die")
    A("s_or_b32 s3, s3, s52", "answer if it is on the other die")
    A("s_cmp_lt_u32 s40, 2")
    A("s_cselect_b32 s52, s54, 0x1000")
    A("v_mov_b32 v5, s52")
    A("s_cmp_eq_u32 s55, 1")
    A("s_waitcnt lgkmcnt(0)")
    A("s_cselect_b32 s32, s26, s4")
    A("s_cselect_b32 s33, s27, s5")
    A("s_cmp_eq_u32 s55, 2")
    A("s_cselect_b32 s32, s30, s32")
    A("s_cselect_b32 s33, s31, s33")
    A("s_lshl_b32 s43, s58, 5")
    A(f"s_and_b32 s43, s43, {hex(0x1fff80 & ~8192)}", "some line of the page, so that the pair is not an L2 hit")
    A("s_add_u32 s42, s42, s43")
    A("s_and_b32 s43, s32, 0x1ffffc")
    A("s_sub_u32 s42, s42, s43")
    A("s_add_u32 s43, s42, 8192")
    dbg_srd()
    A("buffer_load_dword v3, v2, s[32:35], s42 offen nt", "lower half (values unused)")
    A("buffer_load_dword v4, v2, s[32:35], s43 offen nt", "upper half")
    A("buffer_atomic_or v2, v5, s[16:19], 0 offen sc1", "scouts 0,1: OR 0 fetches the word's line; others: out of range")
    A("s_waitcnt vmcnt(2)")
    A("s_memtime s[56:57]")
    A("s_waitcnt vmcnt(1)")
    A("s_memtime s[58:59]")
    A("s_waitcnt lgkmcnt(0)")
    A("s_sub_u32 s42, s58, s56")
    A(f"s_cmpk_le_u32 s42, {THR}", "upper half was already back: the lower half is the far one")
    A("s_cselect_b32 s48, s3, s48")
    A("v_mov_b32 v15, s48")
    A("buffer_atomic_or v15, v2, s[16:19], s54 offen sc1")
    A("s_barrier", "releases the other waves of this workgroup")
    A("s_cmp_lg_u32 s40, 0")
    A("s_cbranch_scc1 L_notag")
    A("s_memrealtime s[56:57]", "workgroup 0 picks the tag of this launch")
    A("v_mov_b32 v12, 1")
    A("s_waitcnt lgkmcnt(0)")
    A("s_mul_i32 s43, s56, 0x9e3779b1")
    A("v_mov_b32 v13, s43")
    A("buffer_store_dwordx2 v[12:13], v2, s[16:19], 0 offen offset:192 sc1")
    A("L_notag:")
    A("s_mov_b64 exec, -1")
    A(f"s_mov_b32 s40, {NS}")
    A("L_main:")
    C("---- workgroups 112..127 pull the kernel's code into L2 before the data stream fills the queues")
    A("s_lshr_b32 s42, s2, 4")
    A("s_and_b32 s43, s36, 12")
    A("s_lshl_b32 s43, s43, 4")
    A("s_or_b32 s42, s42, s43")
    A("s_cmp_lg_u32 s42, 7")
    A("s_cbranch_scc1 L_nocode")
    A("s_getpc_b64 s[54:55]")
    A("L_pc:")
    A("v_lshlrev_b32 v33, 7, v0")
    A("v_min_u32 v33, L_end-L_pc, v33")
    A("global_load_dword v33, v33, s[54:55]")
    A("L_nocode:")
    A("s_mul_i32 s37, s36, 43691")
    A("s_lshr_b32 s37, s37, 17", "q = wave/3: pixel group")
    A("s_mul_i32 s38, s37, 3")
    A("s_sub_u32 s38, s36, s38", "t = wave%3: channels 64t..64t+63")
    A("s_mul_i32 s39, s37, 3072")
    A("s_lshl_b32 s42, s38, 7")
    A("s_add_u32 s39, s39, s42")
    lane_offsets()
    A("s_lshr_b32 s42, s2, 3")
    A("s_and_b32 s43, s2, 3")
    A("s_lshl_b32 s51, s42, 2")
    A("s_add_u32 s51, s51, s43", "pair p")
    A(f"s_mul_i32 s{TAB}, s51, 49152", "window of step 0; step i adds 6 MiB")
    A("s_lshl_b32 s50, s2, 11")
    A("s_lshl_b32 s42, s42, 13")
    A("s_xor_b32 s50, s50, s42")
    A("s_and_b32 s50, s50, 0x2000", f"first {nstatic} steps: halves picked by id bits alone")
    A("s_movk_i32 s49, 24576")
    addr(38, 0)
    addr(39, 1)
    A(f"s_mov_b32 s10, {XB}"); A("s_mov_b32 s11, 0x20000")
    A(f"s_cmp_lt_u32 s40, {NS}")
    A("s_waitcnt lgkmcnt(0)")
    A("s_mov_b32 s8, s4"); A("s_mov_b32 s9, s5")
    A("s_cbranch_scc0 L_go")
    A("s_barrier", "waves 1..11 of a scout workgroup wait for the probe")
    A("L_go:")
    C("---- phase 1: stream x into registers, accumulate sum (v2..v9) and max (v10..v17)")
    ops = []
    def issue(j):
        r, i, h = VD + 4 * j, j >> 1, j & 1
        if i < nstatic:
            A(f"buffer_load_dwordx4 v[{r}:{r+3}], v{38+h}, s[8:11], s{TAB+i} offen nt")
            if h == 0: A(f"s_add_u32 s{TAB+i+1}, s{TAB+i}, {SW}")
        else:
            if h == 0:
                A(f"v_readlane_b32 s50, v34, {i}")
                if i < 15:
                    A(f"s_add_u32 s{TAB+i+1}, s{TAB+i}, {SW}")
                    A("s_nop 0")
                else:
                    A("s_nop 1")
            addr(39, h)
            A(f"buffer_load_dwordx4 v[{r}:{r+3}], v39, s[8:11], s{TAB+i} offen nt")
        ops.append(j)
        if j == wpos:
            C("weights into LDS: waves 0..5 w1, waves 6..11 w2, 3 KiB each")
            A("s_cmp_ge_u32 s36, 6")
            A("s_cselect_b32 s32, s24, s6")
            A("s_cselect_b32 s33, s25, s7")
            A("s_cselect_b32 s42, 18432, 0")
            A("s_mov_b32 s34, 18432")
            A("s_mul_i32 s43, s36, 3072")
            A("s_mov_b32 m0, s43")
            A("s_sub_u32 s42, s43, s42")
            for k in range(3):
                A(f"buffer_load_dwordx4 v36, s[32:35], s42 offen offset:{k*1024} lds")
                ops.append(None)
        if j == NL - 1:
            C("wave 0: first touch of this workgroup's hand-off row, off the critical path (values unused)")
            A("s_cmp_lg_u32 s36, 0")
            A("s_cbranch_scc1 L_notouch")
            A("v_lshlrev_b32 v39, 7, v35")
            A("s_mov_b64 exec, 0xfff")
            A("buffer_load_dword v39, v39, s[20:23], s48 offen sc1")
            A("s_mov_b64 exec, -1")
            A("L_notouch:")
    def after(j):
        return len(ops) - 1 - ops.index(j)
    def map_use():
        C("the scouts' bits -> v34 lane i: offset that picks this workgroup's halves in step i")
        A("s_load_dword s56, s[28:29], 0")
        A("s_load_dword s57, s[28:29], 128")
        A("s_load_dwordx2 s[58:59], s[28:29], 192")
        A("s_sub_u32 s42, s12, s8")
        A("s_add_u32 s42, s42, 0x800")
        A("s_bitcmp1_b32 s42, 12")
        A(f"s_mov_b32 s42, {hex(MIX)}")
        A(f"s_cmov_b32 s42, {hex(MIX2)}")
        A("v_add_u32 v19, s51, v35")
        A("v_and_b32 v19, 15, v19")
        A("v_bfe_u32 v19, s42, v19, 1", "1: near for the store, 0: near for the load")
        A("v_cmp_ne_u32 vcc, 0, v19")
        A("s_and_b32 s42, s8, 0x1fffff")
        A("s_and_b32 s43, s12, 0x1fffff")
        A("v_mov_b32 v20, s42")
        A("v_mov_b32 v21, s43")
        A("v_cndmask_b32 v20, v20, v21, vcc", "buffer start inside its 2 MiB page")
        A("v_and_b32 v18, 15, v35")
        A(f"v_add_u32 v21, s{TAB}, v20")
        A("v_lshrrev_b32 v21, 21, v21")
        A("v_mad_u32_u24 v18, v18, 3, v21", "page of the window")
        A("v_lshrrev_b32 v21, 2, v18")
        A("v_min_u32 v21, 11, v21")
        A("v_mad_u32_u24 v19, v19, 12, v21", "bit of its group")
        def chk():
            A("s_lshl_b32 s42, s58, 12")
            A("s_or_b32 s42, s42, s57")
            A("s_and_b32 s42, s42, s56")
            A("s_andn2_b32 s42, 0x1fff, s42", "13 + 12 done bits and the tag")
            A("s_cbranch_scc0 L_mapok")
        A("s_waitcnt lgkmcnt(0)")
        chk()
        A("v_mov_b32 v26, 0")
        A("L_map:", "not complete yet: poll")
        A("buffer_load_dword v22, v26, s[16:19], 0 offen sc1")
        A("buffer_load_dword v23, v26, s[16:19], 0 offen offset:128 sc1")
        A("buffer_load_dwordx2 v[24:25], v26, s[16:19], 0 offen offset:192 sc1")
        A("s_add_u32 s45, s45, 1")
        A("s_waitcnt vmcnt(0)")
        for k in range(4):
            A(f"v_readfirstlane_b32 s{56+k}, v{22+k}")
        chk()
        A(f"s_cmp_lt_u32 s45, {SPIN}")
        A("s_cbranch_scc1 L_map")
        A("L_mapok:")
        stamp(1)
        A("s_and_b32 s46, s59, 0xffff", "tag of even pairs")
        A("s_lshr_b32 s52, s59, 16", "tag of odd pairs")
        A("s_and_b32 s42, s56, 0x10000000")
        A("s_or_b32 s57, s57, s42")
        A("s_lshr_b32 s57, s57, 16")
        A("s_lshl_b32 s57, s57, 12")
        A("s_bfe_u32 s42, s56, 0xc0010")
        A("s_or_b32 s57, s57, s42", "x groups, out groups, hand-off page")
        A("s_lshr_b32 s56, s56, 29", "XCC of workgroup 0")
        A("s_lshl_b32 s42, s57, 1", "majority of three neighbouring groups")
        A("s_lshr_b32 s43, s57, 2")
        A("s_and_b32 s42, s42, 0xffeffe")
        A("s_and_b32 s43, s43, 0x1001")
        A("s_or_b32 s42, s42, s43")
        A("s_lshr_b32 s43, s57, 1")
        A("s_lshl_b32 s48, s57, 2")
        A("s_and_b32 s43, s43, 0x7ff7ff")
        A("s_and_b32 s48, s48, 0x800800")
        A("s_or_b32 s43, s43, s48")
        A("s_and_b32 s48, s42, s43")
        A("s_or_b32 s42, s42, s43")
        A("s_bitset1_b32 s42, 24")
        A("s_and_b32 s57, s57, s42")
        A("s_or_b32 s57, s57, s48")
        A("s_add_u32 s42, s56, s2")
        A("s_lshr_b32 s42, s42, 2", "bit 0: expected die, always opposite for g and g^4")
        A("v_lshrrev_b32 v19, v19, s57")
        A("v_xor_b32 v18, s42, v18", "odd pages swap the dies")
        A("v_xor_b32 v19, v18, v19")
        A(f"s_mov_b32 exec_lo, {hex(0xffffffff & ~((1 << nstatic) - 1))}")
        A("v_lshl_add_u32 v34, v19, 13, v20")
        A("s_mov_b32 exec_lo, -1")
    for j in range(W):
        issue(j)
    nxt = W
    A("s_add_u32 s20, s30, 0x400000")
    A("s_addc_u32 s21, s31, 0")
    A("s_and_b32 s20, s20, 0xffe00000", "hand-off area: one 2 MiB page inside ws")
    A(f"s_mov_b32 s22, {hex(0x400000 if stamps else 0x100000)}"); A("s_mov_b32 s23, 0x20000")
    dbg_srd()
    A("s_mov_b32 s12, s26"); A("s_mov_b32 s13, s27")
    A(f"s_mov_b32 s14, {XB}"); A("s_mov_b32 s15, 0x20000")
    A("s_mov_b32 s45, 0", "bound on all polling")
    A("v_mov_b32 v34, s50")
    A("v_lshlrev_b32 v36, 4, v35")
    for i in range(8):
        A(f"v_mov_b32 v{S+i}, 0")
        A(f"v_mov_b32 v{M+i}, 0xff800000")
    A("s_mov_b32 s44, 0xffff0000")
    A(f"ds_write_b64 v{S}, v[{S}:{S+1}] offset:{L_FL}")
    groups = [(j, j + 1) for j in range(0, NL - 2, 2)] + [(NL - 2,), (NL - 1,)]
    guse = nstatic - W // 2
    for k, g in enumerate(groups):
        if k == len(groups) - 2:
            A("s_branch L_pageT", "one fetch brings nine lines of a 4 KiB page: the tail starts a page")
            A(".p2align 12")
            A("L_pageT:")
        if k in rbrk:
            A(f"s_branch L_pageR{k}")
            A(".p2align 12")
            A(f"L_pageR{k}:")
        A(f"s_waitcnt vmcnt({after(g[-1])})")
        if k == guse:
            map_use()
        for _ in g:
            if nxt < NL:
                issue(nxt); nxt += 1
        if k >= gW2:
            extra = 0
            while nxt < NL and nxt - g[-1] - 1 < W2 and extra < 2:
                issue(nxt); nxt += 1; extra += 1
        if k == rbar:
            A("s_barrier", "keeps the waves of the workgroup level")
        for gi, j in enumerate(g):
            for i in range(4):
                d, t = VD + 4 * j + i, T + 8 * gi + 2 * i
                A(f"v_lshlrev_b32 v{t}, 16, v{d}")
                A(f"v_and_b32 v{t+1}, s44, v{d}")
        for gi, j in enumerate(g):
            for i in range(4):
                t = T + 8 * gi + 2 * i
                A(f"v_pk_add_f32 v[{S+2*i}:{S+2*i+1}], v[{S+2*i}:{S+2*i+1}], v[{t}:{t+1}]")
        for i in range(8):
            if len(g) == 2:
                A(f"v_max3_f32 v{M+i}, v{M+i}, v{T+i}, v{T+8+i}")
            else:
                A(f"v_max_f32 v{M+i}, v{M+i}, v{T+i}")
        if k == gsetup:
            assert k > guse
            A("v_and_b32 v37, 6, v35")
            A("v_lshrrev_b32 v38, 3, v35")
            A("v_lshl_add_u32 v37, v37, 2, v38")
            A("v_and_b32 v38, 1, v35")
            A("v_lshl_add_u32 v37, v37, 1, v38")
            A("s_mul_i32 s42, s37, 1536")
            A("s_lshl_b32 s43, s38, 9")
            A("s_add_u32 s42, s42, s43")
            A("v_lshl_add_u32 v37, v37, 3, s42", "LDS slot of this lane's channel; 16 bytes = channels c, c+8")
            A("s_mul_i32 s43, s36, 768")
            A("v_add_u32 v38, s43, v36")
            A("s_mul_i32 s48, s2, 1536")
            A("s_add_u32 s48, s48, s43")
            A(f"s_add_u32 s48, s48, {W_A}", "row half of waves 0,1")
    stamp(2)
    C("---- phase 2: reduce over lane bits 5,4,3 (one channel per lane is left), then over the 4 pixel groups")
    for i in range(4):
        A(f"v_permlane32_swap_b32 v{S+i}, v{S+i+4}")
    for i in range(4):
        A(f"v_permlane32_swap_b32 v{M+i}, v{M+i+4}")
    for i in range(2):
        A(f"v_pk_add_f32 v[{S+2*i}:{S+2*i+1}], v[{S+2*i}:{S+2*i+1}], v[{S+4+2*i}:{S+5+2*i}]")
    for i in range(4):
        A(f"v_max_f32 v{M+i}, v{M+i}, v{M+i+4}")
    for i in range(2):
        A(f"v_permlane16_swap_b32 v{S+i}, v{S+i+2}")
    for i in range(2):
        A(f"v_permlane16_swap_b32 v{M+i}, v{M+i+2}")
    A(f"v_pk_add_f32 v[{S}:{S+1}], v[{S}:{S+1}], v[{S+2}:{S+3}]")
    for i in range(2):
        A(f"v_max_f32 v{M+i}, v{M+i}, v{M+i+2}")
    A(f"v_add_f32_dpp v{T}, v{S}, v{S} row_ror:8 row_mask:0xf bank_mask:0x3")
    A(f"v_max_f32_dpp v{T+1}, v{M}, v{M} row_ror:8 row_mask:0xf bank_mask:0x3")
    A("s_nop 0")
    A(f"v_add_f32_dpp v{T}, v{S+1}, v{S+1} row_ror:8 row_mask:0xf bank_mask:0xc")
    A(f"v_max_f32_dpp v{T+1}, v{M+1}, v{M+1} row_ror:8 row_mask:0xf bank_mask:0xc")
    A(f"ds_write_b64 v37, v[{T}:{T+1}] offset:{L_RED}")
    A("s_cmp_ge_u32 s36, 2")
    A("s_waitcnt lgkmcnt(0)")
    A("s_barrier")
    stamp(3)
    A("s_cbranch_scc1 L_role2")
    C("waves 0,1: publish the workgroup's row")
    A("s_mov_b32 exec_hi, 0xffff")
    for q in range(4):
        A(f"ds_read_b128 v[{T+4*q}:{T+4*q+3}], v38 offset:{L_RED+q*1536}")
    A("s_waitcnt lgkmcnt(2)")
    A(f"v_add_f32 v{T}, v{T}, v{T+4}")
    A(f"v_add_f32 v{T+2}, v{T+2}, v{T+6}")
    A(f"v_max_f32 v{T+1}, v{T+1}, v{T+5}")
    A(f"v_max_f32 v{T+3}, v{T+3}, v{T+7}")
    A("s_waitcnt lgkmcnt(0)")
    A(f"v_add_f32 v{T+8}, v{T+8}, v{T+12}")
    A(f"v_add_f32 v{T+10}, v{T+10}, v{T+14}")
    A(f"v_max3_f32 v{T+1}, v{T+1}, v{T+9}, v{T+13}")
    A(f"v_max3_f32 v{T+3}, v{T+3}, v{T+11}, v{T+15}")
    A(f"v_add_f32 v{T}, v{T}, v{T+8}")
    A(f"v_add_f32 v{T+2}, v{T+2}, v{T+10}")
    A(f"v_or_b32 v{T+1}, s46, v{T+1}", "a max is a bf16 value: its low half carries the tag")
    A(f"v_or_b32 v{T+3}, s52, v{T+3}")
    A(f"buffer_store_dwordx4 v[{T}:{T+3}], v36, s[20:23], s48 offen", "into L2; written through below")
    A("s_barrier")
    A("s_mov_b64 exec, -1")
    A("s_branch L_common")
    A("L_role2:")
    A("s_barrier", "the row leaves before any polling load is queued")
    A("s_lshr_b32 s47, s2, 3")
    A(f"s_sub_u32 s47, s47, {ry0}")
    A("s_cmp_lt_u32 s47, 12")
    A(f"s_cselect_b32 s42, {hex(redmask)}, 0")
    A("s_bitcmp1_b32 s42, s36")
    A("s_cbranch_scc0 L_role4")
    C("reducing workgroup: waves 2,3,8,9 watch column s47 of the group's 32 rows")
    A("v_mov_b32 v24, 0")
    A("v_mov_b32 v25, 1")
    A("v_lshrrev_b32 v2, 3, v35")
    A("v_mul_u32_u24 v20, 12288, v2")
    A("v_and_b32 v3, 0x70, v36")
    A("v_add_u32 v20, v20, v3")
    A("s_and_b32 s43, s2, 7")
    A("s_mul_i32 s42, s43, 1536")
    A("s_lshl_b32 s47, s47, 7")
    A("s_add_u32 s42, s42, s47")
    A(f"s_add_u32 s4, s42, {W_A}")
    for k in range(1, 4):
        A(f"s_add_u32 s{4+k}, s{3+k}, 98304")
    A("v_and_b32 v2, 3, v2", "8 copies of a group row, one per reading group, near its die")
    A("v_add_u32 v21, s56, v2")
    A("s_lshr_b32 s48, s57, 22")
    A("v_xor_b32 v21, s48, v21")
    A("v_and_b32 v21, 4, v21")
    A("v_lshlrev_b32 v21, 11, v21")
    A("v_lshl_add_u32 v21, v2, 15, v21")
    A("v_lshrrev_b32 v3, 1, v3")
    A("v_add_u32 v21, v21, v3")
    A("v_lshrrev_b32 v3, 5, v35")
    A("v_lshl_add_u32 v21, v3, 6, v21")
    A("v_xor_b32 v22, 0x22000, v21")
    A("s_bfe_u32 s43, s2, 0x10002")
    A(f"s_mul_i32 s43, s43, {16384 - 4 * 1536}")
    A("s_add_u32 s48, s42, s43")
    A("v_and_b32 v23, 16, v36")
    A("v_bfe_u32 v23, s59, v23, 16")
    A("L_pollA:")
    for k in range(4):
        A(f"buffer_load_dwordx4 v[{4+4*k}:{7+4*k}], v20, s[20:23], s{4+k} offen sc1")
    A("s_add_u32 s45, s45, 1")
    for k in range(4):
        A(f"s_waitcnt vmcnt({3-k})")
        if k == 0:
            A("v_xor_b32 v2, s46, v5")
        else:
            A(f"v_bitop3_b32 v2, v2, v{5+4*k}, s46 bitop3:0xf6")
        A(f"v_bitop3_b32 v2, v2, v{7+4*k}, s52 bitop3:0xf6", "a | (b ^ c)" if k == 0 else None)
    A("v_cmp_ne_u16 vcc, 0, v2")
    A("s_cbranch_vccz L_gotA")
    A(f"s_cmp_lt_u32 s45, {SPIN}")
    A("s_cbranch_scc1 L_pollA")
    A("L_gotA:")
    A("s_mov_b64 exec, 1")
    A(f"ds_wrxchg_rtn_b32 v26, v24, v25 offset:{L_FL+4}", "the first wave to see all rows publishes")
    A("s_mov_b64 exec, -1")
    A("v_add_f32 v4, v4, v8")
    A("v_add_f32 v6, v6, v10")
    A("v_add_f32 v12, v12, v16")
    A("v_add_f32 v14, v14, v18")
    for k in range(8):
        A(f"v_and_b32 v{5+2*k}, s44, v{5+2*k}")
    A("v_add_f32 v4, v4, v12")
    A("v_add_f32 v6, v6, v14")
    A("v_max3_f32 v5, v5, v9, v13")
    A("v_max3_f32 v7, v7, v11, v15")
    A("v_max_f32 v5, v5, v17")
    A("v_max_f32 v7, v7, v19")
    def fold345():
        A("v_permlane32_swap_b32 v4, v6", "pair picked by lane bit 5, reduced over lane bits 5,4,3")
        A("v_add_f32 v4, v4, v6")
        A("v_permlane32_swap_b32 v5, v7")
        A("v_mov_b32 v6, v4")
        A("v_max_f32 v5, v5, v7")
        A("v_mov_b32 v7, v5")
        A("v_permlane16_swap_b32 v4, v6")
        A("v_add_f32 v4, v4, v6")
        A("v_permlane16_swap_b32 v5, v7")
        A("v_max_f32 v5, v5, v7")
        A("v_add_f32_dpp v4, v4, v4 row_ror:8 row_mask:0xf bank_mask:0xf")
        A("s_nop 0")
        A("v_max_f32_dpp v5, v5, v5 row_ror:8 row_mask:0xf bank_mask:0xf")
    fold345()
    A("v_or_b32 v5, v23, v5")
    A("s_waitcnt lgkmcnt(0)")
    A("v_readfirstlane_b32 s42, v26")
    A("s_cmp_lg_u32 s42, 0")
    A("s_cbranch_scc1 L_common")
    A("buffer_store_dwordx2 v[4:5], v21, s[20:23], s48 offen sc1")
    A("buffer_store_dwordx2 v[4:5], v22, s[20:23], s48 offen sc1")
    A(f"ds_write_b32 v24, v25 offset:{L_FL}")
    A("s_branch L_common")
    A("L_role4:")
    A("s_sub_u32 s43, s36, 4")
    A("s_cmp_ge_u32 s43, 3")
    A("s_cbranch_scc1 L_common")
    C("waves 4..6 compute layer 1: park 24 data registers in LDS, fetch w1^T tiles into them")
    A("s_mul_i32 s42, s43, 6144")
    A(f"s_add_u32 s42, s42, {L_SP}")
    A("v_add_u32 v38, s42, v36")
    for k in range(6):
        A(f"ds_write_b128 v38, v[{VS+4*k}:{VS+4*k+3}] offset:{k*1024}")
    A("v_lshrrev_b32 v2, 4, v35")
    A("v_lshlrev_b32 v2, 3, v2")
    A("v_bfe_u32 v3, v35, 2, 2")
    A("v_add_u32 v2, v2, v3")
    A("v_mul_u32_u24 v2, 96, v2")
    A("v_and_b32 v3, 3, v35")
    A("v_lshl_add_u32 v2, v3, 3, v2")
    A("s_lshl_b32 s42, s43, 5")
    A("v_add_u32 v2, s42, v2")
    A("s_waitcnt lgkmcnt(0)")
    for k in range(6):
        A(f"ds_read_b64_tr_b16 v[{VS+4*k}:{VS+4*k+1}], v2 offset:{L_W1 + k*3072}")
        A(f"ds_read_b64_tr_b16 v[{VS+4*k+2}:{VS+4*k+3}], v2 offset:{L_W1 + k*3072 + 384}")
    A("v_and_b32 v2, 1, v35")
    A("v_mul_u32_u24 v2, 384, v2")
    A("v_lshrrev_b32 v3, 4, v35")
    A("v_lshl_add_u32 v39, v3, 4, v2")
    A("s_waitcnt lgkmcnt(0)")
    A("L_common:")
    C("every wave gathers column `wave` (16 channels) of the 8 group rows")
    A("v_lshrrev_b32 v2, 5, v35")
    A("v_bfe_u32 v3, v35, 3, 2")
    A("v_mul_u32_u24 v3, 1536, v3")
    A("v_lshl_add_u32 v8, v2, 14, v3")
    A("v_and_b32 v3, 0x70, v36")
    A("v_add_u32 v8, v8, v3")
    A("s_add_u32 s42, s56, s2")
    A("s_lshr_b32 s43, s57, 22")
    A("s_xor_b32 s42, s42, s43")
    A("s_and_b32 s42, s42, 4")
    A("s_lshl_b32 s42, s42, 11")
    A("s_and_b32 s43, s2, 7")
    A("s_lshl_b32 s43, s43, 15")
    A("s_add_u32 s42, s42, s43")
    A("s_lshl_b32 s43, s36, 7")
    A("s_add_u32 s47, s42, s43")
    A("v_lshrrev_b32 v3, 2, v3")
    A("v_lshl_add_u32 v9, v2, 1, v3")
    A("s_lshl_b32 s42, s36, 5")
    A("v_add_u32 v9, s42, v9")
    A("v_lshrrev_b32 v2, 2, v35")
    A("v_mul_u32_u24 v2, 384, v2")
    A("v_and_b32 v3, 3, v35")
    A("v_lshl_add_u32 v2, v3, 3, v2")
    A("v_add_u32 v2, s42, v2")
    for k in range(3):
        A(f"ds_read_b64_tr_b16 v[{W2F+2*k}:{W2F+2*k+1}], v2 offset:{L_W2 + k*6144}", "w2 tile of channels 16*wave.." if k == 0 else None)
    A("v_lshlrev_b32 v37, 3, v35")
    A("s_cmp_lt_u32 s36, 2")
    A(f"s_cselect_b32 s3, {NWT}, 0", "waves 0,1: rounds left before the row is written through")
    def wthrough(name):
        A("s_sub_u32 s3, s3, 1")
        A("s_cmp_eq_u32 s3, 0")
        A(f"s_cbranch_scc0 {name}")
        A("s_mov_b64 s[4:5], exec")
        A("s_mov_b32 exec_lo, -1")
        A("s_mov_b32 exec_hi, 0xffff")
        A(f"buffer_store_dwordx4 v[{T}:{T+3}], v36, s[20:23], s48 offen sc1")
        A("s_mov_b64 exec, s[4:5]")
        A(f"{name}:")
    A("s_lshr_b32 s42, s2, 3")
    A(f"s_sub_u32 s42, s42, {ry0}")
    A("s_cmp_ge_u32 s42, 12")
    A("s_cbranch_scc1 L_open")
    A("v_mov_b32 v2, 0")
    A("L_gate:", "reducing workgroup: leave the memory pipeline to the reducers until they have published")
    A(f"ds_read_b32 v3, v2 offset:{L_FL}")
    A("s_waitcnt lgkmcnt(0)")
    A("v_cmp_ne_u32 vcc, 0, v3")
    A("s_cbranch_vccnz L_open")
    wthrough("L_nowt0")
    A("s_add_u32 s45, s45, 1")
    A(f"s_cmp_lt_u32 s45, {SPIN}")
    A("s_cbranch_scc1 L_gate")
    A("s_branch L_open")
    A(".p2align 12")
    A("L_open:")
    A("buffer_load_dwordx4 v[4:7], v8, s[20:23], s47 offen sc1")
    A("L_pollB:")
    A("s_waitcnt vmcnt(0)")
    A("v_cmp_ne_u16 vcc, s46, v5")
    A("v_cmp_ne_u16 s[4:5], s52, v7")
    A("s_or_b64 vcc, vcc, s[4:5]")
    A("s_cbranch_scc0 L_gotB")
    A("s_wqm_b64 exec, vcc", "reload the quads that are not complete")
    A("buffer_load_dwordx4 v[4:7], v8, s[20:23], s47 offen sc1")
    wthrough("L_nowt1")
    A("s_add_u32 s45, s45, 1")
    A(f"s_cmp_lt_u32 s45, {SPIN}")
    A("s_cbranch_scc1 L_pollB")
    A("s_waitcnt vmcnt(0)")
    A("L_gotB:")
    A("s_mov_b64 exec, -1")
    A("v_and_b32 v5, s44, v5")
    A("v_and_b32 v7, s44, v7")
    fold345()
    A("v_mul_f32 v4, 0x36800000, v4", "mean = sum / 262144")
    A("v_cvt_pk_bf16_f32 v4, v4, v5")
    A(f"ds_write_b16 v9, v4 offset:{L_G}")
    A(f"ds_write_b16_d16_hi v9, v4 offset:{L_G+384}")
    A("s_cmp_gt_i32 s3, 0")
    A("s_cbranch_scc0 L_nowt2")
    A("s_mov_b32 exec_hi, 0xffff")
    A(f"buffer_store_dwordx4 v[{T}:{T+3}], v36, s[20:23], s48 offen sc1", "a reducer on another die may still wait for the row")
    A("s_mov_b32 exec_hi, -1")
    A("L_nowt2:")
    A("s_sub_u32 s42, s36, 4")
    A("s_cmp_ge_u32 s42, 3")
    A("s_waitcnt lgkmcnt(0)")
    A("s_barrier")
    stamp(4)
    C("---- phase 3: h = relu([mean; max] @ w1), columns alternate mean / max")
    A("s_cbranch_scc1 L_l2")
    for k in range(6):
        A(f"ds_read_b128 v[{BF+4*k}:{BF+4*k+3}], v39 offset:{L_G + k*64}")
    A("s_lshl_b32 s42, s42, 9")
    A("v_add_u32 v36, s42, v37")
    A("s_mov_b32 s43, 0x7f800000")
    for k in range(6):
        A(f"s_waitcnt lgkmcnt({5-k})")
        c = "0" if k == 0 else "v[0:3]"
        A(f"v_mfma_f32_16x16x32_bf16 v[0:3], v[{VS+4*k}:{VS+4*k+3}], v[{BF+4*k}:{BF+4*k+3}], {c}")
    A("s_nop 7")
    for i in range(4):
        A(f"v_mul_f32_e64 v{4+i}, v{i}, s43 clamp", "clamp(h * inf) = (h > 0)" if i == 0 else None)
    A("v_pk_mul_f32 v[0:1], v[0:1], v[4:5]")
    A("v_pk_mul_f32 v[2:3], v[2:3], v[6:7]")
    A("v_cvt_pk_bf16_f32 v4, v0, v1")
    A("v_cvt_pk_bf16_f32 v5, v2, v3")
    A(f"ds_write_b64 v36, v[4:5] offset:{L_H}")
    A("L_l2:")
    lane_offsets()
    A("s_waitcnt lgkmcnt(0)")
    A("s_barrier")
    C("scale = sigmoid(h_mean @ w2 + h_max @ w2), 16 channels per wave")
    for k in range(3):
        A(f"ds_read_b64 v[{4+2*k}:{5+2*k}], v37 offset:{L_H + k*512}")
    A("v_and_b32 v2, 15, v35")
    A("s_lshl_b32 s42, s36, 6")
    A("v_lshl_add_u32 v36, v2, 2, s42")
    A("v_and_b32 v2, 7, v35")
    A("s_lshl_b32 s42, s38, 8")
    A("v_lshl_add_u32 v39, v2, 5, s42")
    A("s_mov_b32 s43, 0xbfb8aa3b", "-log2(e)")
    if wdot:
        A("v_bfe_i32 v3, v35, 0, 1")
        A("v_xor_b32 v3, 0xffff, v3", "even channel: low half, odd channel: high half")
    for k in range(3):
        A(f"s_waitcnt lgkmcnt({2-k})")
        c = "0" if k == 0 else "v[12:15]"
        A(f"v_mfma_f32_16x16x16_bf16 v[12:15], v[{4+2*k}:{5+2*k}], v[{W2F+2*k}:{W2F+2*k+1}], {c}")
    A("s_nop 7")
    A("v_cvt_pk_bf16_f32 v12, v12, v13")
    A("v_lshlrev_b32 v13, 16, v12")
    A("v_and_b32 v12, s44, v12")
    A("v_add_f32 v12, v12, v13")
    A("v_cvt_pk_bf16_f32 v12, 0, v12")
    A("v_mul_f32 v12, s43, v12")
    A("v_exp_f32 v12, v12")
    A("s_nop 0")
    A("v_add_f32 v12, 1.0, v12")
    A("v_rcp_f32 v12, v12")
    A("s_nop 0")
    if wdot:
        A("v_cvt_pk_bf16_f32 v12, v12, v12")
        A("v_and_b32 v12, v3, v12", "(scale, 0) or (0, scale)")
    else:
        A("v_cvt_pk_bf16_f32 v12, 0, v12")
    A(f"ds_write_b32 v36, v12 offset:{L_SC}")
    A("s_waitcnt lgkmcnt(0)")
    A("s_barrier")
    C("---- phase 4: scale the registers and store them")
    A(f"ds_read_b128 v[{SCR}:{SCR+3}], v39 offset:{L_SC}")
    A(f"ds_read_b128 v[{SCR+4}:{SCR+7}], v39 offset:{L_SC+16}")
    stamp(5)
    dyn = list(range(nstatic, 16))
    steps = []
    for k in range(nstatic):
        part = dyn[k * len(dyn) // nstatic:(k + 1) * len(dyn) // nstatic]
        steps += part[:1] + [k] + part[1:]
    order = [2 * i + h for i in steps for h in (0, 1)]
    assert sorted(order) == list(range(NL)) and min(order.index(j) for j in range(NL - 6, NL)) == order.index(NL - 6) > 1
    for n, j in enumerate(order):
        tb, i2, h = T2 + 8 * (j % 2), j >> 1, j & 1
        if n in brk:
            A(f"s_branch L_pageW{n}", "the stores do not fit one code page: next page")
            A(".p2align 12")
            A(f"L_pageW{n}:")
        if j == NL - 6:
            A("s_waitcnt lgkmcnt(0)")
        if n and n % wbar == 0:
            A("s_barrier", "the waves store in step" if n == wbar else None)
        fixed = sadr and i2 < nstatic
        ar = (26 if fixed else 28) + h
        need = not (fixed and i2 > 0)
        if h == 0 and need:
            A(f"v_readlane_b32 s50, v34, {i2}")
        if wdot:
            if n == 0:
                A("s_nop 1")
                addr(ar, h)
                A("s_waitcnt lgkmcnt(0)")
            for i in range(8):
                A(f"v_dot2_f32_bf16 v{tb+i}, v{VD+4*j+i//2}, v{SCR+i}, 0", "x * scale, exact in f32" if n == 0 and i == 0 else None)
            if n and need: addr(ar, h)
        else:
            for i in range(4):
                d = VD + 4 * j + i
                A(f"v_lshlrev_b32 v{tb+2*i}, 16, v{d}")
                A(f"v_and_b32 v{tb+2*i+1}, s44, v{d}")
            if need: addr(ar, h)
            if n == 0:
                A("s_waitcnt lgkmcnt(0)")
            for i in range(4):
                A(f"v_pk_mul_f32 v[{tb+2*i}:{tb+2*i+1}], v[{tb+2*i}:{tb+2*i+1}], v[{SCR+2*i}:{SCR+2*i+1}]")
        for i in range(4):
            A(f"v_cvt_pk_bf16_f32 v{VD+4*j+i}, v{tb+2*i}, v{tb+2*i+1}")
        A(f"buffer_store_dwordx4 v[{VD+4*j}:{VD+4*j+3}], v{ar}, s[12:15], s{TAB+i2} offen sc1")
        if n == 0:
            A("s_sub_u32 s42, s36, 4")
            A("s_cmp_ge_u32 s42, 3")
            A("s_cbranch_scc1 L_noreload")
            for k in range(6):
                A(f"ds_read_b128 v[{VS+4*k}:{VS+4*k+3}], v38 offset:{k*1024}", "parked registers back" if k == 0 else None)
            A("L_noreload:")
    if stamps:
        stamp(6)
        A("s_waitcnt vmcnt(0)")
        stamp(7)
        A("s_waitcnt lgkmcnt(0)")
        A("s_mov_b64 exec, 1")
        if diag2:
            A("s_or_b32 s42, s2, s36")
            A("s_cmp_lg_u32 s42, 0")
            A("s_cbranch_scc1 L_end")
            A("L_dq1:")
            A("s_memrealtime s[78:79]")
            A("s_waitcnt lgkmcnt(0)")
            A("s_sub_u32 s43, s78, s60")
            A("s_cmp_lt_u32 s43, 6000")
            A("s_cbranch_scc1 L_dq1")
            A("v_mov_b32 v1, 0")
            for nm, srd, dst in (("x", 8, 62), ("o", 12, 64)):
                A(f"s_mov_b64 s[{dst}:{dst+1}], 0")
                A("s_mov_b32 s3, 0")
                A(f"L_dq{nm}:")
                A("s_mov_b32 s47, 0")
                for rep in range(3):
                    A("s_lshl_b32 s42, s3, 21")
                    A(f"s_add_u32 s42, s42, {0x100000 + rep*0x14100}")
                    A(f"s_and_b32 s43, s{srd}, 0x3fff")
                    A("s_sub_u32 s42, s42, s43")
                    A("s_add_u32 s43, s42, 8192")
                    A(f"buffer_load_dword v3, v1, s[{srd}:{srd+3}], s42 offen offset:128 nt")
                    A(f"buffer_load_dword v4, v1, s[{srd}:{srd+3}], s43 offen offset:128 nt")
                    A("s_waitcnt vmcnt(1)")
                    A("s_memtime s[66:67]")
                    A("s_waitcnt vmcnt(0)")
                    A("s_memtime s[68:69]")
                    A("s_waitcnt lgkmcnt(0)")
                    A("s_sub_u32 s42, s68, s66")
                    A("s_cmpk_le_u32 s42, 80")
                    A("s_addc_u32 s47, s47, 0")
                A("s_lshr_b32 s47, s47, 1")
                A("s_xor_b32 s47, s47, s3")
                A("s_and_b32 s70, s47, 1")
                A("s_mov_b32 s71, 0")
                A("s_lshl_b64 s[70:71], s[70:71], s3")
                A(f"s_or_b64 s[{dst}:{dst+1}], s[{dst}:{dst+1}], s[70:71]")
                A("s_add_u32 s3, s3, 1")
                A("s_cmp_lt_u32 s3, 48")
                A(f"s_cbranch_scc1 L_dq{nm}")
            for k in range(4):
                A(f"v_mov_b32 v{4+k}, s{62+k}")
            A("buffer_store_dwordx4 v[4:7], v1, s[16:19], 0 offen offset:16")
            for dst, r in ((62, 42), (64, 43)):
                A(f"s_lshr_b64 s[70:71], s[{dst}:{dst+1}], 1")
                A(f"s_xor_b64 s[70:71], s[70:71], s[{dst}:{dst+1}]")
                A("s_and_b32 s71, s71, 0x7fff")
                A(f"s_bcnt1_i32_b64 s{r}, s[70:71]")
            A("s_min_u32 s42, s42, 19")
            A("s_mul_i32 s43, s43, 20")
            A("s_add_u32 s42, s42, s43")
            A("s_mul_i32 s42, s42, 200")
            A("s_add_u32 s42, s42, 30000")
            A("s_min_u32 s42, s42, 290000")
            A("L_dq4:")
            A("s_memrealtime s[78:79]")
            A("s_waitcnt lgkmcnt(0)")
            A("s_sub_u32 s43, s78, s60")
            A("s_cmp_lt_u32 s43, s42")
            A("s_cbranch_scc1 L_dq4")
            A("s_branch L_end")
        if diag:
            a, amax, b, bmax = diag
            A("s_barrier")
            A("s_cmp_lg_u32 s36, 11")
            A("s_cbranch_scc1 L_end")
            A("s_memrealtime s[74:75]")
            A("s_waitcnt lgkmcnt(0)")
            A("v_mov_b32 v9, 64")
            A(("v_mov_b32" if amax else "v_not_b32") + f" v10, s{60+2*a}")
            A(("v_mov_b32" if bmax else "v_not_b32") + f" v11, s{60+2*b}")
            A("buffer_atomic_umax v10, v9, s[16:19], 0 offen sc1")
            A("buffer_atomic_umax v11, v9, s[16:19], 0 offen offset:4 sc1")
            A("s_waitcnt vmcnt(0)")
            A("s_cmp_lg_u32 s2, 0")
            A("s_cbranch_scc1 L_end")
            A("L_dg1:")
            A("s_memrealtime s[78:79]")
            A("s_waitcnt lgkmcnt(0)")
            A("s_sub_u32 s43, s78, s60")
            A("s_cmp_lt_u32 s43, 10000")
            A("s_cbranch_scc1 L_dg1")
            A("buffer_load_dwordx2 v[10:11], v9, s[16:19], 0 offen sc1")
            A("s_waitcnt vmcnt(0)")
            A("v_readfirstlane_b32 s42, v10")
            A("v_readfirstlane_b32 s43, v11")
            if not amax: A("s_not_b32 s42, s42")
            if not bmax: A("s_not_b32 s43, s43")
            A("s_sub_u32 s42, s42, s43")
            A("s_mul_i32 s42, s42, 10")
            A("s_add_u32 s42, s42, 30000")
            A("s_min_u32 s42, s42, 200000")
            A("L_dg4:")
            A("s_memrealtime s[78:79]")
            A("s_waitcnt lgkmcnt(0)")
            A("s_sub_u32 s43, s78, s60")
            A("s_cmp_lt_u32 s43, s42")
            A("s_cbranch_scc1 L_dg4")
            A("s_branch L_end")
        A("s_mul_i32 s3, s2, 12")
        A("s_add_u32 s3, s3, s36")
        A("s_lshl_b32 s3, s3, 5")
        A(f"s_add_u32 s3, s3, {1 << 20}")
        A("v_mov_b32 v1, 0")
        for i in range(8):
            A(f"v_mov_b32 v{4+i}, s{60+2*i}")
        A("buffer_store_dwordx4 v[4:7], v1, s[20:23], s3 offen")
        A("buffer_store_dwordx4 v[8:11], v1, s[20:23], s3 offen offset:16")
    A("L_end:")
    A("s_endpgm")
    A('.section .rodata,"a"')
    A(".p2align 6")
    A(".amdhsa_kernel standalone__channel_attn_cbam__vision_kernel")
    for d in ("next_free_vgpr 168", "next_free_sgpr 96", "accum_offset 168", "group_segment_fixed_size 0", "kernarg_size 48",
              "user_sgpr_count 2", "user_sgpr_kernarg_segment_ptr 1", "system_sgpr_workgroup_id_x 1", "float_denorm_mode_32 3"):
        A("  .amdhsa_" + d)
    A(".end_amdhsa_kernel")
    out = [HEADER.rstrip(), f"; @launch grid=(256,1,1) block=({NW*64},1,1) lds={L_END}"]
    for s, c in L:
        if s.startswith(("s_", "v_", "ds_", "buffer_", "global_")):
            s = "    " + s
        if not s:
            s = "    ; " + c
        elif c:
            s = f"{s:64s} ; {c}"
        out.append(s)
    return "\n".join(out) + "\n"

if __name__ == "__main__":
    cfg = json.loads(sys.argv[1]) if len(sys.argv) > 1 else {}
    sys.stdout.write(gen(**cfg))
```

```python
import sys, json

HEADER = """; CBAM channel attention: out = x * sigmoid(MLP(mean_hw x) + MLP(max_hw x)), one pass over HBM.
;
;  2. Grid-wide reduction through d_ws in two hops: the 32 workgroups with equal id%8 publish rows of
;     {sum, max|tag} pairs, 12 of them each reduce one 128-byte column; the 8 group rows then go to every
"""

def gen(W=4, W2=6, gW2=11, nstatic=5, wpos=16, rbar=9, wbar=2, THR=70, MIX=0xAAAA, MIX2=0xFEFE, NWT=64,
        ry0=16, redmask=0x30C, gsetup=8, stamps=0, diag=None, wdot=1, sadr=1, brk=(22,), rbrk=(), diag2=0, MIXO=None, sc0=0, fine=0, half=0):
    if diag2: stamps = 1
    if diag: stamps = 1
    NW, NL, VD = 12, 32, 40
    XB = 100663296
    L_W1, L_W2 = 0, 18432
    L_RED = 36864
    L_G = L_RED + 6144
    L_H = L_G + 768
    L_SC = L_H + 1536
    L_FL = L_SC + 768
    L_SP = L_FL + 64
    L_END = L_SP + 3 * 6144
    W_A = 256 << 10
    SPIN = 1 << 22
    SW = 6 << 20
    TAB = 80
    NS = 25
    S, M, T = 2, 10, 18
    VS = VD + 4 * (NL - 6)
    W2F, BF, SCR, T2 = 28, 4, 2, 10
    L = []
    def A(s, c=None):
        L.append((s, c))
    def C(c):
        L.append(("", c))
    def stamp(i):
        if stamps: A(f"s_memrealtime s[{60+2*i}:{61+2*i}]")
    def addr(dst, src):
        A(f"v_add_u32 v{dst}, s50, v{src}")
        A(f"v_bfe_u32 v{dst}, v{dst}, 13, 1")
        A(f"v_mad_u32_u24 v{dst}, v{dst}, s49, v{src}")
    def lane_offsets():
        A("v_lshrrev_b32 v0, 3, v35")
        A("v_mul_u32_u24 v0, 384, v0")
        A("v_and_b32 v1, 7, v35")
        A("v_lshl_add_u32 v0, v1, 4, v0")
        A("v_add_u32 v0, s39, v0", "position in a half window: 8 pixels x 128 bytes per load")
        A("v_add_u32 v1, 12288, v0", "... of the second load of a step")
    def dbg_srd():
        A("s_mov_b32 s16, s28"); A("s_mov_b32 s17, s29")
        A("s_mov_b32 s18, 256"); A("s_mov_b32 s19, 0x20000")

    A(".amdgcn_target \"amdgcn-amd-amdhsa--gfx950\"")
    A(".text")
    A(".globl standalone__channel_attn_cbam__vision_kernel")
    A(".p2align 12")
    A(".p2align 8")
    A(".type standalone__channel_attn_cbam__vision_kernel,@function")
    A("standalone__channel_attn_cbam__vision_kernel:")
    stamp(0)
    A("s_load_dwordx4 s[4:7], s[0:1], 0", "x, w1")
    A("s_load_dwordx4 s[24:27], s[0:1], 16", "w2, out")
    A("s_load_dwordx4 s[28:31], s[0:1], 32", "debug, ws")
    A("s_memtime s[58:59]")
    A("s_cmp_ge_u32 s2, 256")
    A("s_cbranch_scc1 L_end", "extra workgroups leave")
    A("v_lshrrev_b32 v2, 6, v0")
    A("v_and_b32 v35, 63, v0", "lane")
    A("v_readfirstlane_b32 s36, v2", "wave")
    A("s_mov_b32 s35, 0x20000")
    if sc0 == 1:
        A("s_lshr_b32 s40, s2, 3")
        A("s_and_b32 s42, s2, 7")
    elif sc0 == 2:
        A("s_lshr_b32 s40, s2, 2")
        A("s_bfe_u32 s42, s2, 0x10001")
        A("s_or_b32 s40, s40, s42")
        A("s_and_b32 s42, s2, 5")
    else:
        A("s_lshr_b32 s40, s2, 2")
        A("s_and_b32 s42, s2, 1")
        A("s_or_b32 s40, s40, s42")
        A("s_and_b32 s42, s2, 6")
    A(f"s_cselect_b32 s40, {NS}, s40", f"scout number 2a+b of workgroup 8a+b, b<2 (>= {NS}: none)")
    A("s_lshl_b32 s42, s36, 5")
    A("s_or_b32 s42, s42, s40")
    A(f"s_cmp_lt_u32 s42, {NS}")
    A("s_cbranch_scc0 L_main")
    C("---- scout (wave 0): which die holds the lower 8 KiB half of 16 KiB in one page of x, out or ws")
    A("s_getreg_b32 s48, hwreg(HW_REG_XCC_ID, 0, 3)")
    A("s_mov_b64 exec, 1")
    A("v_mov_b32 v2, 0")
    A(f"s_mov_b32 s34, {XB}")
    A("s_lshr_b32 s43, s40, 1", "8 MiB group a")
    A("s_and_b32 s55, s40, 1", "buffer: 0 x, 1 out, 2 ws")
    A("s_lshl_b32 s54, s55, 7", "word of d_debug")
    A("s_cmp_eq_u32 s43, 12")
    A("s_cselect_b32 s55, 2, s55")
    A("s_cselect_b32 s42, 0, s43")
    A("s_lshl_b32 s42, s42, 23")
    A("s_bitset1_b32 s42, 22", "page 2 of the group")
    A("s_lshl_b32 s52, s48, 29")
    A("s_cmp_eq_u32 s40, 0")
    A("s_cselect_b32 s52, s52, 0", "workgroup 0 also tells its XCC")
    A("s_bitset1_b32 s52, s43", "done bit")
    A("s_lshl_b32 s3, 0x10000, s43")
    A("s_cmp_ge_u32 s48, 4")
    A("s_cselect_b32 s48, s3, 0")
    A("s_xor_b32 s3, s3, s48")
    A("s_or_b32 s48, s48, s52", "answer if the lower half is on my die")
    A("s_or_b32 s3, s3, s52", "answer if it is on the other die")
    A("s_cmp_lt_u32 s40, 2")
    A("s_cselect_b32 s52, s54, 0x1000")
    A("v_mov_b32 v5, s52")
    A("s_cmp_eq_u32 s55, 1")
    A("s_waitcnt lgkmcnt(0)")
    A("s_cselect_b32 s32, s26, s4")
    A("s_cselect_b32 s33, s27, s5")
    A("s_cmp_eq_u32 s55, 2")
    A("s_cselect_b32 s32, s30, s32")
    A("s_cselect_b32 s33, s31, s33")
    A("s_lshl_b32 s43, s58, 5")
    A(f"s_and_b32 s43, s43, {hex(0x1fff80 & ~8192)}", "some line of the page, so that the pair is not an L2 hit")
    A("s_add_u32 s42, s42, s43")
    A("s_and_b32 s43, s32, 0x1ffffc")
    A("s_sub_u32 s42, s42, s43")
    A("s_add_u32 s43, s42, 8192")
    dbg_srd()
    A("buffer_load_dword v3, v2, s[32:35], s42 offen nt", "lower half (values unused)")
    A("buffer_load_dword v4, v2, s[32:35], s43 offen nt", "upper half")
    A("buffer_atomic_or v2, v5, s[16:19], 0 offen sc1", "scouts 0,1: OR 0 fetches the word's line; others: out of range")
    A("s_waitcnt vmcnt(2)")
    A("s_memtime s[56:57]")
    A("s_waitcnt vmcnt(1)")
    A("s_memtime s[58:59]")
    A("s_waitcnt lgkmcnt(0)")
    A("s_sub_u32 s42, s58, s56")
    A(f"s_cmpk_le_u32 s42, {THR}", "upper half was already back: the lower half is the far one")
    A("s_cselect_b32 s48, s3, s48")
    A("v_mov_b32 v15, s48")
    A("buffer_atomic_or v15, v2, s[16:19], s54 offen sc1")
    A("s_barrier", "releases the other waves of this workgroup")
    A("s_cmp_lg_u32 s40, 0")
    A("s_cbranch_scc1 L_notag")
    A("s_memrealtime s[56:57]", "workgroup 0 picks the tag of this launch")
    A("v_mov_b32 v12, 1")
    A("s_waitcnt lgkmcnt(0)")
    A("s_mul_i32 s43, s56, 0x9e3779b1")
    A("v_mov_b32 v13, s43")
    A("buffer_store_dwordx2 v[12:13], v2, s[16:19], 0 offen offset:192 sc1")
    A("L_notag:")
    A("s_mov_b64 exec, -1")
    A(f"s_mov_b32 s40, {NS}")
    A("L_main:")
    C("---- workgroups 112..127 pull the kernel's code into L2 before the data stream fills the queues")
    A("s_lshr_b32 s42, s2, 4")
    A("s_and_b32 s43, s36, 12")
    A("s_lshl_b32 s43, s43, 4")
    A("s_or_b32 s42, s42, s43")
    A(f"s_cmp_lg_u32 s42, {13 if sc0 == 1 else 7}")
    A("s_cbranch_scc1 L_nocode")
    A("s_getpc_b64 s[54:55]")
    A("L_pc:")
    A("v_lshlrev_b32 v32, 7, v0")
    A("v_min_u32 v32, L_end-L_pc, v32")
    A("v_add_co_u32 v32, vcc, s54, v32")
    A("v_mov_b32 v33, s55")
    A("s_nop 0")
    A("v_addc_co_u32 v33, vcc, 0, v33, vcc")
    A("global_load_dword v32, v[32:33], off", "one word of every 128-byte line (values unused)")
    A("L_nocode:")
    A("s_mul_i32 s37, s36, 43691")
    A("s_lshr_b32 s37, s37, 17", "q = wave/3: pixel group")
    A("s_mul_i32 s38, s37, 3")
    A("s_sub_u32 s38, s36, s38", "t = wave%3: channels 64t..64t+63")
    A("s_mul_i32 s39, s37, 3072")
    A("s_lshl_b32 s42, s38, 7")
    A("s_add_u32 s39, s39, s42")
    lane_offsets()
    A("s_lshr_b32 s42, s2, 3")
    A("s_and_b32 s43, s2, 3")
    A("s_lshl_b32 s51, s42, 2")
    A("s_add_u32 s51, s51, s43", "pair p")
    A(f"s_mul_i32 s{TAB}, s51, 49152", "window of step 0; step i adds 6 MiB")
    A("s_lshl_b32 s50, s2, 11")
    A("s_lshl_b32 s42, s42, 13")
    A("s_xor_b32 s50, s50, s42")
    A("s_and_b32 s50, s50, 0x2000", f"first {nstatic} steps: halves picked by id bits alone")
    A("s_movk_i32 s49, 24576")
    addr(38, 0)
    addr(39, 1)
    A(f"s_mov_b32 s10, {XB}"); A("s_mov_b32 s11, 0x20000")
    A(f"s_cmp_lt_u32 s40, {NS}")
    A("s_waitcnt lgkmcnt(0)")
    A("s_mov_b32 s8, s4"); A("s_mov_b32 s9, s5")
    A("s_cbranch_scc0 L_go")
    A("s_barrier", "waves 1..11 of a scout workgroup wait for the probe")
    A("L_go:")
    C("---- phase 1: stream x into registers, accumulate sum (v2..v9) and max (v10..v17)")
    ops = []
    def issue(j):
        r, i, h = VD + 4 * j, j >> 1, j & 1
        if i < nstatic:
            A(f"buffer_load_dwordx4 v[{r}:{r+3}], v{38+h}, s[8:11], s{TAB+i} offen nt")
            if h == 0: A(f"s_add_u32 s{TAB+i+1}, s{TAB+i}, {SW}")
        else:
            if h == 0:
                A(f"v_readlane_b32 s50, v34, {i}")
                if i < 15:
                    A(f"s_add_u32 s{TAB+i+1}, s{TAB+i}, {SW}")
                    A("s_nop 0")
                else:
                    A("s_nop 1")
            addr(39, h)
            A(f"buffer_load_dwordx4 v[{r}:{r+3}], v39, s[8:11], s{TAB+i} offen nt")
        ops.append(j)
        if j == wpos:
            C("weights into LDS: waves 0..5 w1, waves 6..11 w2, 3 KiB each")
            A("s_cmp_ge_u32 s36, 6")
            A("s_cselect_b32 s32, s24, s6")
            A("s_cselect_b32 s33, s25, s7")
            A("s_cselect_b32 s42, 18432, 0")
            A("s_mov_b32 s34, 18432")
            A("s_mul_i32 s43, s36, 3072")
            A("s_mov_b32 m0, s43")
            A("s_sub_u32 s42, s43, s42")
            for k in range(3):
                A(f"buffer_load_dwordx4 v36, s[32:35], s42 offen offset:{k*1024} lds")
                ops.append(None)
        if j == NL - 1:
            C("wave 0: first touch of this workgroup's hand-off row, off the critical path (values unused)")
            A("s_cmp_lg_u32 s36, 0")
            A("s_cbranch_scc1 L_notouch")
            A("v_lshlrev_b32 v39, 7, v35")
            A("s_mov_b64 exec, 0xfff")
            A("buffer_load_dword v39, v39, s[20:23], s48 offen sc1")
            A("s_mov_b64 exec, -1")
            A("L_notouch:")
    def after(j):
        return len(ops) - 1 - ops.index(j)
    def map_use():
        C("the scouts' bits -> v34 lane i: offset that picks this workgroup's halves in step i")
        A("s_load_dword s56, s[28:29], 0")
        A("s_load_dword s57, s[28:29], 128")
        A("s_load_dwordx2 s[58:59], s[28:29], 192")
        if MIXO is not None:
            A("s_bitcmp1_b32 s2, 0")
            A(f"s_mov_b32 s43, {hex(MIX2)}")
            A(f"s_cmov_b32 s43, {hex(MIXO)}")
        A("s_sub_u32 s42, s12, s8")
        A("s_add_u32 s42, s42, 0x800")
        A("s_bitcmp1_b32 s42, 12")
        A(f"s_mov_b32 s42, {hex(MIX)}")
        A(f"s_cmov_b32 s42, {hex(MIX2) if MIXO is None else 's43'}")
        if MIXO is not None:
            A("s_lshr_b32 s43, s2, 3")
            A("v_add_u32 v19, s43, v35")
        else:
            A("v_add_u32 v19, s51, v35")
        A("v_and_b32 v19, 15, v19")
        A("v_bfe_u32 v19, s42, v19, 1", "1: near for the store, 0: near for the load")
        A("v_cmp_ne_u32 vcc, 0, v19")
        A("s_and_b32 s42, s8, 0x1fffff")
        A("s_and_b32 s43, s12, 0x1fffff")
        A("v_mov_b32 v20, s42")
        A("v_mov_b32 v21, s43")
        A("v_cndmask_b32 v20, v20, v21, vcc", "buffer start inside its 2 MiB page")
        A("v_and_b32 v18, 15, v35")
        A(f"v_add_u32 v21, s{TAB}, v20")
        A("v_lshrrev_b32 v21, 21, v21")
        A("v_mad_u32_u24 v18, v18, 3, v21", "page of the window")
        A("v_lshrrev_b32 v21, 2, v18")
        A("v_min_u32 v21, 11, v21")
        A("v_mad_u32_u24 v19, v19, 12, v21", "bit of its group")
        def chk():
            A("s_lshl_b32 s42, s58, 12")
            A("s_or_b32 s42, s42, s57")
            A("s_and_b32 s42, s42, s56")
            A("s_andn2_b32 s42, 0x1fff, s42", "13 + 12 done bits and the tag")
            A("s_cbranch_scc0 L_mapok")
        A("s_waitcnt lgkmcnt(0)")
        chk()
        A("v_mov_b32 v26, 0")
        A("L_map:", "not complete yet: poll")
        A("buffer_load_dword v22, v26, s[16:19], 0 offen sc1")
        A("buffer_load_dword v23, v26, s[16:19], 0 offen offset:128 sc1")
        A("buffer_load_dwordx2 v[24:25], v26, s[16:19], 0 offen offset:192 sc1")
        A("s_add_u32 s45, s45, 1")
        A("s_waitcnt vmcnt(0)")
        for k in range(4):
            A(f"v_readfirstlane_b32 s{56+k}, v{22+k}")
        chk()
        A(f"s_cmp_lt_u32 s45, {SPIN}")
        A("s_cbranch_scc1 L_map")
        A("L_mapok:")
        stamp(1)
        A("s_and_b32 s46, s59, 0xffff", "tag of even pairs")
        A("s_lshr_b32 s52, s59, 16", "tag of odd pairs")
        A("s_and_b32 s42, s56, 0x10000000")
        A("s_or_b32 s57, s57, s42")
        A("s_lshr_b32 s57, s57, 16")
        A("s_lshl_b32 s57, s57, 12")
        A("s_bfe_u32 s42, s56, 0xc0010")
        A("s_or_b32 s57, s57, s42", "x groups, out groups, hand-off page")
        A("s_lshr_b32 s56, s56, 29", "XCC of workgroup 0")
        A("s_lshl_b32 s42, s57, 1", "majority of three neighbouring groups")
        A("s_lshr_b32 s43, s57, 2")
        A("s_and_b32 s42, s42, 0xffeffe")
        A("s_and_b32 s43, s43, 0x1001")
        A("s_or_b32 s42, s42, s43")
        A("s_lshr_b32 s43, s57, 1")
        A("s_lshl_b32 s48, s57, 2")
        A("s_and_b32 s43, s43, 0x7ff7ff")
        A("s_and_b32 s48, s48, 0x800800")
        A("s_or_b32 s43, s43, s48")
        A("s_and_b32 s48, s42, s43")
        A("s_or_b32 s42, s42, s43")
        A("s_bitset1_b32 s42, 24")
        A("s_and_b32 s57, s57, s42")
        A("s_or_b32 s57, s57, s48")
        A("s_add_u32 s42, s56, s2")
        A("s_lshr_b32 s42, s42, 2", "bit 0: expected die, always opposite for g and g^4")
        A("v_lshrrev_b32 v19, v19, s57")
        A("v_xor_b32 v18, s42, v18", "odd pages swap the dies")
        A("v_xor_b32 v19, v18, v19")
        A(f"s_mov_b32 exec_lo, {hex(0xffffffff & ~((1 << nstatic) - 1))}")
        A("v_lshl_add_u32 v34, v19, 13, v20")
        A("s_mov_b32 exec_lo, -1")
    for j in range(W):
        issue(j)
    nxt = W
    A("s_add_u32 s20, s30, 0x400000")
    A("s_addc_u32 s21, s31, 0")
    A("s_and_b32 s20, s20, 0xffe00000", "hand-off area: one 2 MiB page inside ws")
    A(f"s_mov_b32 s22, {hex(0x400000 if stamps else 0x100000)}"); A("s_mov_b32 s23, 0x20000")
    dbg_srd()
    A("s_mov_b32 s12, s26"); A("s_mov_b32 s13, s27")
    A(f"s_mov_b32 s14, {XB}"); A("s_mov_b32 s15, 0x20000")
    A("s_mov_b32 s45, 0", "bound on all polling")
    A("v_mov_b32 v34, s50")
    A("v_lshlrev_b32 v36, 4, v35")
    for i in range(8):
        A(f"v_mov_b32 v{S+i}, 0")
        A(f"v_mov_b32 v{M+i}, 0xff800000")
    A("s_mov_b32 s44, 0xffff0000")
    A(f"ds_write_b64 v{S}, v[{S}:{S+1}] offset:{L_FL}")
    groups = [(j, j + 1) for j in range(0, NL - 2, 2)] + [(NL - 2,), (NL - 1,)]
    guse = nstatic - W // 2
    for k, g in enumerate(groups):
        if k == len(groups) - 2:
            A("s_branch L_pageT", "one fetch brings nine lines of a 4 KiB page: the tail starts a page")
            A(".p2align 12")
            A("L_pageT:")
        if k in rbrk:
            A(f"s_branch L_pageR{k}")
            A(".p2align 12")
            A(f"L_pageR{k}:")
        A(f"s_waitcnt vmcnt({after(g[-1])})")
        if k == guse:
            map_use()
        for _ in g:
            if nxt < NL:
                issue(nxt); nxt += 1
        if k >= gW2:
            extra = 0
            while nxt < NL and nxt - g[-1] - 1 < W2 and extra < 2:
                issue(nxt); nxt += 1; extra += 1
        if k == rbar:
            A("s_barrier", "keeps the waves of the workgroup level")
        for gi, j in enumerate(g):
            for i in range(4):
                d, t = VD + 4 * j + i, T + 8 * gi + 2 * i
                if half == 2 and k > 0: continue
                A(f"v_lshlrev_b32 v{t}, 16, v{d}")
                if not half or k == 0: A(f"v_and_b32 v{t+1}, s44, v{d}")
        for gi, j in enumerate(g):
            for i in range(0 if half else 4):
                t = T + 8 * gi + 2 * i
                A(f"v_pk_add_f32 v[{S+2*i}:{S+2*i+1}], v[{S+2*i}:{S+2*i+1}], v[{t}:{t+1}]")
        for i in range(0 if half == 2 and k > 0 else 8):
            if len(g) == 2:
                A(f"v_max3_f32 v{M+i}, v{M+i}, v{T+i}, v{T+8+i}")
            else:
                A(f"v_max_f32 v{M+i}, v{M+i}, v{T+i}")
        if k == gsetup:
            assert k > guse
            A("v_and_b32 v37, 6, v35")
            A("v_lshrrev_b32 v38, 3, v35")
            A("v_lshl_add_u32 v37, v37, 2, v38")
            A("v_and_b32 v38, 1, v35")
            A("v_lshl_add_u32 v37, v37, 1, v38")
            A("s_mul_i32 s42, s37, 1536")
            A("s_lshl_b32 s43, s38, 9")
            A("s_add_u32 s42, s42, s43")
            A("v_lshl_add_u32 v37, v37, 3, s42", "LDS slot of this lane's channel; 16 bytes = channels c, c+8")
            A("s_mul_i32 s43, s36, 768")
            A("v_add_u32 v38, s43, v36")
            A("s_mul_i32 s48, s2, 1536")
            A("s_add_u32 s48, s48, s43")
            A(f"s_add_u32 s48, s48, {W_A}", "row half of waves 0,1")
    stamp(2)
    C("---- phase 2: reduce over lane bits 5,4,3 (one channel per lane is left), then over the 4 pixel groups")
    for i in range(4):
        A(f"v_permlane32_swap_b32 v{S+i}, v{S+i+4}")
    for i in range(4):
        A(f"v_permlane32_swap_b32 v{M+i}, v{M+i+4}")
    for i in range(2):
        A(f"v_pk_add_f32 v[{S+2*i}:{S+2*i+1}], v[{S+2*i}:{S+2*i+1}], v[{S+4+2*i}:{S+5+2*i}]")
    for i in range(4):
        A(f"v_max_f32 v{M+i}, v{M+i}, v{M+i+4}")
    for i in range(2):
        A(f"v_permlane16_swap_b32 v{S+i}, v{S+i+2}")
    for i in range(2):
        A(f"v_permlane16_swap_b32 v{M+i}, v{M+i+2}")
    A(f"v_pk_add_f32 v[{S}:{S+1}], v[{S}:{S+1}], v[{S+2}:{S+3}]")
    for i in range(2):
        A(f"v_max_f32 v{M+i}, v{M+i}, v{M+i+2}")
    A(f"v_add_f32_dpp v{T}, v{S}, v{S} row_ror:8 row_mask:0xf bank_mask:0x3")
    A(f"v_max_f32_dpp v{T+1}, v{M}, v{M} row_ror:8 row_mask:0xf bank_mask:0x3")
    A("s_nop 0")
    A(f"v_add_f32_dpp v{T}, v{S+1}, v{S+1} row_ror:8 row_mask:0xf bank_mask:0xc")
    A(f"v_max_f32_dpp v{T+1}, v{M+1}, v{M+1} row_ror:8 row_mask:0xf bank_mask:0xc")
    A(f"ds_write_b64 v37, v[{T}:{T+1}] offset:{L_RED}")
    A("s_cmp_ge_u32 s36, 2")
    A("s_waitcnt lgkmcnt(0)")
    A("s_barrier")
    stamp(3)
    A("s_cbranch_scc1 L_role2")
    C("waves 0,1: publish the workgroup's row")
    A("s_mov_b32 exec_hi, 0xffff")
    for q in range(4):
        A(f"ds_read_b128 v[{T+4*q}:{T+4*q+3}], v38 offset:{L_RED+q*1536}")
    A("s_waitcnt lgkmcnt(2)")
    A(f"v_add_f32 v{T}, v{T}, v{T+4}")
    A(f"v_add_f32 v{T+2}, v{T+2}, v{T+6}")
    A(f"v_max_f32 v{T+1}, v{T+1}, v{T+5}")
    A(f"v_max_f32 v{T+3}, v{T+3}, v{T+7}")
    A("s_waitcnt lgkmcnt(0)")
    A(f"v_add_f32 v{T+8}, v{T+8}, v{T+12}")
    A(f"v_add_f32 v{T+10}, v{T+10}, v{T+14}")
    A(f"v_max3_f32 v{T+1}, v{T+1}, v{T+9}, v{T+13}")
    A(f"v_max3_f32 v{T+3}, v{T+3}, v{T+11}, v{T+15}")
    A(f"v_add_f32 v{T}, v{T}, v{T+8}")
    A(f"v_add_f32 v{T+2}, v{T+2}, v{T+10}")
    if half:
        A(f"v_and_b32 v{T+1}, s44, v{T+1}")
        A(f"v_and_b32 v{T+3}, s44, v{T+3}")
    A(f"v_or_b32 v{T+1}, s46, v{T+1}", "a max is a bf16 value: its low half carries the tag")
    A(f"v_or_b32 v{T+3}, s52, v{T+3}")
    A(f"buffer_store_dwordx4 v[{T}:{T+3}], v36, s[20:23], s48 offen", "into L2; written through below")
    A("s_barrier")
    A("s_mov_b64 exec, -1")
    A("s_branch L_common")
    A("L_role2:")
    A("s_barrier", "the row leaves before any polling load is queued")
    A("s_lshr_b32 s47, s2, 3")
    A(f"s_sub_u32 s47, s47, {ry0}")
    A("s_cmp_lt_u32 s47, 12")
    A(f"s_cselect_b32 s42, {hex(redmask)}, 0")
    A("s_bitcmp1_b32 s42, s36")
    A("s_cbranch_scc0 L_role4")
    C("reducing workgroup: waves 2,3,8,9 watch column s47 of the group's 32 rows")
    A("v_mov_b32 v24, 0")
    A("v_mov_b32 v25, 1")
    A("v_lshrrev_b32 v2, 3, v35")
    A("v_mul_u32_u24 v20, 12288, v2")
    A("v_and_b32 v3, 0x70, v36")
    A("v_add_u32 v20, v20, v3")
    A("s_and_b32 s43, s2, 7")
    A("s_mul_i32 s42, s43, 1536")
    A("s_lshl_b32 s47, s47, 7")
    A("s_add_u32 s42, s42, s47")
    A(f"s_add_u32 s4, s42, {W_A}")
    for k in range(1, 4):
        A(f"s_add_u32 s{4+k}, s{3+k}, 98304")
    A("v_and_b32 v2, 3, v2", "8 copies of a group row, one per reading group, near its die")
    A("v_add_u32 v21, s56, v2")
    A("s_lshr_b32 s48, s57, 22")
    A("v_xor_b32 v21, s48, v21")
    A("v_and_b32 v21, 4, v21")
    A("v_lshlrev_b32 v21, 11, v21")
    A("v_lshl_add_u32 v21, v2, 15, v21")
    A("v_lshrrev_b32 v3, 1, v3")
    A("v_add_u32 v21, v21, v3")
    A("v_lshrrev_b32 v3, 5, v35")
    A("v_lshl_add_u32 v21, v3, 6, v21")
    A("v_xor_b32 v22, 0x22000, v21")
    A("s_bfe_u32 s43, s2, 0x10002")
    A(f"s_mul_i32 s43, s43, {16384 - 4 * 1536}")
    A("s_add_u32 s48, s42, s43")
    A("v_and_b32 v23, 16, v36")
    A("v_bfe_u32 v23, s59, v23, 16")
    A("L_pollA:")
    for k in range(4):
        A(f"buffer_load_dwordx4 v[{4+4*k}:{7+4*k}], v20, s[20:23], s{4+k} offen sc1")
    A("s_add_u32 s45, s45, 1")
    for k in range(4):
        A(f"s_waitcnt vmcnt({3-k})")
        if k == 0:
            A("v_xor_b32 v2, s46, v5")
        else:
            A(f"v_bitop3_b32 v2, v2, v{5+4*k}, s46 bitop3:0xf6")
        A(f"v_bitop3_b32 v2, v2, v{7+4*k}, s52 bitop3:0xf6", "a | (b ^ c)" if k == 0 else None)
    A("v_cmp_ne_u16 vcc, 0, v2")
    A("s_cbranch_vccz L_gotA")
    A(f"s_cmp_lt_u32 s45, {SPIN}")
    A("s_cbranch_scc1 L_pollA")
    A("L_gotA:")
    A("s_mov_b64 exec, 1")
    A(f"ds_wrxchg_rtn_b32 v26, v24, v25 offset:{L_FL+4}", "the first wave to see all rows publishes")
    A("s_mov_b64 exec, -1")
    A("v_add_f32 v4, v4, v8")
    A("v_add_f32 v6, v6, v10")
    A("v_add_f32 v12, v12, v16")
    A("v_add_f32 v14, v14, v18")
    for k in range(8):
        A(f"v_and_b32 v{5+2*k}, s44, v{5+2*k}")
    A("v_add_f32 v4, v4, v12")
    A("v_add_f32 v6, v6, v14")
    A("v_max3_f32 v5, v5, v9, v13")
    A("v_max3_f32 v7, v7, v11, v15")
    A("v_max_f32 v5, v5, v17")
    A("v_max_f32 v7, v7, v19")
    def fold345():
        A("v_permlane32_swap_b32 v4, v6", "pair picked by lane bit 5, reduced over lane bits 5,4,3")
        A("v_add_f32 v4, v4, v6")
        A("v_permlane32_swap_b32 v5, v7")
        A("v_mov_b32 v6, v4")
        A("v_max_f32 v5, v5, v7")
        A("v_mov_b32 v7, v5")
        A("v_permlane16_swap_b32 v4, v6")
        A("v_add_f32 v4, v4, v6")
        A("v_permlane16_swap_b32 v5, v7")
        A("v_max_f32 v5, v5, v7")
        A("v_add_f32_dpp v4, v4, v4 row_ror:8 row_mask:0xf bank_mask:0xf")
        A("s_nop 0")
        A("v_max_f32_dpp v5, v5, v5 row_ror:8 row_mask:0xf bank_mask:0xf")
    fold345()
    A("v_or_b32 v5, v23, v5")
    A("s_waitcnt lgkmcnt(0)")
    A("v_readfirstlane_b32 s42, v26")
    A("s_cmp_lg_u32 s42, 0")
    A("s_cbranch_scc1 L_common")
    A("buffer_store_dwordx2 v[4:5], v21, s[20:23], s48 offen sc1")
    A("buffer_store_dwordx2 v[4:5], v22, s[20:23], s48 offen sc1")
    A(f"ds_write_b32 v24, v25 offset:{L_FL}")
    A("s_branch L_common")
    A("L_role4:")
    A("s_sub_u32 s43, s36, 4")
    A("s_cmp_ge_u32 s43, 3")
    A("s_cbranch_scc1 L_common")
    C("waves 4..6 compute layer 1: park 24 data registers in LDS, fetch w1^T tiles into them")
    A("s_mul_i32 s42, s43, 6144")
    A(f"s_add_u32 s42, s42, {L_SP}")
    A("v_add_u32 v38, s42, v36")
    for k in range(6):
        A(f"ds_write_b128 v38, v[{VS+4*k}:{VS+4*k+3}] offset:{k*1024}")
    A("v_lshrrev_b32 v2, 4, v35")
    A("v_lshlrev_b32 v2, 3, v2")
    A("v_bfe_u32 v3, v35, 2, 2")
    A("v_add_u32 v2, v2, v3")
    A("v_mul_u32_u24 v2, 96, v2")
    A("v_and_b32 v3, 3, v35")
    A("v_lshl_add_u32 v2, v3, 3, v2")
    A("s_lshl_b32 s42, s43, 5")
    A("v_add_u32 v2, s42, v2")
    A("s_waitcnt lgkmcnt(0)")
    for k in range(6):
        A(f"ds_read_b64_tr_b16 v[{VS+4*k}:{VS+4*k+1}], v2 offset:{L_W1 + k*3072}")
        A(f"ds_read_b64_tr_b16 v[{VS+4*k+2}:{VS+4*k+3}], v2 offset:{L_W1 + k*3072 + 384}")
    A("v_and_b32 v2, 1, v35")
    A("v_mul_u32_u24 v2, 384, v2")
    A("v_lshrrev_b32 v3, 4, v35")
    A("v_lshl_add_u32 v39, v3, 4, v2")
    A("s_waitcnt lgkmcnt(0)")
    A("L_common:")
    C("every wave gathers column `wave` (16 channels) of the 8 group rows")
    A("v_lshrrev_b32 v2, 5, v35")
    A("v_bfe_u32 v3, v35, 3, 2")
    A("v_mul_u32_u24 v3, 1536, v3")
    A("v_lshl_add_u32 v8, v2, 14, v3")
    A("v_and_b32 v3, 0x70, v36")
    A("v_add_u32 v8, v8, v3")
    A("s_add_u32 s42, s56, s2")
    A("s_lshr_b32 s43, s57, 22")
    A("s_xor_b32 s42, s42, s43")
    A("s_and_b32 s42, s42, 4")
    A("s_lshl_b32 s42, s42, 11")
    A("s_and_b32 s43, s2, 7")
    A("s_lshl_b32 s43, s43, 15")
    A("s_add_u32 s42, s42, s43")
    A("s_lshl_b32 s43, s36, 7")
    A("s_add_u32 s47, s42, s43")
    A("v_lshrrev_b32 v3, 2, v3")
    A("v_lshl_add_u32 v9, v2, 1, v3")
    A("s_lshl_b32 s42, s36, 5")
    A("v_add_u32 v9, s42, v9")
    A("v_lshrrev_b32 v2, 2, v35")
    A("v_mul_u32_u24 v2, 384, v2")
    A("v_and_b32 v3, 3, v35")
    A("v_lshl_add_u32 v2, v3, 3, v2")
    A("v_add_u32 v2, s42, v2")
    for k in range(3):
        A(f"ds_read_b64_tr_b16 v[{W2F+2*k}:{W2F+2*k+1}], v2 offset:{L_W2 + k*6144}", "w2 tile of channels 16*wave.." if k == 0 else None)
    A("v_lshlrev_b32 v37, 3, v35")
    A("s_cmp_lt_u32 s36, 2")
    A(f"s_cselect_b32 s3, {NWT}, 0", "waves 0,1: rounds left before the row is written through")
    def wthrough(name):
        A("s_sub_u32 s3, s3, 1")
        A("s_cmp_eq_u32 s3, 0")
        A(f"s_cbranch_scc0 {name}")
        A("s_mov_b64 s[4:5], exec")
        A("s_mov_b32 exec_lo, -1")
        A("s_mov_b32 exec_hi, 0xffff")
        A(f"buffer_store_dwordx4 v[{T}:{T+3}], v36, s[20:23], s48 offen sc1")
        A("s_mov_b64 exec, s[4:5]")
        A(f"{name}:")
    A("s_lshr_b32 s42, s2, 3")
    A(f"s_sub_u32 s42, s42, {ry0}")
    A("s_cmp_ge_u32 s42, 12")
    A("s_cbranch_scc1 L_open")
    A("v_mov_b32 v2, 0")
    A("L_gate:", "reducing workgroup: leave the memory pipeline to the reducers until they have published")
    A(f"ds_read_b32 v3, v2 offset:{L_FL}")
    A("s_waitcnt lgkmcnt(0)")
    A("v_cmp_ne_u32 vcc, 0, v3")
    A("s_cbranch_vccnz L_open")
    wthrough("L_nowt0")
    A("s_add_u32 s45, s45, 1")
    A(f"s_cmp_lt_u32 s45, {SPIN}")
    A("s_cbranch_scc1 L_gate")
    A("s_branch L_open")
    A(".p2align 12")
    A("L_open:")
    A("buffer_load_dwordx4 v[4:7], v8, s[20:23], s47 offen sc1")
    A("L_pollB:")
    A("s_waitcnt vmcnt(0)")
    A("v_cmp_ne_u16 vcc, s46, v5")
    A("v_cmp_ne_u16 s[4:5], s52, v7")
    A("s_or_b64 vcc, vcc, s[4:5]")
    A("s_cbranch_scc0 L_gotB")
    A("s_wqm_b64 exec, vcc", "reload the quads that are not complete")
    A("buffer_load_dwordx4 v[4:7], v8, s[20:23], s47 offen sc1")
    wthrough("L_nowt1")
    A("s_add_u32 s45, s45, 1")
    A(f"s_cmp_lt_u32 s45, {SPIN}")
    A("s_cbranch_scc1 L_pollB")
    A("s_waitcnt vmcnt(0)")
    A("L_gotB:")
    A("s_mov_b64 exec, -1")
    A("v_and_b32 v5, s44, v5")
    A("v_and_b32 v7, s44, v7")
    fold345()
    A("v_mul_f32 v4, 0x36800000, v4", "mean = sum / 262144")
    A("v_cvt_pk_bf16_f32 v4, v4, v5")
    A(f"ds_write_b16 v9, v4 offset:{L_G}")
    A(f"ds_write_b16_d16_hi v9, v4 offset:{L_G+384}")
    A("s_cmp_gt_i32 s3, 0")
    A("s_cbranch_scc0 L_nowt2")
    A("s_mov_b32 exec_hi, 0xffff")
    A(f"buffer_store_dwordx4 v[{T}:{T+3}], v36, s[20:23], s48 offen sc1", "a reducer on another die may still wait for the row")
    A("s_mov_b32 exec_hi, -1")
    A("L_nowt2:")
    A("s_sub_u32 s42, s36, 4")
    A("s_cmp_ge_u32 s42, 3")
    A("s_waitcnt lgkmcnt(0)")
    A("s_barrier")
    stamp(4)
    C("---- phase 3: h = relu([mean; max] @ w1), columns alternate mean / max")
    A("s_cbranch_scc1 L_l2")
    for k in range(6):
        A(f"ds_read_b128 v[{BF+4*k}:{BF+4*k+3}], v39 offset:{L_G + k*64}")
    A("s_lshl_b32 s42, s42, 9")
    A("v_add_u32 v36, s42, v37")
    A("s_mov_b32 s43, 0x7f800000")
    for k in range(6):
        A(f"s_waitcnt lgkmcnt({5-k})")
        c = "0" if k == 0 else "v[0:3]"
        A(f"v_mfma_f32_16x16x32_bf16 v[0:3], v[{VS+4*k}:{VS+4*k+3}], v[{BF+4*k}:{BF+4*k+3}], {c}")
    A("s_nop 7")
    for i in range(4):
        A(f"v_mul_f32_e64 v{4+i}, v{i}, s43 clamp", "clamp(h * inf) = (h > 0)" if i == 0 else None)
    A("v_pk_mul_f32 v[0:1], v[0:1], v[4:5]")
    A("v_pk_mul_f32 v[2:3], v[2:3], v[6:7]")
    A("v_cvt_pk_bf16_f32 v4, v0, v1")
    A("v_cvt_pk_bf16_f32 v5, v2, v3")
    A(f"ds_write_b64 v36, v[4:5] offset:{L_H}")
    A("L_l2:")
    lane_offsets()
    A("s_waitcnt lgkmcnt(0)")
    A("s_barrier")
    C("scale = sigmoid(h_mean @ w2 + h_max @ w2), 16 channels per wave")
    for k in range(3):
        A(f"ds_read_b64 v[{4+2*k}:{5+2*k}], v37 offset:{L_H + k*512}")
    A("v_and_b32 v2, 15, v35")
    A("s_lshl_b32 s42, s36, 6")
    A("v_lshl_add_u32 v36, v2, 2, s42")
    A("v_and_b32 v2, 7, v35")
    A("s_lshl_b32 s42, s38, 8")
    A("v_lshl_add_u32 v39, v2, 5, s42")
    A("s_mov_b32 s43, 0xbfb8aa3b", "-log2(e)")
    if wdot:
        A("v_bfe_i32 v3, v35, 0, 1")
        A("v_xor_b32 v3, 0xffff, v3", "even channel: low half, odd channel: high half")
    for k in range(3):
        A(f"s_waitcnt lgkmcnt({2-k})")
        c = "0" if k == 0 else "v[12:15]"
        A(f"v_mfma_f32_16x16x16_bf16 v[12:15], v[{4+2*k}:{5+2*k}], v[{W2F+2*k}:{W2F+2*k+1}], {c}")
    A("s_nop 7")
    A("v_cvt_pk_bf16_f32 v12, v12, v13")
    A("v_lshlrev_b32 v13, 16, v12")
    A("v_and_b32 v12, s44, v12")
    A("v_add_f32 v12, v12, v13")
    A("v_cvt_pk_bf16_f32 v12, 0, v12")
    A("v_mul_f32 v12, s43, v12")
    A("v_exp_f32 v12, v12")
    A("s_nop 0")
    A("v_add_f32 v12, 1.0, v12")
    A("v_rcp_f32 v12, v12")
    A("s_nop 0")
    if wdot:
        A("v_cvt_pk_bf16_f32 v12, v12, v12")
        A("v_and_b32 v12, v3, v12", "(scale, 0) or (0, scale)")
    else:
        A("v_cvt_pk_bf16_f32 v12, 0, v12")
    A(f"ds_write_b32 v36, v12 offset:{L_SC}")
    A("s_waitcnt lgkmcnt(0)")
    A("s_barrier")
    C("---- phase 4: scale the registers and store them")
    A(f"ds_read_b128 v[{SCR}:{SCR+3}], v39 offset:{L_SC}")
    A(f"ds_read_b128 v[{SCR+4}:{SCR+7}], v39 offset:{L_SC+16}")
    stamp(5)
    dyn = list(range(nstatic, 16))
    steps = []
    for k in range(nstatic):
        part = dyn[k * len(dyn) // nstatic:(k + 1) * len(dyn) // nstatic]
        steps += part[:1] + [k] + part[1:]
    order = [2 * i + h for i in steps for h in (0, 1)]
    if fine:
        assert sadr
        st = list(range(2 * nstatic))
        order = []
        for k, i in enumerate(dyn):
            order += [2 * i, 2 * i + 1]
            take = (k + 1) * 2 * nstatic // (len(dyn) - fine + 1) - k * 2 * nstatic // (len(dyn) - fine + 1)
            for _ in range(take):
                if st: order.append(st.pop(0))
    assert sorted(order) == list(range(NL)) and min(order.index(j) for j in range(NL - 6, NL)) == order.index(NL - 6) > 1
    for n, j in enumerate(order):
        tb, i2, h = T2 + 8 * (n % 2), j >> 1, j & 1
        if n in brk:
            A(f"s_branch L_pageW{n}", "the stores do not fit one code page: next page")
            A(".p2align 12")
            A(f"L_pageW{n}:")
        if j == NL - 6:
            A("s_waitcnt lgkmcnt(0)")
        if n and n % wbar == 0:
            A("s_barrier", "the waves store in step" if n == wbar else None)
        fixed = sadr and i2 < nstatic
        ar = (26 if fixed else 28) + h
        need = not (fixed and i2 > 0)
        if (h == 0 or (fine and j == 1)) and need:
            A(f"v_readlane_b32 s50, v34, {i2}")
        if wdot:
            if n == 0:
                A("s_nop 1")
                addr(ar, h)
                A("s_waitcnt lgkmcnt(0)")
            for i in range(8):
                A(f"v_dot2_f32_bf16 v{tb+i}, v{VD+4*j+i//2}, v{SCR+i}, 0", "x * scale, exact in f32" if n == 0 and i == 0 else None)
            if n and need: addr(ar, h)
        else:
            for i in range(4):
                d = VD + 4 * j + i
                A(f"v_lshlrev_b32 v{tb+2*i}, 16, v{d}")
                A(f"v_and_b32 v{tb+2*i+1}, s44, v{d}")
            if need: addr(ar, h)
            if n == 0:
                A("s_waitcnt lgkmcnt(0)")
            for i in range(4):
                A(f"v_pk_mul_f32 v[{tb+2*i}:{tb+2*i+1}], v[{tb+2*i}:{tb+2*i+1}], v[{SCR+2*i}:{SCR+2*i+1}]")
        for i in range(4):
            A(f"v_cvt_pk_bf16_f32 v{VD+4*j+i}, v{tb+2*i}, v{tb+2*i+1}")
        A(f"buffer_store_dwordx4 v[{VD+4*j}:{VD+4*j+3}], v{ar}, s[12:15], s{TAB+i2} offen sc1")
        if n == 0:
            A("s_sub_u32 s42, s36, 4")
            A("s_cmp_ge_u32 s42, 3")
            A("s_cbranch_scc1 L_noreload")
            for k in range(6):
                A(f"ds_read_b128 v[{VS+4*k}:{VS+4*k+3}], v38 offset:{k*1024}", "parked registers back" if k == 0 else None)
            A("L_noreload:")
    if stamps:
        stamp(6)
        A("s_waitcnt vmcnt(0)")
        stamp(7)
        A("s_waitcnt lgkmcnt(0)")
        A("s_mov_b64 exec, 1")
        if diag2:
            A("s_or_b32 s42, s2, s36")
            A("s_cmp_lg_u32 s42, 0")
            A("s_cbranch_scc1 L_end")
            A("L_dq1:")
            A("s_memrealtime s[78:79]")
            A("s_waitcnt lgkmcnt(0)")
            A("s_sub_u32 s43, s78, s60")
            A("s_cmp_lt_u32 s43, 6000")
            A("s_cbranch_scc1 L_dq1")
            A("v_mov_b32 v1, 0")
            for nm, srd, dst in (("x", 8, 62), ("o", 12, 64)):
                A(f"s_mov_b64 s[{dst}:{dst+1}], 0")
                A("s_mov_b32 s3, 0")
                A(f"L_dq{nm}:")
                A("s_mov_b32 s47, 0")
                for rep in range(3):
                    A("s_lshl_b32 s42, s3, 21")
                    A(f"s_add_u32 s42, s42, {0x100000 + rep*0x14100}")
                    A(f"s_and_b32 s43, s{srd}, 0x3fff")
                    A("s_sub_u32 s42, s42, s43")
                    A("s_add_u32 s43, s42, 8192")
                    A(f"buffer_load_dword v3, v1, s[{srd}:{srd+3}], s42 offen offset:128 nt")
                    A(f"buffer_load_dword v4, v1, s[{srd}:{srd+3}], s43 offen offset:128 nt")
                    A("s_waitcnt vmcnt(1)")
                    A("s_memtime s[66:67]")
                    A("s_waitcnt vmcnt(0)")
                    A("s_memtime s[68:69]")
                    A("s_waitcnt lgkmcnt(0)")
                    A("s_sub_u32 s42, s68, s66")
                    A("s_cmpk_le_u32 s42, 80")
                    A("s_addc_u32 s47, s47, 0")
                A("s_lshr_b32 s47, s47, 1")
                A("s_xor_b32 s47, s47, s3")
                A("s_and_b32 s70, s47, 1")
                A("s_mov_b32 s71, 0")
                A("s_lshl_b64 s[70:71], s[70:71], s3")
                A(f"s_or_b64 s[{dst}:{dst+1}], s[{dst}:{dst+1}], s[70:71]")
                A("s_add_u32 s3, s3, 1")
                A("s_cmp_lt_u32 s3, 48")
                A(f"s_cbranch_scc1 L_dq{nm}")
            for k in range(4):
                A(f"v_mov_b32 v{4+k}, s{62+k}")
            A("buffer_store_dwordx4 v[4:7], v1, s[16:19], 0 offen offset:16")
            for dst, r in ((62, 42), (64, 43)):
                A(f"s_lshr_b64 s[70:71], s[{dst}:{dst+1}], 1")
                A(f"s_xor_b64 s[70:71], s[70:71], s[{dst}:{dst+1}]")
                A("s_and_b32 s71, s71, 0x7fff")
                A(f"s_bcnt1_i32_b64 s{r}, s[70:71]")
            A("s_min_u32 s42, s42, 19")
            A("s_mul_i32 s43, s43, 20")
            A("s_add_u32 s42, s42, s43")
            A("s_mul_i32 s42, s42, 200")
            A("s_add_u32 s42, s42, 30000")
            A("s_min_u32 s42, s42, 290000")
            A("L_dq4:")
            A("s_memrealtime s[78:79]")
            A("s_waitcnt lgkmcnt(0)")
            A("s_sub_u32 s43, s78, s60")
            A("s_cmp_lt_u32 s43, s42")
            A("s_cbranch_scc1 L_dq4")
            A("s_branch L_end")
        if diag:
            a, amax, b, bmax = diag
            A("s_barrier")
            A("s_cmp_lg_u32 s36, 11")
            A("s_cbranch_scc1 L_end")
            A("s_memrealtime s[74:75]")
            A("s_waitcnt lgkmcnt(0)")
            A("v_mov_b32 v9, 64")
            A(("v_mov_b32" if amax else "v_not_b32") + f" v10, s{60+2*a}")
            A(("v_mov_b32" if bmax else "v_not_b32") + f" v11, s{60+2*b}")
            A("buffer_atomic_umax v10, v9, s[16:19], 0 offen sc1")
            A("buffer_atomic_umax v11, v9, s[16:19], 0 offen offset:4 sc1")
            A("s_waitcnt vmcnt(0)")
            A("s_cmp_lg_u32 s2, 0")
            A("s_cbranch_scc1 L_end")
            A("L_dg1:")
            A("s_memrealtime s[78:79]")
            A("s_waitcnt lgkmcnt(0)")
            A("s_sub_u32 s43, s78, s60")
            A("s_cmp_lt_u32 s43, 10000")
            A("s_cbranch_scc1 L_dg1")
            A("buffer_load_dwordx2 v[10:11], v9, s[16:19], 0 offen sc1")
            A("s_waitcnt vmcnt(0)")
            A("v_readfirstlane_b32 s42, v10")
            A("v_readfirstlane_b32 s43, v11")
            if not amax: A("s_not_b32 s42, s42")
            if not bmax: A("s_not_b32 s43, s43")
            A("s_sub_u32 s42, s42, s43")
            A("s_mul_i32 s42, s42, 10")
            A("s_add_u32 s42, s42, 30000")
            A("s_min_u32 s42, s42, 200000")
            A("L_dg4:")
            A("s_memrealtime s[78:79]")
            A("s_waitcnt lgkmcnt(0)")
            A("s_sub_u32 s43, s78, s60")
            A("s_cmp_lt_u32 s43, s42")
            A("s_cbranch_scc1 L_dg4")
            A("s_branch L_end")
        A("s_mul_i32 s3, s2, 12")
        A("s_add_u32 s3, s3, s36")
        A("s_lshl_b32 s3, s3, 5")
        A(f"s_add_u32 s3, s3, {1 << 20}")
        A("v_mov_b32 v1, 0")
        for i in range(8):
            A(f"v_mov_b32 v{4+i}, s{60+2*i}")
        A("buffer_store_dwordx4 v[4:7], v1, s[20:23], s3 offen")
        A("buffer_store_dwordx4 v[8:11], v1, s[20:23], s3 offen offset:16")
    A("L_end:")
    A("s_endpgm")
    A('.section .rodata,"a"')
    A(".p2align 6")
    A(".amdhsa_kernel standalone__channel_attn_cbam__vision_kernel")
    for d in ("next_free_vgpr 168", "next_free_sgpr 96", "accum_offset 168", "group_segment_fixed_size 0", "kernarg_size 48",
              "user_sgpr_count 2", "user_sgpr_kernarg_segment_ptr 1", "system_sgpr_workgroup_id_x 1", "float_denorm_mode_32 3"):
        A("  .amdhsa_" + d)
    A(".end_amdhsa_kernel")
    out = [HEADER.rstrip(), f"; @launch grid=(256,1,1) block=({NW*64},1,1) lds={L_END}"]
    for s, c in L:
        if s.startswith(("s_", "v_", "ds_", "buffer_", "global_")):
            s = "    " + s
        if not s:
            s = "    ; " + c
        elif c:
            s = f"{s:64s} ; {c}"
        out.append(s)
    return "\n".join(out) + "\n"

if __name__ == "__main__":
    cfg = json.loads(sys.argv[1]) if len(sys.argv) > 1 else {}
    sys.stdout.write(gen(**cfg))
```

```python
import sys, json

HEADER = """; CBAM channel attention: out = x * sigmoid(MLP(mean_hw x) + MLP(max_hw x)), one pass over HBM.
;
;  2. Grid-wide reduction through d_ws in two hops: the 32 workgroups with equal id%8 publish rows of
;     {sum, max|tag} pairs, 12 of them each reduce one 128-byte column; the 8 group rows then go to every
"""

def gen(W=4, W2=6, gW2=11, nstatic=5, wpos=16, rbar=9, wbar=2, THR=70, MIX=0xAAAA, MIX2=0xFEFE, NWT=64,
        ry0=16, redmask=0x30C, gsetup=8, stamps=0, diag=None, wdot=1, sadr=1, brk=(22,), rbrk=(), diag2=0, MIXO=None, sc0=0, fine=0, half=0, diag3=0):
    if diag2: stamps = 1
    if diag: stamps = 1
    NW, NL, VD = 12, 32, 40
    XB = 100663296
    L_W1, L_W2 = 0, 18432
    L_RED = 36864
    L_G = L_RED + 6144
    L_H = L_G + 768
    L_SC = L_H + 1536
    L_FL = L_SC + 768
    L_SP = L_FL + 64
    L_END = L_SP + 3 * 6144
    W_A = 256 << 10
    SPIN = 1 << 22
    SW = 6 << 20
    TAB = 80
    NS = 25
    S, M, T = 2, 10, 18
    VS = VD + 4 * (NL - 6)
    W2F, BF, SCR, T2 = 28, 4, 2, 10
    L = []
    def A(s, c=None):
        L.append((s, c))
    def C(c):
        L.append(("", c))
    def stamp(i):
        if stamps: A(f"s_memrealtime s[{60+2*i}:{61+2*i}]")
    def addr(dst, src):
        A(f"v_add_u32 v{dst}, s50, v{src}")
        A(f"v_bfe_u32 v{dst}, v{dst}, 13, 1")
        A(f"v_mad_u32_u24 v{dst}, v{dst}, s49, v{src}")
    def lane_offsets():
        A("v_lshrrev_b32 v0, 3, v35")
        A("v_mul_u32_u24 v0, 384, v0")
        A("v_and_b32 v1, 7, v35")
        A("v_lshl_add_u32 v0, v1, 4, v0")
        A("v_add_u32 v0, s39, v0", "position in a half window: 8 pixels x 128 bytes per load")
        A("v_add_u32 v1, 12288, v0", "... of the second load of a step")
    def dbg_srd():
        A("s_mov_b32 s16, s28"); A("s_mov_b32 s17, s29")
        A("s_mov_b32 s18, 256"); A("s_mov_b32 s19, 0x20000")

    A(".amdgcn_target \"amdgcn-amd-amdhsa--gfx950\"")
    A(".text")
    A(".globl standalone__channel_attn_cbam__vision_kernel")
    A(".p2align 12")
    A(".p2align 8")
    A(".type standalone__channel_attn_cbam__vision_kernel,@function")
    A("standalone__channel_attn_cbam__vision_kernel:")
    stamp(0)
    A("s_load_dwordx4 s[4:7], s[0:1], 0", "x, w1")
    A("s_load_dwordx4 s[24:27], s[0:1], 16", "w2, out")
    A("s_load_dwordx4 s[28:31], s[0:1], 32", "debug, ws")
    A("s_memtime s[58:59]")
    A("s_cmp_ge_u32 s2, 256")
    A("s_cbranch_scc1 %s" % ("L_extra" if diag3 else "L_end"), "extra workgroups leave")
    A("v_lshrrev_b32 v2, 6, v0")
    A("v_and_b32 v35, 63, v0", "lane")
    A("v_readfirstlane_b32 s36, v2", "wave")
    A("s_mov_b32 s35, 0x20000")
    if sc0 == 1:
        A("s_lshr_b32 s40, s2, 3")
        A("s_and_b32 s42, s2, 7")
    elif sc0 == 2:
        A("s_lshr_b32 s40, s2, 2")
        A("s_bfe_u32 s42, s2, 0x10001")
        A("s_or_b32 s40, s40, s42")
        A("s_and_b32 s42, s2, 5")
    else:
        A("s_lshr_b32 s40, s2, 2")
        A("s_and_b32 s42, s2, 1")
        A("s_or_b32 s40, s40, s42")
        A("s_and_b32 s42, s2, 6")
    A(f"s_cselect_b32 s40, {NS}, s40", f"scout number 2a+b of workgroup 8a+b, b<2 (>= {NS}: none)")
    A("s_lshl_b32 s42, s36, 5")
    A("s_or_b32 s42, s42, s40")
    A(f"s_cmp_lt_u32 s42, {NS}")
    A("s_cbranch_scc0 L_main")
    C("---- scout (wave 0): which die holds the lower 8 KiB half of 16 KiB in one page of x, out or ws")
    A("s_getreg_b32 s48, hwreg(HW_REG_XCC_ID, 0, 3)")
    A("s_mov_b64 exec, 1")
    A("v_mov_b32 v2, 0")
    A(f"s_mov_b32 s34, {XB}")
    A("s_lshr_b32 s43, s40, 1", "8 MiB group a")
    A("s_and_b32 s55, s40, 1", "buffer: 0 x, 1 out, 2 ws")
    A("s_lshl_b32 s54, s55, 7", "word of d_debug")
    A("s_cmp_eq_u32 s43, 12")
    A("s_cselect_b32 s55, 2, s55")
    A("s_cselect_b32 s42, 0, s43")
    A("s_lshl_b32 s42, s42, 23")
    A("s_bitset1_b32 s42, 22", "page 2 of the group")
    A("s_lshl_b32 s52, s48, 29")
    A("s_cmp_eq_u32 s40, 0")
    A("s_cselect_b32 s52, s52, 0", "workgroup 0 also tells its XCC")
    A("s_bitset1_b32 s52, s43", "done bit")
    A("s_lshl_b32 s3, 0x10000, s43")
    A("s_cmp_ge_u32 s48, 4")
    A("s_cselect_b32 s48, s3, 0")
    A("s_xor_b32 s3, s3, s48")
    A("s_or_b32 s48, s48, s52", "answer if the lower half is on my die")
    A("s_or_b32 s3, s3, s52", "answer if it is on the other die")
    A("s_cmp_lt_u32 s40, 2")
    A("s_cselect_b32 s52, s54, 0x1000")
    A("v_mov_b32 v5, s52")
    A("s_cmp_eq_u32 s55, 1")
    A("s_waitcnt lgkmcnt(0)")
    A("s_cselect_b32 s32, s26, s4")
    A("s_cselect_b32 s33, s27, s5")
    A("s_cmp_eq_u32 s55, 2")
    A("s_cselect_b32 s32, s30, s32")
    A("s_cselect_b32 s33, s31, s33")
    A("s_lshl_b32 s43, s58, 5")
    A(f"s_and_b32 s43, s43, {hex(0x1fff80 & ~8192)}", "some line of the page, so that the pair is not an L2 hit")
    A("s_add_u32 s42, s42, s43")
    A("s_and_b32 s43, s32, 0x1ffffc")
    A("s_sub_u32 s42, s42, s43")
    A("s_add_u32 s43, s42, 8192")
    dbg_srd()
    A("buffer_load_dword v3, v2, s[32:35], s42 offen nt", "lower half (values unused)")
    A("buffer_load_dword v4, v2, s[32:35], s43 offen nt", "upper half")
    A("buffer_atomic_or v2, v5, s[16:19], 0 offen sc1", "scouts 0,1: OR 0 fetches the word's line; others: out of range")
    A("s_waitcnt vmcnt(2)")
    A("s_memtime s[56:57]")
    A("s_waitcnt vmcnt(1)")
    A("s_memtime s[58:59]")
    A("s_waitcnt lgkmcnt(0)")
    A("s_sub_u32 s42, s58, s56")
    A(f"s_cmpk_le_u32 s42, {THR}", "upper half was already back: the lower half is the far one")
    A("s_cselect_b32 s48, s3, s48")
    A("v_mov_b32 v15, s48")
    A("buffer_atomic_or v15, v2, s[16:19], s54 offen sc1")
    A("s_barrier", "releases the other waves of this workgroup")
    A("s_cmp_lg_u32 s40, 0")
    A("s_cbranch_scc1 L_notag")
    A("s_memrealtime s[56:57]", "workgroup 0 picks the tag of this launch")
    A("v_mov_b32 v12, 1")
    A("s_waitcnt lgkmcnt(0)")
    A("s_mul_i32 s43, s56, 0x9e3779b1")
    A("v_mov_b32 v13, s43")
    A("buffer_store_dwordx2 v[12:13], v2, s[16:19], 0 offen offset:192 sc1")
    A("L_notag:")
    A("s_mov_b64 exec, -1")
    A(f"s_mov_b32 s40, {NS}")
    A("L_main:")
    C("---- workgroups 112..127 pull the kernel's code into L2 before the data stream fills the queues")
    A("s_lshr_b32 s42, s2, 4")
    A("s_and_b32 s43, s36, 12")
    A("s_lshl_b32 s43, s43, 4")
    A("s_or_b32 s42, s42, s43")
    A(f"s_cmp_lg_u32 s42, {13 if sc0 == 1 else 7}")
    A("s_cbranch_scc1 L_nocode")
    A("s_getpc_b64 s[54:55]")
    A("L_pc:")
    A("v_lshlrev_b32 v32, 7, v0")
    A("v_min_u32 v32, L_end-L_pc, v32")
    A("v_add_co_u32 v32, vcc, s54, v32")
    A("v_mov_b32 v33, s55")
    A("s_nop 0")
    A("v_addc_co_u32 v33, vcc, 0, v33, vcc")
    A("global_load_dword v32, v[32:33], off", "one word of every 128-byte line (values unused)")
    A("L_nocode:")
    A("s_mul_i32 s37, s36, 43691")
    A("s_lshr_b32 s37, s37, 17", "q = wave/3: pixel group")
    A("s_mul_i32 s38, s37, 3")
    A("s_sub_u32 s38, s36, s38", "t = wave%3: channels 64t..64t+63")
    A("s_mul_i32 s39, s37, 3072")
    A("s_lshl_b32 s42, s38, 7")
    A("s_add_u32 s39, s39, s42")
    lane_offsets()
    A("s_lshr_b32 s42, s2, 3")
    A("s_and_b32 s43, s2, 3")
    A("s_lshl_b32 s51, s42, 2")
    A("s_add_u32 s51, s51, s43", "pair p")
    A(f"s_mul_i32 s{TAB}, s51, 49152", "window of step 0; step i adds 6 MiB")
    A("s_lshl_b32 s50, s2, 11")
    A("s_lshl_b32 s42, s42, 13")
    A("s_xor_b32 s50, s50, s42")
    A("s_and_b32 s50, s50, 0x2000", f"first {nstatic} steps: halves picked by id bits alone")
    A("s_movk_i32 s49, 24576")
    addr(38, 0)
    addr(39, 1)
    A(f"s_mov_b32 s10, {XB}"); A("s_mov_b32 s11, 0x20000")
    A(f"s_cmp_lt_u32 s40, {NS}")
    A("s_waitcnt lgkmcnt(0)")
    A("s_mov_b32 s8, s4"); A("s_mov_b32 s9, s5")
    A("s_cbranch_scc0 L_go")
    A("s_barrier", "waves 1..11 of a scout workgroup wait for the probe")
    A("L_go:")
    C("---- phase 1: stream x into registers, accumulate sum (v2..v9) and max (v10..v17)")
    ops = []
    def issue(j):
        r, i, h = VD + 4 * j, j >> 1, j & 1
        if i < nstatic:
            A(f"buffer_load_dwordx4 v[{r}:{r+3}], v{38+h}, s[8:11], s{TAB+i} offen nt")
            if h == 0: A(f"s_add_u32 s{TAB+i+1}, s{TAB+i}, {SW}")
        else:
            if h == 0:
                A(f"v_readlane_b32 s50, v34, {i}")
                if i < 15:
                    A(f"s_add_u32 s{TAB+i+1}, s{TAB+i}, {SW}")
                    A("s_nop 0")
                else:
                    A("s_nop 1")
            addr(39, h)
            A(f"buffer_load_dwordx4 v[{r}:{r+3}], v39, s[8:11], s{TAB+i} offen nt")
        ops.append(j)
        if j == wpos:
            C("weights into LDS: waves 0..5 w1, waves 6..11 w2, 3 KiB each")
            A("s_cmp_ge_u32 s36, 6")
            A("s_cselect_b32 s32, s24, s6")
            A("s_cselect_b32 s33, s25, s7")
            A("s_cselect_b32 s42, 18432, 0")
            A("s_mov_b32 s34, 18432")
            A("s_mul_i32 s43, s36, 3072")
            A("s_mov_b32 m0, s43")
            A("s_sub_u32 s42, s43, s42")
            for k in range(3):
                A(f"buffer_load_dwordx4 v36, s[32:35], s42 offen offset:{k*1024} lds")
                ops.append(None)
        if j == NL - 1:
            C("wave 0: first touch of this workgroup's hand-off row, off the critical path (values unused)")
            A("s_cmp_lg_u32 s36, 0")
            A("s_cbranch_scc1 L_notouch")
            A("v_lshlrev_b32 v39, 7, v35")
            A("s_mov_b64 exec, 0xfff")
            A("buffer_load_dword v39, v39, s[20:23], s48 offen sc1")
            A("s_mov_b64 exec, -1")
            A("L_notouch:")
    def after(j):
        return len(ops) - 1 - ops.index(j)
    def map_use():
        C("the scouts' bits -> v34 lane i: offset that picks this workgroup's halves in step i")
        A("s_load_dword s56, s[28:29], 0")
        A("s_load_dword s57, s[28:29], 128")
        A("s_load_dwordx2 s[58:59], s[28:29], 192")
        if MIXO is not None:
            A("s_bitcmp1_b32 s2, 0")
            A(f"s_mov_b32 s43, {hex(MIX2)}")
            A(f"s_cmov_b32 s43, {hex(MIXO)}")
        A("s_sub_u32 s42, s12, s8")
        A("s_add_u32 s42, s42, 0x800")
        A("s_bitcmp1_b32 s42, 12")
        A(f"s_mov_b32 s42, {hex(MIX)}")
        A(f"s_cmov_b32 s42, {hex(MIX2) if MIXO is None else 's43'}")
        if MIXO is not None:
            A("s_lshr_b32 s43, s2, 3")
            A("v_add_u32 v19, s43, v35")
        else:
            A("v_add_u32 v19, s51, v35")
        A("v_and_b32 v19, 15, v19")
        A("v_bfe_u32 v19, s42, v19, 1", "1: near for the store, 0: near for the load")
        A("v_cmp_ne_u32 vcc, 0, v19")
        A("s_and_b32 s42, s8, 0x1fffff")
        A("s_and_b32 s43, s12, 0x1fffff")
        A("v_mov_b32 v20, s42")
        A("v_mov_b32 v21, s43")
        A("v_cndmask_b32 v20, v20, v21, vcc", "buffer start inside its 2 MiB page")
        A("v_and_b32 v18, 15, v35")
        A(f"v_add_u32 v21, s{TAB}, v20")
        A("v_lshrrev_b32 v21, 21, v21")
        A("v_mad_u32_u24 v18, v18, 3, v21", "page of the window")
        A("v_lshrrev_b32 v21, 2, v18")
        A("v_min_u32 v21, 11, v21")
        A("v_mad_u32_u24 v19, v19, 12, v21", "bit of its group")
        def chk():
            A("s_lshl_b32 s42, s58, 12")
            A("s_or_b32 s42, s42, s57")
            A("s_and_b32 s42, s42, s56")
            A("s_andn2_b32 s42, 0x1fff, s42", "13 + 12 done bits and the tag")
            A("s_cbranch_scc0 L_mapok")
        A("s_waitcnt lgkmcnt(0)")
        chk()
        A("v_mov_b32 v26, 0")
        A("L_map:", "not complete yet: poll")
        A("buffer_load_dword v22, v26, s[16:19], 0 offen sc1")
        A("buffer_load_dword v23, v26, s[16:19], 0 offen offset:128 sc1")
        A("buffer_load_dwordx2 v[24:25], v26, s[16:19], 0 offen offset:192 sc1")
        A("s_add_u32 s45, s45, 1")
        A("s_waitcnt vmcnt(0)")
        for k in range(4):
            A(f"v_readfirstlane_b32 s{56+k}, v{22+k}")
        chk()
        A(f"s_cmp_lt_u32 s45, {SPIN}")
        A("s_cbranch_scc1 L_map")
        A("L_mapok:")
        stamp(1)
        A("s_and_b32 s46, s59, 0xffff", "tag of even pairs")
        A("s_lshr_b32 s52, s59, 16", "tag of odd pairs")
        A("s_and_b32 s42, s56, 0x10000000")
        A("s_or_b32 s57, s57, s42")
        A("s_lshr_b32 s57, s57, 16")
        A("s_lshl_b32 s57, s57, 12")
        A("s_bfe_u32 s42, s56, 0xc0010")
        A("s_or_b32 s57, s57, s42", "x groups, out groups, hand-off page")
        A("s_lshr_b32 s56, s56, 29", "XCC of workgroup 0")
        A("s_lshl_b32 s42, s57, 1", "majority of three neighbouring groups")
        A("s_lshr_b32 s43, s57, 2")
        A("s_and_b32 s42, s42, 0xffeffe")
        A("s_and_b32 s43, s43, 0x1001")
        A("s_or_b32 s42, s42, s43")
        A("s_lshr_b32 s43, s57, 1")
        A("s_lshl_b32 s48, s57, 2")
        A("s_and_b32 s43, s43, 0x7ff7ff")
        A("s_and_b32 s48, s48, 0x800800")
        A("s_or_b32 s43, s43, s48")
        A("s_and_b32 s48, s42, s43")
        A("s_or_b32 s42, s42, s43")
        A("s_bitset1_b32 s42, 24")
        A("s_and_b32 s57, s57, s42")
        A("s_or_b32 s57, s57, s48")
        A("s_add_u32 s42, s56, s2")
        A("s_lshr_b32 s42, s42, 2", "bit 0: expected die, always opposite for g and g^4")
        A("v_lshrrev_b32 v19, v19, s57")
        A("v_xor_b32 v18, s42, v18", "odd pages swap the dies")
        A("v_xor_b32 v19, v18, v19")
        A(f"s_mov_b32 exec_lo, {hex(0xffffffff & ~((1 << nstatic) - 1))}")
        A("v_lshl_add_u32 v34, v19, 13, v20")
        A("s_mov_b32 exec_lo, -1")
    for j in range(W):
        issue(j)
    nxt = W
    A("s_add_u32 s20, s30, 0x400000")
    A("s_addc_u32 s21, s31, 0")
    A("s_and_b32 s20, s20, 0xffe00000", "hand-off area: one 2 MiB page inside ws")
    A(f"s_mov_b32 s22, {hex(0x400000 if stamps else 0x100000)}"); A("s_mov_b32 s23, 0x20000")
    dbg_srd()
    A("s_mov_b32 s12, s26"); A("s_mov_b32 s13, s27")
    A(f"s_mov_b32 s14, {XB}"); A("s_mov_b32 s15, 0x20000")
    A("s_mov_b32 s45, 0", "bound on all polling")
    A("v_mov_b32 v34, s50")
    A("v_lshlrev_b32 v36, 4, v35")
    for i in range(8):
        A(f"v_mov_b32 v{S+i}, 0")
        A(f"v_mov_b32 v{M+i}, 0xff800000")
    A("s_mov_b32 s44, 0xffff0000")
    A(f"ds_write_b64 v{S}, v[{S}:{S+1}] offset:{L_FL}")
    groups = [(j, j + 1) for j in range(0, NL - 2, 2)] + [(NL - 2,), (NL - 1,)]
    guse = nstatic - W // 2
    for k, g in enumerate(groups):
        if k == len(groups) - 2:
            A("s_branch L_pageT", "one fetch brings nine lines of a 4 KiB page: the tail starts a page")
            A(".p2align 12")
            A("L_pageT:")
        if k in rbrk:
            A(f"s_branch L_pageR{k}")
            A(".p2align 12")
            A(f"L_pageR{k}:")
        A(f"s_waitcnt vmcnt({after(g[-1])})")
        if k == guse:
            map_use()
        for _ in g:
            if nxt < NL:
                issue(nxt); nxt += 1
        if k >= gW2:
            extra = 0
            while nxt < NL and nxt - g[-1] - 1 < W2 and extra < 2:
                issue(nxt); nxt += 1; extra += 1
        if k == rbar:
            A("s_barrier", "keeps the waves of the workgroup level")
        for gi, j in enumerate(g):
            for i in range(4):
                d, t = VD + 4 * j + i, T + 8 * gi + 2 * i
                if half == 2 and k > 0: continue
                A(f"v_lshlrev_b32 v{t}, 16, v{d}")
                if not half or k == 0: A(f"v_and_b32 v{t+1}, s44, v{d}")
        for gi, j in enumerate(g):
            for i in range(0 if half else 4):
                t = T + 8 * gi + 2 * i
                A(f"v_pk_add_f32 v[{S+2*i}:{S+2*i+1}], v[{S+2*i}:{S+2*i+1}], v[{t}:{t+1}]")
        for i in range(0 if half == 2 and k > 0 else 8):
            if len(g) == 2:
                A(f"v_max3_f32 v{M+i}, v{M+i}, v{T+i}, v{T+8+i}")
            else:
                A(f"v_max_f32 v{M+i}, v{M+i}, v{T+i}")
        if k == gsetup:
            assert k > guse
            A("v_and_b32 v37, 6, v35")
            A("v_lshrrev_b32 v38, 3, v35")
            A("v_lshl_add_u32 v37, v37, 2, v38")
            A("v_and_b32 v38, 1, v35")
            A("v_lshl_add_u32 v37, v37, 1, v38")
            A("s_mul_i32 s42, s37, 1536")
            A("s_lshl_b32 s43, s38, 9")
            A("s_add_u32 s42, s42, s43")
            A("v_lshl_add_u32 v37, v37, 3, s42", "LDS slot of this lane's channel; 16 bytes = channels c, c+8")
            A("s_mul_i32 s43, s36, 768")
            A("v_add_u32 v38, s43, v36")
            A("s_mul_i32 s48, s2, 1536")
            A("s_add_u32 s48, s48, s43")
            A(f"s_add_u32 s48, s48, {W_A}", "row half of waves 0,1")
    stamp(2)
    C("---- phase 2: reduce over lane bits 5,4,3 (one channel per lane is left), then over the 4 pixel groups")
    for i in range(4):
        A(f"v_permlane32_swap_b32 v{S+i}, v{S+i+4}")
    for i in range(4):
        A(f"v_permlane32_swap_b32 v{M+i}, v{M+i+4}")
    for i in range(2):
        A(f"v_pk_add_f32 v[{S+2*i}:{S+2*i+1}], v[{S+2*i}:{S+2*i+1}], v[{S+4+2*i}:{S+5+2*i}]")
    for i in range(4):
        A(f"v_max_f32 v{M+i}, v{M+i}, v{M+i+4}")
    for i in range(2):
        A(f"v_permlane16_swap_b32 v{S+i}, v{S+i+2}")
    for i in range(2):
        A(f"v_permlane16_swap_b32 v{M+i}, v{M+i+2}")
    A(f"v_pk_add_f32 v[{S}:{S+1}], v[{S}:{S+1}], v[{S+2}:{S+3}]")
    for i in range(2):
        A(f"v_max_f32 v{M+i}, v{M+i}, v{M+i+2}")
    A(f"v_add_f32_dpp v{T}, v{S}, v{S} row_ror:8 row_mask:0xf bank_mask:0x3")
    A(f"v_max_f32_dpp v{T+1}, v{M}, v{M} row_ror:8 row_mask:0xf bank_mask:0x3")
    A("s_nop 0")
    A(f"v_add_f32_dpp v{T}, v{S+1}, v{S+1} row_ror:8 row_mask:0xf bank_mask:0xc")
    A(f"v_max_f32_dpp v{T+1}, v{M+1}, v{M+1} row_ror:8 row_mask:0xf bank_mask:0xc")
    A(f"ds_write_b64 v37, v[{T}:{T+1}] offset:{L_RED}")
    A("s_cmp_ge_u32 s36, 2")
    A("s_waitcnt lgkmcnt(0)")
    A("s_barrier")
    stamp(3)
    A("s_cbranch_scc1 L_role2")
    C("waves 0,1: publish the workgroup's row")
    A("s_mov_b32 exec_hi, 0xffff")
    for q in range(4):
        A(f"ds_read_b128 v[{T+4*q}:{T+4*q+3}], v38 offset:{L_RED+q*1536}")
    A("s_waitcnt lgkmcnt(2)")
    A(f"v_add_f32 v{T}, v{T}, v{T+4}")
    A(f"v_add_f32 v{T+2}, v{T+2}, v{T+6}")
    A(f"v_max_f32 v{T+1}, v{T+1}, v{T+5}")
    A(f"v_max_f32 v{T+3}, v{T+3}, v{T+7}")
    A("s_waitcnt lgkmcnt(0)")
    A(f"v_add_f32 v{T+8}, v{T+8}, v{T+12}")
    A(f"v_add_f32 v{T+10}, v{T+10}, v{T+14}")
    A(f"v_max3_f32 v{T+1}, v{T+1}, v{T+9}, v{T+13}")
    A(f"v_max3_f32 v{T+3}, v{T+3}, v{T+11}, v{T+15}")
    A(f"v_add_f32 v{T}, v{T}, v{T+8}")
    A(f"v_add_f32 v{T+2}, v{T+2}, v{T+10}")
    if half:
        A(f"v_and_b32 v{T+1}, s44, v{T+1}")
        A(f"v_and_b32 v{T+3}, s44, v{T+3}")
    A(f"v_or_b32 v{T+1}, s46, v{T+1}", "a max is a bf16 value: its low half carries the tag")
    A(f"v_or_b32 v{T+3}, s52, v{T+3}")
    A(f"buffer_store_dwordx4 v[{T}:{T+3}], v36, s[20:23], s48 offen", "into L2; written through below")
    A("s_barrier")
    A("s_mov_b64 exec, -1")
    A("s_branch L_common")
    A("L_role2:")
    A("s_barrier", "the row leaves before any polling load is queued")
    A("s_lshr_b32 s47, s2, 3")
    A(f"s_sub_u32 s47, s47, {ry0}")
    A("s_cmp_lt_u32 s47, 12")
    A(f"s_cselect_b32 s42, {hex(redmask)}, 0")
    A("s_bitcmp1_b32 s42, s36")
    A("s_cbranch_scc0 L_role4")
    C("reducing workgroup: waves 2,3,8,9 watch column s47 of the group's 32 rows")
    A("v_mov_b32 v24, 0")
    A("v_mov_b32 v25, 1")
    A("v_lshrrev_b32 v2, 3, v35")
    A("v_mul_u32_u24 v20, 12288, v2")
    A("v_and_b32 v3, 0x70, v36")
    A("v_add_u32 v20, v20, v3")
    A("s_and_b32 s43, s2, 7")
    A("s_mul_i32 s42, s43, 1536")
    A("s_lshl_b32 s47, s47, 7")
    A("s_add_u32 s42, s42, s47")
    A(f"s_add_u32 s4, s42, {W_A}")
    for k in range(1, 4):
        A(f"s_add_u32 s{4+k}, s{3+k}, 98304")
    A("v_and_b32 v2, 3, v2", "8 copies of a group row, one per reading group, near its die")
    A("v_add_u32 v21, s56, v2")
    A("s_lshr_b32 s48, s57, 22")
    A("v_xor_b32 v21, s48, v21")
    A("v_and_b32 v21, 4, v21")
    A("v_lshlrev_b32 v21, 11, v21")
    A("v_lshl_add_u32 v21, v2, 15, v21")
    A("v_lshrrev_b32 v3, 1, v3")
    A("v_add_u32 v21, v21, v3")
    A("v_lshrrev_b32 v3, 5, v35")
    A("v_lshl_add_u32 v21, v3, 6, v21")
    A("v_xor_b32 v22, 0x22000, v21")
    A("s_bfe_u32 s43, s2, 0x10002")
    A(f"s_mul_i32 s43, s43, {16384 - 4 * 1536}")
    A("s_add_u32 s48, s42, s43")
    A("v_and_b32 v23, 16, v36")
    A("v_bfe_u32 v23, s59, v23, 16")
    A("L_pollA:")
    for k in range(4):
        A(f"buffer_load_dwordx4 v[{4+4*k}:{7+4*k}], v20, s[20:23], s{4+k} offen sc1")
    A("s_add_u32 s45, s45, 1")
    for k in range(4):
        A(f"s_waitcnt vmcnt({3-k})")
        if k == 0:
            A("v_xor_b32 v2, s46, v5")
        else:
            A(f"v_bitop3_b32 v2, v2, v{5+4*k}, s46 bitop3:0xf6")
        A(f"v_bitop3_b32 v2, v2, v{7+4*k}, s52 bitop3:0xf6", "a | (b ^ c)" if k == 0 else None)
    A("v_cmp_ne_u16 vcc, 0, v2")
    A("s_cbranch_vccz L_gotA")
    A(f"s_cmp_lt_u32 s45, {SPIN}")
    A("s_cbranch_scc1 L_pollA")
    A("L_gotA:")
    A("s_mov_b64 exec, 1")
    A(f"ds_wrxchg_rtn_b32 v26, v24, v25 offset:{L_FL+4}", "the first wave to see all rows publishes")
    A("s_mov_b64 exec, -1")
    A("v_add_f32 v4, v4, v8")
    A("v_add_f32 v6, v6, v10")
    A("v_add_f32 v12, v12, v16")
    A("v_add_f32 v14, v14, v18")
    for k in range(8):
        A(f"v_and_b32 v{5+2*k}, s44, v{5+2*k}")
    A("v_add_f32 v4, v4, v12")
    A("v_add_f32 v6, v6, v14")
    A("v_max3_f32 v5, v5, v9, v13")
    A("v_max3_f32 v7, v7, v11, v15")
    A("v_max_f32 v5, v5, v17")
    A("v_max_f32 v7, v7, v19")
    def fold345():
        A("v_permlane32_swap_b32 v4, v6", "pair picked by lane bit 5, reduced over lane bits 5,4,3")
        A("v_add_f32 v4, v4, v6")
        A("v_permlane32_swap_b32 v5, v7")
        A("v_mov_b32 v6, v4")
        A("v_max_f32 v5, v5, v7")
        A("v_mov_b32 v7, v5")
        A("v_permlane16_swap_b32 v4, v6")
        A("v_add_f32 v4, v4, v6")
        A("v_permlane16_swap_b32 v5, v7")
        A("v_max_f32 v5, v5, v7")
        A("v_add_f32_dpp v4, v4, v4 row_ror:8 row_mask:0xf bank_mask:0xf")
        A("s_nop 0")
        A("v_max_f32_dpp v5, v5, v5 row_ror:8 row_mask:0xf bank_mask:0xf")
    fold345()
    A("v_or_b32 v5, v23, v5")
    A("s_waitcnt lgkmcnt(0)")
    A("v_readfirstlane_b32 s42, v26")
    A("s_cmp_lg_u32 s42, 0")
    A("s_cbranch_scc1 L_common")
    A("buffer_store_dwordx2 v[4:5], v21, s[20:23], s48 offen sc1")
    A("buffer_store_dwordx2 v[4:5], v22, s[20:23], s48 offen sc1")
    A(f"ds_write_b32 v24, v25 offset:{L_FL}")
    A("s_branch L_common")
    A("L_role4:")
    A("s_sub_u32 s43, s36, 4")
    A("s_cmp_ge_u32 s43, 3")
    A("s_cbranch_scc1 L_common")
    C("waves 4..6 compute layer 1: park 24 data registers in LDS, fetch w1^T tiles into them")
    A("s_mul_i32 s42, s43, 6144")
    A(f"s_add_u32 s42, s42, {L_SP}")
    A("v_add_u32 v38, s42, v36")
    for k in range(6):
        A(f"ds_write_b128 v38, v[{VS+4*k}:{VS+4*k+3}] offset:{k*1024}")
    A("v_lshrrev_b32 v2, 4, v35")
    A("v_lshlrev_b32 v2, 3, v2")
    A("v_bfe_u32 v3, v35, 2, 2")
    A("v_add_u32 v2, v2, v3")
    A("v_mul_u32_u24 v2, 96, v2")
    A("v_and_b32 v3, 3, v35")
    A("v_lshl_add_u32 v2, v3, 3, v2")
    A("s_lshl_b32 s42, s43, 5")
    A("v_add_u32 v2, s42, v2")
    A("s_waitcnt lgkmcnt(0)")
    for k in range(6):
        A(f"ds_read_b64_tr_b16 v[{VS+4*k}:{VS+4*k+1}], v2 offset:{L_W1 + k*3072}")
        A(f"ds_read_b64_tr_b16 v[{VS+4*k+2}:{VS+4*k+3}], v2 offset:{L_W1 + k*3072 + 384}")
    A("v_and_b32 v2, 1, v35")
    A("v_mul_u32_u24 v2, 384, v2")
    A("v_lshrrev_b32 v3, 4, v35")
    A("v_lshl_add_u32 v39, v3, 4, v2")
    A("s_waitcnt lgkmcnt(0)")
    A("L_common:")
    C("every wave gathers column `wave` (16 channels) of the 8 group rows")
    A("v_lshrrev_b32 v2, 5, v35")
    A("v_bfe_u32 v3, v35, 3, 2")
    A("v_mul_u32_u24 v3, 1536, v3")
    A("v_lshl_add_u32 v8, v2, 14, v3")
    A("v_and_b32 v3, 0x70, v36")
    A("v_add_u32 v8, v8, v3")
    A("s_add_u32 s42, s56, s2")
    A("s_lshr_b32 s43, s57, 22")
    A("s_xor_b32 s42, s42, s43")
    A("s_and_b32 s42, s42, 4")
    A("s_lshl_b32 s42, s42, 11")
    A("s_and_b32 s43, s2, 7")
    A("s_lshl_b32 s43, s43, 15")
    A("s_add_u32 s42, s42, s43")
    A("s_lshl_b32 s43, s36, 7")
    A("s_add_u32 s47, s42, s43")
    A("v_lshrrev_b32 v3, 2, v3")
    A("v_lshl_add_u32 v9, v2, 1, v3")
    A("s_lshl_b32 s42, s36, 5")
    A("v_add_u32 v9, s42, v9")
    A("v_lshrrev_b32 v2, 2, v35")
    A("v_mul_u32_u24 v2, 384, v2")
    A("v_and_b32 v3, 3, v35")
    A("v_lshl_add_u32 v2, v3, 3, v2")
    A("v_add_u32 v2, s42, v2")
    for k in range(3):
        A(f"ds_read_b64_tr_b16 v[{W2F+2*k}:{W2F+2*k+1}], v2 offset:{L_W2 + k*6144}", "w2 tile of channels 16*wave.." if k == 0 else None)
    A("v_lshlrev_b32 v37, 3, v35")
    A("s_cmp_lt_u32 s36, 2")
    A(f"s_cselect_b32 s3, {NWT}, 0", "waves 0,1: rounds left before the row is written through")
    def wthrough(name):
        A("s_sub_u32 s3, s3, 1")
        A("s_cmp_eq_u32 s3, 0")
        A(f"s_cbranch_scc0 {name}")
        A("s_mov_b64 s[4:5], exec")
        A("s_mov_b32 exec_lo, -1")
        A("s_mov_b32 exec_hi, 0xffff")
        A(f"buffer_store_dwordx4 v[{T}:{T+3}], v36, s[20:23], s48 offen sc1")
        A("s_mov_b64 exec, s[4:5]")
        A(f"{name}:")
    A("s_lshr_b32 s42, s2, 3")
    A(f"s_sub_u32 s42, s42, {ry0}")
    A("s_cmp_ge_u32 s42, 12")
    A("s_cbranch_scc1 L_open")
    A("v_mov_b32 v2, 0")
    A("L_gate:", "reducing workgroup: leave the memory pipeline to the reducers until they have published")
    A(f"ds_read_b32 v3, v2 offset:{L_FL}")
    A("s_waitcnt lgkmcnt(0)")
    A("v_cmp_ne_u32 vcc, 0, v3")
    A("s_cbranch_vccnz L_open")
    wthrough("L_nowt0")
    A("s_add_u32 s45, s45, 1")
    A(f"s_cmp_lt_u32 s45, {SPIN}")
    A("s_cbranch_scc1 L_gate")
    A("s_branch L_open")
    A(".p2align 12")
    A("L_open:")
    A("buffer_load_dwordx4 v[4:7], v8, s[20:23], s47 offen sc1")
    A("L_pollB:")
    A("s_waitcnt vmcnt(0)")
    A("v_cmp_ne_u16 vcc, s46, v5")
    A("v_cmp_ne_u16 s[4:5], s52, v7")
    A("s_or_b64 vcc, vcc, s[4:5]")
    A("s_cbranch_scc0 L_gotB")
    A("s_wqm_b64 exec, vcc", "reload the quads that are not complete")
    A("buffer_load_dwordx4 v[4:7], v8, s[20:23], s47 offen sc1")
    wthrough("L_nowt1")
    A("s_add_u32 s45, s45, 1")
    A(f"s_cmp_lt_u32 s45, {SPIN}")
    A("s_cbranch_scc1 L_pollB")
    A("s_waitcnt vmcnt(0)")
    A("L_gotB:")
    A("s_mov_b64 exec, -1")
    A("v_and_b32 v5, s44, v5")
    A("v_and_b32 v7, s44, v7")
    fold345()
    A("v_mul_f32 v4, 0x36800000, v4", "mean = sum / 262144")
    A("v_cvt_pk_bf16_f32 v4, v4, v5")
    A(f"ds_write_b16 v9, v4 offset:{L_G}")
    A(f"ds_write_b16_d16_hi v9, v4 offset:{L_G+384}")
    A("s_cmp_gt_i32 s3, 0")
    A("s_cbranch_scc0 L_nowt2")
    A("s_mov_b32 exec_hi, 0xffff")
    A(f"buffer_store_dwordx4 v[{T}:{T+3}], v36, s[20:23], s48 offen sc1", "a reducer on another die may still wait for the row")
    A("s_mov_b32 exec_hi, -1")
    A("L_nowt2:")
    A("s_sub_u32 s42, s36, 4")
    A("s_cmp_ge_u32 s42, 3")
    A("s_waitcnt lgkmcnt(0)")
    A("s_barrier")
    stamp(4)
    C("---- phase 3: h = relu([mean; max] @ w1), columns alternate mean / max")
    A("s_cbranch_scc1 L_l2")
    for k in range(6):
        A(f"ds_read_b128 v[{BF+4*k}:{BF+4*k+3}], v39 offset:{L_G + k*64}")
    A("s_lshl_b32 s42, s42, 9")
    A("v_add_u32 v36, s42, v37")
    A("s_mov_b32 s43, 0x7f800000")
    for k in range(6):
        A(f"s_waitcnt lgkmcnt({5-k})")
        c = "0" if k == 0 else "v[0:3]"
        A(f"v_mfma_f32_16x16x32_bf16 v[0:3], v[{VS+4*k}:{VS+4*k+3}], v[{BF+4*k}:{BF+4*k+3}], {c}")
    A("s_nop 7")
    for i in range(4):
        A(f"v_mul_f32_e64 v{4+i}, v{i}, s43 clamp", "clamp(h * inf) = (h > 0)" if i == 0 else None)
    A("v_pk_mul_f32 v[0:1], v[0:1], v[4:5]")
    A("v_pk_mul_f32 v[2:3], v[2:3], v[6:7]")
    A("v_cvt_pk_bf16_f32 v4, v0, v1")
    A("v_cvt_pk_bf16_f32 v5, v2, v3")
    A(f"ds_write_b64 v36, v[4:5] offset:{L_H}")
    A("L_l2:")
    lane_offsets()
    A("s_waitcnt lgkmcnt(0)")
    A("s_barrier")
    C("scale = sigmoid(h_mean @ w2 + h_max @ w2), 16 channels per wave")
    for k in range(3):
        A(f"ds_read_b64 v[{4+2*k}:{5+2*k}], v37 offset:{L_H + k*512}")
    A("v_and_b32 v2, 15, v35")
    A("s_lshl_b32 s42, s36, 6")
    A("v_lshl_add_u32 v36, v2, 2, s42")
    A("v_and_b32 v2, 7, v35")
    A("s_lshl_b32 s42, s38, 8")
    A("v_lshl_add_u32 v39, v2, 5, s42")
    A("s_mov_b32 s43, 0xbfb8aa3b", "-log2(e)")
    if wdot:
        A("v_bfe_i32 v3, v35, 0, 1")
        A("v_xor_b32 v3, 0xffff, v3", "even channel: low half, odd channel: high half")
    for k in range(3):
        A(f"s_waitcnt lgkmcnt({2-k})")
        c = "0" if k == 0 else "v[12:15]"
        A(f"v_mfma_f32_16x16x16_bf16 v[12:15], v[{4+2*k}:{5+2*k}], v[{W2F+2*k}:{W2F+2*k+1}], {c}")
    A("s_nop 7")
    A("v_cvt_pk_bf16_f32 v12, v12, v13")
    A("v_lshlrev_b32 v13, 16, v12")
    A("v_and_b32 v12, s44, v12")
    A("v_add_f32 v12, v12, v13")
    A("v_cvt_pk_bf16_f32 v12, 0, v12")
    A("v_mul_f32 v12, s43, v12")
    A("v_exp_f32 v12, v12")
    A("s_nop 0")
    A("v_add_f32 v12, 1.0, v12")
    A("v_rcp_f32 v12, v12")
    A("s_nop 0")
    if wdot:
        A("v_cvt_pk_bf16_f32 v12, v12, v12")
        A("v_and_b32 v12, v3, v12", "(scale, 0) or (0, scale)")
    else:
        A("v_cvt_pk_bf16_f32 v12, 0, v12")
    A(f"ds_write_b32 v36, v12 offset:{L_SC}")
    A("s_waitcnt lgkmcnt(0)")
    A("s_barrier")
    C("---- phase 4: scale the registers and store them")
    A(f"ds_read_b128 v[{SCR}:{SCR+3}], v39 offset:{L_SC}")
    A(f"ds_read_b128 v[{SCR+4}:{SCR+7}], v39 offset:{L_SC+16}")
    stamp(5)
    dyn = list(range(nstatic, 16))
    steps = []
    for k in range(nstatic):
        part = dyn[k * len(dyn) // nstatic:(k + 1) * len(dyn) // nstatic]
        steps += part[:1] + [k] + part[1:]
    order = [2 * i + h for i in steps for h in (0, 1)]
    if fine:
        assert sadr
        st = list(range(2 * nstatic))
        order = []
        for k, i in enumerate(dyn):
            order += [2 * i, 2 * i + 1]
            take = (k + 1) * 2 * nstatic // (len(dyn) - fine + 1) - k * 2 * nstatic // (len(dyn) - fine + 1)
            for _ in range(take):
                if st: order.append(st.pop(0))
    assert sorted(order) == list(range(NL)) and min(order.index(j) for j in range(NL - 6, NL)) == order.index(NL - 6) > 1
    for n, j in enumerate(order):
        tb, i2, h = T2 + 8 * (n % 2), j >> 1, j & 1
        if n in brk:
            A(f"s_branch L_pageW{n}", "the stores do not fit one code page: next page")
            A(".p2align 12")
            A(f"L_pageW{n}:")
        if j == NL - 6:
            A("s_waitcnt lgkmcnt(0)")
        if n and n % wbar == 0:
            A("s_barrier", "the waves store in step" if n == wbar else None)
        fixed = sadr and i2 < nstatic
        ar = (26 if fixed else 28) + h
        need = not (fixed and i2 > 0)
        if (h == 0 or (fine and j == 1)) and need:
            A(f"v_readlane_b32 s50, v34, {i2}")
        if wdot:
            if n == 0:
                A("s_nop 1")
                addr(ar, h)
                A("s_waitcnt lgkmcnt(0)")
            for i in range(8):
                A(f"v_dot2_f32_bf16 v{tb+i}, v{VD+4*j+i//2}, v{SCR+i}, 0", "x * scale, exact in f32" if n == 0 and i == 0 else None)
            if n and need: addr(ar, h)
        else:
            for i in range(4):
                d = VD + 4 * j + i
                A(f"v_lshlrev_b32 v{tb+2*i}, 16, v{d}")
                A(f"v_and_b32 v{tb+2*i+1}, s44, v{d}")
            if need: addr(ar, h)
            if n == 0:
                A("s_waitcnt lgkmcnt(0)")
            for i in range(4):
                A(f"v_pk_mul_f32 v[{tb+2*i}:{tb+2*i+1}], v[{tb+2*i}:{tb+2*i+1}], v[{SCR+2*i}:{SCR+2*i+1}]")
        for i in range(4):
            A(f"v_cvt_pk_bf16_f32 v{VD+4*j+i}, v{tb+2*i}, v{tb+2*i+1}")
        A(f"buffer_store_dwordx4 v[{VD+4*j}:{VD+4*j+3}], v{ar}, s[12:15], s{TAB+i2} offen sc1")
        if n == 0:
            A("s_sub_u32 s42, s36, 4")
            A("s_cmp_ge_u32 s42, 3")
            A("s_cbranch_scc1 L_noreload")
            for k in range(6):
                A(f"ds_read_b128 v[{VS+4*k}:{VS+4*k+3}], v38 offset:{k*1024}", "parked registers back" if k == 0 else None)
            A("L_noreload:")
    if stamps:
        stamp(6)
        A("s_waitcnt vmcnt(0)")
        stamp(7)
        A("s_waitcnt lgkmcnt(0)")
        A("s_mov_b64 exec, 1")
        if diag2:
            A("s_or_b32 s42, s2, s36")
            A("s_cmp_lg_u32 s42, 0")
            A("s_cbranch_scc1 L_end")
            A("L_dq1:")
            A("s_memrealtime s[78:79]")
            A("s_waitcnt lgkmcnt(0)")
            A("s_sub_u32 s43, s78, s60")
            A("s_cmp_lt_u32 s43, 6000")
            A("s_cbranch_scc1 L_dq1")
            A("v_mov_b32 v1, 0")
            for nm, srd, dst in (("x", 8, 62), ("o", 12, 64)):
                A(f"s_mov_b64 s[{dst}:{dst+1}], 0")
                A("s_mov_b32 s3, 0")
                A(f"L_dq{nm}:")
                A("s_mov_b32 s47, 0")
                for rep in range(3):
                    A("s_lshl_b32 s42, s3, 21")
                    A(f"s_add_u32 s42, s42, {0x100000 + rep*0x14100}")
                    A(f"s_and_b32 s43, s{srd}, 0x3fff")
                    A("s_sub_u32 s42, s42, s43")
                    A("s_add_u32 s43, s42, 8192")
                    A(f"buffer_load_dword v3, v1, s[{srd}:{srd+3}], s42 offen offset:128 nt")
                    A(f"buffer_load_dword v4, v1, s[{srd}:{srd+3}], s43 offen offset:128 nt")
                    A("s_waitcnt vmcnt(1)")
                    A("s_memtime s[66:67]")
                    A("s_waitcnt vmcnt(0)")
                    A("s_memtime s[68:69]")
                    A("s_waitcnt lgkmcnt(0)")
                    A("s_sub_u32 s42, s68, s66")
                    A("s_cmpk_le_u32 s42, 80")
                    A("s_addc_u32 s47, s47, 0")
                A("s_lshr_b32 s47, s47, 1")
                A("s_xor_b32 s47, s47, s3")
                A("s_and_b32 s70, s47, 1")
                A("s_mov_b32 s71, 0")
                A("s_lshl_b64 s[70:71], s[70:71], s3")
                A(f"s_or_b64 s[{dst}:{dst+1}], s[{dst}:{dst+1}], s[70:71]")
                A("s_add_u32 s3, s3, 1")
                A("s_cmp_lt_u32 s3, 48")
                A(f"s_cbranch_scc1 L_dq{nm}")
            for k in range(4):
                A(f"v_mov_b32 v{4+k}, s{62+k}")
            A("buffer_store_dwordx4 v[4:7], v1, s[16:19], 0 offen offset:16")
            for dst, r in ((62, 42), (64, 43)):
                A(f"s_lshr_b64 s[70:71], s[{dst}:{dst+1}], 1")
                A(f"s_xor_b64 s[70:71], s[70:71], s[{dst}:{dst+1}]")
                A("s_and_b32 s71, s71, 0x7fff")
                A(f"s_bcnt1_i32_b64 s{r}, s[70:71]")
            A("s_min_u32 s42, s42, 19")
            A("s_mul_i32 s43, s43, 20")
            A("s_add_u32 s42, s42, s43")
            A("s_mul_i32 s42, s42, 200")
            A("s_add_u32 s42, s42, 30000")
            A("s_min_u32 s42, s42, 290000")
            A("L_dq4:")
            A("s_memrealtime s[78:79]")
            A("s_waitcnt lgkmcnt(0)")
            A("s_sub_u32 s43, s78, s60")
            A("s_cmp_lt_u32 s43, s42")
            A("s_cbranch_scc1 L_dq4")
            A("s_branch L_end")
        if diag:
            a, amax, b, bmax = diag
            A("s_barrier")
            A("s_cmp_lg_u32 s36, 11")
            A("s_cbranch_scc1 L_end")
            A("s_memrealtime s[74:75]")
            A("s_waitcnt lgkmcnt(0)")
            A("v_mov_b32 v9, 64")
            A(("v_mov_b32" if amax else "v_not_b32") + f" v10, s{60+2*a}")
            A(("v_mov_b32" if bmax else "v_not_b32") + f" v11, s{60+2*b}")
            A("buffer_atomic_umax v10, v9, s[16:19], 0 offen sc1")
            A("buffer_atomic_umax v11, v9, s[16:19], 0 offen offset:4 sc1")
            A("s_waitcnt vmcnt(0)")
            A("s_cmp_lg_u32 s2, 0")
            A("s_cbranch_scc1 L_end")
            A("L_dg1:")
            A("s_memrealtime s[78:79]")
            A("s_waitcnt lgkmcnt(0)")
            A("s_sub_u32 s43, s78, s60")
            A("s_cmp_lt_u32 s43, 10000")
            A("s_cbranch_scc1 L_dg1")
            A("buffer_load_dwordx2 v[10:11], v9, s[16:19], 0 offen sc1")
            A("s_waitcnt vmcnt(0)")
            A("v_readfirstlane_b32 s42, v10")
            A("v_readfirstlane_b32 s43, v11")
            if not amax: A("s_not_b32 s42, s42")
            if not bmax: A("s_not_b32 s43, s43")
            A("s_sub_u32 s42, s42, s43")
            A("s_mul_i32 s42, s42, 10")
            A("s_add_u32 s42, s42, 30000")
            A("s_min_u32 s42, s42, 200000")
            A("L_dg4:")
            A("s_memrealtime s[78:79]")
            A("s_waitcnt lgkmcnt(0)")
            A("s_sub_u32 s43, s78, s60")
            A("s_cmp_lt_u32 s43, s42")
            A("s_cbranch_scc1 L_dg4")
            A("s_branch L_end")
        A("s_mul_i32 s3, s2, 12")
        A("s_add_u32 s3, s3, s36")
        A("s_lshl_b32 s3, s3, 5")
        A(f"s_add_u32 s3, s3, {1 << 20}")
        A("v_mov_b32 v1, 0")
        for i in range(8):
            A(f"v_mov_b32 v{4+i}, s{60+2*i}")
        A("buffer_store_dwordx4 v[4:7], v1, s[20:23], s3 offen")
        A("buffer_store_dwordx4 v[8:11], v1, s[20:23], s3 offen offset:16")
    if diag3:
        A("s_or_b32 s42, s2, s36")
        A("s_cmp_lg_u32 s42, 0")
        A("s_cbranch_scc1 L_end")
        A("v_mov_b32 v1, 0")
        A("v_mov_b32 v2, s57")
        A("s_mov_b64 exec, 1")
        A("buffer_store_dword v2, v1, s[16:19], 0 offen offset:4 sc1")
    A("L_end:")
    A("s_endpgm")
    if diag3:
        A("L_extra:")
        A("v_readfirstlane_b32 s36, v0")
        A("s_sub_u32 s42, s2, 256")
        A("s_or_b32 s42, s42, s36")
        A("s_cmp_lg_u32 s42, 0")
        A("s_cbranch_scc1 L_end")
        A("s_memrealtime s[60:61]")
        A("s_waitcnt lgkmcnt(0)")
        A("s_mov_b32 s8, s4"); A("s_mov_b32 s9, s5"); A(f"s_mov_b32 s10, {XB}"); A("s_mov_b32 s11, 0x20000")
        A("s_mov_b32 s12, s26"); A("s_mov_b32 s13, s27"); A(f"s_mov_b32 s14, {XB}"); A("s_mov_b32 s15, 0x20000")
        dbg_srd()
        A("s_mov_b64 exec, 1")
        A("L_dq1:")
        A("s_memrealtime s[78:79]")
        A("s_waitcnt lgkmcnt(0)")
        A("s_sub_u32 s43, s78, s60")
        A("s_cmp_lt_u32 s43, 5000")
        A("s_cbranch_scc1 L_dq1")
        A("v_mov_b32 v1, 0")
        for nm, srd, dst, o0 in (("x", 8, 62, 0x100000), ("o", 12, 64, 0x100000), ("p", 12, 72, 0x40000), ("q", 12, 74, 0x1a0000)):
            A(f"s_mov_b64 s[{dst}:{dst+1}], 0")
            A("s_mov_b32 s3, 0")
            A(f"L_dq{nm}:")
            A("s_mov_b32 s47, 0")
            for rep in range(3):
                A("s_lshl_b32 s42, s3, 21")
                A(f"s_add_u32 s42, s42, {o0 + rep*0x500}")
                A(f"s_and_b32 s43, s{srd}, 0x3fff")
                A("s_sub_u32 s42, s42, s43")
                A("s_add_u32 s43, s42, 8192")
                A(f"buffer_load_dword v3, v1, s[{srd}:{srd+3}], s42 offen offset:128 nt")
                A(f"buffer_load_dword v4, v1, s[{srd}:{srd+3}], s43 offen offset:128 nt")
                A("s_waitcnt vmcnt(1)")
                A("s_memtime s[66:67]")
                A("s_waitcnt vmcnt(0)")
                A("s_memtime s[68:69]")
                A("s_waitcnt lgkmcnt(0)")
                A("s_sub_u32 s42, s68, s66")
                A("s_cmpk_le_u32 s42, 80")
                A("s_addc_u32 s47, s47, 0")
            A("s_lshr_b32 s47, s47, 1")
            A("s_xor_b32 s47, s47, s3")
            A("s_and_b32 s70, s47, 1")
            A("s_mov_b32 s71, 0")
            A("s_lshl_b64 s[70:71], s[70:71], s3")
            A(f"s_or_b64 s[{dst}:{dst+1}], s[{dst}:{dst+1}], s[70:71]")
            A("s_add_u32 s3, s3, 1")
            A("s_cmp_lt_u32 s3, 48")
            A(f"s_cbranch_scc1 L_dq{nm}")
        for k in range(4):
            A(f"v_mov_b32 v{4+k}, s{62+k}")
            A(f"v_mov_b32 v{8+k}, s{72+k}")
        A("buffer_store_dwordx4 v[4:7], v1, s[16:19], 0 offen offset:16 sc1")
        A("buffer_store_dwordx4 v[8:11], v1, s[16:19], 0 offen offset:32 sc1")
        A("v_mov_b32 v4, s8"); A("v_mov_b32 v5, s12")
        A("buffer_store_dwordx2 v[4:5], v1, s[16:19], 0 offen offset:48 sc1")
        A("s_endpgm")
    A('.section .rodata,"a"')
    A(".p2align 6")
    A(".amdhsa_kernel standalone__channel_attn_cbam__vision_kernel")
    for d in ("next_free_vgpr 168", "next_free_sgpr 96", "accum_offset 168", "group_segment_fixed_size 0", "kernarg_size 48",
              "user_sgpr_count 2", "user_sgpr_kernarg_segment_ptr 1", "system_sgpr_workgroup_id_x 1", "float_denorm_mode_32 3"):
        A("  .amdhsa_" + d)
    A(".end_amdhsa_kernel")
    out = [HEADER.rstrip(), f"; @launch grid=(256,1,1) block=({NW*64},1,1) lds={L_END}"]
    for s, c in L:
        if s.startswith(("s_", "v_", "ds_", "buffer_", "global_")):
            s = "    " + s
        if not s:
            s = "    ; " + c
        elif c:
            s = f"{s:64s} ; {c}"
        out.append(s)
    return "\n".join(out) + "\n"

if __name__ == "__main__":
    cfg = json.loads(sys.argv[1]) if len(sys.argv) > 1 else {}
    sys.stdout.write(gen(**cfg))
```

```python
import sys, json

HEADER = """; CBAM channel attention: out = x * sigmoid(MLP(mean_hw x) + MLP(max_hw x)), one pass over HBM.
;
;  2. Grid-wide reduction through d_ws in two hops: the 32 workgroups with equal id%8 publish rows of
;     {sum, max|tag} pairs, 12 of them each reduce one 128-byte column; the 8 group rows then go to every
"""

def gen(W=4, W2=6, gW2=11, nstatic=5, wpos=16, rbar=9, wbar=2, THR=70, MIX=0xAAAA, MIX2=0xFEFE, NWT=64,
        ry0=16, redmask=0x30C, gsetup=8, stamps=0, diag=None, wdot=1, sadr=1, brk=(22,), rbrk=(), diag2=0, MIXO=None, sc0=0, fine=0, half=0, diag3=0):
    if diag2: stamps = 1
    if diag: stamps = 1
    NW, NL, VD = 12, 32, 40
    XB = 100663296
    L_W1, L_W2 = 0, 18432
    L_RED = 36864
    L_G = L_RED + 6144
    L_H = L_G + 768
    L_SC = L_H + 1536
    L_FL = L_SC + 768
    L_SP = L_FL + 64
    L_END = L_SP + 3 * 6144
    W_A = 256 << 10
    SPIN = 1 << 22
    SW = 6 << 20
    TAB = 80
    NS = 25
    S, M, T = 2, 10, 18
    VS = VD + 4 * (NL - 6)
    W2F, BF, SCR, T2 = 28, 4, 2, 10
    L = []
    def A(s, c=None):
        L.append((s, c))
    def C(c):
        L.append(("", c))
    def stamp(i):
        if stamps: A(f"s_memrealtime s[{60+2*i}:{61+2*i}]")
    def addr(dst, src):
        A(f"v_add_u32 v{dst}, s50, v{src}")
        A(f"v_bfe_u32 v{dst}, v{dst}, 13, 1")
        A(f"v_mad_u32_u24 v{dst}, v{dst}, s49, v{src}")
    def lane_offsets():
        A("v_lshrrev_b32 v0, 3, v35")
        A("v_mul_u32_u24 v0, 384, v0")
        A("v_and_b32 v1, 7, v35")
        A("v_lshl_add_u32 v0, v1, 4, v0")
        A("v_add_u32 v0, s39, v0", "position in a half window: 8 pixels x 128 bytes per load")
        A("v_add_u32 v1, 12288, v0", "... of the second load of a step")
    def dbg_srd():
        A("s_mov_b32 s16, s28"); A("s_mov_b32 s17, s29")
        A("s_mov_b32 s18, 256"); A("s_mov_b32 s19, 0x20000")

    A(".amdgcn_target \"amdgcn-amd-amdhsa--gfx950\"")
    A(".text")
    A(".globl standalone__channel_attn_cbam__vision_kernel")
    A(".p2align 12")
    A(".p2align 8")
    A(".type standalone__channel_attn_cbam__vision_kernel,@function")
    A("standalone__channel_attn_cbam__vision_kernel:")
    stamp(0)
    A("s_load_dwordx4 s[4:7], s[0:1], 0", "x, w1")
    A("s_load_dwordx4 s[24:27], s[0:1], 16", "w2, out")
    A("s_load_dwordx4 s[28:31], s[0:1], 32", "debug, ws")
    A("s_memtime s[58:59]")
    A("s_cmp_ge_u32 s2, 256")
    A("s_cbranch_scc1 %s" % ("L_extra" if diag3 else "L_end"), "extra workgroups leave")
    A("v_lshrrev_b32 v2, 6, v0")
    A("v_and_b32 v35, 63, v0", "lane")
    A("v_readfirstlane_b32 s36, v2", "wave")
    A("s_mov_b32 s35, 0x20000")
    if sc0 == 1:
        A("s_lshr_b32 s40, s2, 3")
        A("s_and_b32 s42, s2, 7")
    elif sc0 == 2:
        A("s_lshr_b32 s40, s2, 2")
        A("s_bfe_u32 s42, s2, 0x10001")
        A("s_or_b32 s40, s40, s42")
        A("s_and_b32 s42, s2, 5")
    else:
        A("s_lshr_b32 s40, s2, 2")
        A("s_and_b32 s42, s2, 1")
        A("s_or_b32 s40, s40, s42")
        A("s_and_b32 s42, s2, 6")
    A(f"s_cselect_b32 s40, {NS}, s40", f"scout number 2a+b of workgroup 8a+b, b<2 (>= {NS}: none)")
    A("s_lshl_b32 s42, s36, 5")
    A("s_or_b32 s42, s42, s40")
    A(f"s_cmp_lt_u32 s42, {NS}")
    A("s_cbranch_scc0 L_main")
    C("---- scout (wave 0): which die holds the lower 8 KiB half of 16 KiB in one page of x, out or ws")
    A("s_getreg_b32 s48, hwreg(HW_REG_XCC_ID, 0, 3)")
    A("s_mov_b64 exec, 1")
    A("v_mov_b32 v2, 0")
    A(f"s_mov_b32 s34, {XB}")
    A("s_lshr_b32 s43, s40, 1", "8 MiB group a")
    A("s_and_b32 s55, s40, 1", "buffer: 0 x, 1 out, 2 ws")
    A("s_lshl_b32 s54, s55, 7", "word of d_debug")
    A("s_cmp_eq_u32 s43, 12")
    A("s_cselect_b32 s55, 2, s55")
    A("s_cselect_b32 s42, 0, s43")
    A("s_lshl_b32 s42, s42, 23")
    A("s_bitset1_b32 s42, 22", "page 2 of the group")
    A("s_lshl_b32 s52, s48, 29")
    A("s_cmp_eq_u32 s40, 0")
    A("s_cselect_b32 s52, s52, 0", "workgroup 0 also tells its XCC")
    A("s_bitset1_b32 s52, s43", "done bit")
    A("s_lshl_b32 s3, 0x10000, s43")
    A("s_cmp_ge_u32 s48, 4")
    A("s_cselect_b32 s48, s3, 0")
    A("s_xor_b32 s3, s3, s48")
    A("s_or_b32 s48, s48, s52", "answer if the lower half is on my die")
    A("s_or_b32 s3, s3, s52", "answer if it is on the other die")
    A("s_cmp_lt_u32 s40, 2")
    A("s_cselect_b32 s52, s54, 0x1000")
    A("v_mov_b32 v5, s52")
    A("s_cmp_eq_u32 s55, 1")
    A("s_waitcnt lgkmcnt(0)")
    A("s_cselect_b32 s32, s26, s4")
    A("s_cselect_b32 s33, s27, s5")
    A("s_cmp_eq_u32 s55, 2")
    A("s_cselect_b32 s32, s30, s32")
    A("s_cselect_b32 s33, s31, s33")
    A("s_lshl_b32 s43, s58, 5")
    A(f"s_and_b32 s43, s43, {hex(0x1fff80 & ~8192)}", "some line of the page, so that the pair is not an L2 hit")
    A("s_add_u32 s42, s42, s43")
    A("s_and_b32 s43, s32, 0x1ffffc")
    A("s_sub_u32 s42, s42, s43")
    A("s_add_u32 s43, s42, 8192")
    dbg_srd()
    A("buffer_load_dword v3, v2, s[32:35], s42 offen nt", "lower half (values unused)")
    A("buffer_load_dword v4, v2, s[32:35], s43 offen nt", "upper half")
    A("buffer_atomic_or v2, v5, s[16:19], 0 offen sc1", "scouts 0,1: OR 0 fetches the word's line; others: out of range")
    A("s_waitcnt vmcnt(2)")
    A("s_memtime s[56:57]")
    A("s_waitcnt vmcnt(1)")
    A("s_memtime s[58:59]")
    A("s_waitcnt lgkmcnt(0)")
    A("s_sub_u32 s42, s58, s56")
    A(f"s_cmpk_le_u32 s42, {THR}", "upper half was already back: the lower half is the far one")
    A("s_cselect_b32 s48, s3, s48")
    A("v_mov_b32 v15, s48")
    A("buffer_atomic_or v15, v2, s[16:19], s54 offen sc1")
    A("s_barrier", "releases the other waves of this workgroup")
    A("s_cmp_lg_u32 s40, 0")
    A("s_cbranch_scc1 L_notag")
    A("s_memrealtime s[56:57]", "workgroup 0 picks the tag of this launch")
    A("v_mov_b32 v12, 1")
    A("s_waitcnt lgkmcnt(0)")
    A("s_mul_i32 s43, s56, 0x9e3779b1")
    A("v_mov_b32 v13, s43")
    A("buffer_store_dwordx2 v[12:13], v2, s[16:19], 0 offen offset:192 sc1")
    A("L_notag:")
    A("s_mov_b64 exec, -1")
    A(f"s_mov_b32 s40, {NS}")
    A("L_main:")
    C("---- workgroups 112..127 pull the kernel's code into L2 before the data stream fills the queues")
    A("s_lshr_b32 s42, s2, 4")
    A("s_and_b32 s43, s36, 12")
    A("s_lshl_b32 s43, s43, 4")
    A("s_or_b32 s42, s42, s43")
    A(f"s_cmp_lg_u32 s42, {13 if sc0 == 1 else 7}")
    A("s_cbranch_scc1 L_nocode")
    A("s_getpc_b64 s[54:55]")
    A("L_pc:")
    A("v_lshlrev_b32 v32, 7, v0")
    A("v_min_u32 v32, L_end-L_pc, v32")
    A("v_add_co_u32 v32, vcc, s54, v32")
    A("v_mov_b32 v33, s55")
    A("s_nop 0")
    A("v_addc_co_u32 v33, vcc, 0, v33, vcc")
    A("global_load_dword v32, v[32:33], off", "one word of every 128-byte line (values unused)")
    A("L_nocode:")
    A("s_mul_i32 s37, s36, 43691")
    A("s_lshr_b32 s37, s37, 17", "q = wave/3: pixel group")
    A("s_mul_i32 s38, s37, 3")
    A("s_sub_u32 s38, s36, s38", "t = wave%3: channels 64t..64t+63")
    A("s_mul_i32 s39, s37, 3072")
    A("s_lshl_b32 s42, s38, 7")
    A("s_add_u32 s39, s39, s42")
    lane_offsets()
    A("s_lshr_b32 s42, s2, 3")
    A("s_and_b32 s43, s2, 3")
    A("s_lshl_b32 s51, s42, 2")
    A("s_add_u32 s51, s51, s43", "pair p")
    A(f"s_mul_i32 s{TAB}, s51, 49152", "window of step 0; step i adds 6 MiB")
    A("s_lshl_b32 s50, s2, 11")
    A("s_lshl_b32 s42, s42, 13")
    A("s_xor_b32 s50, s50, s42")
    A("s_and_b32 s50, s50, 0x2000", f"first {nstatic} steps: halves picked by id bits alone")
    A("s_movk_i32 s49, 24576")
    addr(38, 0)
    addr(39, 1)
    A(f"s_mov_b32 s10, {XB}"); A("s_mov_b32 s11, 0x20000")
    A(f"s_cmp_lt_u32 s40, {NS}")
    A("s_waitcnt lgkmcnt(0)")
    A("s_mov_b32 s8, s4"); A("s_mov_b32 s9, s5")
    A("s_cbranch_scc0 L_go")
    A("s_barrier", "waves 1..11 of a scout workgroup wait for the probe")
    A("L_go:")
    C("---- phase 1: stream x into registers, accumulate sum (v2..v9) and max (v10..v17)")
    ops = []
    def issue(j):
        r, i, h = VD + 4 * j, j >> 1, j & 1
        if i < nstatic:
            A(f"buffer_load_dwordx4 v[{r}:{r+3}], v{38+h}, s[8:11], s{TAB+i} offen nt")
            if h == 0: A(f"s_add_u32 s{TAB+i+1}, s{TAB+i}, {SW}")
        else:
            if h == 0:
                A(f"v_readlane_b32 s50, v34, {i}")
                if i < 15:
                    A(f"s_add_u32 s{TAB+i+1}, s{TAB+i}, {SW}")
                    A("s_nop 0")
                else:
                    A("s_nop 1")
            addr(39, h)
            A(f"buffer_load_dwordx4 v[{r}:{r+3}], v39, s[8:11], s{TAB+i} offen nt")
        ops.append(j)
        if j == wpos:
            C("weights into LDS: waves 0..5 w1, waves 6..11 w2, 3 KiB each")
            A("s_cmp_ge_u32 s36, 6")
            A("s_cselect_b32 s32, s24, s6")
            A("s_cselect_b32 s33, s25, s7")
            A("s_cselect_b32 s42, 18432, 0")
            A("s_mov_b32 s34, 18432")
            A("s_mul_i32 s43, s36, 3072")
            A("s_mov_b32 m0, s43")
            A("s_sub_u32 s42, s43, s42")
            for k in range(3):
                A(f"buffer_load_dwordx4 v36, s[32:35], s42 offen offset:{k*1024} lds")
                ops.append(None)
        if j == NL - 1:
            C("wave 0: first touch of this workgroup's hand-off row, off the critical path (values unused)")
            A("s_cmp_lg_u32 s36, 0")
            A("s_cbranch_scc1 L_notouch")
            A("v_lshlrev_b32 v39, 7, v35")
            A("s_mov_b64 exec, 0xfff")
            A("buffer_load_dword v39, v39, s[20:23], s48 offen sc1")
            A("s_mov_b64 exec, -1")
            A("L_notouch:")
    def after(j):
        return len(ops) - 1 - ops.index(j)
    def map_use():
        C("the scouts' bits -> v34 lane i: offset that picks this workgroup's halves in step i")
        A("s_load_dword s56, s[28:29], 0")
        A("s_load_dword s57, s[28:29], 128")
        A("s_load_dwordx2 s[58:59], s[28:29], 192")
        if MIXO is not None:
            A("s_bitcmp1_b32 s2, 0")
            A(f"s_mov_b32 s43, {hex(MIX2)}")
            A(f"s_cmov_b32 s43, {hex(MIXO)}")
        A("s_sub_u32 s42, s12, s8")
        A("s_add_u32 s42, s42, 0x800")
        A("s_bitcmp1_b32 s42, 12")
        A(f"s_mov_b32 s42, {hex(MIX)}")
        A(f"s_cmov_b32 s42, {hex(MIX2) if MIXO is None else 's43'}")
        if MIXO is not None:
            A("s_lshr_b32 s43, s2, 3")
            A("v_add_u32 v19, s43, v35")
        else:
            A("v_add_u32 v19, s51, v35")
        A("v_and_b32 v19, 15, v19")
        A("v_bfe_u32 v19, s42, v19, 1", "1: near for the store, 0: near for the load")
        A("v_cmp_ne_u32 vcc, 0, v19")
        A("s_and_b32 s42, s8, 0x1fffff")
        A("s_and_b32 s43, s12, 0x1fffff")
        A("v_mov_b32 v20, s42")
        A("v_mov_b32 v21, s43")
        A("v_cndmask_b32 v20, v20, v21, vcc", "buffer start inside its 2 MiB page")
        A("v_and_b32 v18, 15, v35")
        A(f"v_add_u32 v21, s{TAB}, v20")
        A("v_lshrrev_b32 v21, 21, v21")
        A("v_mad_u32_u24 v18, v18, 3, v21", "page of the window")
        A("v_lshrrev_b32 v21, 2, v18")
        A("v_min_u32 v21, 11, v21")
        A("v_mad_u32_u24 v19, v19, 12, v21", "bit of its group")
        def chk():
            A("s_lshl_b32 s42, s58, 12")
            A("s_or_b32 s42, s42, s57")
            A("s_and_b32 s42, s42, s56")
            A("s_andn2_b32 s42, 0x1fff, s42", "13 + 12 done bits and the tag")
            A("s_cbranch_scc0 L_mapok")
        A("s_waitcnt lgkmcnt(0)")
        chk()
        A("v_mov_b32 v26, 0")
        A("L_map:", "not complete yet: poll")
        A("buffer_load_dword v22, v26, s[16:19], 0 offen sc1")
        A("buffer_load_dword v23, v26, s[16:19], 0 offen offset:128 sc1")
        A("buffer_load_dwordx2 v[24:25], v26, s[16:19], 0 offen offset:192 sc1")
        A("s_add_u32 s45, s45, 1")
        A("s_waitcnt vmcnt(0)")
        for k in range(4):
            A(f"v_readfirstlane_b32 s{56+k}, v{22+k}")
        chk()
        A(f"s_cmp_lt_u32 s45, {SPIN}")
        A("s_cbranch_scc1 L_map")
        A("L_mapok:")
        stamp(1)
        A("s_and_b32 s46, s59, 0xffff", "tag of even pairs")
        A("s_lshr_b32 s52, s59, 16", "tag of odd pairs")
        A("s_and_b32 s42, s56, 0x10000000")
        A("s_or_b32 s57, s57, s42")
        A("s_lshr_b32 s57, s57, 16")
        A("s_lshl_b32 s57, s57, 12")
        A("s_bfe_u32 s42, s56, 0xc0010")
        A("s_or_b32 s57, s57, s42", "x groups, out groups, hand-off page")
        A("s_lshr_b32 s56, s56, 29", "XCC of workgroup 0")
        A("s_lshl_b32 s42, s57, 1", "majority of three neighbouring groups")
        A("s_lshr_b32 s43, s57, 2")
        A("s_and_b32 s42, s42, 0xffeffe")
        A("s_and_b32 s43, s43, 0x1001")
        A("s_or_b32 s42, s42, s43")
        A("s_lshr_b32 s43, s57, 1")
        A("s_lshl_b32 s48, s57, 2")
        A("s_and_b32 s43, s43, 0x7ff7ff")
        A("s_and_b32 s48, s48, 0x800800")
        A("s_or_b32 s43, s43, s48")
        A("s_and_b32 s48, s42, s43")
        A("s_or_b32 s42, s42, s43")
        A("s_bitset1_b32 s42, 24")
        A("s_and_b32 s57, s57, s42")
        A("s_or_b32 s57, s57, s48")
        A("s_add_u32 s42, s56, s2")
        A("s_lshr_b32 s42, s42, 2", "bit 0: expected die, always opposite for g and g^4")
        A("v_lshrrev_b32 v19, v19, s57")
        A("v_xor_b32 v18, s42, v18", "odd pages swap the dies")
        A("v_xor_b32 v19, v18, v19")
        A(f"s_mov_b32 exec_lo, {hex(0xffffffff & ~((1 << nstatic) - 1))}")
        A("v_lshl_add_u32 v34, v19, 13, v20")
        A("s_mov_b32 exec_lo, -1")
    for j in range(W):
        issue(j)
    nxt = W
    A("s_add_u32 s20, s30, 0x400000")
    A("s_addc_u32 s21, s31, 0")
    A("s_and_b32 s20, s20, 0xffe00000", "hand-off area: one 2 MiB page inside ws")
    A(f"s_mov_b32 s22, {hex(0x400000 if stamps else 0x100000)}"); A("s_mov_b32 s23, 0x20000")
    dbg_srd()
    A("s_mov_b32 s12, s26"); A("s_mov_b32 s13, s27")
    A(f"s_mov_b32 s14, {XB}"); A("s_mov_b32 s15, 0x20000")
    A("s_mov_b32 s45, 0", "bound on all polling")
    A("v_mov_b32 v34, s50")
    A("v_lshlrev_b32 v36, 4, v35")
    for i in range(8):
        A(f"v_mov_b32 v{S+i}, 0")
        A(f"v_mov_b32 v{M+i}, 0xff800000")
    A("s_mov_b32 s44, 0xffff0000")
    A(f"ds_write_b64 v{S}, v[{S}:{S+1}] offset:{L_FL}")
    groups = [(j, j + 1) for j in range(0, NL - 2, 2)] + [(NL - 2,), (NL - 1,)]
    guse = nstatic - W // 2
    for k, g in enumerate(groups):
        if k == len(groups) - 2:
            A("s_branch L_pageT", "one fetch brings nine lines of a 4 KiB page: the tail starts a page")
            A(".p2align 12")
            A("L_pageT:")
        if k in rbrk:
            A(f"s_branch L_pageR{k}")
            A(".p2align 12")
            A(f"L_pageR{k}:")
        A(f"s_waitcnt vmcnt({after(g[-1])})")
        if k == guse:
            map_use()
        for _ in g:
            if nxt < NL:
                issue(nxt); nxt += 1
        if k >= gW2:
            extra = 0
            while nxt < NL and nxt - g[-1] - 1 < W2 and extra < 2:
                issue(nxt); nxt += 1; extra += 1
        if k == rbar:
            A("s_barrier", "keeps the waves of the workgroup level")
        for gi, j in enumerate(g):
            for i in range(4):
                d, t = VD + 4 * j + i, T + 8 * gi + 2 * i
                if half == 2 and k > 0: continue
                A(f"v_lshlrev_b32 v{t}, 16, v{d}")
                if not half or k == 0: A(f"v_and_b32 v{t+1}, s44, v{d}")
        for gi, j in enumerate(g):
            for i in range(0 if half else 4):
                t = T + 8 * gi + 2 * i
                A(f"v_pk_add_f32 v[{S+2*i}:{S+2*i+1}], v[{S+2*i}:{S+2*i+1}], v[{t}:{t+1}]")
        for i in range(0 if half == 2 and k > 0 else 8):
            if len(g) == 2:
                A(f"v_max3_f32 v{M+i}, v{M+i}, v{T+i}, v{T+8+i}")
            else:
                A(f"v_max_f32 v{M+i}, v{M+i}, v{T+i}")
        if k == gsetup:
            assert k > guse
            A("v_and_b32 v37, 6, v35")
            A("v_lshrrev_b32 v38, 3, v35")
            A("v_lshl_add_u32 v37, v37, 2, v38")
            A("v_and_b32 v38, 1, v35")
            A("v_lshl_add_u32 v37, v37, 1, v38")
            A("s_mul_i32 s42, s37, 1536")
            A("s_lshl_b32 s43, s38, 9")
            A("s_add_u32 s42, s42, s43")
            A("v_lshl_add_u32 v37, v37, 3, s42", "LDS slot of this lane's channel; 16 bytes = channels c, c+8")
            A("s_mul_i32 s43, s36, 768")
            A("v_add_u32 v38, s43, v36")
            A("s_mul_i32 s48, s2, 1536")
            A("s_add_u32 s48, s48, s43")
            A(f"s_add_u32 s48, s48, {W_A}", "row half of waves 0,1")
    stamp(2)
    C("---- phase 2: reduce over lane bits 5,4,3 (one channel per lane is left), then over the 4 pixel groups")
    for i in range(4):
        A(f"v_permlane32_swap_b32 v{S+i}, v{S+i+4}")
    for i in range(4):
        A(f"v_permlane32_swap_b32 v{M+i}, v{M+i+4}")
    for i in range(2):
        A(f"v_pk_add_f32 v[{S+2*i}:{S+2*i+1}], v[{S+2*i}:{S+2*i+1}], v[{S+4+2*i}:{S+5+2*i}]")
    for i in range(4):
        A(f"v_max_f32 v{M+i}, v{M+i}, v{M+i+4}")
    for i in range(2):
        A(f"v_permlane16_swap_b32 v{S+i}, v{S+i+2}")
    for i in range(2):
        A(f"v_permlane16_swap_b32 v{M+i}, v{M+i+2}")
    A(f"v_pk_add_f32 v[{S}:{S+1}], v[{S}:{S+1}], v[{S+2}:{S+3}]")
    for i in range(2):
        A(f"v_max_f32 v{M+i}, v{M+i}, v{M+i+2}")
    A(f"v_add_f32_dpp v{T}, v{S}, v{S} row_ror:8 row_mask:0xf bank_mask:0x3")
    A(f"v_max_f32_dpp v{T+1}, v{M}, v{M} row_ror:8 row_mask:0xf bank_mask:0x3")
    A("s_nop 0")
    A(f"v_add_f32_dpp v{T}, v{S+1}, v{S+1} row_ror:8 row_mask:0xf bank_mask:0xc")
    A(f"v_max_f32_dpp v{T+1}, v{M+1}, v{M+1} row_ror:8 row_mask:0xf bank_mask:0xc")
    A(f"ds_write_b64 v37, v[{T}:{T+1}] offset:{L_RED}")
    A("s_cmp_ge_u32 s36, 2")
    A("s_waitcnt lgkmcnt(0)")
    A("s_barrier")
    stamp(3)
    A("s_cbranch_scc1 L_role2")
    C("waves 0,1: publish the workgroup's row")
    A("s_mov_b32 exec_hi, 0xffff")
    for q in range(4):
        A(f"ds_read_b128 v[{T+4*q}:{T+4*q+3}], v38 offset:{L_RED+q*1536}")
    A("s_waitcnt lgkmcnt(2)")
    A(f"v_add_f32 v{T}, v{T}, v{T+4}")
    A(f"v_add_f32 v{T+2}, v{T+2}, v{T+6}")
    A(f"v_max_f32 v{T+1}, v{T+1}, v{T+5}")
    A(f"v_max_f32 v{T+3}, v{T+3}, v{T+7}")
    A("s_waitcnt lgkmcnt(0)")
    A(f"v_add_f32 v{T+8}, v{T+8}, v{T+12}")
    A(f"v_add_f32 v{T+10}, v{T+10}, v{T+14}")
    A(f"v_max3_f32 v{T+1}, v{T+1}, v{T+9}, v{T+13}")
    A(f"v_max3_f32 v{T+3}, v{T+3}, v{T+11}, v{T+15}")
    A(f"v_add_f32 v{T}, v{T}, v{T+8}")
    A(f"v_add_f32 v{T+2}, v{T+2}, v{T+10}")
    if half:
        A(f"v_and_b32 v{T+1}, s44, v{T+1}")
        A(f"v_and_b32 v{T+3}, s44, v{T+3}")
    A(f"v_or_b32 v{T+1}, s46, v{T+1}", "a max is a bf16 value: its low half carries the tag")
    A(f"v_or_b32 v{T+3}, s52, v{T+3}")
    A(f"buffer_store_dwordx4 v[{T}:{T+3}], v36, s[20:23], s48 offen", "into L2; written through below")
    A("s_barrier")
    A("s_mov_b64 exec, -1")
    A("s_branch L_common")
    A("L_role2:")
    A("s_barrier", "the row leaves before any polling load is queued")
    A("s_lshr_b32 s47, s2, 3")
    A(f"s_sub_u32 s47, s47, {ry0}")
    A("s_cmp_lt_u32 s47, 12")
    A(f"s_cselect_b32 s42, {hex(redmask)}, 0")
    A("s_bitcmp1_b32 s42, s36")
    A("s_cbranch_scc0 L_role4")
    C("reducing workgroup: waves 2,3,8,9 watch column s47 of the group's 32 rows")
    A("v_mov_b32 v24, 0")
    A("v_mov_b32 v25, 1")
    A("v_lshrrev_b32 v2, 3, v35")
    A("v_mul_u32_u24 v20, 12288, v2")
    A("v_and_b32 v3, 0x70, v36")
    A("v_add_u32 v20, v20, v3")
    A("s_and_b32 s43, s2, 7")
    A("s_mul_i32 s42, s43, 1536")
    A("s_lshl_b32 s47, s47, 7")
    A("s_add_u32 s42, s42, s47")
    A(f"s_add_u32 s4, s42, {W_A}")
    for k in range(1, 4):
        A(f"s_add_u32 s{4+k}, s{3+k}, 98304")
    A("v_and_b32 v2, 3, v2", "8 copies of a group row, one per reading group, near its die")
    A("v_add_u32 v21, s56, v2")
    A("s_lshr_b32 s48, s57, 22")
    A("v_xor_b32 v21, s48, v21")
    A("v_and_b32 v21, 4, v21")
    A("v_lshlrev_b32 v21, 11, v21")
    A("v_lshl_add_u32 v21, v2, 15, v21")
    A("v_lshrrev_b32 v3, 1, v3")
    A("v_add_u32 v21, v21, v3")
    A("v_lshrrev_b32 v3, 5, v35")
    A("v_lshl_add_u32 v21, v3, 6, v21")
    A("v_xor_b32 v22, 0x22000, v21")
    A("s_bfe_u32 s43, s2, 0x10002")
    A(f"s_mul_i32 s43, s43, {16384 - 4 * 1536}")
    A("s_add_u32 s48, s42, s43")
    A("v_and_b32 v23, 16, v36")
    A("v_bfe_u32 v23, s59, v23, 16")
    A("L_pollA:")
    for k in range(4):
        A(f"buffer_load_dwordx4 v[{4+4*k}:{7+4*k}], v20, s[20:23], s{4+k} offen sc1")
    A("s_add_u32 s45, s45, 1")
    for k in range(4):
        A(f"s_waitcnt vmcnt({3-k})")
        if k == 0:
            A("v_xor_b32 v2, s46, v5")
        else:
            A(f"v_bitop3_b32 v2, v2, v{5+4*k}, s46 bitop3:0xf6")
        A(f"v_bitop3_b32 v2, v2, v{7+4*k}, s52 bitop3:0xf6", "a | (b ^ c)" if k == 0 else None)
    A("v_cmp_ne_u16 vcc, 0, v2")
    A("s_cbranch_vccz L_gotA")
    A(f"s_cmp_lt_u32 s45, {SPIN}")
    A("s_cbranch_scc1 L_pollA")
    A("L_gotA:")
    A("s_mov_b64 exec, 1")
    A(f"ds_wrxchg_rtn_b32 v26, v24, v25 offset:{L_FL+4}", "the first wave to see all rows publishes")
    A("s_mov_b64 exec, -1")
    A("v_add_f32 v4, v4, v8")
    A("v_add_f32 v6, v6, v10")
    A("v_add_f32 v12, v12, v16")
    A("v_add_f32 v14, v14, v18")
    for k in range(8):
        A(f"v_and_b32 v{5+2*k}, s44, v{5+2*k}")
    A("v_add_f32 v4, v4, v12")
    A("v_add_f32 v6, v6, v14")
    A("v_max3_f32 v5, v5, v9, v13")
    A("v_max3_f32 v7, v7, v11, v15")
    A("v_max_f32 v5, v5, v17")
    A("v_max_f32 v7, v7, v19")
    def fold345():
        A("v_permlane32_swap_b32 v4, v6", "pair picked by lane bit 5, reduced over lane bits 5,4,3")
        A("v_add_f32 v4, v4, v6")
        A("v_permlane32_swap_b32 v5, v7")
        A("v_mov_b32 v6, v4")
        A("v_max_f32 v5, v5, v7")
        A("v_mov_b32 v7, v5")
        A("v_permlane16_swap_b32 v4, v6")
        A("v_add_f32 v4, v4, v6")
        A("v_permlane16_swap_b32 v5, v7")
        A("v_max_f32 v5, v5, v7")
        A("v_add_f32_dpp v4, v4, v4 row_ror:8 row_mask:0xf bank_mask:0xf")
        A("s_nop 0")
        A("v_max_f32_dpp v5, v5, v5 row_ror:8 row_mask:0xf bank_mask:0xf")
    fold345()
    A("v_or_b32 v5, v23, v5")
    A("s_waitcnt lgkmcnt(0)")
    A("v_readfirstlane_b32 s42, v26")
    A("s_cmp_lg_u32 s42, 0")
    A("s_cbranch_scc1 L_common")
    A("buffer_store_dwordx2 v[4:5], v21, s[20:23], s48 offen sc1")
    A("buffer_store_dwordx2 v[4:5], v22, s[20:23], s48 offen sc1")
    A(f"ds_write_b32 v24, v25 offset:{L_FL}")
    A("s_branch L_common")
    A("L_role4:")
    A("s_sub_u32 s43, s36, 4")
    A("s_cmp_ge_u32 s43, 3")
    A("s_cbranch_scc1 L_common")
    C("waves 4..6 compute layer 1: park 24 data registers in LDS, fetch w1^T tiles into them")
    A("s_mul_i32 s42, s43, 6144")
    A(f"s_add_u32 s42, s42, {L_SP}")
    A("v_add_u32 v38, s42, v36")
    for k in range(6):
        A(f"ds_write_b128 v38, v[{VS+4*k}:{VS+4*k+3}] offset:{k*1024}")
    A("v_lshrrev_b32 v2, 4, v35")
    A("v_lshlrev_b32 v2, 3, v2")
    A("v_bfe_u32 v3, v35, 2, 2")
    A("v_add_u32 v2, v2, v3")
    A("v_mul_u32_u24 v2, 96, v2")
    A("v_and_b32 v3, 3, v35")
    A("v_lshl_add_u32 v2, v3, 3, v2")
    A("s_lshl_b32 s42, s43, 5")
    A("v_add_u32 v2, s42, v2")
    A("s_waitcnt lgkmcnt(0)")
    for k in range(6):
        A(f"ds_read_b64_tr_b16 v[{VS+4*k}:{VS+4*k+1}], v2 offset:{L_W1 + k*3072}")
        A(f"ds_read_b64_tr_b16 v[{VS+4*k+2}:{VS+4*k+3}], v2 offset:{L_W1 + k*3072 + 384}")
    A("v_and_b32 v2, 1, v35")
    A("v_mul_u32_u24 v2, 384, v2")
    A("v_lshrrev_b32 v3, 4, v35")
    A("v_lshl_add_u32 v39, v3, 4, v2")
    A("s_waitcnt lgkmcnt(0)")
    A("L_common:")
    C("every wave gathers column `wave` (16 channels) of the 8 group rows")
    A("v_lshrrev_b32 v2, 5, v35")
    A("v_bfe_u32 v3, v35, 3, 2")
    A("v_mul_u32_u24 v3, 1536, v3")
    A("v_lshl_add_u32 v8, v2, 14, v3")
    A("v_and_b32 v3, 0x70, v36")
    A("v_add_u32 v8, v8, v3")
    A("s_add_u32 s42, s56, s2")
    A("s_lshr_b32 s43, s57, 22")
    A("s_xor_b32 s42, s42, s43")
    A("s_and_b32 s42, s42, 4")
    A("s_lshl_b32 s42, s42, 11")
    A("s_and_b32 s43, s2, 7")
    A("s_lshl_b32 s43, s43, 15")
    A("s_add_u32 s42, s42, s43")
    A("s_lshl_b32 s43, s36, 7")
    A("s_add_u32 s47, s42, s43")
    A("v_lshrrev_b32 v3, 2, v3")
    A("v_lshl_add_u32 v9, v2, 1, v3")
    A("s_lshl_b32 s42, s36, 5")
    A("v_add_u32 v9, s42, v9")
    A("v_lshrrev_b32 v2, 2, v35")
    A("v_mul_u32_u24 v2, 384, v2")
    A("v_and_b32 v3, 3, v35")
    A("v_lshl_add_u32 v2, v3, 3, v2")
    A("v_add_u32 v2, s42, v2")
    for k in range(3):
        A(f"ds_read_b64_tr_b16 v[{W2F+2*k}:{W2F+2*k+1}], v2 offset:{L_W2 + k*6144}", "w2 tile of channels 16*wave.." if k == 0 else None)
    A("v_lshlrev_b32 v37, 3, v35")
    A("s_cmp_lt_u32 s36, 2")
    A(f"s_cselect_b32 s3, {NWT}, 0", "waves 0,1: rounds left before the row is written through")
    def wthrough(name):
        A("s_sub_u32 s3, s3, 1")
        A("s_cmp_eq_u32 s3, 0")
        A(f"s_cbranch_scc0 {name}")
        A("s_mov_b64 s[4:5], exec")
        A("s_mov_b32 exec_lo, -1")
        A("s_mov_b32 exec_hi, 0xffff")
        A(f"buffer_store_dwordx4 v[{T}:{T+3}], v36, s[20:23], s48 offen sc1")
        A("s_mov_b64 exec, s[4:5]")
        A(f"{name}:")
    A("s_lshr_b32 s42, s2, 3")
    A(f"s_sub_u32 s42, s42, {ry0}")
    A("s_cmp_ge_u32 s42, 12")
    A("s_cbranch_scc1 L_open")
    A("v_mov_b32 v2, 0")
    A("L_gate:", "reducing workgroup: leave the memory pipeline to the reducers until they have published")
    A(f"ds_read_b32 v3, v2 offset:{L_FL}")
    A("s_waitcnt lgkmcnt(0)")
    A("v_cmp_ne_u32 vcc, 0, v3")
    A("s_cbranch_vccnz L_open")
    wthrough("L_nowt0")
    A("s_add_u32 s45, s45, 1")
    A(f"s_cmp_lt_u32 s45, {SPIN}")
    A("s_cbranch_scc1 L_gate")
    A("s_branch L_open")
    A(".p2align 12")
    A("L_open:")
    A("buffer_load_dwordx4 v[4:7], v8, s[20:23], s47 offen sc1")
    A("L_pollB:")
    A("s_waitcnt vmcnt(0)")
    A("v_cmp_ne_u16 vcc, s46, v5")
    A("v_cmp_ne_u16 s[4:5], s52, v7")
    A("s_or_b64 vcc, vcc, s[4:5]")
    A("s_cbranch_scc0 L_gotB")
    A("s_wqm_b64 exec, vcc", "reload the quads that are not complete")
    A("buffer_load_dwordx4 v[4:7], v8, s[20:23], s47 offen sc1")
    wthrough("L_nowt1")
    A("s_add_u32 s45, s45, 1")
    A(f"s_cmp_lt_u32 s45, {SPIN}")
    A("s_cbranch_scc1 L_pollB")
    A("s_waitcnt vmcnt(0)")
    A("L_gotB:")
    A("s_mov_b64 exec, -1")
    A("v_and_b32 v5, s44, v5")
    A("v_and_b32 v7, s44, v7")
    fold345()
    A("v_mul_f32 v4, 0x36800000, v4", "mean = sum / 262144")
    A("v_cvt_pk_bf16_f32 v4, v4, v5")
    A(f"ds_write_b16 v9, v4 offset:{L_G}")
    A(f"ds_write_b16_d16_hi v9, v4 offset:{L_G+384}")
    A("s_cmp_gt_i32 s3, 0")
    A("s_cbranch_scc0 L_nowt2")
    A("s_mov_b32 exec_hi, 0xffff")
    A(f"buffer_store_dwordx4 v[{T}:{T+3}], v36, s[20:23], s48 offen sc1", "a reducer on another die may still wait for the row")
    A("s_mov_b32 exec_hi, -1")
    A("L_nowt2:")
    A("s_sub_u32 s42, s36, 4")
    A("s_cmp_ge_u32 s42, 3")
    A("s_waitcnt lgkmcnt(0)")
    A("s_barrier")
    stamp(4)
    C("---- phase 3: h = relu([mean; max] @ w1), columns alternate mean / max")
    A("s_cbranch_scc1 L_l2")
    for k in range(6):
        A(f"ds_read_b128 v[{BF+4*k}:{BF+4*k+3}], v39 offset:{L_G + k*64}")
    A("s_lshl_b32 s42, s42, 9")
    A("v_add_u32 v36, s42, v37")
    A("s_mov_b32 s43, 0x7f800000")
    for k in range(6):
        A(f"s_waitcnt lgkmcnt({5-k})")
        c = "0" if k == 0 else "v[0:3]"
        A(f"v_mfma_f32_16x16x32_bf16 v[0:3], v[{VS+4*k}:{VS+4*k+3}], v[{BF+4*k}:{BF+4*k+3}], {c}")
    A("s_nop 7")
    for i in range(4):
        A(f"v_mul_f32_e64 v{4+i}, v{i}, s43 clamp", "clamp(h * inf) = (h > 0)" if i == 0 else None)
    A("v_pk_mul_f32 v[0:1], v[0:1], v[4:5]")
    A("v_pk_mul_f32 v[2:3], v[2:3], v[6:7]")
    A("v_cvt_pk_bf16_f32 v4, v0, v1")
    A("v_cvt_pk_bf16_f32 v5, v2, v3")
    A(f"ds_write_b64 v36, v[4:5] offset:{L_H}")
    A("L_l2:")
    lane_offsets()
    A("s_waitcnt lgkmcnt(0)")
    A("s_barrier")
    C("scale = sigmoid(h_mean @ w2 + h_max @ w2), 16 channels per wave")
    for k in range(3):
        A(f"ds_read_b64 v[{4+2*k}:{5+2*k}], v37 offset:{L_H + k*512}")
    A("v_and_b32 v2, 15, v35")
    A("s_lshl_b32 s42, s36, 6")
    A("v_lshl_add_u32 v36, v2, 2, s42")
    A("v_and_b32 v2, 7, v35")
    A("s_lshl_b32 s42, s38, 8")
    A("v_lshl_add_u32 v39, v2, 5, s42")
    A("s_mov_b32 s43, 0xbfb8aa3b", "-log2(e)")
    if wdot:
        A("v_bfe_i32 v3, v35, 0, 1")
        A("v_xor_b32 v3, 0xffff, v3", "even channel: low half, odd channel: high half")
    for k in range(3):
        A(f"s_waitcnt lgkmcnt({2-k})")
        c = "0" if k == 0 else "v[12:15]"
        A(f"v_mfma_f32_16x16x16_bf16 v[12:15], v[{4+2*k}:{5+2*k}], v[{W2F+2*k}:{W2F+2*k+1}], {c}")
    A("s_nop 7")
    A("v_cvt_pk_bf16_f32 v12, v12, v13")
    A("v_lshlrev_b32 v13, 16, v12")
    A("v_and_b32 v12, s44, v12")
    A("v_add_f32 v12, v12, v13")
    A("v_cvt_pk_bf16_f32 v12, 0, v12")
    A("v_mul_f32 v12, s43, v12")
    A("v_exp_f32 v12, v12")
    A("s_nop 0")
    A("v_add_f32 v12, 1.0, v12")
    A("v_rcp_f32 v12, v12")
    A("s_nop 0")
    if wdot:
        A("v_cvt_pk_bf16_f32 v12, v12, v12")
        A("v_and_b32 v12, v3, v12", "(scale, 0) or (0, scale)")
    else:
        A("v_cvt_pk_bf16_f32 v12, 0, v12")
    A(f"ds_write_b32 v36, v12 offset:{L_SC}")
    A("s_waitcnt lgkmcnt(0)")
    A("s_barrier")
    C("---- phase 4: scale the registers and store them")
    A(f"ds_read_b128 v[{SCR}:{SCR+3}], v39 offset:{L_SC}")
    A(f"ds_read_b128 v[{SCR+4}:{SCR+7}], v39 offset:{L_SC+16}")
    stamp(5)
    dyn = list(range(nstatic, 16))
    steps = []
    for k in range(nstatic):
        part = dyn[k * len(dyn) // nstatic:(k + 1) * len(dyn) // nstatic]
        steps += part[:1] + [k] + part[1:]
    order = [2 * i + h for i in steps for h in (0, 1)]
    if fine:
        assert sadr
        st = list(range(2 * nstatic))
        order = []
        for k, i in enumerate(dyn):
            order += [2 * i, 2 * i + 1]
            take = (k + 1) * 2 * nstatic // (len(dyn) - fine + 1) - k * 2 * nstatic // (len(dyn) - fine + 1)
            for _ in range(take):
                if st: order.append(st.pop(0))
    assert sorted(order) == list(range(NL)) and min(order.index(j) for j in range(NL - 6, NL)) == order.index(NL - 6) > 1
    for n, j in enumerate(order):
        tb, i2, h = T2 + 8 * (n % 2), j >> 1, j & 1
        if n in brk:
            A(f"s_branch L_pageW{n}", "the stores do not fit one code page: next page")
            A(".p2align 12")
            A(f"L_pageW{n}:")
        if j == NL - 6:
            A("s_waitcnt lgkmcnt(0)")
        if n and n % wbar == 0:
            A("s_barrier", "the waves store in step" if n == wbar else None)
        fixed = sadr and i2 < nstatic
        ar = (26 if fixed else 28) + h
        need = not (fixed and i2 > 0)
        if (h == 0 or (fine and j == 1)) and need:
            A(f"v_readlane_b32 s50, v34, {i2}")
        if wdot:
            if n == 0:
                A("s_nop 1")
                addr(ar, h)
                A("s_waitcnt lgkmcnt(0)")
            for i in range(8):
                A(f"v_dot2_f32_bf16 v{tb+i}, v{VD+4*j+i//2}, v{SCR+i}, 0", "x * scale, exact in f32" if n == 0 and i == 0 else None)
            if n and need: addr(ar, h)
        else:
            for i in range(4):
                d = VD + 4 * j + i
                A(f"v_lshlrev_b32 v{tb+2*i}, 16, v{d}")
                A(f"v_and_b32 v{tb+2*i+1}, s44, v{d}")
            if need: addr(ar, h)
            if n == 0:
                A("s_waitcnt lgkmcnt(0)")
            for i in range(4):
                A(f"v_pk_mul_f32 v[{tb+2*i}:{tb+2*i+1}], v[{tb+2*i}:{tb+2*i+1}], v[{SCR+2*i}:{SCR+2*i+1}]")
        for i in range(4):
            A(f"v_cvt_pk_bf16_f32 v{VD+4*j+i}, v{tb+2*i}, v{tb+2*i+1}")
        A(f"buffer_store_dwordx4 v[{VD+4*j}:{VD+4*j+3}], v{ar}, s[12:15], s{TAB+i2} offen sc1")
        if n == 0:
            A("s_sub_u32 s42, s36, 4")
            A("s_cmp_ge_u32 s42, 3")
            A("s_cbranch_scc1 L_noreload")
            for k in range(6):
                A(f"ds_read_b128 v[{VS+4*k}:{VS+4*k+3}], v38 offset:{k*1024}", "parked registers back" if k == 0 else None)
            A("L_noreload:")
    if stamps:
        stamp(6)
        A("s_waitcnt vmcnt(0)")
        stamp(7)
        A("s_waitcnt lgkmcnt(0)")
        A("s_mov_b64 exec, 1")
        if diag2:
            A("s_or_b32 s42, s2, s36")
            A("s_cmp_lg_u32 s42, 0")
            A("s_cbranch_scc1 L_end")
            A("L_dq1:")
            A("s_memrealtime s[78:79]")
            A("s_waitcnt lgkmcnt(0)")
            A("s_sub_u32 s43, s78, s60")
            A("s_cmp_lt_u32 s43, 6000")
            A("s_cbranch_scc1 L_dq1")
            A("v_mov_b32 v1, 0")
            for nm, srd, dst in (("x", 8, 62), ("o", 12, 64)):
                A(f"s_mov_b64 s[{dst}:{dst+1}], 0")
                A("s_mov_b32 s3, 0")
                A(f"L_dq{nm}:")
                A("s_mov_b32 s47, 0")
                for rep in range(3):
                    A("s_lshl_b32 s42, s3, 21")
                    A(f"s_add_u32 s42, s42, {0x100000 + rep*0x14100}")
                    A(f"s_and_b32 s43, s{srd}, 0x3fff")
                    A("s_sub_u32 s42, s42, s43")
                    A("s_add_u32 s43, s42, 8192")
                    A(f"buffer_load_dword v3, v1, s[{srd}:{srd+3}], s42 offen offset:128 nt")
                    A(f"buffer_load_dword v4, v1, s[{srd}:{srd+3}], s43 offen offset:128 nt")
                    A("s_waitcnt vmcnt(1)")
                    A("s_memtime s[66:67]")
                    A("s_waitcnt vmcnt(0)")
                    A("s_memtime s[68:69]")
                    A("s_waitcnt lgkmcnt(0)")
                    A("s_sub_u32 s42, s68, s66")
                    A("s_cmpk_le_u32 s42, 80")
                    A("s_addc_u32 s47, s47, 0")
                A("s_lshr_b32 s47, s47, 1")
                A("s_xor_b32 s47, s47, s3")
                A("s_and_b32 s70, s47, 1")
                A("s_mov_b32 s71, 0")
                A("s_lshl_b64 s[70:71], s[70:71], s3")
                A(f"s_or_b64 s[{dst}:{dst+1}], s[{dst}:{dst+1}], s[70:71]")
                A("s_add_u32 s3, s3, 1")
                A("s_cmp_lt_u32 s3, 48")
                A(f"s_cbranch_scc1 L_dq{nm}")
            for k in range(4):
                A(f"v_mov_b32 v{4+k}, s{62+k}")
            A("buffer_store_dwordx4 v[4:7], v1, s[16:19], 0 offen offset:16")
            for dst, r in ((62, 42), (64, 43)):
                A(f"s_lshr_b64 s[70:71], s[{dst}:{dst+1}], 1")
                A(f"s_xor_b64 s[70:71], s[70:71], s[{dst}:{dst+1}]")
                A("s_and_b32 s71, s71, 0x7fff")
                A(f"s_bcnt1_i32_b64 s{r}, s[70:71]")
            A("s_min_u32 s42, s42, 19")
            A("s_mul_i32 s43, s43, 20")
            A("s_add_u32 s42, s42, s43")
            A("s_mul_i32 s42, s42, 200")
            A("s_add_u32 s42, s42, 30000")
            A("s_min_u32 s42, s42, 290000")
            A("L_dq4:")
            A("s_memrealtime s[78:79]")
            A("s_waitcnt lgkmcnt(0)")
            A("s_sub_u32 s43, s78, s60")
            A("s_cmp_lt_u32 s43, s42")
            A("s_cbranch_scc1 L_dq4")
            A("s_branch L_end")
        if diag:
            a, amax, b, bmax = diag
            A("s_barrier")
            A("s_cmp_lg_u32 s36, 11")
            A("s_cbranch_scc1 L_end")
            A("s_memrealtime s[74:75]")
            A("s_waitcnt lgkmcnt(0)")
            A("v_mov_b32 v9, 64")
            A(("v_mov_b32" if amax else "v_not_b32") + f" v10, s{60+2*a}")
            A(("v_mov_b32" if bmax else "v_not_b32") + f" v11, s{60+2*b}")
            A("buffer_atomic_umax v10, v9, s[16:19], 0 offen sc1")
            A("buffer_atomic_umax v11, v9, s[16:19], 0 offen offset:4 sc1")
            A("s_waitcnt vmcnt(0)")
            A("s_cmp_lg_u32 s2, 0")
            A("s_cbranch_scc1 L_end")
            A("L_dg1:")
            A("s_memrealtime s[78:79]")
            A("s_waitcnt lgkmcnt(0)")
            A("s_sub_u32 s43, s78, s60")
            A("s_cmp_lt_u32 s43, 10000")
            A("s_cbranch_scc1 L_dg1")
            A("buffer_load_dwordx2 v[10:11], v9, s[16:19], 0 offen sc1")
            A("s_waitcnt vmcnt(0)")
            A("v_readfirstlane_b32 s42, v10")
            A("v_readfirstlane_b32 s43, v11")
            if not amax: A("s_not_b32 s42, s42")
            if not bmax: A("s_not_b32 s43, s43")
            A("s_sub_u32 s42, s42, s43")
            A("s_mul_i32 s42, s42, 10")
            A("s_add_u32 s42, s42, 30000")
            A("s_min_u32 s42, s42, 200000")
            A("L_dg4:")
            A("s_memrealtime s[78:79]")
            A("s_waitcnt lgkmcnt(0)")
            A("s_sub_u32 s43, s78, s60")
            A("s_cmp_lt_u32 s43, s42")
            A("s_cbranch_scc1 L_dg4")
            A("s_branch L_end")
        A("s_mul_i32 s3, s2, 12")
        A("s_add_u32 s3, s3, s36")
        A("s_lshl_b32 s3, s3, 5")
        A(f"s_add_u32 s3, s3, {1 << 20}")
        A("v_mov_b32 v1, 0")
        for i in range(8):
            A(f"v_mov_b32 v{4+i}, s{60+2*i}")
        A("buffer_store_dwordx4 v[4:7], v1, s[20:23], s3 offen")
        A("buffer_store_dwordx4 v[8:11], v1, s[20:23], s3 offen offset:16")
    if diag3:
        A("s_or_b32 s42, s2, s36")
        A("s_cmp_lg_u32 s42, 0")
        A("s_cbranch_scc1 L_end")
        A("v_mov_b32 v1, 0")
        A("v_mov_b32 v2, s57")
        A("s_mov_b64 exec, 1")
        A("buffer_store_dword v2, v1, s[16:19], 0 offen offset:4 sc1")
        A("s_cmp_lg_u32 s56, 0")
        A("s_cbranch_scc0 L_end")
        A("s_memrealtime s[60:61]")
        A("s_waitcnt lgkmcnt(0)")
        A("s_branch L_dq1")
    A("L_end:")
    A("s_endpgm")
    if diag3:
        A("L_extra:")
        A("v_readfirstlane_b32 s36, v0")
        A("s_sub_u32 s42, s2, 256")
        A("s_or_b32 s42, s42, s36")
        A("s_cmp_lg_u32 s42, 0")
        A("s_cbranch_scc1 L_end")
        A("s_memrealtime s[60:61]")
        A("s_waitcnt lgkmcnt(0)")
        A("s_mov_b32 s8, s4"); A("s_mov_b32 s9, s5"); A(f"s_mov_b32 s10, {XB}"); A("s_mov_b32 s11, 0x20000")
        A("s_mov_b32 s12, s26"); A("s_mov_b32 s13, s27"); A(f"s_mov_b32 s14, {XB}"); A("s_mov_b32 s15, 0x20000")
        dbg_srd()
        A("s_mov_b64 exec, 1")
        A("L_dq1:")
        A("s_memrealtime s[78:79]")
        A("s_waitcnt lgkmcnt(0)")
        A("s_sub_u32 s43, s78, s60")
        A("s_cmp_lt_u32 s43, 5000")
        A("s_cbranch_scc1 L_dq1")
        A("v_mov_b32 v1, 0")
        for nm, srd, dst, o0 in (("x", 8, 62, 0x100000), ("o", 12, 64, 0x100000), ("p", 12, 72, 0x40000), ("q", 12, 74, 0x1a0000)):
            A(f"s_mov_b64 s[{dst}:{dst+1}], 0")
            A("s_mov_b32 s3, 0")
            A(f"L_dq{nm}:")
            A("s_mov_b32 s47, 0")
            for rep in range(3):
                A("s_lshl_b32 s42, s3, 21")
                A(f"s_add_u32 s42, s42, {o0 + rep*0x500}")
                A(f"s_and_b32 s43, s{srd}, 0x3fff")
                A("s_sub_u32 s42, s42, s43")
                A("s_add_u32 s43, s42, 8192")
                A(f"buffer_load_dword v3, v1, s[{srd}:{srd+3}], s42 offen offset:128 nt")
                A(f"buffer_load_dword v4, v1, s[{srd}:{srd+3}], s43 offen offset:128 nt")
                A("s_waitcnt vmcnt(1)")
                A("s_memtime s[66:67]")
                A("s_waitcnt vmcnt(0)")
                A("s_memtime s[68:69]")
                A("s_waitcnt lgkmcnt(0)")
                A("s_sub_u32 s42, s68, s66")
                A("s_cmpk_le_u32 s42, 80")
                A("s_addc_u32 s47, s47, 0")
            A("s_lshr_b32 s47, s47, 1")
            A("s_xor_b32 s47, s47, s3")
            A("s_and_b32 s70, s47, 1")
            A("s_mov_b32 s71, 0")
            A("s_lshl_b64 s[70:71], s[70:71], s3")
            A(f"s_or_b64 s[{dst}:{dst+1}], s[{dst}:{dst+1}], s[70:71]")
            A("s_add_u32 s3, s3, 1")
            A("s_cmp_lt_u32 s3, 48")
            A(f"s_cbranch_scc1 L_dq{nm}")
        for k in range(4):
            A(f"v_mov_b32 v{4+k}, s{62+k}")
            A(f"v_mov_b32 v{8+k}, s{72+k}")
        A("buffer_store_dwordx4 v[4:7], v1, s[16:19], 0 offen offset:16 sc1")
        A("buffer_store_dwordx4 v[8:11], v1, s[16:19], 0 offen offset:32 sc1")
        A("v_mov_b32 v4, s8"); A("v_mov_b32 v5, s12")
        A("buffer_store_dwordx2 v[4:5], v1, s[16:19], 0 offen offset:48 sc1")
        A("s_endpgm")
    A('.section .rodata,"a"')
    A(".p2align 6")
    A(".amdhsa_kernel standalone__channel_attn_cbam__vision_kernel")
    for d in ("next_free_vgpr 168", "next_free_sgpr 96", "accum_offset 168", "group_segment_fixed_size 0", "kernarg_size 48",
              "user_sgpr_count 2", "user_sgpr_kernarg_segment_ptr 1", "system_sgpr_workgroup_id_x 1", "float_denorm_mode_32 3"):
        A("  .amdhsa_" + d)
    A(".end_amdhsa_kernel")
    out = [HEADER.rstrip(), f"; @launch grid=(256,1,1) block=({NW*64},1,1) lds={L_END}"]
    for s, c in L:
        if s.startswith(("s_", "v_", "ds_", "buffer_", "global_")):
            s = "    " + s
        if not s:
            s = "    ; " + c
        elif c:
            s = f"{s:64s} ; {c}"
        out.append(s)
    return "\n".join(out) + "\n"

if __name__ == "__main__":
    cfg = json.loads(sys.argv[1]) if len(sys.argv) > 1 else {}
    sys.stdout.write(gen(**cfg))
```
